```python
import torch

def _softmax(x, axis=-1):
    return torch.softmax(x, dim=axis)

def _gelu(x):
    return torch.nn.functional.gelu(x, approximate='tanh')

def _silu(x):
    return torch.nn.functional.silu(x)

def _sigmoid(x):
    return torch.sigmoid(x)

def _layernorm(x, axis=-1, eps=1e-05):
    m = x.mean(dim=axis, keepdim=True)
    v = x.var(dim=axis, keepdim=True, unbiased=False)
    return (x - m) / torch.sqrt(v + eps)

def _scatter_add(tgt, idx, src, axis=0):
    return tgt.clone().index_add_(axis, idx, src)

def _segment_sum(src, seg, n):
    out = torch.zeros((n,) + src.shape[1:], dtype=src.dtype)
    return out.index_add_(0, seg, src)

def _pad(x, pw):
    flat = tuple((v for pair in reversed(pw) for v in pair))
    return torch.nn.functional.pad(x, flat)
kernel_name = 'gated_mix__ssm_conv_s4d__mixer_gmlp__prompt'

def setup_inputs():

    _w = lambda a: (lambda t: t.to(torch.bfloat16) if t.is_floating_point() else t)(torch.as_tensor(a))

    def _A_setup():
        Bsz, L, D, N = (1, 2048, 448, 256)
        return {'u': _w((lambda *s: torch.randn(*s, dtype=torch.bfloat16) * 0.05)(Bsz, L, D)), 'log_A_real': _w((lambda *s: torch.randn(*s, dtype=torch.bfloat16) * 3.2)(D, N) * 0.5), 'A_imag': _w((lambda *s: torch.randn(*s, dtype=torch.bfloat16) * 0.05)(D, N) * 3.14), 'C_real': _w((lambda *s: torch.randn(*s, dtype=torch.bfloat16) * 1.6)(D, N) / N ** 0.5), 'C_imag': _w((lambda *s: torch.randn(*s, dtype=torch.bfloat16) * 1.6)(D, N) / N ** 0.5), 'log_dt': _w((lambda *s: torch.randn(*s, dtype=torch.bfloat16) * 0.05)(D) * 0.5 - 4.0), 'D_skip': _w((lambda *s: torch.randn(*s, dtype=torch.bfloat16) * 0.2)(D))}
    _A_in = _A_setup()

    def _B_setup():
        B, S, D, F = (1, 2048, 448, 1792)
        Fh = F // 2
        return {'x': _w((lambda *s: torch.randn(*s, dtype=torch.bfloat16) * 0.05)(B, S, D)), 'w_in': _w((lambda *s: torch.randn(*s, dtype=torch.bfloat16) * 0.2)(D, 2 * Fh)), 'w_sp': _w(0.01 * (lambda *s: torch.randn(*s, dtype=torch.bfloat16) * 0.2)(S, S)), 'b_sp': _w(1.0 + 0.01 * (lambda *s: torch.randn(*s, dtype=torch.bfloat16) * 0.05)(S)), 'w_out': _w((lambda *s: torch.randn(*s, dtype=torch.bfloat16) * 0.05)(Fh, D))}
    _B_in = _B_setup()
    return {'A_u': _A_in['u'], 'A_log_A_real': _A_in['log_A_real'], 'A_A_imag': _A_in['A_imag'], 'A_C_real': _A_in['C_real'], 'A_C_imag': _A_in['C_imag'], 'A_log_dt': _A_in['log_dt'], 'A_D_skip': _A_in['D_skip'], 'B_x': _B_in['x'], 'B_w_in': _B_in['w_in'], 'B_w_sp': _B_in['w_sp'], 'B_b_sp': _B_in['b_sp'], 'B_w_out': _B_in['w_out'], 'gate_w': _w((lambda *s: torch.randn(*s, dtype=torch.bfloat16) * 0.05)(448) * 16.0)}

def reference(A_u, A_log_A_real, A_A_imag, A_C_real, A_C_imag, A_log_dt, A_D_skip, B_x, B_w_in, B_w_sp, B_b_sp, B_w_out, gate_w):

    def _A_ref(u, log_A_real, A_imag, C_real, C_imag, log_dt, D_skip):
        L = u.shape[1]
        dt = torch.exp(log_dt)
        A = -torch.exp(log_A_real) + 1j * A_imag
        C = (C_real + 1j * C_imag) * dt[:, None]
        pos = (lambda x, dt: x.to(dt))(torch.arange(L), log_dt.dtype)
        P = torch.exp((A * dt[:, None])[:, :, None] * pos[None, None, :])
        K = 2.0 * torch.einsum('dn,dnl->dl', C, P).real
        L2 = 2 * L
        u_t = (lambda x, *d: x.permute(*d))(u, 0, 2, 1)
        Kf = (lambda x, *a, **k: torch.fft.rfft(x.float(), *a, **k))(K, L2)
        Uf = (lambda x, *a, **k: torch.fft.rfft(x.float(), *a, **k))(u_t, L2)
        y = (lambda x, *a, **k: torch.fft.irfft(x, *a, **k).to(torch.bfloat16))(Uf * Kf[None, :, :], L2)[:, :, :L]
        y = (lambda x, *d: x.permute(*d))(y, 0, 2, 1)
        return y + u * D_skip[None, None, :]

    def _B_ref(x, w_in, w_sp, b_sp, w_out):
        B, S, D = x.shape
        F = w_in.shape[-1]
        Fh = F // 2
        z = _gelu(torch.einsum('bsd,df->bsf', x, w_in))
        z1 = z[..., :Fh].clone()
        z2 = _layernorm(z[..., Fh:], axis=-1)
        g = torch.einsum('ts,bsf->btf', w_sp, z2) + b_sp[None, :, None]
        return torch.einsum('bsf,fd->bsd', z1 * g, w_out)
    x = A_u
    g = _sigmoid((x * gate_w).sum(-1, keepdims=True))
    a = _A_ref(x, A_log_A_real, A_A_imag, A_C_real, A_C_imag, A_log_dt, A_D_skip)
    b = _B_ref(x, B_w_in, B_w_sp, B_b_sp, B_w_out)
    return g * a + (1 - g) * b
```

```python
import re

def _regs(tok):
    tok = tok.strip()
    tok = re.sub(r'^-|^\||\|$', '', tok)
    m = re.fullmatch(r'abs\((.*)\)', tok)
    if m: tok = m.group(1)
    m = re.fullmatch(r'([vas])\[(\d+):(\d+)\]', tok)
    if m: return {(m.group(1), i) for i in range(int(m.group(2)), int(m.group(3)) + 1)}
    m = re.fullmatch(r'([vas])(\d+)', tok)
    if m: return {(m.group(1), int(m.group(2)))}
    if tok == 'vcc': return {('s', 'vcc')}
    if tok == 'exec': return {('s', 'exec')}
    if tok == 'm0': return {('s', 'm0')}
    return set()

TRANS = ('v_exp_f32', 'v_log_f32', 'v_rcp_f32', 'v_rsq_f32', 'v_sqrt_f32', 'v_sin_f32', 'v_cos_f32')

class Ins:
    def __init__(self, line):
        self.line = line
        s = line.split(';')[0].strip()
        self.op = s.split()[0]
        rest = s[len(self.op):].strip()
        ops = []; cur = ''; d = 0
        for ch in rest:
            if ch == '[': d += 1
            if ch == ']': d -= 1
            if ch == ',' and d == 0: ops.append(cur.strip()); cur = ''
            else: cur += ch
        if cur.strip(): ops.append(cur.strip())
        self.mods = ''
        if ops:
            last = ops[-1].split(None, 1)
            ops[-1] = last[0]
            self.mods = last[1] if len(last) > 1 else ''
        self.ops = ops
        op = self.op
        self.kind = 'other'
        self.dst = set(); self.src = set(); self.srcC = set(); self.passes = 0
        R = [_regs(o) for o in ops]
        allr = lambda xs: set().union(*xs) if xs else set()
        if op.startswith('v_mfma'):
            self.kind = 'mfma'
            self.dst = R[0]; self.srcAB = R[1] | R[2]; self.srcC = R[3]; self.src = self.srcAB | self.srcC
            self.passes = 8 if '32x32' in op else 4
        elif op.startswith('v_'):
            self.kind = 'valu'
            base = re.sub(r'_(e32|e64|dpp|sdwa)$', '', op)
            self.trans = base in TRANS
            self.dpp = op.endswith('_dpp') or 'row_' in self.mods or 'quad_perm' in self.mods or 'wave_' in self.mods
            if base.startswith('v_permlane') and 'swap' in base:
                self.dst = R[0] | R[1]; self.src = R[0] | R[1]
            elif base in ('v_add_co_u32', 'v_sub_co_u32', 'v_addc_co_u32', 'v_subb_co_u32', 'v_div_scale_f32'):
                self.dst = R[0] | R[1]; self.src = allr(R[2:])
            else:
                self.dst = R[0]; self.src = allr(R[1:])
                if base.startswith(('v_fmac', 'v_pk_fmac', 'v_dot2c', 'v_writelane')) or self.dpp:
                    self.src |= R[0]
                if base.startswith('v_cndmask') and len(ops) == 3: self.src |= {('s', 'vcc')}
            self.base = base
        elif op.startswith('ds_'):
            self.kind = 'ds'
            if op.startswith(('ds_read', 'ds_bpermute', 'ds_permute', 'ds_swizzle')) or '_rtn' in op:
                self.dst = R[0]; self.src = allr(R[1:])
            else:
                self.src = allr(R)
        elif op.startswith(('buffer_', 'global_')):
            self.kind = 'vmem'
            self.lds = ' lds' in (' ' + self.mods) or 'load_lds' in op
            if 'load' in op and not self.lds:
                self.dst = R[0]; self.src = allr(R[1:])
            else:
                self.src = allr(R)
                if 'atomic' in op and 'sc0' in self.mods: self.dst = R[0]
            self.data = set()
            if 'store' in op and re.search(r'x[34]$', op):
                self.data = R[0] if op.startswith('buffer_') else R[1]
        elif op.startswith('s_'):
            self.kind = 'salu'
            if op.startswith(('s_cmp', 's_cbranch', 's_branch', 's_waitcnt', 's_barrier', 's_nop', 's_endpgm', 's_setprio', 's_sleep')):
                self.src = allr(R)
            else:
                self.dst = R[0] if R else set(); self.src = allr(R[1:])
                if 'saveexec' in op: self.dst |= {('s', 'exec')}
        self.states = 1
        if op == 's_nop': self.states = int(ops[0], 0) + 1

def need(p, c):
    n = 0
    vd = {r for r in p.dst if r[0] in 'va'}
    sd = {r for r in p.dst if r[0] == 's'}
    if p.kind == 'valu':
        if c.kind == 'mfma' and vd & c.src: n = max(n, 2)
        if c.kind == 'valu':
            if c.dpp and vd & c.src: n = max(n, 2)
            if c.base.startswith('v_permlane') and vd & c.src: n = max(n, 2)
            if c.base in ('v_readlane_b32', 'v_readfirstlane_b32') and vd & c.src: n = max(n, 1)
            if sd & c.src: n = max(n, 4 if c.base in ('v_readlane_b32', 'v_writelane_b32') else 2)
            if ('s', 'exec') in sd: n = max(n, 5)
        if p.trans and vd & c.src: n = max(n, 1)
        if c.kind == 'vmem' and sd & c.src: n = max(n, 5)
        if c.kind == 'mfma' and ('s', 'exec') in sd: n = max(n, 4)
        if ('sdwa' in p.op or 'op_sel' in p.mods and not p.op.startswith('v_pk_')) and vd & (c.src | c.dst): n = max(n, 1)
    if p.kind == 'mfma':
        big = 12 if p.passes == 8 else 8
        if c.kind == 'mfma':
            if p.dst & c.srcAB: n = max(n, big)
            if p.dst & c.srcC and not (p.dst == c.srcC and p.passes == c.passes): n = max(n, big - 2)
            if p.dst & c.dst and not (p.dst == c.srcC): n = max(n, big - 2)
        elif p.dst & (c.src | c.dst): n = max(n, big)
        if c.kind == 'valu' and p.srcC & c.dst: n = max(n, 7 if p.passes == 8 else 3)
    if p.kind == 'salu' and ('s', 'm0') in p.dst and c.kind == 'vmem' and c.lds: n = max(n, 1)
    if p.kind == 'vmem' and p.data and p.data & c.dst: n = max(n, 2)
    return n

def pad(lines, verbose=False):
    out = []
    nadd = 0
    def dist_needed(hist, c):
        worst = 0; d = 0
        for p in reversed(hist):
            if p is None: continue
            k = need(p, c) - d
            worst = max(worst, k)
            d += p.states
            if d > 20: break
        return worst
    hist = []
    labels = {}
    for l in lines:
        if l.endswith(':'):
            labels[l[:-1]] = len(out); out.append((l, None)); continue
        if l.startswith('.') or l.startswith(';'):
            out.append((l, None)); continue
        c = Ins(l)
        k = dist_needed(hist, c)
        if k > 0:
            t = f's_nop {k-1}'; i2 = Ins(t); out.append((t, i2)); hist.append(i2); nadd += 1
        out.append((l, c)); hist.append(c)
        if c.op.startswith(('s_cbranch', 's_branch')) and c.ops[0] in labels:
            h2 = list(hist)
            cnt = 0
            for t, i3 in out[labels[c.ops[0]]:]:
                if i3 is None: continue
                if dist_needed(h2, i3) > 0:
                    raise RuntimeError(f'back-edge hazard at {c.line} -> {t}')
                h2.append(i3); cnt += i3.states
                if cnt > 20: break
    return [t for t, _ in out], nadd

def check_fwd_branches(lines):
    idx = {l[:-1]: i for i, l in enumerate(lines) if l.endswith(':')}
    ins = [None if (l.endswith(':') or l.startswith(('.', ';'))) else Ins(l) for l in lines]
    for i, c in enumerate(ins):
        if c is None or not c.op.startswith(('s_cbranch', 's_branch')): continue
        t = idx.get(c.ops[0])
        if t is None or t < i: continue
        hist = [x for x in ins[max(0, i - 30):i + 1] if x is not None]
        cnt = 0
        for j in range(t, len(lines)):
            x = ins[j]
            if x is None: continue
            d = 0
            for p in reversed(hist):
                if need(p, x) - d > 0:
                    raise RuntimeError(f'fwd-branch hazard {p.line} -> {x.line} via {c.line}')
                d += p.states
                if d > 20: break
            hist.append(x); cnt += x.states
            if cnt > 20: break

class K:
    def __init__(self, name):
        self.name = name
        self.lines = []
        self.uid = 0
    def __call__(self, s=''):
        for l in s.split('\n'):
            l = l.strip()
            if l:
                self.lines.append(l)
    def label(self, base):
        self.uid += 1
        return f'L_{self.name}_{base}_{self.uid}'
    def text(self, dopad=True, align=False):
        lines = self.lines
        if dopad:
            lines, n = pad(lines)
            check_fwd_branches(lines)
        if align:
            lines, st = align32([l.split(';')[0].strip() if not l.startswith(';') else l for l in lines], self.name)
            print('align: widened, padded, left', st)
        out = [f'.p2align 8', f'.globl {self.name}', f'.type {self.name},@function', f'{self.name}:']
        for l in lines:
            out.append(l if l.endswith(':') else '    ' + l)
        return '\n'.join(out) + '\n'
    def maxreg(self):
        mv = ms = -1
        for l in self.lines:
            s = l.split(';')[0]
            for m in re.finditer(r'\bv\[(\d+):(\d+)\]|\bv(\d+)\b', s):
                mv = max(mv, int(m.group(2) or m.group(3)))
            for m in re.finditer(r'\bs\[(\d+):(\d+)\]|\bs(\d+)\b', s):
                ms = max(ms, int(m.group(2) or m.group(3)))
        return mv + 1, ms + 1

def desc(name, vgpr, sgpr=96, accum=None):
    if accum is None:
        accum = (vgpr + 3) // 4 * 4
    return f"""
.p2align 6
.amdhsa_kernel {name}
  .amdhsa_next_free_vgpr {vgpr}
  .amdhsa_next_free_sgpr {sgpr}
  .amdhsa_accum_offset {accum}
  .amdhsa_group_segment_fixed_size 0
  .amdhsa_kernarg_size 128
  .amdhsa_user_sgpr_count 2
  .amdhsa_user_sgpr_kernarg_segment_ptr 1
  .amdhsa_system_sgpr_workgroup_id_x 1
.end_amdhsa_kernel
"""

def build(path, kernels, launches, header='', dopad=True):
    ks = []
    for k in kernels:
        if isinstance(k, K):
            v, s = k.maxreg(); ks.append((k, max(v, 8), max(s, 16)))
        else: ks.append(k)
    s = header
    s += ''.join(f'; @launch kernel={n} grid=({g},1,1) block=({b},1,1) lds={l}\n' for n, g, b, l in launches)
    s += '.amdgcn_target "amdgcn-amd-amdhsa--gfx950"\n.text\n'
    s += ''.join(k.text(dopad) for k, *_ in ks)
    s += '.section .rodata,"a"\n' + ''.join(desc(k.name, *rest) for k, *rest in ks)
    open(path, 'w').write(s)
    return ks

def vr(a, n=1):
    return f'v{a}' if n == 1 else f'v[{a}:{a+n-1}]'
def sr(a, n=1):
    return f's{a}' if n == 1 else f's[{a}:{a+n-1}]'

import subprocess, os
_PROMO = ('v_mov_b32', 'v_add_f32', 'v_sub_f32', 'v_mul_f32', 'v_lshlrev_b32', 'v_lshrrev_b32', 'v_and_b32', 'v_xor_b32', 'v_add_u32', 'v_sub_u32',
          'v_exp_f32', 'v_rcp_f32', 'v_sin_f32', 'v_cos_f32', 'v_fract_f32', 'v_sqrt_f32', 'v_min_u32', 'v_max_f32', 'v_mul_u32_u24', 'v_fmac_f32')
def inst_sizes(lines):
    src = '.amdgcn_target "amdgcn-amd-amdhsa--gfx950"\n.text\nK_start_:\n' + '\n'.join(lines) + '\n'
    open('_al.s', 'w').write(src)
    subprocess.check_call(['clang', '-x', 'assembler', '-target', 'amdgcn-amd-amdhsa', '-mcpu=gfx950', '-c', '_al.s', '-o', '_al.o'])
    out = subprocess.check_output(['llvm-objdump', '-d', '--mcpu=gfx950', '_al.o']).decode()
    sz = []
    for l in out.split('\n'):
        m = re.search(r'// [0-9A-F]{12}: ((?:[0-9A-F]{8} ?)+)', l)
        if m: sz.append(4 * len(m.group(1).split()))
    return sz
def align32(lines, name, minrun=3, B=32):
    fixed = [l.replace(name, 'K_start_') for l in lines]
    sz = inst_sizes(fixed)
    isins = [not (l.endswith(':') or l.startswith(('.', ';'))) for l in lines]
    assert sum(isins) == len(sz), (sum(isins), len(sz))
    it = iter(sz); sizes = [next(it) if f else 0 for f in isins]
    out = []; osz = []; addr = 0; nprom = nnop = nleft = 0
    for i, l in enumerate(lines):
        s = sizes[i]
        if s == 8 and addr % B == B - 4:
            done = False; back = 0
            for j in range(len(out) - 1, -1, -1):
                back += osz[j]
                if back > B - 4: break
                op = out[j].split()[0]
                if osz[j] == 4 and op in _PROMO:
                    out[j] = op + '_e64' + out[j][len(op):]; osz[j] = 8; addr += 4; done = True; nprom += 1; break
            if not done:
                run = 0
                for j in range(i, len(lines)):
                    if sizes[j] == 8: run += 1
                    elif sizes[j] == 4: break
                if run >= minrun + B // 8:
                    out.append('s_nop 0'); osz.append(4); addr += 4; nnop += 1
                else: nleft += 1
        out.append(l); osz.append(s); addr += s
    return out, (nprom, nnop, nleft)
```

```python
import sys, struct
from asmlib import *

NAME = 'gated_mix__ssm_conv_s4d__mixer_gmlp__prompt_kernel'
WS_Z2 = 0x000000
WS_H  = 0x380000
WS_UT = 0x700000
WS_AT = 0x8C0000
WS_G2 = 0xA80000
WS_ST = 0xA90000
WS_FZ = 0xAD0000
WS_FH = 0xAD4000
WS_FA = 0xAE4000
WS_FU = 0xAE5000
WS_FG = 0xAE5E00
WS_FG = 0xAE7000
WS_EP = 0xAE6000
WS_END = 0xAF0000
SZ_Z = 3670016
STAMP_BASE = 0x2000000
L_X = 65536
L_KG = 122880
KG_ROW = 144
KG_WAVE = 64 * KG_ROW
L_U = 131072
L_KI = L_U + 2 * 4352
L_R = L_KI + 2 * 4352
L_Z1 = L_U
L_CNT = 163840 - 32
LDS = 163840
L2E = 1.4426950408889634
TAG = 28
POLL_LIMIT = 1 << 16

def f32hex(x): return hex(struct.unpack('<I', struct.pack('<f', x))[0])

def srd(k, d, lo, hi, size, add=0):
    if add: k(f's_add_u32 s{d}, s{lo}, {hex(add)}\n s_addc_u32 s{d+1}, s{hi}, 0')
    else: k(f's_mov_b32 s{d}, s{lo}\n s_mov_b32 s{d+1}, s{hi}')
    k(f's_mov_b32 s{d+2}, {hex(size)}\n s_mov_b32 s{d+3}, 0x20000')

class Gen:
    def __init__(self, opt):
        self.opt = opt
        self.k = K(NAME)
    def st(self, idx, grp='1'):
        if str(self.opt.get('stamp')) == grp or (idx == 0 and self.opt.get('stamp')): return f's_memrealtime s[{64+2*idx}:{65+2*idx}]\n'
        return ''
    def stamp(self, idx, grp='1'):
        self.k(self.st(idx, grp))
        if grp == '1' and str(self.opt.get('stamp')) == '6' and idx in self.CL:
            j = self.CL.index(idx)
            self.k(f's_memrealtime s[{66+4*j}:{67+4*j}]\n s_memtime s[{68+4*j}:{69+4*j}]')
    CL = [1, 2, 3, 4, 10, 11, 14]
    def flush(self, n):
        k = self.k
        if not self.opt.get('stamp'): return
        k('s_waitcnt lgkmcnt(0)\n s_mov_b64 exec, 1')
        k(f's_lshl_b32 s60, s2, 3\n s_add_u32 s60, s60, s61\n s_lshl_b32 s60, s60, 6\n s_add_u32 s60, s60, {hex(STAMP_BASE)}')
        k('v_mov_b32 v1, 0')
        for i in range(n):
            k(f'v_mov_b32 v2, s{64+2*i}\n buffer_store_dword v2, v1, s[56:59], s60 offen offset:{4*i}')
        k('s_mov_b64 exec, -1')

def lo(k, d, s): k(f'v_lshlrev_b32 v{d}, 16, v{s}')
def hi(k, d, s): k(f'v_and_b32 v{d}, 0xffff0000, v{s}')
def cvt(k, d, a, b): k(f'v_cvt_pk_bf16_f32 v{d}, v{a}, v{b}')
def pk(k, op, d, a, b, c=None, mods=''):
    s = f'v_pk_{op}_f32 v[{d}:{d+1}], v[{a}:{a+1}], v[{b}:{b+1}]'
    if c is not None: s += f', v[{c}:{c+1}]'
    k(s + (' ' + mods if mods else ''))
def pks(k, op, d, a, b, c=None, neg=False, sc=True):
    if not sc:
        return pk(k, op, d, a, b, c, mods='neg_lo:[0,1] neg_hi:[0,1]' if neg else '')
    for i in range(2):
        if op == 'fma':
            k(f'v_fmac_f32 v{d+i}, v{a+i}, v{b+i}' if c == d else f'v_fma_f32 v{d+i}, v{a+i}, v{b+i}, v{c+i}')
        else: k(f"v_{'sub' if neg else op}_f32 v{d+i}, v{a+i}, v{b+i}")
def mfma(k, c, a, b, cin=None):
    k(f'v_mfma_f32_16x16x32_bf16 v[{c}:{c+3}], v[{a}:{a+3}], v[{b}:{b+3}], ' + (cin or f'v[{c}:{c+3}]'))

GC = 24
def gelu_consts(k):
    c0 = -2.0 * 0.7978845608028654 * L2E
    k(f'v_mov_b32 v24, {f32hex(c0*0.044715)}\n v_mov_b32 v25, {f32hex(c0*0.044715)}\n v_mov_b32 v26, {f32hex(c0)}\n v_mov_b32 v27, {f32hex(c0)}')
    k('v_mov_b32 v30, 1.0\n v_mov_b32 v31, 1.0')
def gelu_tiles(k, cs, t, sc=False):
    c0 = -2.0 * 0.7978845608028654 * L2E
    pairs = [(c + 2 * p, t + 4 * i + 2 * p) for i, c in enumerate(cs) for p in range(2)]
    for x, tt in pairs: cvt(k, tt, x, x + 1)
    for x, tt in pairs: lo(k, x, tt); hi(k, x + 1, tt)
    for x, tt in pairs: pks(k, 'mul', tt, x, x, sc=sc)
    for x, tt in pairs:
        if sc: k(f'v_fmaak_f32 v{tt}, v{tt}, v24, {f32hex(c0)}\n v_fmaak_f32 v{tt+1}, v{tt+1}, v24, {f32hex(c0)}')
        else: pk(k, 'fma', tt, tt, 24, 26)
    for x, tt in pairs: pks(k, 'mul', tt, tt, x, sc=sc)
    for x, tt in pairs: k(f'v_exp_f32 v{tt}, v{tt}\n v_exp_f32 v{tt+1}, v{tt+1}')
    for x, tt in pairs: pks(k, 'add', tt, tt, 30, sc=sc)
    for x, tt in pairs: k(f'v_rcp_f32 v{tt}, v{tt}\n v_rcp_f32 v{tt+1}, v{tt+1}')
    for x, tt in pairs: pks(k, 'mul', x, x, tt, sc=sc)

def rowsum16(k, regs):
    for sh in (8, 4, 2, 1):
        for r in regs: k(f'v_add_f32_dpp v{r}, v{r}, v{r} row_ror:{sh} row_mask:0xf bank_mask:0xf')
def xsum4(k, regs, t):
    for sw in ('16', '32'):
        for i, r in enumerate(regs): k(f'v_mov_b32 v{t+i}, v{r}')
        for i, r in enumerate(regs): k(f'v_permlane{sw}_swap_b32 v{r}, v{t+i}')
        for i, r in enumerate(regs): k(f'v_add_f32 v{r}, v{r}, v{t+i}')
def cmul(k, d, x, w):
    k(f'v_mul_f32 v{d}, v{x}, v{w}\n v_mul_f32 v{d+1}, v{x+1}, v{w}\n v_fmac_f32 v{d}, v{x+1}, v{w+2}\n v_fmac_f32 v{d+1}, v{x}, v{w+1}')

def poll(k, name, loads, regs, lanes=None, first_issued=False, wait0='s_waitcnt vmcnt(0)', nap=0):
    k(f's_mov_b32 s62, {POLL_LIMIT}')
    if lanes: k(lanes)
    if first_issued: k(f'{wait0}\n s_branch L_{name}_chk')
    k(f'L_{name}:')
    k(loads)
    k(f's_waitcnt vmcnt(0)\nL_{name}_chk:')
    k(f'v_cmp_ne_u32 vcc, v{TAG}, v{regs[0]}')
    for r in regs[1:]:
        k(f'v_cmp_ne_u32 s[54:55], v{TAG}, v{r}\n s_or_b64 vcc, vcc, s[54:55]')
    k(f's_cbranch_vccz L_{name}_ok\n' + (f's_sleep {nap}\n' if nap else '') + f's_sub_u32 s62, s62, 1\n s_cbranch_scc0 L_{name}\nL_{name}_ok:')
    if lanes: k('s_mov_b64 exec, -1')

def post(k, val, addr=29, tmp=23):
    k(f'v_mov_b32 v{tmp}, {val}\n ds_write_b32 v{addr}, v{tmp}')
def waitfor(k, name, off, n, val, t, base=22, sleep=True):
    k(f's_mov_b32 s62, {POLL_LIMIT*16}\nL_{name}:')
    if n == 4:
        k(f'ds_read_b128 v[{t}:{t+3}], v{base} offset:{off}\n s_waitcnt lgkmcnt(0)\n v_min3_u32 v{t}, v{t}, v{t+1}, v{t+2}\n v_min_u32 v{t}, v{t}, v{t+3}')
    else:
        k(f'ds_read_b32 v{t}, v{base} offset:{off}\n s_waitcnt lgkmcnt(0)')
    k(f'v_cmp_gt_u32 vcc, {val}, v{t}\n s_cbranch_vccz L_{name}_ok')
    if sleep: k(f's_sleep {int(sleep)}')
    k(f's_sub_u32 s62, s62, 1\n s_cbranch_scc0 L_{name}\nL_{name}_ok:')

def weave(lines, events):
    out = []; n = len(lines); ev = sorted(events, key=lambda e: e[0]); j = 0
    for i, l in enumerate(lines):
        while j < len(ev) and ev[j][0] * n <= i:
            out += [x.strip() for x in ev[j][1].split('\n') if x.strip()]; j += 1
        out.append(l)
    while j < len(ev):
        out += [x.strip() for x in ev[j][1].split('\n') if x.strip()]; j += 1
    return out

def sub(fn, *a):
    t = K('t'); fn(t, *a); return t.lines

def gen(opt):
    G = Gen(opt); k = G.k
    D = 8
    ZF = '' if opt.get('nosc1') else 'sc1'
    npf = int(opt.get('pfcode', 3))
    k(f"""
    s_cmp_ge_u32 s2, 256
    s_cbranch_scc1 L_end
    s_load_dwordx2 s[8:9], s[0:1], 0       ; x
    s_load_dwordx2 s[16:17], s[0:1], 64    ; w_in
    s_load_dwordx2 s[12:13], s[0:1], 120   ; ws
    s_load_dwordx8 s[36:43], s[0:1], 8
    s_load_dwordx4 s[44:47], s[0:1], 40
    s_load_dwordx8 s[48:55], s[0:1], 72
    s_load_dwordx2 s[26:27], s[0:1], 104   ; out
    v_lshrrev_b32 v1, 6, v0
    v_and_b32 v0, 63, v0
    v_readfirstlane_b32 s3, v1             ; wave
    s_lshr_b32 s30, s2, 3                  ; j
    s_and_b32 s29, s2, 1
    s_lshl_b32 s29, s29, 2                 ; 4*par
    s_and_b32 s31, s30, 3
    s_add_u32 s31, s31, s29
    s_lshr_b32 s35, s30, 3
    s_add_u32 s29, s29, s35
    s_and_b32 s35, s30, 7
    s_cmp_lt_u32 s30, 24
    s_cselect_b32 s31, s35, s31            ; tb&7
    s_cselect_b32 s29, s29, 3
    s_cmp_ge_u32 s30, 28
    s_cselect_b32 s29, 7, s29
    s_and_b32 s28, s2, 6
    s_lshl_b32 s28, s28, 2
    s_add_u32 s28, s28, s31
    s_min_u32 s31, s31, 6
    s_and_b32 s32, s3, 3
    v_and_b32 v8, 15, v0
    v_lshrrev_b32 v9, 4, v0
    v_lshlrev_b32 v10, 1, v9
    v_xor_b32 v10, v10, v8
    v_lshlrev_b32 v10, 4, v10
    v_mul_u32_u24 v11, 3584, v9
    v_add_u32 v10, v10, v11
    v_add_u32 v11, {4*3584}, v10
    v_xor_b32 v12, 128, v10
    v_add_u32 v12, {8*3584}, v12
    v_add_u32 v13, {4*3584}, v12
    s_mul_i32 s33, s32, {16*3584}
    s_lshl_b32 s34, s29, 8
    s_add_u32 s33, s33, s34
    s_add_u32 s33, s33, 1792
    s_lshl_b32 s34, s32, 12
    v_lshrrev_b32 v21, 3, v0
    v_and_b32 v20, 7, v0
    v_lshrrev_b32 v5, 1, v21
    v_xor_b32 v20, v20, v5
    v_lshlrev_b32 v20, 4, v20
    v_mul_u32_u24 v6, 896, v21
    v_add_u32 v6, v6, v20
    v_xor_b32 v7, 64, v6
    v_add_u32 v4, {8*896}, v7
    s_lshl_b32 s24, s28, 2
    s_add_u32 s24, s24, s32
    s_mul_i32 s24, s24, {16*896}
    s_lshl_b32 s25, s32, 11
    s_add_u32 s25, s25, {L_X}
    v_mov_b32 v{TAG}, 0
    s_mov_b32 s10, {2048*896}
    s_mov_b32 s11, 0x20000
    s_mov_b32 s14, {hex(WS_END)}
    s_mov_b32 s15, 0x20000
    s_mov_b32 s18, {448*3584}
    s_mov_b32 s19, 0x20000
    s_mov_b32 s35, {hex(WS_EP)}
    s_cmp_eq_u32 s29, 7
    s_waitcnt lgkmcnt(0)
    """)
    if opt.get('stamp'):
        k('s_mov_b32 s61, s3'); G.stamp(0); srd(k, 56, 12, 13, 0x4000000)
    k(f"""
    buffer_load_dword v{TAG}, v{TAG}, s[12:15], s35 offen sc1
    s_cbranch_scc1 L_helper
    s_cmp_lt_u32 s3, 4
    s_cbranch_scc1 L_A
    """)
    k(f"""
    s_mul_i32 s20, s28, 7
    s_add_u32 s20, s20, s29                ; m
    s_lshr_b32 s21, s32, 1                 ; c2
    s_and_b32 s22, s32, 1                  ; hf
    s_lshl_b32 s23, s20, 2
    s_load_dword s30, s[46:47], s23
    s_lshl_b32 s20, s20, 1
    s_add_u32 s20, s20, s21                ; channel
    s_lshl_b32 s23, s20, 9
    s_lshl_b32 s35, s22, 8
    s_add_u32 s23, s23, s35
    v_lshlrev_b32 v1, 1, v0
    v_add_u32 v1, s23, v1
    """)
    PRM = 200
    for c in range(2):
        for i in range(4): k(f'global_load_ushort v{PRM+4*c+i}, v1, s[{36+2*i}:{37+2*i}] offset:{128*c}')
    k(f"""
    s_lshl_b32 s23, s20, 1
    v_mov_b32 v1, s23
    global_load_ushort v{PRM+8}, v1, s[44:45]
    """)
    G.stamp(1, '3')
    k('s_branch L_B')
    def w2parts(j):
        h = f's_add_u32 s35, s31, {j}\n s_cmp_ge_u32 s35, 7\n s_cselect_b32 s63, 7, 0\n s_sub_u32 s35, s35, s63\n s_lshl_b32 s63, s35, 7\n s_add_u32 s63, s63, s24\n'
        p = [h + f's_add_u32 m0, s25, {j * 8192}\n s_mul_i32 s35, s35, {64*3584}\n buffer_load_dwordx4 v6, s[8:11], s63 offen lds\n',
             f's_add_u32 m0, s25, {j * 8192 + 1024}\n s_add_u32 s35, s35, s33\n buffer_load_dwordx4 v4, s[8:11], s63 offen lds\n']
        for q in range(4):
            p.append(f's_add_u32 m0, s34, {(j & 3) * 16384 + q * 1024}\n buffer_load_dwordx4 v{10+q}, s[16:19], s35 offen lds\n')
        return p
    def w2stage(j): return ''.join(w2parts(j))
    def common2():
        k(f"""
        v_lshlrev_b32 v2, 4, v0
        v_mov_b32 v22, {L_CNT}
        s_lshl_b32 s35, s3, 2
        v_add_u32 v29, s35, v22
        """)
    tagcalc = f's_mov_b32 s35, 0x9E3779B1\n v_mul_lo_u32 v{TAG}, v{TAG}, s35\n v_add_u32 v{TAG}, 0x7F4A7C15, v{TAG}'
    def w1setup(r):
        k(f"""
        v_lshrrev_b32 v{r}, 2, v0
        v_mul_u32_u24 v{r}, 3584, v{r}
        v_lshrrev_b32 v{r+1}, 4, v0
        v_and_b32 v{r+1}, 2, v{r+1}
        v_xor_b32 v{r+1}, v{r+1}, v0
        v_and_b32 v{r+1}, 3, v{r+1}
        v_lshl_add_u32 v{r}, v{r+1}, 4, v{r}
        v_add_u32 v{r+1}, {16*3584}, v{r}
        s_lshl_b32 s38, s29, 8
        s_lshl_b32 s35, s32, 6
        s_add_u32 s38, s38, s35
        s_lshl_b32 s40, s32, 11
        """)
    def w1off(i): return [3, 0, 1, 2][(i % 8) >> 1] * 16384 + (i & 1) * 8192
    def w1dma(i, r):
        off = w1off(i)
        return (f's_mul_i32 s35, s41, {32*3584}\n s_add_u32 s35, s35, s38\n s_add_u32 m0, s40, {off}\n s_add_u32 s41, s41, 1\n'
                f'buffer_load_dwordx4 v{r}, s[16:19], s35 offen lds\n s_add_u32 m0, s40, {off+1024}\n s_cmp_eq_u32 s41, 14\n'
                f'buffer_load_dwordx4 v{r+1}, s[16:19], s35 offen lds\n s_cselect_b32 s41, 0, s41\n')
    k('L_A:')
    k(w2stage(0)); k(w2stage(1))
    if opt.get('prio', '1') != '0': k(f"s_setprio {opt.get('prio', 1)}")
    srd(k, 36, 50, 51, 4096)
    k('v_lshlrev_b32 v1, 1, v8\n s_lshl_b32 s35, s28, 7')
    BSP = [228, 229, 230, 231]
    for tt in range(4): k(f'buffer_load_ushort v{BSP[tt]}, v1, s[36:39], s35 offen offset:{32*tt}')
    common2()
    WA = 168
    k(f"""
    v_mov_b32 v23, 0
    ds_write_b32 v29, v23
    ds_write_b32 v29, v23 offset:16
    v_lshrrev_b32 v14, 1, v8
    v_xor_b32 v14, v14, v9
    v_lshlrev_b32 v14, 4, v14
    v_lshl_add_u32 v14, v8, 7, v14
    v_add_u32 v14, s25, v14
    v_xor_b32 v15, 64, v14
    v_lshrrev_b32 v16, 2, v0
    v_and_b32 v17, 7, v16
    v_lshlrev_b32 v17, 5, v17
    v_and_b32 v16, 3, v16
    v_lshl_add_u32 v16, v9, 3, v16         ; 8g + r
    v_and_b32 v19, 3, v0
    v_lshlrev_b32 v18, 3, v19
    v_lshl_add_u32 v18, v16, 8, v18
    """)
    for ft in range(8): k(f'v_xor_b32 v{WA+ft}, {32*ft}, v17\n v_add_u32 v{WA+ft}, v{WA+ft}, v18')
    gelu_consts(k)
    w1setup(224)
    k(f"""
    v_lshlrev_b32 v226, 6, v16
    v_lshl_add_u32 v226, v19, 3, v226
    v_and_b32 v227, 1, v9
    v_lshl_add_u32 v226, v227, 5, v226     ; row*64 + (p ^ (g&1))*32 + 8c  (p = 0)
    v_xor_b32 v227, 32, v226
    v_add_u32 v226, s40, v226
    v_add_u32 v227, s40, v227
    s_lshl_b32 s41, s31, 1
    s_add_u32 s41, s41, 8
    s_cmp_ge_u32 s41, 14
    s_cselect_b32 s35, 14, 0
    s_sub_u32 s41, s41, s35
    s_lshl_b32 s35, s32, 2
    v_add_u32 v5, s35, v22
    """)
    XF, WF, ACC, T, CK1 = 32, 88, 120, 152, 40
    G.stamp(14, '2')
    k('s_waitcnt vmcnt(10) lgkmcnt(0)')
    G.stamp(15, '2')
    k(tagcalc + '\n s_barrier')
    G.stamp(1); G.stamp(1, '2')
    def wread(gi):
        ks = gi >> 1
        for f in range(4):
            for hh in range(2):
                r = WF + (gi & 1) * 16 + f * 4 + hh * 2
                k(f'ds_read_b64_tr_b16 v[{r}:{r+1}], v{WA + 4 * (gi & 1) + f} offset:{((ks >> 1) & 3) * 16384 + (ks & 1) * 8192 + hh * 1024}')
    def xread(i):
        k(f'ds_read_b128 v[{XF+4*(i&1)}:{XF+4*(i&1)+3}], v{14 + (i & 1)} offset:{(i >> 1) * 8192}')
    xread(0); wread(0)
    for gi in range(28):
        ks = gi >> 1; j = gi >> 2
        if gi % 4 == 3:
            k('s_waitcnt lgkmcnt(0)' + (' vmcnt(0)' if j == 0 else ''))
            if j < 6: G.stamp(2 + 2 * j, '2')
            k('s_barrier')
            if j < 6:
                G.stamp(3 + 2 * j, '2'); xread(ks + 1); wread(gi + 1)
        else:
            nx = 0
            if gi % 4 == 0: xread(ks + 1); nx = 1
            wread(gi + 1); k(f's_waitcnt lgkmcnt({8 + nx})')
        for f in range(4):
            mfma(k, ACC + 16 * (gi & 1) + 4 * f, XF + 4 * (ks & 1), WF + (gi & 1) * 16 + f * 4, '0' if ks == 0 else None)
    G.stamp(2)
    S, Q = 88, 92
    def z2epi(t):
        for h in range(2):
            cs = [ACC + 16 * h + 4 * f for f in range(4)]
            gelu_tiles(t, cs, T)
            prs = [(c + 2 * p, T + 2 * i + p) for i, c in enumerate(cs) for p in range(2)]
            for x, tt in prs: cvt(t, tt, x, x + 1)
            for x, tt in prs: lo(t, x, tt); hi(t, x + 1, tt)
            for i, c in enumerate(cs):
                for p in range(2):
                    if h == 0 and i == 0: pk(t, 'mul', Q + 2 * p, c + 2 * p, c + 2 * p)
                    else: pk(t, 'fma', Q + 2 * p, c + 2 * p, c + 2 * p, Q + 2 * p)
                    if h == 0 and i == 0: pass
                    elif h == 0 and i == 1: pk(t, 'add', S + 2 * p, ACC + 2 * p, c + 2 * p)
                    else: pk(t, 'add', S + 2 * p, S + 2 * p, c + 2 * p)
    z2epi(k)
    rowsum16(k, list(range(S, S + 8)))
    k(f"""
    v_cmp_eq_u32 vcc, 1, v19
    v_cndmask_b32 v{T}, v{S}, v{S+1}, vcc
    v_cndmask_b32 v{T+2}, v{Q}, v{Q+1}, vcc
    v_cmp_eq_u32 vcc, 2, v19
    v_cndmask_b32 v{T}, v{T}, v{S+2}, vcc
    v_cndmask_b32 v{T+2}, v{T+2}, v{Q+2}, vcc
    v_cmp_eq_u32 vcc, 3, v19
    v_cndmask_b32 v{T}, v{T}, v{S+3}, vcc
    v_cndmask_b32 v{T+2}, v{T+2}, v{Q+3}, vcc
    v_mov_b32 v{T+1}, v{TAG}
    v_mov_b32 v{T+3}, v{TAG}
    v_lshl_add_u32 v18, v9, 2, v19
    v_lshlrev_b32 v18, 4, v18              ; row*16
    s_lshl_b32 s24, s28, 2
    s_add_u32 s24, s24, s32
    s_lshl_b32 s24, s24, 11
    s_add_u32 s24, s24, {hex(WS_ST)}
    s_lshl_b32 s35, s29, 8
    s_add_u32 s35, s35, s24
    s_mov_b32 exec_lo, 0x000f000f
    s_mov_b32 exec_hi, 0x000f000f
    buffer_store_dwordx4 v[{T}:{T+3}], v18, s[12:15], s35 offen sc1
    s_mov_b64 exec, -1
    v_min_u32 v18, 2, v9
    v_lshlrev_b32 v18, 8, v18
    v_lshl_add_u32 v18, v8, 4, v18
    """)
    G.stamp(3)
    def spdma(j, dyn=False, slot=0):
        vv, off = ((10, 0), (12, 1024), (11, 8192), (13, 9216))[j]
        t = f's_add_u32 m0, s43, {off + slot * 16384}\n buffer_load_dwordx4 v{vv}, s[8:11], s42 offen lds\n'
        if j == 3:
            t += 's_add_u32 s42, s42, 256\n'
            if dyn: t += 's_add_u32 s43, s43, 16384\n s_and_b32 s43, s43, 0x1ffff\n'
        return t
    A1, FR, ZP = 176, 64, 208
    k(f"""
    s_lshl_b32 s35, s32, 11
    v_subrev_u32 v14, s35, v14
    v_subrev_u32 v15, s35, v15
    """)
    srd(k, 8, 48, 49, 0x800000)
    k(f"""
    v_lshl_add_u32 v10, v21, 12, v20
    v_add_u32 v11, 128, v10
    v_xor_b32 v12, 64, v10
    v_add_u32 v12, 0x8000, v12
    v_add_u32 v13, 128, v12
    s_lshl_b32 s42, s28, 2
    s_add_u32 s42, s42, s32
    s_lshl_b32 s42, s42, 16                ; (64*tb + 16*a)*4096
    s_lshl_b32 s43, s32, 11
    """)
    def z1read(i):
        b = FR + (i & 1) * 24
        for p in range(2):
            for hh in range(2):
                k(f'ds_read_b64_tr_b16 v[{b+4*p+2*hh}:{b+4*p+2*hh+1}], v{226 + p} offset:{w1off(i) + 256*hh}')
        for tt in range(4):
            r = b + 8 + 4 * tt
            k(f'ds_read_b128 v[{r}:{r+3}], v{14 + (i & 1)} offset:{(i >> 1) * 8192 + tt * 2048}')
    G.stamp(1, '5')
    waitfor(k, 'wb1', 16, 1, 1, 32, base=5, sleep=False)
    G.stamp(2, '5')
    z1read(0)
    for i in range(14):
        if i < 13:
            if i >= 7: k(f's_waitcnt vmcnt({2 * (12 - i)})')
            z1read(i + 1); k('s_waitcnt lgkmcnt(8)')
        else:
            k('s_waitcnt lgkmcnt(0)'); post(k, 9)
        b = FR + (i & 1) * 24
        if i < 13: G.stamp(3 + i, '5')
        for p in range(2):
            for tt in range(4):
                mfma(k, A1 + (p * 4 + tt) * 4, b + 4 * p, b + 8 + 4 * tt, '0' if i == 0 else None)
            if p == 0 and i < 6: k(w1dma(8 + i, 224))
    G.stamp(4)
    PL = 32
    poll(k, 'pst', f'buffer_load_dwordx4 v[{PL}:{PL+3}], v2, s[12:15], s24 offen sc1\n buffer_load_dwordx4 v[{PL+4}:{PL+7}], v18, s[12:15], s24 offen offset:1024 sc1', [PL + 1, PL + 3, PL + 5, PL + 7])
    G.stamp(5)
    k(f"""
    v_cmp_gt_u32 vcc, 3, v9
    v_cndmask_b32 v{PL+4}, 0, v{PL+4}, vcc
    v_cndmask_b32 v{PL+6}, 0, v{PL+6}, vcc
    v_add_f32 v40, v{PL}, v{PL+4}
    v_add_f32 v41, v{PL+2}, v{PL+6}
    """)
    xsum4(k, [40, 41], 42)
    k(f"""
    v_mul_f32 v40, {f32hex(1/896)}, v40
    v_mul_f32 v41, {f32hex(1/896)}, v41
    v_fma_f32 v41, -v40, v40, v41
    v_max_f32 v41, 0, v41
    """)
    cvt(k, 40, 40, 41); hi(k, 41, 40); lo(k, 40, 40)
    k(f'v_add_f32 v41, {f32hex(1e-5)}, v41')
    cvt(k, 41, 41, 41); lo(k, 41, 41)
    k('v_sqrt_f32 v41, v41')
    cvt(k, 41, 41, 41); lo(k, 41, 41)
    k('v_rcp_f32 v41, v41\n v_lshlrev_b32 v14, 4, v9')
    for r in range(4):
        k(f'ds_bpermute_b32 v{S+r}, v14, v40 offset:{4*r}\n ds_bpermute_b32 v{Q+r}, v14, v41 offset:{4*r}')
    k(f"""
    s_lshl_b32 s24, s29, 6
    s_lshl_b32 s25, s28, 1
    s_add_u32 s24, s24, s25
    s_lshr_b32 s25, s32, 1
    s_add_u32 s24, s24, s25
    s_lshl_b32 s24, s24, 13
    s_and_b32 s25, s32, 1
    s_lshl_b32 s25, s25, 9
    s_add_u32 s24, s24, s25
    s_add_u32 s25, s24, 4096
    v_lshrrev_b32 v14, 1, v9
    v_lshlrev_b32 v14, 8, v14
    v_lshl_add_u32 v14, v8, 4, v14
    v_and_b32 v15, 1, v9
    v_lshl_add_u32 v14, v15, 10, v14
    s_waitcnt lgkmcnt(0)
    """)
    for h in range(2):
        cs = [ACC + 16 * h + 4 * f for f in range(4)]
        prs = [(c + 2 * p, T + 8 * h + 2 * i + p, p) for i, c in enumerate(cs) for p in range(2)]
        for x, t, p in prs: pks(k, 'add', x, x, S + 2 * p, neg=True, sc=bool(opt.get('sca')))
        for x, t, p in prs: cvt(k, t, x, x + 1)
        for x, t, p in prs: lo(k, x, t); hi(k, x + 1, t)
        for x, t, p in prs: pks(k, 'mul', x, x, Q + 2 * p, sc=bool(opt.get('sca')))
        for x, t, p in prs: cvt(k, t, x, x + 1)
        for pr in range(2):
            o = T + 8 * h + 4 * pr
            k(f'v_permlane16_swap_b32 v{o}, v{o+2}\n v_permlane16_swap_b32 v{o+1}, v{o+3}')
        for pr in range(2):
            o = T + 8 * h + 4 * pr
            k(f'buffer_store_dwordx4 v[{o}:{o+3}], v14, s[12:15], s{24+h} offen offset:{2048*pr} sc1')
    G.stamp(6)
    srd(k, 16, 12, 13, SZ_Z)
    k(f"""
    s_lshl_b32 s24, s29, 11
    s_add_u32 s24, s24, {hex(WS_FZ)}
    s_lshl_b32 s35, s28, 6
    s_lshl_b32 s25, s32, 2
    s_add_u32 s35, s35, s25
    v_mov_b32 v14, s35
    v_lshlrev_b32 v19, 6, v0
    s_lshl_b32 s33, s29, 19
    s_lshl_b32 s35, s32, 11
    s_add_u32 s34, s33, s35                ; fb*64*8192 + w*2048
    v_lshrrev_b32 v17, 1, v8
    v_xor_b32 v17, v17, v9
    v_lshlrev_b32 v17, 4, v17
    v_lshl_add_u32 v17, v8, 7, v17
    v_xor_b32 v18, 64, v17
    s_waitcnt vmcnt(0)
    s_mov_b64 exec, 1
    buffer_store_dword v{TAG}, v14, s[12:15], s24 offen sc1
    s_mov_b64 exec, -1
    v_add_u32 v14, 8192, v2
    v_add_u32 v15, 16384, v2
    v_add_u32 v16, 24576, v2
    """)
    G.stamp(7)
    waitfor(k, 'wa9', 0, 4, 9, 32, sleep=False); waitfor(k, 'wb2', 16, 4, 1, 32, sleep=False)
    def z1epi(t):
        for h in range(2):
            cs = [A1 + 16 * h + 4 * f for f in range(4)]
            gelu_tiles(t, cs, 64, sc=bool(opt.get('sca')))
            for tt in range(4):
                for p in range(2): cvt(t, ZP + 4 * tt + 2 * h + p, cs[tt] + 2 * p, cs[tt] + 2 * p + 1)
    k.lines += weave(sub(z1epi), [(i / 28.0, spdma(i % 4, slot=i // 4)) for i in range(28)])
    k(f's_add_u32 s43, s43, {6*16384}')
    ACC2, W, Z, CK = 32, 64, 96, 160
    ZV = [2, 14, 15, 16]
    for i in range(32): k(f'v_mov_b32 v{ACC2+i}, 0')
    G.stamp(8)
    poll(k, 'pfz', f'buffer_load_dwordx4 v[{CK}:{CK+3}], v19, s[12:15], s24 offen sc1', [CK, CK + 1, CK + 2, CK + 3], lanes='s_mov_b32 exec_hi, 0')
    G.stamp(9)
    post(k, 10)
    adv = f's_add_u32 s34, s34, {4*8192}'
    def zld(n, ft):
        r = Z + (n % D) * 8 + ft * 4
        k(f'buffer_load_dwordx4 v[{r}:{r+3}], v{ZV[n%4]}, s[16:19], s34 offen offset:{1024*ft} {ZF}')
    for n in range(D):
        zld(n, 0); zld(n, 1)
        if n % 4 == 3: k(adv)
    waitfor(k, 'wa10', 0, 4, 10, CK, sleep=False)
    def w2read(n, tt):
        st = (n >> 2) & 1; ks = n & 3
        r = W + (n & 1) * 16 + tt * 4
        k(f'ds_read_b128 v[{r}:{r+3}], v{17 + (ks & 1)} offset:{st * 16384 + (ks >> 1) * 8192 + tt * 2048}')
    for tt in range(4): w2read(0, tt)
    k('s_mov_b32 s36, 10')
    G.stamp(10)
    def p2loop(name, dma):
        k(f'L_{name}:')
        for n in range(8):
            k(f's_waitcnt vmcnt({(D-1)*2}) lgkmcnt(0)')
            if n % 4 == 0:
                if True:
                    k(f"""
                    s_cmp_eq_u32 s36, 10
                    s_cbranch_scc1 L_{name}_ok{n}
                    s_mov_b32 s62, {POLL_LIMIT*16}
                    s_sub_u32 s35, s36, 1
L_{name}_ck{n}:
                    v_min3_u32 v{CK}, v{CK}, v{CK+1}, v{CK+2}
                    v_min3_u32 v{CK+4}, v{CK+4}, v{CK+5}, v{CK+6}
                    v_min3_u32 v{CK}, v{CK}, v{CK+3}, v{CK+7}
                    v_min_u32 v{CK}, v{CK}, v{CK+4}
                    v_cmp_gt_u32 vcc, s35, v{CK}
                    s_cbranch_vccz L_{name}_ok{n}
                    ds_read_b128 v[{CK}:{CK+3}], v22
                    ds_read_b128 v[{CK+4}:{CK+7}], v22 offset:16
                    s_waitcnt lgkmcnt(0)
                    s_sub_u32 s62, s62, 1
                    s_cbranch_scc0 L_{name}_ck{n}
L_{name}_ok{n}:
                    """)
                k('v_mov_b32 v23, s36\n ds_write_b32 v29, v23')
                if opt.get('stamp') == '4':
                    for it in range(5 if dma else 3):
                        st = (0 if dma else 10) + 2 * it + n // 4
                        if st == 0: continue
                        k(f's_cmp_lg_u32 s36, {10+st}\n s_cbranch_scc1 L_{name}_t{n}_{it}\n s_memrealtime s[{64+2*st}:{65+2*st}]\nL_{name}_t{n}_{it}:')
            if n == 7: k('v_add_u32 v17, 0x8000, v17\n v_add_u32 v18, 0x8000, v18\n v_and_b32 v17, 0x1ffff, v17\n v_and_b32 v18, 0x1ffff, v18')
            if n == 0 and not dma: k('s_cmp_eq_u32 s36, 24\n s_cselect_b32 s18, 0, s18')
            for ft in range(2):
                for tt in range(4):
                    mfma(k, ACC2 + (ft * 4 + tt) * 4, Z + (n % D) * 8 + ft * 4, W + (n & 1) * 16 + tt * 4)
                    if ft == 0: w2read(n + 1, tt)
                if ft == 0 and n % 4 == 3: k(f'ds_read_b128 v[{CK}:{CK+3}], v22\n ds_read_b128 v[{CK+4}:{CK+7}], v22 offset:16')
                if ft == 0 and dma:
                    if n < 4:
                        k(f's_cmp_eq_u32 s36, 10\n s_cbranch_scc1 L_{name}_sk{n}')
                        k(spdma(n % 4)); k(f'L_{name}_sk{n}:')
                        if n == 3: k('s_add_u32 s43, s43, 16384\n s_and_b32 s43, s43, 0x1ffff')
                    else: k(spdma(n % 4, dyn=True))
                zld(n, ft)
            if n % 4 == 3: k(adv + '\n s_add_u32 s36, s36, 1')
        k(f's_cmp_lt_u32 s36, {20 if dma else 26}\n s_cbranch_scc1 L_{name}')
    p2loop('p2a', True)
    p2loop('p2b', False)
    G.stamp(11)
    k(f"""
    s_mul_i32 s24, s28, {4*28}
    s_lshl_b32 s36, s29, 2
    s_add_u32 s36, s36, s32                ; kk
    s_add_u32 s24, s24, s36
    s_lshl_b32 s24, s24, 10
    s_add_u32 s24, s24, {hex(WS_H)}
    """)
    Z1R = ZP
    for tt in range(4): lo(k, BSP[tt], BSP[tt])
    for tt in range(4):
        for ft in range(2):
            for r in range(4): k(f'v_add_f32 v{ACC2+(ft*4+tt)*4+r}, v{ACC2+(ft*4+tt)*4+r}, v{BSP[tt]}')
    k('s_waitcnt vmcnt(0)')
    for tt in range(4):
        o = 96 + 24 * tt
        its = [(ACC2 + (ft * 4 + tt) * 4 + 2 * p, Z1R + 4 * tt + 2 * ft + p, o + 4 + 4 * (2 * ft + p), o + 2 * ft + p) for ft in range(2) for p in range(2)]
        for a, z, t, d in its: cvt(k, d, a, a + 1)
        for a, z, t, d in its: lo(k, t, z); hi(k, t + 1, z); lo(k, t + 2, d); hi(k, t + 3, d)
        for a, z, t, d in its: pk(k, 'mul', t, t, t + 2)
        for a, z, t, d in its: cvt(k, d, t, t + 1)
        k(f'buffer_store_dwordx4 v[{o}:{o+3}], v2, s[12:15], s24 offen sc1')
        if tt < 3: k(f's_add_u32 s24, s24, {28*1024}')
    G.stamp(12)
    srd(k, 16, 26, 27, 2048 * 896)
    k(f"""
    s_lshl_b32 s33, s28, 2
    s_add_u32 s33, s33, s32                ; tt
    s_lshl_b32 s37, s28, 11
    s_add_u32 s37, s37, {hex(WS_FH)}
    s_lshl_b32 s36, s36, 6
    v_mov_b32 v12, s36
    v_lshrrev_b32 v10, 2, v0
    v_lshrrev_b32 v4, 1, v10
    v_and_b32 v4, 3, v4
    v_lshlrev_b32 v21, 5, v4
    v_and_b32 v13, 3, v0
    v_lshlrev_b32 v13, 3, v13
    v_lshl_add_u32 v13, v10, 7, v13
    """)
    for dt in range(4):
        k(f'v_xor_b32 v{192+dt}, {32*dt}, v21\n v_add_u32 v{192+dt}, v{192+dt}, v13\n v_add_u32 v{196+dt}, 0xe000, v{192+dt}')
    k(f"""
    s_waitcnt vmcnt(0)
    s_mov_b64 exec, 1
    buffer_store_dword v{TAG}, v12, s[12:15], s37 offen sc1
    s_mov_b64 exec, -1
    s_waitcnt lgkmcnt(0)
    s_barrier
    s_mul_i32 s34, s33, {28*1024}
    s_add_u32 s34, s34, {hex(WS_H)}
    """)
    HB, AC3, A3 = 32, 144, 160
    def aread(kk):
        for dt in range(4):
            for hh in range(2):
                f0 = 32 * kk + 16 * hh
                r = A3 + (kk & 1) * 16 + dt * 4 + hh * 2
                k(f'ds_read_b64_tr_b16 v[{r}:{r+1}], v{(192 if f0 < 448 else 196) + dt} offset:{(f0 % 448) * 128}')
    aread(0)
    poll(k, 'pfh', 'buffer_load_dword v20, v19, s[12:15], s37 offen sc1', [20], lanes='s_mov_b32 exec_lo, 0x0fffffff\n s_mov_b32 exec_hi, 0')
    G.stamp(13)
    HD = int(opt.get('hd', 10))
    def hload(kk):
        k(f'buffer_load_dwordx4 v[{HB+4*kk}:{HB+4*kk+3}], v2, s[12:15], s34 offen offset:{1024*(kk%4)} {ZF}')
        if kk % 4 == 3: k('s_add_u32 s34, s34, 4096')
    for kk in range(HD): hload(kk)
    for kk in range(28):
        if kk < 27: aread(kk + 1)
        k(f's_waitcnt vmcnt({min(HD - 1, 27 - kk)}) lgkmcnt({8 if kk < 27 else 0})')
        for dt in range(4):
            mfma(k, AC3 + 4 * dt, A3 + (kk & 1) * 16 + dt * 4, HB + 4 * kk, '0' if kk == 0 else None)
        if kk + HD < 28: hload(kk + HD)
    G.stamp(14)
    k(f"""
    s_lshl_b32 s36, s32, 5
    v_xor_b32 v12, s36, v21
    v_add_u32 v12, v12, v13
    v_add_u32 v12, {L_R}, v12
    s_lshl_b32 s36, s32, 7
    s_add_u32 s36, s36, {L_R + 8192}
    v_lshlrev_b32 v11, 3, v8
    v_add_u32 v11, s36, v11
    s_barrier
    ds_read_b64 v[4:5], v11
    """)
    for dt in range(4): k(f'ds_read_b64_tr_b16 v[{32+2*dt}:{33+2*dt}], v12 offset:{2048*dt}')
    k(f"""
    v_mul_u32_u24 v10, 896, v8
    v_lshrrev_b32 v11, 1, v9
    v_lshl_add_u32 v10, v11, 4, v10
    v_and_b32 v11, 1, v9
    v_lshl_add_u32 v10, v11, 5, v10        ; t*896 + (g>>1)*16 + (g&1)*32
    s_mul_i32 s36, s33, {16*896}
    s_lshl_b32 s37, s29, 7
    s_add_u32 s36, s36, s37
    v_mov_b32 v6, v4
    v_mov_b32 v7, v4
    v_mov_b32 v4, v5
    s_waitcnt lgkmcnt(0)
    """)
    its = [(AC3 + 4 * dt + 2 * p, 32 + 2 * dt + p, 48 + 4 * (2 * dt + p)) for dt in range(4) for p in range(2)]
    for c, a, t in its: cvt(k, c, c, c + 1)
    for c, a, t in its: lo(k, t, a); hi(k, t + 1, a); lo(k, t + 2, c); hi(k, t + 3, c)
    for c, a, t in its: pk(k, 'mul', t, t, 6); pk(k, 'mul', t + 2, t + 2, 4)
    for c, a, t in its: cvt(k, a, t, t + 1); cvt(k, c, t + 2, t + 3)
    for c, a, t in its: lo(k, t, a); hi(k, t + 1, a); lo(k, t + 2, c); hi(k, t + 3, c)
    for c, a, t in its: pk(k, 'add', t, t, t + 2)
    for c, a, t in its: cvt(k, a, t, t + 1)
    for pr in range(2):
        o = 32 + 4 * pr
        k(f'v_permlane16_swap_b32 v{o}, v{o+2}\n v_permlane16_swap_b32 v{o+1}, v{o+3}')
    for pr in range(2):
        o = 32 + 4 * pr
        k(f'buffer_store_dwordx4 v[{o}:{o+3}], v10, s[16:19], s36 offen offset:{64*pr}')
    k(f"""
    s_lshl_b32 s35, s2, 3
    s_add_u32 s35, s35, s3
    s_cmp_lg_u32 s35, 0
    s_cbranch_scc1 L_A_fin
    s_mov_b32 s35, {hex(WS_EP)}
    v_mov_b32 v1, 0
    s_mov_b64 exec, 1
    buffer_store_dword v{TAG}, v1, s[12:15], s35 offen sc1
    s_mov_b64 exec, -1
L_A_fin:
    """)
    if opt.get('stamp'): k('s_waitcnt vmcnt(0)')
    G.stamp(15)
    G.flush(16)
    k('s_endpgm')

    k('L_B:')
    common2()
    k(f"""
    s_mul_i32 s39, s32, {KG_WAVE}
    s_add_u32 s39, s39, {L_KG}
    s_waitcnt vmcnt(9)
    """)
    G.stamp(1, '2')
    def wb(j, w): return G.st(2 + 2 * j, '2') + (f's_waitcnt vmcnt({w})\n' if w is not None else '') + G.st(3 + 2 * j, '2') + 's_barrier\n'
    k(w2stage(2) + wb(0, None) + w2stage(3))
    w1setup(18)
    k(f"""
    s_lshl_b32 s41, s31, 1
    v_mul_u32_u24 v7, {KG_ROW}, v0
    v_add_u32 v7, s39, v7
    v_lshrrev_b32 v1, 5, v0
    v_lshrrev_b32 v3, 2, v8
    v_lshl_add_u32 v1, v1, 2, v3
    v_mul_u32_u24 v1, {KG_ROW}, v1
    v_and_b32 v3, 1, v9
    v_lshl_add_u32 v1, v3, 5, v1
    v_and_b32 v3, 3, v0
    v_lshl_add_u32 v1, v3, 3, v1
    v_add_u32 v1, s39, v1
    """)
    k(wb(1, None) + w2stage(4))
    k(f"""
    s_lshl_b32 s35, s29, 2
    s_add_u32 s35, s35, s32
    s_mul_i32 s35, s35, 37
    v_min_u32 v15, 36, v0
    v_add_u32 v15, s35, v15
    v_min_u32 v15, 1023, v15
    v_lshrrev_b32 v16, 4, v15
    v_and_b32 v15, 15, v15
    v_lshlrev_b32 v15, 7, v15
    v_lshl_add_u32 v15, v16, 12, v15
    s_lshl_b32 s35, s28, 18
    s_add_u32 s35, s35, 2048
    v_add_u32 v15, s35, v15
    s_and_b32 s35, s28, 7
    s_lshl_b32 s35, s35, 2
    s_add_u32 s35, s35, s32
    s_mul_i32 s42, s35, {14*3584}
    s_lshl_b32 s35, s29, 8
    s_add_u32 s42, s42, s35
    v_min_u32 v16, 27, v0
    v_lshrrev_b32 v17, 1, v16
    v_mul_u32_u24 v17, 3584, v17
    v_and_b32 v16, 1, v16
    v_lshl_add_u32 v16, v16, 7, v17
    v_lshrrev_b32 v36, 2, v8
    v_lshl_add_u32 v36, v9, 3, v36         ; 8g + r
    v_lshrrev_b32 v37, 1, v36
    v_and_b32 v37, 7, v37
    v_and_b32 v38, 3, v0
    v_lshrrev_b32 v39, 1, v38
    s_lshl_b32 s35, s32, 1
    v_add_u32 v39, s35, v39
    v_xor_b32 v37, v37, v39
    v_lshlrev_b32 v37, 4, v37
    v_lshl_add_u32 v37, v36, 7, v37
    v_and_b32 v38, 1, v38
    v_lshl_add_u32 v37, v38, 3, v37
    s_add_u32 s35, s29, 7
    s_sub_u32 s35, s35, s31
    s_cmp_ge_u32 s35, 7
    s_cselect_b32 s63, 7, 0
    s_sub_u32 s35, s35, s63
    s_lshl_b32 s35, s35, 13
    s_add_u32 s35, s35, {L_X}
    v_add_u32 v37, s35, v37                ; hh = 0
    v_xor_b32 v38, 32, v37
    v_add_u32 v38, 512, v38                ; hh = 1
    v_lshlrev_b32 v39, 12, v8
    v_lshl_add_u32 v39, v9, 4, v39
    s_lshl_b32 s36, s29, 2
    s_add_u32 s36, s36, s32
    s_lshl_b32 s36, s36, 16
    s_lshl_b32 s35, s28, 7
    s_add_u32 s36, s36, s35
    s_add_u32 s36, s36, {hex(WS_UT)}
    s_lshl_b32 s37, s29, 5
    s_add_u32 s37, s37, s28
    s_lshl_b32 s37, s37, 2
    s_add_u32 s37, s37, s32
    s_lshl_b32 s37, s37, 2
    s_add_u32 s37, s37, {hex(WS_FU)}
    """)
    k(tagcalc)
    k(wb(2, 12) + w2stage(5) + wb(3, 12) + w2stage(6) + f'buffer_load_dword v{PRM+9}, v16, s[16:19], s42 offen')
    k(wb(4, 13) + w1dma(0, 18) + w1dma(1, 18) + wb(5, 11) + w1dma(2, 18) + w1dma(3, 18) + wb(6, 9) + w1dma(4, 18) + w1dma(5, 18))
    for hf in range(2):
        k(f'ds_read_b64_tr_b16 v[{52+4*hf}:{53+4*hf}], v37 offset:{4096*hf}\n ds_read_b64_tr_b16 v[{54+4*hf}:{55+4*hf}], v38 offset:{4096*hf}')
    k('s_waitcnt lgkmcnt(0)')
    k('s_barrier\n' + w1dma(6, 18) + w1dma(7, 18))
    for hf in range(2): k(f'buffer_store_dwordx4 v[{52+4*hf}:{55+4*hf}], v39, s[12:15], s36 offen offset:{64*hf} sc1')
    G.stamp(1)
    DP = 232; DT = PRM + 8
    def kgen(t, c):
        if c == 0:
            t(f'v_lshlrev_b32 v{DT}, 16, v{DT}\n v_mul_f32 v{DT}, {f32hex(L2E)}, v{DT}\n v_exp_f32 v{DT}, v{DT}')
            cvt(t, DT, DT, DT); lo(t, DT, DT)
        Z1_, Z8, Z256, Z2_, Z4 = 32, 35, 38, 41, 44
        V, PKD, XA_, XB_ = 128, 48, 56, 58
        p = PRM + 4 * c
        t(f"""
        v_lshlrev_b32 v{p}, 16, v{p}
        v_mul_f32 v{p}, {f32hex(L2E)}, v{p}
        v_exp_f32 v{p}, v{p}
        v_lshlrev_b32 v{p+1}, 16, v{p+1}
        v_lshlrev_b32 v{p+2}, 16, v{p+2}
        v_lshlrev_b32 v{p+3}, 16, v{p+3}
        v_cvt_pk_bf16_f32 v{p}, v{p}, v{p}
        v_mul_f32 v{p+1}, v{p+1}, v{DT}
        v_lshlrev_b32 v{p}, 16, v{p}
        v_mul_f32 v{p+1}, 0.15915494, v{p+1}
        v_mul_f32 v{p}, v{p}, v{DT}
        v_add_f32 v60, v{DT}, v{DT}
        v_mul_f32 v{p}, {f32hex(-L2E)}, v{p}
        v_mul_f32 v{XA_}, v{p+2}, v60
        v_mul_f32 v{XA_+1}, v{p+3}, v60
        """)
        for (d, e) in ((Z8, 8), (Z1_, 1), (Z256, 256)):
            t(f"""
            v_mul_f32 v60, {f32hex(float(e))}, v{p}
            v_mul_f32 v61, {f32hex(float(e))}, v{p+1}
            v_exp_f32 v60, v60
            v_fract_f32 v61, v61
            v_cos_f32 v{d}, v61
            v_sin_f32 v{d+1}, v61
            v_mul_f32 v{d}, v{d}, v60
            v_mul_f32 v{d+1}, v{d+1}, v60
            v_sub_f32 v{d+2}, 0, v{d+1}
            """)
        def put(q, vals, neg):
            for i in range(4):
                cvt(t, PKD + i, vals[2 * i], vals[2 * i + 1])
            t(f'ds_write_b128 v7, v[{PKD}:{PKD+3}] offset:{16*q}')
            n = '-' if neg else ''
            for i in range(4):
                t(f'v_cvt_pk_bf16_f32 v{PKD+4+i}, {n}v{vals[2*i]+1}, {n}v{vals[2*i+1]+1}')
            t(f'ds_write_b128 v7, v[{PKD+4}:{PKD+7}] offset:{64 + 16*q}')
        vs = [V + 2 * i for i in range(8)]
        t(f'v_mov_b32 v{V}, 1.0\n v_mov_b32 v{V+1}, 0')
        for q in range(4):
            for i in range(8):
                if q == 0 and i == 0: continue
                if q == 0 and i == 1: t(f'v_mov_b32 v{vs[1]}, v{Z8}\n v_mov_b32 v{vs[1]+1}, v{Z8+1}')
                else: cmul(t, vs[i], vs[i - 1], Z8)
            put(q, vs, True)
        cmul(t, Z2_, Z1_, Z1_); t(f'v_sub_f32 v{Z2_+2}, 0, v{Z2_+1}')
        cmul(t, Z4, Z2_, Z2_); t(f'v_sub_f32 v{Z4+2}, 0, v{Z4+1}')
        t('s_waitcnt lgkmcnt(0)')
        FB, FA = 64, 96
        def frags(F):
            for ks in range(8):
                t(f'ds_read_b64_tr_b16 v[{F+4*ks}:{F+4*ks+1}], v1 offset:{8*KG_ROW*ks}\n ds_read_b64_tr_b16 v[{F+4*ks+2}:{F+4*ks+3}], v1 offset:{8*KG_ROW*ks + 64}')
        frags(FB)
        cmul(t, vs[1], XA_, Z1_)
        for i in range(2, 8): cmul(t, vs[i], vs[i - 1], Z1_)
        t('s_waitcnt lgkmcnt(0)')
        put(0, [XA_] + vs[1:], False)
        cmul(t, XB_, XA_, Z256)
        cmul(t, vs[1], XB_, Z2_)
        for i in range(2, 5): cmul(t, vs[i], vs[i - 1], Z2_)
        put(1, [XB_, vs[1], vs[2], vs[2], vs[2], vs[3], vs[4], vs[4]], False)
        cmul(t, XA_, XB_, Z256); cmul(t, vs[0], XA_, Z4); cmul(t, vs[1], vs[0], Z4)
        cmul(t, XB_, XA_, Z256); cmul(t, vs[2], XB_, Z4); cmul(t, vs[3], vs[2], Z4)
        put(2, [XA_, vs[0], XB_, vs[2], vs[0], vs[1], vs[2], vs[3]], False)
        cmul(t, vs[0], XB_, Z256)
        for i in range(1, 4): cmul(t, vs[i], vs[i - 1], Z256)
        for i in range(4): cmul(t, vs[4 + i], vs[i], Z8)
        put(3, vs, False)
        t('s_waitcnt lgkmcnt(0)')
        frags(FA)
        for ks in range(8):
            t(f's_waitcnt lgkmcnt({14-2*ks})')
            cin = '0' if (ks == 0 and c == 0) else f'v[{DP}:{DP+15}]'
            t(f'v_mfma_f32_32x32x16_bf16 v[{DP}:{DP+15}], v[{FA+4*ks}:{FA+4*ks+3}], v[{FB+4*ks}:{FB+4*ks+3}], {cin}')
    t = K('w'); t('s_waitcnt vmcnt(2)'); post(t, 1); t(f'global_load_dword v{PRM+9}, v15, s[48:49]')
    t2 = f's_waitcnt vmcnt(1)\n v_mov_b32 v10, 0\n s_mov_b64 exec, 1\n buffer_store_dword v{TAG}, v10, s[12:15], s37 offen sc1\n s_mov_b64 exec, -1'
    k.lines += weave(sub(kgen, 0), [(float(opt.get('kgp', 0.12)), '\n'.join(t.lines)), (0.7, t2)])
    G.stamp(2)
    kgen(k, 1)
    G.stamp(5)
    k(f"""
    s_mul_i32 s38, s21, 4352
    s_lshl_b32 s23, s20, 12                ; ch*4096
    s_xor_b32 s35, s3, 1
    s_lshl_b32 s35, s35, 2
    v_add_u32 v21, s35, v22
    s_cmp_eq_u32 s22, 0
    s_cbranch_scc1 L_B_fin
    v_add_u32 v1, s39, v2
    """)
    for q in range(4): k(f'ds_write_b128 v1, v[{DP+4*q}:{DP+4*q+3}] offset:{1024*q}')
    k('s_waitcnt lgkmcnt(0)'); post(k, 100)
    k(f's_lshr_b32 s36, s20, 6\n s_lshl_b32 s36, s36, 9\n s_add_u32 s36, s36, {hex(WS_FU)}\n v_lshlrev_b32 v5, 3, v0')
    poll(k, 'pfu', 'buffer_load_dwordx2 v[32:33], v5, s[12:15], s36 offen sc1', [32, 33], nap=8)
    k(f"""
    s_add_u32 s44, s12, {hex(WS_UT)}
    s_addc_u32 s45, s13, 0
    s_add_u32 s44, s44, s23
    s_addc_u32 s45, s45, 0
    s_mov_b32 s46, 4096
    s_mov_b32 s47, 0x20000
    s_add_u32 s36, s38, {L_U}
    """)
    waitfor(k, 'wbb1', 16, 4, 100, 32)
    for q in range(5):
        k(f"""
        v_add_u32 v5, {64*q}, v0
        v_mul_u32_u24 v6, 3856, v5
        v_lshrrev_b32 v6, 16, v6
        v_sub_u32 v5, v5, v6
        v_lshlrev_b32 v5, 4, v5
        v_add_u32 v5, -16, v5
        s_add_u32 m0, s36, {q*1024}
        """)
        if q == 4: k('s_mov_b64 exec, 0xffff')
        k('buffer_load_dwordx4 v5, s[44:47], 0 offen sc1 lds')
    k('s_mov_b64 exec, -1\n s_waitcnt vmcnt(0)\n s_branch L_B_join')
    k(f'L_B_fin:\n s_add_u32 s35, s39, {KG_WAVE}\n v_add_u32 v1, s35, v2')
    waitfor(k, 'wbp', 0, 1, 100, 32, base=21)
    for q in range(4): k(f'ds_read_b128 v[{80+4*q}:{83+4*q}], v1 offset:{1024*q}')
    k(f"""
    v_and_b32 v5, 31, v0
    v_lshlrev_b32 v5, 4, v5
    v_lshrrev_b32 v7, 5, v0
    v_xor_b32 v6, 1, v7
    v_lshl_add_u32 v5, v6, 3, v5
    s_add_u32 s35, s38, {L_KI + 256}
    v_add_u32 v5, s35, v5                  ; KI + j*16 + 8*(1-h)
    v_lshlrev_b32 v6, 2, v0
    s_add_u32 s35, s38, {L_KI}
    v_add_u32 v6, s35, v6
    s_waitcnt lgkmcnt(0)
    """)
    post(k, 100)
    for i in range(8): pks(k, 'add', 64 + 2 * i, DP + 2 * i, 80 + 2 * i)
    k('v_cmp_eq_u32 vcc, 1, v7\n v_cndmask_b32 v80, v72, v73, vcc\n v_cndmask_b32 v81, v74, v75, vcc')
    k('v_and_b32 v7, 1, v0\n v_cmp_eq_u32 vcc, 1, v7')
    for i in range(4): k(f'v_mov_b32 v{84+i}, v{76+i}\n v_mov_b32 v{88+i}, v{76+i}')
    for i in range(4): k(f'v_permlane32_swap_b32 v{84+i}, v{88+i}')
    for i in range(4): k(f'v_cndmask_b32 v{84+i}, v{84+i}, v{76+i}, vcc')
    blks = [(67, 66, 65, 64), (70, 69, 68, 68), (73, 80, 72, 72), (75, 81, 74, 74)] + [(76 + i, 76 + i, 76 + i, 84 + i) for i in range(4)]
    for b, (a0, a1, a2, a3) in enumerate(blks): cvt(k, 96 + 2 * b, a0, a1); cvt(k, 97 + 2 * b, a2, a3)
    waitfor(k, 'wbb0', 16, 4, 100, 32)
    k('v_mov_b32 v3, 0\n ds_write_b32 v6, v3')
    for b in range(8): k(f'ds_write_b64 v5, v[{96+2*b}:{97+2*b}] offset:{512*b}')
    k('s_waitcnt vmcnt(0) lgkmcnt(0)\nL_B_join:')
    post(k, 101)
    k(f"""
    v_sub_u32 v5, v8, v9
    v_lshlrev_b32 v5, 4, v5
    s_add_u32 s35, s38, {L_KI + 64 + 15*256}
    v_add_u32 v5, s35, v5
    v_mul_u32_u24 v6, 272, v8
    v_lshl_add_u32 v7, v9, 4, v6
    s_add_u32 s35, s38, {L_U}
    v_add_u32 v7, s35, v7                  ; U: a*272 + g*16
    v_cmp_ne_u32 vcc, 8, v8
    v_cndmask_b32 v15, 0, -1, vcc
    """)
    waitfor(k, 'wbq', 0, 1, 101, 32, base=21)
    G.stamp(6)
    B_, B2, Wt, A_, AC, P = 32, 96, 128, 160, 192, 208
    for kk in range(4):
        k(f'ds_read_b128 v[{Wt+8*kk}:{Wt+8*kk+3}], v7 offset:{64*kk}\n ds_read_b128 v[{Wt+8*kk+4}:{Wt+8*kk+7}], v7 offset:{64*kk+16}')
    def cread(buf):
        for kk in range(4):
            r = A_ + buf * 16 + kk * 4
            k(f'ds_read_b128 v[{r}:{r+3}], v5 offset:{192 - 64*kk}')
        k('v_add_u32 v5, -256, v5')
    k('s_cmp_eq_u32 s22, 0\n s_waitcnt lgkmcnt(0)')
    post(k, 102)
    cread(0)
    k('s_cbranch_scc1 L_B_nosh')
    for kk in range(4):
        for j in range(6): k(f'v_mov_b32 v{Wt+8*kk+j}, v{Wt+8*kk+j+2}')
    k('L_B_nosh:')
    for kk in range(4):
        w = Wt + 8 * kk
        for rr in range(4):
            o = rr + 1
            for j in range(4):
                d = B_ + (kk * 4 + rr) * 4 + j
                if o % 2 == 0: k(f'v_mov_b32 v{d}, v{w + o//2 + j}')
                else: k(f'v_alignbit_b32 v{d}, v{w + (o+1)//2 + j}, v{w + (o-1)//2 + j}, 16')
    for kk in range(4):
        for p in range(2):
            for j in range(4): k(f'v_mov_b32 v{B2 + (kk*2+p)*4 + j}, v{B_ + (kk*4+2*p)*4 + j}')
    for kk in range(4):
        for p in range(2):
            for j in range(4):
                k(f'v_mov_b32_dpp v{B2 + (kk*2+p)*4 + j}, v{B_ + (kk*4+2*p+1)*4 + j} row_shr:8 row_mask:0xf bank_mask:0xc')
    for j in range(8): k(f'v_mov_b32 v{P+j}, 0')
    G.stamp(7)
    shp = lambda r: f'v_and_b32_dpp v{r}, v{r}, v15 row_shr:1 row_mask:0xf bank_mask:0xf bound_ctrl:1'
    shf = lambda r: f'v_mov_b32_dpp v{r}, v{r} row_shr:1 row_mask:0xf bank_mask:0xf bound_ctrl:1'
    k('s_mov_b32 s41, 0' + ('\n s_branch L_B_last' if opt.get('noconv') else '') + '\nL_B_pk:')
    for half in range(2):
        cread(1 - half)
        for j in range(4): k(shp(P + j))
        k('s_waitcnt lgkmcnt(4)')
        for kk in range(4): mfma(k, P, A_ + half * 16 + kk * 4, B2 + (kk * 2) * 4); k(shp(P + 4 + kk))
        for kk in range(4): mfma(k, P + 4, A_ + half * 16 + kk * 4, B2 + (kk * 2 + 1) * 4)
    k('s_add_u32 s41, s41, 1\n s_cmp_lt_u32 s41, 4\n s_cbranch_scc1 L_B_pk')
    for j in range(4): k(f'v_mov_b32_dpp v{AC + j}, v{P+j} row_shr:1 row_mask:0xf bank_mask:0xf bound_ctrl:1')
    for j in range(4): k(f'v_mov_b32_dpp v{AC + 4 + j}, v{P+j} row_shl:8 row_mask:0xf bank_mask:0xf bound_ctrl:1')
    for j in range(4): k(f'v_mov_b32 v{AC + 8 + j}, v{P+4+j}')
    for j in range(4): k(f'v_mov_b32_dpp v{AC + 12 + j}, v{P+4+j} row_shl:8 row_mask:0xf bank_mask:0xf bound_ctrl:1')
    k('s_mov_b32 s41, 0\nL_B_fl:')
    for half in range(2):
        cread(1 - half)
        k('s_waitcnt lgkmcnt(4)')
        for rr in range(4):
            if rr == 3 and half == 1: k('s_add_u32 s41, s41, 1\n s_cmp_eq_u32 s41, 4\n s_cbranch_scc1 L_B_last')
            for kk in range(4):
                mfma(k, AC + 4 * rr, A_ + half * 16 + kk * 4, B_ + (kk * 4 + rr) * 4)
                k(shf(AC + 4 * ((rr + 1) % 4) + kk))
    k('s_branch L_B_fl\nL_B_last:\n s_nop 1')
    for kk in range(4): mfma(k, AC + 12, A_ + 16 + kk * 4, B_ + (kk * 4 + 3) * 4)
    G.stamp(8)
    k(f"""
    s_lshl_b32 s35, s22, 3
    s_add_u32 s35, s35, s38
    s_add_u32 s35, s35, {L_U + 16}
    v_lshl_add_u32 v7, v9, 6, v6
    v_add_u32 v7, s35, v7                  ; U + a*272 + g*64 + 16 + 8hf
    s_lshl_b32 s35, s21, 4
    s_lshr_b32 s30, s30, s35
    s_lshl_b32 s30, s30, 16
    v_mov_b32 v18, s30
    v_mov_b32 v19, s30
    """)
    for i in range(4): k(f'ds_read_b64 v[{32+2*i}:{33+2*i}], v7 offset:{16*i}')
    waitfor(k, 'wbu', 0, 1, 102, 44, base=21)
    its = [(32 + 2 * i + p, AC + 8 * p + i, AC + 8 * p + 4 + i, 48 + 4 * (2 * i + p), 40 + 2 * i + p) for i in range(4) for p in range(2)]
    for u, y0, y1, t, y in its: cvt(k, y, y0, y1); lo(k, t, u); hi(k, t + 1, u)
    for u, y0, y1, t, y in its: pks(k, 'mul', t, t, 18)
    for u, y0, y1, t, y in its: cvt(k, u, t, t + 1); lo(k, t + 2, y); hi(k, t + 3, y)
    for u, y0, y1, t, y in its: lo(k, t, u); hi(k, t + 1, u)
    for u, y0, y1, t, y in its: pks(k, 'add', t, t, t + 2)
    for u, y0, y1, t, y in its: cvt(k, u, t, t + 1)
    for i in range(4): k(f'ds_write_b64 v7, v[{32+2*i}:{33+2*i}] offset:{16*i}')
    k(f"""
    s_lshl_b32 s35, s22, 3
    v_add_u32 v7, s35, v9
    v_mul_u32_u24 v7, 272, v7
    v_lshl_add_u32 v7, v8, 4, v7
    s_add_u32 s35, s38, {L_U + 16}
    v_add_u32 v7, s35, v7
    s_lshl_b32 s36, s22, 11
    s_add_u32 s36, s36, s23
    s_add_u32 s36, s36, {hex(WS_AT)}
    s_waitcnt lgkmcnt(0)
    """)
    post(k, 103)
    waitfor(k, 'wbr', 0, 1, 103, 32, base=21)
    k(f"""
    ds_read_b128 v[32:35], v7
    ds_read_b128 v[36:39], v7 offset:{4*272}
    s_waitcnt lgkmcnt(0)
    buffer_store_dwordx4 v[32:35], v2, s[12:15], s36 offen sc1
    buffer_store_dwordx4 v[36:39], v2, s[12:15], s36 offen offset:1024 sc1
    """)
    srd(k, 16, 52, 53, 896 * 896)
    k(f"""
    s_lshl_b32 s36, s20, 3
    s_lshl_b32 s35, s22, 2
    s_add_u32 s36, s36, s35
    s_add_u32 s36, s36, {hex(WS_FA)}
    v_lshrrev_b32 v3, 3, v0
    v_and_b32 v5, 6, v3
    v_and_b32 v6, 7, v0
    v_xor_b32 v5, v5, v6
    v_lshlrev_b32 v5, 4, v5
    v_mul_u32_u24 v6, 896, v3
    v_add_u32 v6, v6, v5
    v_lshl_add_u32 v7, v3, 12, v5
    """)
    k(f"""
    v_mov_b32 v1, 0
    s_waitcnt vmcnt(0)
    s_mov_b64 exec, 1
    buffer_store_dword v{TAG}, v1, s[12:15], s36 offen sc1
    s_mov_b64 exec, -1
    s_lshl_b32 s38, s29, 7
    s_mov_b32 s36, {hex(WS_FG)}
    s_lshl_b32 s35, s29, 9
    s_add_u32 s35, s35, {hex(WS_FA)}
    v_lshlrev_b32 v1, 3, v0
    """)
    G.stamp(9)
    k(f"""
    s_mul_i32 s42, s32, {8*896}
    s_add_u32 s42, s42, s38
    s_lshl_b32 s38, s32, 10
    s_add_u32 s39, s38, {24*4096}
    """)
    waitfor(k, 'wa24', 0, 4, 24, 32, sleep=8)
    wl = lambda n: f"""
L_B_w{n}:
    s_mov_b32 m0, s38
    s_add_u32 s38, s38, 4096
    buffer_load_dwordx4 v6, s[16:19], s42 offen lds
    s_add_u32 s42, s42, {32*896}
    s_cmp_lt_u32 s38, s39
    s_cbranch_scc1 L_B_w{n}
    """
    k(wl(0))
    k(f's_add_u32 s39, s39, {4*4096}')
    waitfor(k, 'wa25', 0, 4, 25, 32)
    k(wl(1))
    k('s_waitcnt vmcnt(0)')
    G.stamp(10)
    k('s_barrier')
    poll(k, 'pfa', 'buffer_load_dwordx2 v[32:33], v1, s[12:15], s35 offen sc1\n buffer_load_dwordx4 v[36:39], v2, s[12:15], s36 offen sc1', [32, 33, 36, 37, 38, 39], nap=4)
    k(f"""
    s_lshl_b32 s36, s29, 2
    s_add_u32 s36, s36, s32
    s_lshl_b32 s36, s36, 16
    s_lshl_b32 s35, s28, 7
    s_add_u32 s36, s36, s35
    s_add_u32 s36, s36, {hex(WS_AT)}
    s_lshl_b32 s40, s32, 11
    s_add_u32 m0, s40, {L_R}
    s_nop 0
    buffer_load_dwordx4 v7, s[12:15], s36 offen sc1 lds
    s_add_u32 s36, s36, 0x8000
    s_add_u32 m0, s40, {L_R + 1024}
    s_nop 0
    buffer_load_dwordx4 v7, s[12:15], s36 offen sc1 lds
    s_lshl_b32 s36, s28, 2
    s_add_u32 s36, s36, s32
    s_lshl_b32 s36, s36, 7
    s_add_u32 s36, s36, {hex(WS_G2)}
    s_lshl_b32 s40, s32, 7
    s_add_u32 m0, s40, {L_R + 8192}
    s_mov_b64 exec, 0xff
    buffer_load_dwordx4 v2, s[12:15], s36 offen sc1 lds
    s_mov_b64 exec, -1
    s_waitcnt vmcnt(0)
    """)
    G.stamp(11)
    k('s_barrier')
    G.flush(16)
    k('s_endpgm')

    k('L_helper:')
    k(f"""
    s_and_b32 s35, s3, 1
    s_cmp_eq_u32 s35, 1
    s_cbranch_scc0 L_H_even
    v_mov_b32 v6, v7
L_H_even:
    s_lshl_b32 s20, s28, 3
    s_add_u32 s20, s20, s3
    s_mul_i32 s20, s20, {8*896}
    s_lshl_b32 s21, s3, 10
    """)
    for p in range(7):
        k(f's_add_u32 m0, s21, {8192*p}\n buffer_load_dwordx4 v6, s[8:11], s20 offen lds\n s_add_u32 s20, s20, 128')
    k(f"""
    v_min_u32 v1, 55, v0
    v_lshlrev_b32 v10, 4, v1
    global_load_dwordx4 v[24:27], v10, s[54:55]
    s_getpc_b64 s[36:37]
L_pc:
    s_sub_u32 s36, s36, L_pc-{NAME}
    s_subb_u32 s37, s37, 0
    s_lshl_b32 s35, s3, 13
    v_lshlrev_b32 v10, 7, v0
    v_add_u32 v10, s35, v10
    v_min_u32 v10, L_end-{NAME}, v10
    global_load_dword v29, v10, s[36:37]
    v_lshlrev_b32 v5, 12, v0
    s_lshl_b32 s35, s28, 18
    s_lshl_b32 s22, s3, 7
    s_add_u32 s35, s35, s22
    v_add_u32 v5, s35, v5
    {'v_mov_b32 v5, 0' if opt.get('nohpf') else ''}
    v_lshrrev_b32 v10, 3, v1
    v_lshlrev_b32 v10, 13, v10
    v_and_b32 v1, 7, v1
    v_lshl_add_u32 v10, v1, 4, v10
    s_lshl_b32 s23, s28, 3
    s_add_u32 s23, s23, s3
    s_waitcnt vmcnt(1)
    """)
    k(tagcalc + '\n s_barrier')
    k('global_load_dword v29, v5, s[48:49]\n global_load_dword v29, v5, s[48:49] offset:1024')
    G.stamp(1)
    for i in range(8):
        k(f"""
        s_lshl_b32 s35, s3, 2
        s_add_u32 s35, s35, {i >> 1}
        s_and_b32 s35, s35, 7
        s_lshl_b32 s35, s35, 4
        v_xor_b32 v1, s35, v10
        v_add_u32 v1, s21, v1
        ds_read_b128 v[{64+4*i}:{67+4*i}], v1 offset:{128*i}
        """)
    for j in range(4): lo(k, 16 + 2 * j, 24 + j); hi(k, 17 + 2 * j, 24 + j)
    k('v_cmp_gt_u32 vcc, 56, v0\n s_waitcnt lgkmcnt(0)')
    for i in range(8):
        t = 96 + 8 * i
        for j in range(4): lo(k, t + 2 * j, 64 + 4 * i + j); hi(k, t + 2 * j + 1, 64 + 4 * i + j)
        for j in range(4): pk(k, 'mul', t + 2 * j, t + 2 * j, 16 + 2 * j)
        for j in range(4): cvt(k, 64 + 4 * i + j, t + 2 * j, t + 2 * j + 1)
        for j in range(4): lo(k, t + 2 * j, 64 + 4 * i + j); hi(k, t + 2 * j + 1, 64 + 4 * i + j)
        pk(k, 'add', t, t, t + 2); pk(k, 'add', t + 4, t + 4, t + 6); pk(k, 'add', t, t, t + 4)
        k(f'v_add_f32 v{t}, v{t}, v{t+1}\n v_cndmask_b32 v{32+i}, 0, v{t}, vcc')
    rowsum16(k, list(range(32, 40))); xsum4(k, list(range(32, 40)), 40)
    for i in range(1, 8): k(f'v_cmp_eq_u32 vcc, {i}, v0\n v_cndmask_b32 v32, v32, v{32+i}, vcc')
    cvt(k, 32, 32, 32); lo(k, 32, 32)
    k(f'v_mul_f32 v32, {f32hex(-L2E)}, v32\n v_exp_f32 v32, v32\n v_add_f32 v32, 1.0, v32\n v_rcp_f32 v32, v32')
    cvt(k, 32, 32, 32); lo(k, 32, 32)
    k('v_sub_f32 v33, 1.0, v32')
    cvt(k, 33, 33, 33); lo(k, 33, 33)
    k(f"""
    s_lshl_b32 s36, s23, 6
    s_add_u32 s36, s36, {hex(WS_G2)}
    s_lshl_b32 s35, s23, 2
    s_add_u32 s35, s35, {hex(WS_FG)}
    v_lshlrev_b32 v1, 3, v0
    s_mov_b64 exec, 0xff
    buffer_store_dwordx2 v[32:33], v1, s[12:15], s36 offen sc1
    s_waitcnt vmcnt(0)
    s_mov_b64 exec, 1
    buffer_store_dword v{TAG}, v1, s[12:15], s35 offen sc1
    s_mov_b64 exec, -1
    s_and_b32 s35, s28, 3
    s_lshl_b32 s35, s35, 3
    s_add_u32 s35, s35, s3
    s_mul_i32 s35, s35, {28*896}
    s_and_b32 s36, s2, 1
    s_mul_i32 s36, s36, 384
    s_add_u32 s35, s35, s36
    v_min_u32 v5, 55, v0
    v_lshrrev_b32 v1, 2, v5
    v_mul_u32_u24 v1, 896, v1
    v_and_b32 v5, 3, v5
    v_lshl_add_u32 v5, v5, 7, v1
    v_add_u32 v5, s35, v5
    global_load_dword v29, v5, s[52:53]
    v_add_u32 v5, {14*896}, v5
    global_load_dword v29, v5, s[52:53]
    """)
    G.stamp(2)
    K0 = int(opt.get('zk0', 6))
    k(f"""
    s_and_b32 s35, s2, 1
    s_mul_i32 s35, s35, 3
    s_add_u32 s35, s35, s32
    s_lshl_b32 s36, s35, 11
    s_add_u32 s36, s36, {hex(WS_FZ)}
    s_and_b32 s37, s28, 3
    s_lshl_b32 s37, s37, 1
    s_lshr_b32 s38, s3, 2
    s_add_u32 s37, s37, s38
    s_add_u32 s37, s37, {K0}
    s_lshl_b32 s37, s37, 13
    s_lshl_b32 s35, s35, 19
    s_add_u32 s37, s37, s35
    s_add_u32 s38, s35, {64*8192}
    v_lshlrev_b32 v1, 6, v0
    v_lshlrev_b32 v5, 7, v0
    """)
    if opt.get('zpf'):
        poll(k, 'hfz', 'buffer_load_dwordx4 v[32:35], v1, s[12:15], s36 offen sc1', [32, 33, 34, 35], lanes='s_mov_b32 exec_hi, 0', nap=4)
        k(f"""
L_H_z:
        buffer_load_dword v29, v5, s[12:15], s37 offen sc1
        s_add_u32 s37, s37, {8*8192}
        s_cmp_lt_u32 s37, s38
        s_cbranch_scc1 L_H_z
        """)
    if opt.get('stamp'): k('s_waitcnt vmcnt(0)')
    G.stamp(3)
    G.flush(4)
    k('L_end:\n s_endpgm')
    return k

if __name__ == '__main__':
    opt = dict(a.split('=') if '=' in a else (a, 1) for a in sys.argv[2:])
    k = gen(opt)
    v, s = k.maxreg()
    ref = open('gated_mix__ssm_conv_s4d__mixer_gmlp__prompt.s.ref').read().split('\n')
    hdr = [l for l in ref if l.startswith(';') and '@launch' not in l and 'Override launch' not in l and 'grid=ceil' not in l]
    txt = '\n'.join(hdr) + f'\n; @launch grid=(256,1,1) block=(512,1,1) lds={LDS}\n'
    txt += '.amdgcn_target "amdgcn-amd-amdhsa--gfx950"\n.text\n' + k.text(align=(opt.get('align', '1') == '1')) + '.section .rodata,"a"\n' + desc(k.name, v, s)
    open(sys.argv[1], 'w').write(txt)
    print('vgpr', v, 'sgpr', s, 'lines', len(k.lines))
```

```python
import sys, struct
from asmlib import *

NAME = 'gated_mix__ssm_conv_s4d__mixer_gmlp__prompt_kernel'
WS_Z2 = 0x000000
WS_H  = 0x380000
WS_UT = 0x700000
WS_AT = 0x8C0000
WS_G2 = 0xA80000
WS_ST = 0xA90000
WS_FZ = 0xAD0000
WS_FH = 0xAD4000
WS_FA = 0xAE4000
WS_FU = 0xAE5000
WS_FG = 0xAE5E00
WS_FG = 0xAE7000
WS_EP = 0xAE6000
WS_END = 0xAF0000
SZ_Z = 3670016
STAMP_BASE = 0x2000000
L_X = 65536
L_KG = 122880
KG_ROW = 144
KG_WAVE = 64 * KG_ROW
L_U = 131072
L_KI = L_U + 2 * 4352
L_R = L_KI + 2 * 4352
L_Z1 = L_U
L_CNT = 163840 - 48
LDS = 163840
L2E = 1.4426950408889634
PI = [4, 5, 2, 3, 6, 0, 1, 7]
PI_WORD = sum(v << (4 * i) for i, v in enumerate(PI))
TAG = 28
POLL_LIMIT = 1 << 16

def f32hex(x): return hex(struct.unpack('<I', struct.pack('<f', x))[0])

def srd(k, d, lo, hi, size, add=0):
    if add: k(f's_add_u32 s{d}, s{lo}, {hex(add)}\n s_addc_u32 s{d+1}, s{hi}, 0')
    else: k(f's_mov_b32 s{d}, s{lo}\n s_mov_b32 s{d+1}, s{hi}')
    k(f's_mov_b32 s{d+2}, {hex(size)}\n s_mov_b32 s{d+3}, 0x20000')

class Gen:
    def __init__(self, opt):
        self.opt = opt
        self.k = K(NAME)
    def st(self, idx, grp='1'):
        if str(self.opt.get('stamp')) == grp or (idx == 0 and self.opt.get('stamp')): return f's_memrealtime s[{64+2*idx}:{65+2*idx}]\n'
        return ''
    def stamp(self, idx, grp='1'):
        self.k(self.st(idx, grp))
        if grp == '1' and str(self.opt.get('stamp')) == '6' and idx in self.CL:
            j = self.CL.index(idx)
            self.k(f's_memrealtime s[{66+4*j}:{67+4*j}]\n s_memtime s[{68+4*j}:{69+4*j}]')
    CL = [1, 2, 3, 4, 10, 11, 14]
    def flush(self, n):
        k = self.k
        if not self.opt.get('stamp'): return
        k('s_waitcnt lgkmcnt(0)\n s_mov_b64 exec, 1')
        k(f's_lshl_b32 s60, s2, 3\n s_add_u32 s60, s60, s61\n s_lshl_b32 s60, s60, 6\n s_add_u32 s60, s60, {hex(STAMP_BASE)}')
        k('v_mov_b32 v1, 0')
        for i in range(n):
            k(f'v_mov_b32 v2, s{64+2*i}\n buffer_store_dword v2, v1, s[56:59], s60 offen offset:{4*i}')
        k('s_mov_b64 exec, -1')

def lo(k, d, s): k(f'v_lshlrev_b32 v{d}, 16, v{s}')
def hi(k, d, s): k(f'v_and_b32 v{d}, 0xffff0000, v{s}')
def cvt(k, d, a, b): k(f'v_cvt_pk_bf16_f32 v{d}, v{a}, v{b}')
def pk(k, op, d, a, b, c=None, mods=''):
    s = f'v_pk_{op}_f32 v[{d}:{d+1}], v[{a}:{a+1}], v[{b}:{b+1}]'
    if c is not None: s += f', v[{c}:{c+1}]'
    k(s + (' ' + mods if mods else ''))
def pks(k, op, d, a, b, c=None, neg=False, sc=True):
    if not sc:
        return pk(k, op, d, a, b, c, mods='neg_lo:[0,1] neg_hi:[0,1]' if neg else '')
    for i in range(2):
        if op == 'fma':
            k(f'v_fmac_f32 v{d+i}, v{a+i}, v{b+i}' if c == d else f'v_fma_f32 v{d+i}, v{a+i}, v{b+i}, v{c+i}')
        else: k(f"v_{'sub' if neg else op}_f32 v{d+i}, v{a+i}, v{b+i}")
def mfma(k, c, a, b, cin=None):
    k(f'v_mfma_f32_16x16x32_bf16 v[{c}:{c+3}], v[{a}:{a+3}], v[{b}:{b+3}], ' + (cin or f'v[{c}:{c+3}]'))

GC = 24
def gelu_consts(k):
    c0 = -2.0 * 0.7978845608028654 * L2E
    k(f'v_mov_b32 v24, {f32hex(c0*0.044715)}\n v_mov_b32 v25, {f32hex(c0*0.044715)}\n v_mov_b32 v26, {f32hex(c0)}\n v_mov_b32 v27, {f32hex(c0)}')
    k('v_mov_b32 v30, 1.0\n v_mov_b32 v31, 1.0')
def gelu_tiles(k, cs, t, sc=False):
    c0 = -2.0 * 0.7978845608028654 * L2E
    pairs = [(c + 2 * p, t + 4 * i + 2 * p) for i, c in enumerate(cs) for p in range(2)]
    for x, tt in pairs: cvt(k, tt, x, x + 1)
    for x, tt in pairs: lo(k, x, tt); hi(k, x + 1, tt)
    for x, tt in pairs: pks(k, 'mul', tt, x, x, sc=sc)
    for x, tt in pairs:
        if sc: k(f'v_fmaak_f32 v{tt}, v{tt}, v24, {f32hex(c0)}\n v_fmaak_f32 v{tt+1}, v{tt+1}, v24, {f32hex(c0)}')
        else: pk(k, 'fma', tt, tt, 24, 26)
    for x, tt in pairs: pks(k, 'mul', tt, tt, x, sc=sc)
    for x, tt in pairs: k(f'v_exp_f32 v{tt}, v{tt}\n v_exp_f32 v{tt+1}, v{tt+1}')
    for x, tt in pairs: pks(k, 'add', tt, tt, 30, sc=sc)
    for x, tt in pairs: k(f'v_rcp_f32 v{tt}, v{tt}\n v_rcp_f32 v{tt+1}, v{tt+1}')
    for x, tt in pairs: pks(k, 'mul', x, x, tt, sc=sc)

def rowsum16(k, regs):
    for sh in (8, 4, 2, 1):
        for r in regs: k(f'v_add_f32_dpp v{r}, v{r}, v{r} row_ror:{sh} row_mask:0xf bank_mask:0xf')
def xsum4(k, regs, t):
    for sw in ('16', '32'):
        for i, r in enumerate(regs): k(f'v_mov_b32 v{t+i}, v{r}')
        for i, r in enumerate(regs): k(f'v_permlane{sw}_swap_b32 v{r}, v{t+i}')
        for i, r in enumerate(regs): k(f'v_add_f32 v{r}, v{r}, v{t+i}')
def cmul(k, d, x, w):
    k(f'v_mul_f32 v{d}, v{x}, v{w}\n v_mul_f32 v{d+1}, v{x+1}, v{w}\n v_fmac_f32 v{d}, v{x+1}, v{w+2}\n v_fmac_f32 v{d+1}, v{x}, v{w+1}')

def poll(k, name, loads, regs, lanes=None, first_issued=False, wait0='s_waitcnt vmcnt(0)', nap=0):
    k(f's_mov_b32 s62, {POLL_LIMIT}')
    if lanes: k(lanes)
    if first_issued: k(f'{wait0}\n s_branch L_{name}_chk')
    k(f'L_{name}:')
    k(loads)
    k(f's_waitcnt vmcnt(0)\nL_{name}_chk:')
    k(f'v_cmp_ne_u32 vcc, v{TAG}, v{regs[0]}')
    for r in regs[1:]:
        k(f'v_cmp_ne_u32 s[54:55], v{TAG}, v{r}\n s_or_b64 vcc, vcc, s[54:55]')
    k(f's_cbranch_vccz L_{name}_ok\n' + (f's_sleep {nap}\n' if nap else '') + f's_sub_u32 s62, s62, 1\n s_cbranch_scc0 L_{name}\nL_{name}_ok:')
    if lanes: k('s_mov_b64 exec, -1')

def post(k, val, addr=29, tmp=23):
    k(f'v_mov_b32 v{tmp}, {val}\n ds_write_b32 v{addr}, v{tmp}')
def waitfor(k, name, off, n, val, t, base=22, sleep=True):
    k(f's_mov_b32 s62, {POLL_LIMIT*16}\nL_{name}:')
    if n == 4:
        k(f'ds_read_b128 v[{t}:{t+3}], v{base} offset:{off}\n s_waitcnt lgkmcnt(0)\n v_min3_u32 v{t}, v{t}, v{t+1}, v{t+2}\n v_min_u32 v{t}, v{t}, v{t+3}')
    else:
        k(f'ds_read_b32 v{t}, v{base} offset:{off}\n s_waitcnt lgkmcnt(0)')
    k(f'v_cmp_gt_u32 vcc, {val}, v{t}\n s_cbranch_vccz L_{name}_ok')
    if sleep: k(f's_sleep {int(sleep)}')
    k(f's_sub_u32 s62, s62, 1\n s_cbranch_scc0 L_{name}\nL_{name}_ok:')

def weave(lines, events):
    out = []; n = len(lines); ev = sorted(events, key=lambda e: e[0]); j = 0
    for i, l in enumerate(lines):
        while j < len(ev) and ev[j][0] * n <= i:
            out += [x.strip() for x in ev[j][1].split('\n') if x.strip()]; j += 1
        out.append(l)
    while j < len(ev):
        out += [x.strip() for x in ev[j][1].split('\n') if x.strip()]; j += 1
    return out

def sub(fn, *a):
    t = K('t'); fn(t, *a); return t.lines

def gen(opt):
    G = Gen(opt); k = G.k
    D = 8
    ZF = '' if opt.get('nosc1') else 'sc1'
    npf = int(opt.get('pfcode', 3))
    k(f"""
    s_cmp_ge_u32 s2, 256
    s_cbranch_scc1 L_end
    s_load_dwordx2 s[8:9], s[0:1], 0       ; x
    s_load_dwordx2 s[16:17], s[0:1], 64    ; w_in
    s_load_dwordx2 s[12:13], s[0:1], 120   ; ws
    s_load_dwordx8 s[36:43], s[0:1], 8
    s_load_dwordx4 s[44:47], s[0:1], 40
    s_load_dwordx8 s[48:55], s[0:1], 72
    s_load_dwordx2 s[26:27], s[0:1], 104   ; out
    v_lshrrev_b32 v1, 6, v0
    v_and_b32 v0, 63, v0
    v_readfirstlane_b32 s3, v1             ; wave
    s_lshr_b32 s30, s2, 3                  ; j
    s_and_b32 s29, s2, 1
    s_lshl_b32 s29, s29, 2                 ; 4*par
    s_and_b32 s31, s30, 3
    s_add_u32 s31, s31, s29
    s_lshr_b32 s35, s30, 3
    s_add_u32 s29, s29, s35
    s_and_b32 s35, s30, 7
    s_cmp_lt_u32 s30, 24
    s_cselect_b32 s31, s35, s31            ; tb&7
    s_cselect_b32 s29, s29, 3
    s_cmp_ge_u32 s30, 28
    s_cselect_b32 s29, 7, s29
    s_and_b32 s28, s2, 6
    s_lshl_b32 s28, s28, 2
    s_add_u32 s28, s28, s31
    s_min_u32 s31, s31, 6
    s_and_b32 s32, s3, 3
    v_and_b32 v8, 15, v0
    v_lshrrev_b32 v9, 4, v0
    v_lshlrev_b32 v10, 1, v9
    v_xor_b32 v10, v10, v8
    v_lshlrev_b32 v10, 4, v10
    v_mul_u32_u24 v11, 3584, v9
    v_add_u32 v10, v10, v11
    v_add_u32 v11, {4*3584}, v10
    v_xor_b32 v12, 128, v10
    v_add_u32 v12, {8*3584}, v12
    v_add_u32 v13, {4*3584}, v12
    s_mul_i32 s33, s32, {16*3584}
    s_lshl_b32 s34, s29, 8
    s_add_u32 s33, s33, s34
    s_add_u32 s33, s33, 1792
    s_lshl_b32 s34, s32, 12
    v_lshrrev_b32 v21, 3, v0
    v_and_b32 v20, 7, v0
    v_lshrrev_b32 v5, 1, v21
    v_xor_b32 v20, v20, v5
    v_lshlrev_b32 v20, 4, v20
    v_mul_u32_u24 v6, 896, v21
    v_add_u32 v6, v6, v20
    v_xor_b32 v7, 64, v6
    v_add_u32 v4, {8*896}, v7
    s_lshl_b32 s24, s28, 2
    s_add_u32 s24, s24, s32
    s_mul_i32 s24, s24, {16*896}
    s_lshl_b32 s25, s32, 11
    s_add_u32 s25, s25, {L_X}
    s_mov_b32 s10, {2048*896}
    s_mov_b32 s11, 0x20000
    s_mov_b32 s14, {hex(WS_END)}
    s_mov_b32 s15, 0x20000
    s_mov_b32 s18, {448*3584}
    s_mov_b32 s19, 0x20000
    s_mov_b32 s5, {hex(WS_EP)}
    s_cmp_eq_u32 s29, 7
    s_waitcnt lgkmcnt(0)
    """)
    if opt.get('stamp'):
        k('s_mov_b32 s61, s3'); G.stamp(0); srd(k, 56, 12, 13, 0x4000000)
    k(f"""
    s_load_dword s4, s[12:13], s5
    s_cbranch_scc1 L_helper
    s_cmp_lt_u32 s3, 4
    s_cbranch_scc1 L_A
    """)
    k(f"""
    v_mul_u32_u24 v1, 896, v8
    s_lshl_b32 s20, s29, 7
    s_add_u32 s20, s20, s24
    s_mov_b64 exec, 0xffff
    buffer_load_dword v209, v1, s[8:11], s20 offen
    s_mov_b64 exec, -1
    s_mul_i32 s20, s28, 7
    s_add_u32 s20, s20, s29                ; m
    s_lshr_b32 s21, s32, 1                 ; c2
    s_and_b32 s22, s32, 1                  ; hf
    s_lshl_b32 s23, s20, 2
    s_load_dword s30, s[46:47], s23
    s_lshl_b32 s20, s20, 1
    s_add_u32 s20, s20, s21                ; channel
    s_lshl_b32 s23, s20, 9
    s_lshl_b32 s35, s22, 8
    s_add_u32 s23, s23, s35
    v_lshlrev_b32 v1, 1, v0
    v_add_u32 v1, s23, v1
    """)
    PRM = 200
    for c in range(2):
        for i in range(4): k(f'global_load_ushort v{PRM+4*c+i}, v1, s[{36+2*i}:{37+2*i}] offset:{128*c}')
    k(f"""
    s_lshl_b32 s23, s20, 1
    v_mov_b32 v1, s23
    global_load_ushort v{PRM+8}, v1, s[44:45]
    """)
    G.stamp(1, '3')
    k('s_branch L_B')
    def w2parts(j):
        h = f's_add_u32 s35, s31, {j}\n s_cmp_ge_u32 s35, 7\n s_cselect_b32 s63, 7, 0\n s_sub_u32 s35, s35, s63\n s_lshl_b32 s63, s35, 7\n s_add_u32 s63, s63, s24\n'
        p = [h + f's_add_u32 m0, s25, {j * 8192}\n s_mul_i32 s35, s35, {64*3584}\n buffer_load_dwordx4 v6, s[8:11], s63 offen lds\n',
             f's_add_u32 m0, s25, {j * 8192 + 1024}\n s_add_u32 s35, s35, s33\n buffer_load_dwordx4 v4, s[8:11], s63 offen lds\n']
        for q in range(4):
            p.append(f's_add_u32 m0, s34, {(j & 3) * 16384 + q * 1024}\n buffer_load_dwordx4 v{10+q}, s[16:19], s35 offen lds\n')
        return p
    def w2stage(j): return ''.join(w2parts(j))
    def common2():
        k(f"""
        v_lshlrev_b32 v2, 4, v0
        v_mov_b32 v22, {L_CNT}
        s_lshl_b32 s35, s3, 2
        v_add_u32 v29, s35, v22
        """)
    tagcalc = f's_waitcnt lgkmcnt(0)\n s_mul_i32 s4, s4, 0x9E3779B1\n s_add_u32 s4, s4, 0x7F4A7C15\n v_mov_b32 v{TAG}, s4'
    def w1setup(r):
        k(f"""
        v_lshrrev_b32 v{r}, 2, v0
        v_mul_u32_u24 v{r}, 3584, v{r}
        v_lshrrev_b32 v{r+1}, 4, v0
        v_and_b32 v{r+1}, 2, v{r+1}
        v_xor_b32 v{r+1}, v{r+1}, v0
        v_and_b32 v{r+1}, 3, v{r+1}
        v_lshl_add_u32 v{r}, v{r+1}, 4, v{r}
        v_add_u32 v{r+1}, {16*3584}, v{r}
        s_lshl_b32 s38, s29, 8
        s_lshl_b32 s35, s32, 6
        s_add_u32 s38, s38, s35
        s_lshl_b32 s40, s32, 11
        """)
    def w1off(i): return [3, 0, 1, 2][(i % 8) >> 1] * 16384 + (i & 1) * 8192
    def w1dma(i, r):
        off = w1off(i)
        return (f's_mul_i32 s35, s41, {32*3584}\n s_add_u32 s35, s35, s38\n s_add_u32 m0, s40, {off}\n s_add_u32 s41, s41, 1\n'
                f'buffer_load_dwordx4 v{r}, s[16:19], s35 offen lds\n s_add_u32 m0, s40, {off+1024}\n s_cmp_eq_u32 s41, 14\n'
                f'buffer_load_dwordx4 v{r+1}, s[16:19], s35 offen lds\n s_cselect_b32 s41, 0, s41\n')
    k('L_A:')
    k(w2stage(0)); k(w2stage(1))
    if opt.get('prio', '1') != '0': k(f"s_setprio {opt.get('prio', 1)}")
    srd(k, 36, 50, 51, 4096)
    k('v_lshlrev_b32 v1, 1, v8\n s_lshl_b32 s35, s28, 7')
    BSP = [228, 229, 230, 231]
    for tt in range(4): k(f'buffer_load_ushort v{BSP[tt]}, v1, s[36:39], s35 offen offset:{32*tt}')
    common2()
    WA = 168
    k(f"""
    v_mov_b32 v23, 0
    ds_write_b32 v29, v23
    ds_write_b32 v29, v23 offset:16
    v_mov_b32 v23, 6
    ds_write_b32 v29, v23 offset:32
    v_lshrrev_b32 v14, 1, v8
    v_xor_b32 v14, v14, v9
    v_lshlrev_b32 v14, 4, v14
    v_lshl_add_u32 v14, v8, 7, v14
    v_add_u32 v14, s25, v14
    v_xor_b32 v15, 64, v14
    v_lshrrev_b32 v16, 2, v0
    v_and_b32 v17, 7, v16
    v_lshlrev_b32 v17, 5, v17
    v_and_b32 v16, 3, v16
    v_lshl_add_u32 v16, v9, 3, v16         ; 8g + r
    v_and_b32 v19, 3, v0
    v_lshlrev_b32 v18, 3, v19
    v_lshl_add_u32 v18, v16, 8, v18
    """)
    for ft in range(8): k(f'v_xor_b32 v{WA+ft}, {32*ft}, v17\n v_add_u32 v{WA+ft}, v{WA+ft}, v18')
    gelu_consts(k)
    w1setup(224)
    k(f"""
    v_lshlrev_b32 v226, 6, v16
    v_lshl_add_u32 v226, v19, 3, v226
    v_and_b32 v227, 1, v9
    v_lshl_add_u32 v226, v227, 5, v226     ; row*64 + (p ^ (g&1))*32 + 8c  (p = 0)
    v_xor_b32 v227, 32, v226
    v_add_u32 v226, s40, v226
    v_add_u32 v227, s40, v227
    s_lshl_b32 s41, s31, 1
    s_add_u32 s41, s41, 8
    s_cmp_ge_u32 s41, 14
    s_cselect_b32 s35, 14, 0
    s_sub_u32 s41, s41, s35
    s_lshl_b32 s35, s32, 2
    v_add_u32 v5, s35, v22
    """)
    XF, WF, ACC, T, CK1 = 32, 88, 120, 152, 40
    G.stamp(14, '2')
    k('s_waitcnt vmcnt(10) lgkmcnt(0)')
    G.stamp(15, '2')
    k(tagcalc + '\n s_barrier')
    G.stamp(1); G.stamp(1, '2')
    def wread(gi):
        ks = gi >> 1
        for f in range(4):
            for hh in range(2):
                r = WF + (gi & 1) * 16 + f * 4 + hh * 2
                k(f'ds_read_b64_tr_b16 v[{r}:{r+1}], v{WA + 4 * (gi & 1) + f} offset:{((ks >> 1) & 3) * 16384 + (ks & 1) * 8192 + hh * 1024}')
    def xread(i):
        k(f'ds_read_b128 v[{XF+4*(i&1)}:{XF+4*(i&1)+3}], v{14 + (i & 1)} offset:{(i >> 1) * 8192}')
    xread(0); wread(0)
    for gi in range(28):
        ks = gi >> 1; j = gi >> 2
        if gi % 4 == 3:
            k('s_waitcnt lgkmcnt(0)' + (' vmcnt(0)' if j == 0 else ''))
            if j < 6: G.stamp(2 + 2 * j, '2')
            k('s_barrier')
            if j < 6:
                G.stamp(3 + 2 * j, '2'); xread(ks + 1); wread(gi + 1)
        else:
            nx = 0
            if gi % 4 == 0: xread(ks + 1); nx = 1
            wread(gi + 1); k(f's_waitcnt lgkmcnt({8 + nx})')
        for f in range(4):
            mfma(k, ACC + 16 * (gi & 1) + 4 * f, XF + 4 * (ks & 1), WF + (gi & 1) * 16 + f * 4, '0' if ks == 0 else None)
    G.stamp(2)
    S, Q = 88, 92
    def z2epi(t):
        for h in range(2):
            cs = [ACC + 16 * h + 4 * f for f in range(4)]
            gelu_tiles(t, cs, T)
            prs = [(c + 2 * p, T + 2 * i + p) for i, c in enumerate(cs) for p in range(2)]
            for x, tt in prs: cvt(t, tt, x, x + 1)
            for x, tt in prs: lo(t, x, tt); hi(t, x + 1, tt)
            for i, c in enumerate(cs):
                for p in range(2):
                    if h == 0 and i == 0: pk(t, 'mul', Q + 2 * p, c + 2 * p, c + 2 * p)
                    else: pk(t, 'fma', Q + 2 * p, c + 2 * p, c + 2 * p, Q + 2 * p)
                    if h == 0 and i == 0: pass
                    elif h == 0 and i == 1: pk(t, 'add', S + 2 * p, ACC + 2 * p, c + 2 * p)
                    else: pk(t, 'add', S + 2 * p, S + 2 * p, c + 2 * p)
    z2epi(k)
    rowsum16(k, list(range(S, S + 8)))
    k(f"""
    v_cmp_eq_u32 vcc, 1, v19
    v_cndmask_b32 v{T}, v{S}, v{S+1}, vcc
    v_cndmask_b32 v{T+2}, v{Q}, v{Q+1}, vcc
    v_cmp_eq_u32 vcc, 2, v19
    v_cndmask_b32 v{T}, v{T}, v{S+2}, vcc
    v_cndmask_b32 v{T+2}, v{T+2}, v{Q+2}, vcc
    v_cmp_eq_u32 vcc, 3, v19
    v_cndmask_b32 v{T}, v{T}, v{S+3}, vcc
    v_cndmask_b32 v{T+2}, v{T+2}, v{Q+3}, vcc
    v_mov_b32 v{T+1}, v{TAG}
    v_mov_b32 v{T+3}, v{TAG}
    v_lshl_add_u32 v18, v9, 2, v19
    v_lshlrev_b32 v18, 4, v18              ; row*16
    s_lshl_b32 s24, s28, 2
    s_add_u32 s24, s24, s32
    s_lshl_b32 s24, s24, 11
    s_add_u32 s24, s24, {hex(WS_ST)}
    s_lshl_b32 s35, s29, 8
    s_add_u32 s35, s35, s24
    s_mov_b32 exec_lo, 0x000f000f
    s_mov_b32 exec_hi, 0x000f000f
    buffer_store_dwordx4 v[{T}:{T+3}], v18, s[12:15], s35 offen sc1
    s_mov_b64 exec, -1
    v_min_u32 v18, 2, v9
    v_lshlrev_b32 v18, 8, v18
    v_lshl_add_u32 v18, v8, 4, v18
    """)
    G.stamp(3)
    def spdma(j, dyn=False, slot=0):
        vv, off = ((10, 0), (12, 1024), (11, 8192), (13, 9216))[j]
        t = f's_add_u32 m0, s43, {off + slot * 16384}\n buffer_load_dwordx4 v{vv}, s[8:11], s42 offen lds\n'
        if j == 3:
            t += 's_add_u32 s42, s42, 256\n'
            if dyn: t += 's_lshr_b64 s[40:41], s[40:41], 4\n s_and_b32 s43, s40, 15\n s_lshl_b32 s43, s43, 3\n s_add_u32 s43, s43, s32\n s_lshl_b32 s43, s43, 11\n'
        return t
    A1, FR, ZP = 176, 64, 208
    k(f"""
    s_lshl_b32 s35, s32, 11
    v_subrev_u32 v14, s35, v14
    v_subrev_u32 v15, s35, v15
    """)
    srd(k, 8, 48, 49, 0x800000)
    k(f"""
    v_lshl_add_u32 v10, v21, 12, v20
    v_add_u32 v11, 128, v10
    v_xor_b32 v12, 64, v10
    v_add_u32 v12, 0x8000, v12
    v_add_u32 v13, 128, v12
    s_lshl_b32 s42, s28, 2
    s_add_u32 s42, s42, s32
    s_lshl_b32 s42, s42, 16                ; (64*tb + 16*a)*4096
    s_lshl_b32 s43, s32, 11
    """)
    def z1read(i):
        b = FR + (i & 1) * 24
        for p in range(2):
            for hh in range(2):
                k(f'ds_read_b64_tr_b16 v[{b+4*p+2*hh}:{b+4*p+2*hh+1}], v{226 + p} offset:{w1off(i) + 256*hh}')
        for tt in range(4):
            r = b + 8 + 4 * tt
            k(f'ds_read_b128 v[{r}:{r+3}], v{14 + (i & 1)} offset:{(i >> 1) * 8192 + tt * 2048}')
    G.stamp(1, '5')
    waitfor(k, 'wb1', 16, 1, 1, 32, base=5, sleep=False)
    G.stamp(2, '5')
    PL = 32; S, Q = 44, 48
    NP = int(opt.get('np', 7))
    stload = f'buffer_load_dwordx4 v[{PL}:{PL+3}], v2, s[12:15], s24 offen sc1\n buffer_load_dwordx4 v[{PL+4}:{PL+7}], v18, s[12:15], s24 offen offset:1024 sc1'
    def normalise():
        poll(k, 'pst', stload, [PL + 1, PL + 3, PL + 5, PL + 7], first_issued=True)
        G.stamp(5)
        k(f"""
        v_cmp_gt_u32 vcc, 3, v9
        v_cndmask_b32 v{PL+4}, 0, v{PL+4}, vcc
        v_cndmask_b32 v{PL+6}, 0, v{PL+6}, vcc
        v_add_f32 v40, v{PL}, v{PL+4}
        v_add_f32 v41, v{PL+2}, v{PL+6}
        """)
        xsum4(k, [40, 41], 42)
        k(f"""
        v_mul_f32 v40, {f32hex(1/896)}, v40
        v_mul_f32 v41, {f32hex(1/896)}, v41
        v_fma_f32 v41, -v40, v40, v41
        v_max_f32 v41, 0, v41
        """)
        cvt(k, 40, 40, 41); hi(k, 41, 40); lo(k, 40, 40)
        k(f'v_add_f32 v41, {f32hex(1e-5)}, v41')
        cvt(k, 41, 41, 41); lo(k, 41, 41)
        k('v_sqrt_f32 v41, v41')
        cvt(k, 41, 41, 41); lo(k, 41, 41)
        k('v_rcp_f32 v41, v41\n v_lshlrev_b32 v53, 4, v9')
        for r in range(4):
            k(f'ds_bpermute_b32 v{S+r}, v53, v40 offset:{4*r}\n ds_bpermute_b32 v{Q+r}, v53, v41 offset:{4*r}')
        k(f"""
        s_lshl_b32 s24, s29, 6
        s_lshl_b32 s25, s28, 1
        s_add_u32 s24, s24, s25
        s_lshr_b32 s25, s32, 1
        s_add_u32 s24, s24, s25
        s_lshl_b32 s24, s24, 13
        s_and_b32 s25, s32, 1
        s_lshl_b32 s25, s25, 9
        s_add_u32 s24, s24, s25
        s_add_u32 s25, s24, 4096
        v_lshrrev_b32 v53, 1, v9
        v_lshlrev_b32 v53, 8, v53
        v_lshl_add_u32 v53, v8, 4, v53
        v_and_b32 v54, 1, v9
        v_lshl_add_u32 v53, v54, 10, v53
        s_waitcnt lgkmcnt(0)
        """)
        for h in range(2):
            cs = [ACC + 16 * h + 4 * f for f in range(4)]
            prs = [(c + 2 * p, T + 8 * h + 2 * i + p, p) for i, c in enumerate(cs) for p in range(2)]
            for x, t, p in prs: pks(k, 'add', x, x, S + 2 * p, neg=True, sc=bool(opt.get('sca')))
            for x, t, p in prs: cvt(k, t, x, x + 1)
            for x, t, p in prs: lo(k, x, t); hi(k, x + 1, t)
            for x, t, p in prs: pks(k, 'mul', x, x, Q + 2 * p, sc=bool(opt.get('sca')))
            for x, t, p in prs: cvt(k, t, x, x + 1)
            for pr in range(2):
                o = T + 8 * h + 4 * pr
                k(f'v_permlane16_swap_b32 v{o}, v{o+2}\n v_permlane16_swap_b32 v{o+1}, v{o+3}')
            for pr in range(2):
                o = T + 8 * h + 4 * pr
                k(f'buffer_store_dwordx4 v[{o}:{o+3}], v53, s[12:15], s{24+h} offen offset:{2048*pr} sc1')

    CK1 = 56
    posts = {3: 5, 7: 6, 9: 7, 11: 8}; checks = {6: 5, 8: 6, 12: 7}
    pre = {6: [(0, 0), (0, 1)], 7: [(0, 2), (0, 3)], 8: [(1, 0), (1, 1)], 9: [(1, 2), (1, 3)], 10: [(2, 0), (2, 1)], 11: [(2, 2), (2, 3)], 12: [(3, 0), (3, 1)], 13: [(3, 2), (3, 3)]}
    assert NP == 7
    spins = []
    z1read(0)
    for i in range(14):
        if i in checks: k(f'ds_read_b128 v[{CK1}:{CK1+3}], v22')
        if i < 13:
            if i == 7: k('s_waitcnt vmcnt(14)')
            z1read(i + 1); k('s_waitcnt lgkmcnt(8)')
        else:
            k('s_waitcnt lgkmcnt(0)'); post(k, 9)
        if i in posts: post(k, posts[i])
        b = FR + (i & 1) * 24
        if i < 13: G.stamp(3 + i, '5')
        for p in range(2):
            for tt in range(4):
                mfma(k, A1 + (p * 4 + tt) * 4, b + 4 * p, b + 8 + 4 * tt, '0' if i == 0 else None)
                if p == 0 and i in checks:
                    k([f'v_min3_u32 v{CK1}, v{CK1}, v{CK1+1}, v{CK1+2}', f'v_min_u32 v{CK1}, v{CK1}, v{CK1+3}', f'v_cmp_gt_u32 vcc, {checks[i]}, v{CK1}',
                       f's_cbranch_vccnz L_z1_spin{i}\nL_z1_ok{i}:'][tt])
            if p == 0 and i < 6: k(w1dma(8 + i, 224))
            if i in pre: st, j = pre[i][p]; k(spdma(j, slot=PI[st]))
        if i in checks: spins.append((f'L_z1_spin{i}', f'L_z1_ok{i}', CK1, 0, checks[i]))
        if i == NP - 2: k(stload)
        if i == NP:
            G.stamp(4); normalise(); G.stamp(6)
        if i == NP + 3:
            k(f"""
            s_lshl_b32 s24, s29, 11
            s_add_u32 s24, s24, {hex(WS_FZ)}
            s_lshl_b32 s35, s28, 6
            s_lshl_b32 s25, s32, 2
            s_add_u32 s35, s35, s25
            v_mov_b32 v53, s35
            s_waitcnt vmcnt(6)
            s_mov_b64 exec, 1
            buffer_store_dword v{TAG}, v53, s[12:15], s24 offen sc1
            s_mov_b64 exec, -1
            """)
            G.stamp(7)
    waitfor(k, 'wa9', 0, 4, 9, 32, sleep=False)
    for st in range(4, 7):
        for j in range(4): k(spdma(j, slot=PI[st]))
    srd(k, 16, 12, 13, SZ_Z)
    ACC2, W, Z, CK = 32, 64, 96, 160
    k(f"""
    v_lshlrev_b32 v19, 6, v0
    s_lshl_b32 s33, s29, 19
    s_lshl_b32 s35, s32, 11
    s_add_u32 s34, s33, s35                ; fb*64*8192 + w*2048
    v_lshrrev_b32 v20, 1, v8
    v_xor_b32 v20, v20, v9
    v_lshlrev_b32 v20, 4, v20
    v_lshl_add_u32 v20, v8, 7, v20
    v_xor_b32 v21, 64, v20
    v_add_u32 v17, {PI[0]*16384}, v20
    v_add_u32 v18, {PI[0]*16384}, v21
    v_add_u32 v14, 8192, v2
    v_add_u32 v15, 16384, v2
    v_add_u32 v16, 24576, v2
    s_mov_b32 s38, {hex(PI_WORD)}
    s_mov_b32 s39, {hex(PI_WORD)}
    s_mov_b32 s36, 10                      ; 10 + stage
    """)
    ZV = [2, 14, 15, 16]
    for i in range(32): k(f'v_mov_b32 v{ACC2+i}, 0')
    G.stamp(8)
    k('s_cmp_lg_u32 s3, 0\n s_cbranch_scc1 L_nofz')
    poll(k, 'pfz', f'buffer_load_dwordx4 v[{CK}:{CK+3}], v19, s[12:15], s24 offen sc1', [CK, CK + 1, CK + 2, CK + 3], lanes='s_mov_b32 exec_hi, 0', nap=int(opt.get('nap', 1)))
    k('L_nofz:\n s_waitcnt vmcnt(0)')
    post(k, 10)
    waitfor(k, 'wa10', 0, 4, 10, CK, sleep=False)
    G.stamp(9)
    adv = f's_add_u32 s34, s34, {4*8192}'
    def zld(n, ft):
        r = Z + (n % D) * 8 + ft * 4
        k(f'buffer_load_dwordx4 v[{r}:{r+3}], v{ZV[n%4]}, s[16:19], s34 offen offset:{1024*ft} {ZF}')
    for n in range(D):
        zld(n, 0); zld(n, 1)
        if n % 4 == 3: k(adv)
    def w2read(n, tt):
        ks = n & 3
        r = W + (n & 1) * 16 + tt * 4
        k(f'ds_read_b128 v[{r}:{r+3}], v{17 + (ks & 1)} offset:{(ks >> 1) * 8192 + tt * 2048}')
    for tt in range(4): w2read(0, tt)
    G.stamp(10)
    def z1epi(t):
        for h in range(2):
            for q in range(2):
                cs = [A1 + 16 * h + 8 * q + 4 * f for f in range(2)]
                gelu_tiles(t, cs, 232 + 8 * q, sc=True)
                for f in range(2):
                    for p in range(2): cvt(t, ZP + 4 * (2 * q + f) + 2 * h + p, cs[f] + 2 * p, cs[f] + 2 * p + 1)
    extra = sub(z1epi)
    NPEEL = int(opt.get('peel', 3)); per = -(-len(extra) // (NPEEL * 64))
    def body(name, ride, last):
        for n in range(8):
            k(f's_waitcnt vmcnt({(D-1)*2 - (2*n if last else 0)}) lgkmcnt(0)')
            fill = [[] for _ in range(8)]
            if n % 4 == 0:
                fill[4] = ['ds_write_b32 v29, v23']
                if opt.get('stamp') == '4':
                    for it in range(8):
                        st = 2 * it + n // 4
                        if st: fill[5].append(f's_cmp_lg_u32 s36, {10+st}\n s_cbranch_scc1 L_t{name}{n}_{it}\n s_memrealtime s[{64+2*st}:{65+2*st}]\nL_t{name}{n}_{it}:')
            if not (last and n > 3):
                if n % 4 == 1:
                    fill[4] = [f'ds_read_b128 v[{CK}:{CK+3}], v22 offset:32', 'v_add_u32 v23, 1, v23']
                    fill[5] = ['s_lshr_b64 s[38:39], s[38:39], 4\n s_and_b32 s37, s38, 15\n s_lshl_b32 s37, s37, 14']
                if n % 4 == 2:
                    fill[4] = [f'v_min3_u32 v{CK}, v{CK}, v{CK+1}, v{CK+2}', 's_sub_u32 s35, s36, 9']
                    fill[5] = [f'v_min_u32 v{CK}, v{CK}, v{CK+3}', 'v_add_u32 v17, s37, v20']
                    fill[6] = [f'v_cmp_gt_u32 vcc, s35, v{CK}']
                    fill[7] = [f's_cbranch_vccnz L_{name}_spin{n}\nL_{name}_ok{n}:']
                    spins.append((f'L_{name}_spin{n}', f'L_{name}_ok{n}', CK, 32, 's35'))
                if n % 4 == 3: fill[4] += ['v_add_u32 v18, s37, v21']
            for ft in range(2):
                for tt in range(4):
                    mfma(k, ACC2 + (ft * 4 + tt) * 4, Z + (n % D) * 8 + ft * 4, W + (n & 1) * 16 + tt * 4)
                    if ft == 0 and not (last and n == 7): w2read(n + 1, tt)
                    for x in fill[4 * ft + tt]: k(x)
                    if ride:
                        for _ in range(per):
                            if extra: k(extra.pop(0))
                if not last: zld(n, ft)
            if n % 4 == 3: k(adv + '\n s_add_u32 s36, s36, 1')
    for it in range(NPEEL): body(f'pa{it}', True, False)
    assert not extra
    k('L_p2:')
    body('pb', False, False)
    k('s_cmp_lt_u32 s36, 24\n s_cbranch_scc1 L_p2')
    body('pc', False, True)
    k('s_branch L_p2_done')
    for a, b, c, off, val in spins:
        k(f"""
{a}:
        s_mov_b32 s62, {POLL_LIMIT*16}
{a}b:
        ds_read_b128 v[{c}:{c+3}], v22 offset:{off}
        s_waitcnt lgkmcnt(0)
        v_min3_u32 v{c}, v{c}, v{c+1}, v{c+2}
        v_min_u32 v{c}, v{c}, v{c+3}
        v_cmp_gt_u32 vcc, {val}, v{c}
        s_cbranch_vccz {b}
        s_sub_u32 s62, s62, 1
        s_cbranch_scc0 {a}b
        s_branch {b}
        """)
    k('L_p2_done:')
    G.stamp(11); G.stamp(1, '7'); G.stamp(1, '9')
    k(f"""
    s_mul_i32 s24, s28, {4*28}
    s_lshl_b32 s36, s29, 2
    s_add_u32 s36, s36, s32                ; kk
    s_add_u32 s24, s24, s36
    s_lshl_b32 s24, s24, 10
    s_add_u32 s24, s24, {hex(WS_H)}
    """)
    Z1R = ZP
    for tt in range(4): lo(k, BSP[tt], BSP[tt])
    for tt in range(4):
        for ft in range(2):
            for r in range(4): k(f'v_add_f32 v{ACC2+(ft*4+tt)*4+r}, v{ACC2+(ft*4+tt)*4+r}, v{BSP[tt]}')
    for tt in range(4):
        o = 96 + 24 * tt
        its = [(ACC2 + (ft * 4 + tt) * 4 + 2 * p, Z1R + 4 * tt + 2 * ft + p, o + 4 + 4 * (2 * ft + p), o + 2 * ft + p) for ft in range(2) for p in range(2)]
        for a, z, t, d in its: cvt(k, d, a, a + 1)
        for a, z, t, d in its: lo(k, t, z); hi(k, t + 1, z); lo(k, t + 2, d); hi(k, t + 3, d)
        for a, z, t, d in its: pk(k, 'mul', t, t, t + 2)
        for a, z, t, d in its: cvt(k, d, t, t + 1)
        k(f'buffer_store_dwordx4 v[{o}:{o+3}], v2, s[12:15], s24 offen sc1')
        if tt < 3: k(f's_add_u32 s24, s24, {28*1024}')
    G.stamp(12); G.stamp(2, '7')
    srd(k, 16, 26, 27, 2048 * 896)
    HB, AC3, A3 = 32, 144, 160
    HD = int(opt.get('hd', 6))
    NA = int(opt.get('na', 16))
    def p3setup(half):
        k(f"""
        s_lshl_b32 s33, s28, 2
        s_add_u32 s33, s33, s32                ; tt
        s_lshl_b32 s37, s28, 11
        s_add_u32 s37, s37, {hex(WS_FH)}
        s_mul_i32 s34, s33, {28*1024}
        s_add_u32 s34, s34, {hex(WS_H + half * NA * 1024)}
        v_lshrrev_b32 v10, 2, v0
        v_lshrrev_b32 v4, 1, v10
        v_and_b32 v4, 3, v4
        v_lshlrev_b32 v21, 5, v4
        v_and_b32 v13, 3, v0
        v_lshlrev_b32 v13, 3, v13
        v_lshl_add_u32 v13, v10, 7, v13
        s_lshl_b32 s35, s32, 12
        s_add_u32 s35, s35, {7*16384}
        v_add_u32 v14, s35, v2
        v_lshlrev_b32 v19, 6, v0
        """)
        for dt in range(4):
            k(f'v_xor_b32 v{192+dt}, {32*dt}, v21\n v_add_u32 v{192+dt}, v{192+dt}, v13')
            if half: k(f'v_add_u32 v{192+dt}, {NA*32*128}, v{192+dt}')
    def p3gemm(name, NK, hook=None):
        def aread(kk):
            for dt in range(4):
                for hh in range(2):
                    r = A3 + (kk & 1) * 16 + dt * 4 + hh * 2
                    k(f'ds_read_b64_tr_b16 v[{r}:{r+1}], v{192 + dt} offset:{(32 * kk + 16 * hh) * 128}')
        if name:
            k('s_cmp_lg_u32 s3, 0\n s_cbranch_scc1 L_nofh')
            poll(k, name, 'buffer_load_dword v20, v19, s[12:15], s37 offen sc1', [20], lanes='s_mov_b32 exec_lo, 0x0fffffff\n s_mov_b32 exec_hi, 0', nap=int(opt.get('nap', 1)))
            k('L_nofh:'); G.stamp(3, '9')
        k('s_barrier')
        G.stamp(13); G.stamp(6, '7'); G.stamp(9, '9')
        def hload(kk):
            k(f'buffer_load_dwordx4 v[{HB+4*kk}:{HB+4*kk+3}], v2, s[12:15], s34 offen offset:{1024*(kk%4)} {ZF}')
            if kk % 4 == 3: k('s_add_u32 s34, s34, 4096')
        for kk in range(HD): hload(kk)
        aread(0)
        for kk in range(NK):
            if kk < NK - 1: aread(kk + 1)
            k(f's_waitcnt vmcnt({min(HD - 1, NK - 1 - kk)}) lgkmcnt({8 if kk < NK - 1 else 0})')
            if kk in (0, 4, 8): G.stamp(7 + kk // 4, '7')
            for dt in range(4):
                mfma(k, AC3 + 4 * dt, A3 + (kk & 1) * 16 + dt * 4, HB + 4 * kk, '0' if kk == 0 else None)
            if kk + HD < NK: hload(kk + HD)
            if kk == 0 and hook: hook()
    p3setup(0)
    k(f"""
    s_lshl_b32 s36, s36, 6
    v_mov_b32 v12, s36
    {G.st(3, '7')}
    s_waitcnt vmcnt(0)
    {G.st(4, '7')}
    {G.st(2, '9')}
    s_mov_b64 exec, 1
    buffer_store_dword v{TAG}, v12, s[12:15], s37 offen sc1
    s_mov_b64 exec, -1
    s_waitcnt lgkmcnt(0)
    """)
    p3gemm('pfh', NA)
    G.stamp(14); G.stamp(11, '7')
    k(f"""
    s_lshl_b32 s36, s32, 5
    v_xor_b32 v12, s36, v21
    v_add_u32 v12, v12, v13
    v_add_u32 v12, {L_R}, v12
    s_lshl_b32 s36, s32, 7
    s_add_u32 s36, s36, {L_R + 8192}
    v_lshlrev_b32 v11, 3, v8
    v_add_u32 v11, s36, v11
    s_barrier
    {G.st(12, '7')}
    ds_read_b64 v[4:5], v11
    """)
    for dt in range(4): k(f'ds_read_b128 v[{96+4*dt}:{99+4*dt}], v14 offset:{1024*dt}')
    for dt in range(4): k(f'ds_read_b64_tr_b16 v[{32+2*dt}:{33+2*dt}], v12 offset:{2048*dt}')
    k(f"""
    v_mul_u32_u24 v10, 896, v8
    v_lshrrev_b32 v11, 1, v9
    v_lshl_add_u32 v10, v11, 4, v10
    v_and_b32 v11, 1, v9
    v_lshl_add_u32 v10, v11, 5, v10        ; t*896 + (g>>1)*16 + (g&1)*32
    s_mul_i32 s36, s33, {16*896}
    s_lshl_b32 s37, s29, 7
    s_add_u32 s36, s36, s37
    s_waitcnt lgkmcnt(0)
    v_mov_b32 v6, v4
    v_mov_b32 v7, v4
    v_mov_b32 v4, v5
    """)
    for i in range(8): pk(k, 'add', AC3 + 2 * i, AC3 + 2 * i, 96 + 2 * i)
    its = [(AC3 + 4 * dt + 2 * p, 32 + 2 * dt + p, 48 + 4 * (2 * dt + p)) for dt in range(4) for p in range(2)]
    for c, a, t in its: cvt(k, c, c, c + 1)
    for c, a, t in its: lo(k, t, a); hi(k, t + 1, a); lo(k, t + 2, c); hi(k, t + 3, c)
    for c, a, t in its: pk(k, 'mul', t, t, 6); pk(k, 'mul', t + 2, t + 2, 4)
    for c, a, t in its: cvt(k, a, t, t + 1); cvt(k, c, t + 2, t + 3)
    for c, a, t in its: lo(k, t, a); hi(k, t + 1, a); lo(k, t + 2, c); hi(k, t + 3, c)
    for c, a, t in its: pk(k, 'add', t, t, t + 2)
    for c, a, t in its: cvt(k, a, t, t + 1)
    for pr in range(2):
        o = 32 + 4 * pr
        k(f'v_permlane16_swap_b32 v{o}, v{o+2}\n v_permlane16_swap_b32 v{o+1}, v{o+3}')
    for pr in range(2):
        o = 32 + 4 * pr
        k(f'buffer_store_dwordx4 v[{o}:{o+3}], v10, s[16:19], s36 offen offset:{64*pr}')
    k(f"""
    s_lshl_b32 s35, s2, 3
    s_add_u32 s35, s35, s3
    s_cmp_lg_u32 s35, 0
    s_cbranch_scc1 L_A_fin
    s_mov_b32 s35, {hex(WS_EP)}
    v_mov_b32 v1, 0
    s_mov_b64 exec, 1
    buffer_store_dword v{TAG}, v1, s[12:15], s35 offen sc1
    s_mov_b64 exec, -1
L_A_fin:
    """)
    G.stamp(13, '7')
    if opt.get('stamp'): k('s_waitcnt vmcnt(0)')
    G.stamp(15); G.stamp(14, '7')
    G.flush(16)
    k('s_endpgm')

    k('L_B:')
    common2()
    k(f"""
    s_mul_i32 s39, s32, {KG_WAVE}
    s_add_u32 s39, s39, {L_KG}
    """)
    k(tagcalc)
    G.stamp(1, '2')
    def wb(j, w): return G.st(2 + 2 * j, '2') + (f's_waitcnt vmcnt({w})\n' if w is not None else '') + G.st(3 + 2 * j, '2') + 's_barrier\n'
    k(wb(0, None) + w2stage(2))
    w1setup(18)
    k(f"""
    s_lshl_b32 s41, s31, 1
    v_mul_u32_u24 v7, {KG_ROW}, v0
    v_add_u32 v7, s39, v7
    v_lshrrev_b32 v1, 5, v0
    v_lshrrev_b32 v3, 2, v8
    v_lshl_add_u32 v1, v1, 2, v3
    v_mul_u32_u24 v1, {KG_ROW}, v1
    v_and_b32 v3, 1, v9
    v_lshl_add_u32 v1, v3, 5, v1
    v_and_b32 v3, 3, v0
    v_lshl_add_u32 v1, v3, 3, v1
    v_add_u32 v1, s39, v1
    """)
    k(wb(1, None) + w2stage(3) + w2stage(4))
    k(f"""
    s_and_b32 s35, s28, 7
    s_lshl_b32 s35, s35, 2
    s_add_u32 s35, s35, s32
    s_mul_i32 s42, s35, {14*3584}
    s_lshl_b32 s35, s29, 8
    s_add_u32 s42, s42, s35
    v_min_u32 v16, 27, v0
    v_lshrrev_b32 v17, 1, v16
    v_mul_u32_u24 v17, 3584, v17
    v_and_b32 v16, 1, v16
    v_lshl_add_u32 v16, v16, 7, v17
    v_lshrrev_b32 v156, 2, v8
    v_lshl_add_u32 v156, v9, 3, v156         ; 8g + r
    v_lshrrev_b32 v157, 1, v156
    v_and_b32 v157, 7, v157
    v_and_b32 v158, 3, v0
    v_lshrrev_b32 v159, 1, v158
    s_lshl_b32 s35, s32, 1
    v_add_u32 v159, s35, v159
    v_xor_b32 v157, v157, v159
    v_lshlrev_b32 v157, 4, v157
    v_lshl_add_u32 v157, v156, 7, v157
    v_and_b32 v158, 1, v158
    v_lshl_add_u32 v157, v158, 3, v157
    s_add_u32 s35, s29, 7
    s_sub_u32 s35, s35, s31
    s_cmp_ge_u32 s35, 7
    s_cselect_b32 s63, 7, 0
    s_sub_u32 s35, s35, s63
    s_lshl_b32 s35, s35, 13
    s_add_u32 s35, s35, {L_X}
    v_add_u32 v157, s35, v157                ; hh = 0
    v_xor_b32 v158, 32, v157
    v_add_u32 v158, 512, v158                ; hh = 1
    v_lshlrev_b32 v159, 12, v8
    v_lshl_add_u32 v159, v9, 4, v159
    s_lshl_b32 s36, s29, 2
    s_add_u32 s36, s36, s32
    s_lshl_b32 s36, s36, 16
    s_lshl_b32 s35, s28, 7
    s_add_u32 s36, s36, s35
    s_add_u32 s36, s36, {hex(WS_UT)}
    s_lshl_b32 s37, s29, 5
    s_add_u32 s37, s37, s28
    s_lshl_b32 s37, s37, 2
    s_add_u32 s37, s37, s32
    s_lshl_b32 s37, s37, 2
    s_add_u32 s37, s37, {hex(WS_FU)}
    """)
    da = float(opt.get('kga', 0.06)); db = float(opt.get('kgb', 0.09))
    k('s_waitcnt vmcnt(18)')
    d0 = float(opt.get('kg0', 0.0))
    EV = [(d0, wb(2, 12) + w2stage(5)), (d0 + da, wb(3, 12) + w2stage(6) + f'buffer_load_dword v{PRM+9}, v16, s[16:19], s42 offen'),
          (d0 + 2 * da, wb(4, 13) + w1dma(0, 18) + w1dma(1, 18)),
          (d0 + 2 * da + db, wb(5, 11) + w1dma(2, 18) + w1dma(3, 18)),
          (d0 + 2 * da + 2 * db, wb(6, 9) + w1dma(4, 18) + w1dma(5, 18))]
    t = K('w')
    for hf in range(2):
        t(f'ds_read_b64_tr_b16 v[{160+4*hf}:{161+4*hf}], v157 offset:{4096*hf}\n ds_read_b64_tr_b16 v[{162+4*hf}:{163+4*hf}], v158 offset:{4096*hf}')
    t('s_waitcnt lgkmcnt(0)')
    t('s_barrier\n' + w1dma(6, 18) + w1dma(7, 18))
    for hf in range(2): t(f'buffer_store_dwordx4 v[{160+4*hf}:{163+4*hf}], v159, s[12:15], s36 offen offset:{64*hf} sc1')
    t(G.st(1))
    EV.append((d0 + 2 * da + 3 * db, t.lines))
    DP = 232; DT = PRM + 8
    def kgen(t, c, hook=None):
        if c == 0:
            t(f'v_lshlrev_b32 v{DT}, 16, v{DT}\n v_mul_f32 v{DT}, {f32hex(L2E)}, v{DT}\n v_exp_f32 v{DT}, v{DT}')
            cvt(t, DT, DT, DT); lo(t, DT, DT)
        Z1_, Z8, Z256, Z2_, Z4 = 32, 35, 38, 41, 44
        V, PKD, XA_, XB_ = 128, 48, 56, 58
        p = PRM + 4 * c
        t(f"""
        v_lshlrev_b32 v{p}, 16, v{p}
        v_mul_f32 v{p}, {f32hex(L2E)}, v{p}
        v_exp_f32 v{p}, v{p}
        v_lshlrev_b32 v{p+1}, 16, v{p+1}
        v_lshlrev_b32 v{p+2}, 16, v{p+2}
        v_lshlrev_b32 v{p+3}, 16, v{p+3}
        v_cvt_pk_bf16_f32 v{p}, v{p}, v{p}
        v_mul_f32 v{p+1}, v{p+1}, v{DT}
        v_lshlrev_b32 v{p}, 16, v{p}
        v_mul_f32 v{p+1}, 0.15915494, v{p+1}
        v_mul_f32 v{p}, v{p}, v{DT}
        v_add_f32 v60, v{DT}, v{DT}
        v_mul_f32 v{p}, {f32hex(-L2E)}, v{p}
        v_mul_f32 v{XA_}, v{p+2}, v60
        v_mul_f32 v{XA_+1}, v{p+3}, v60
        """)
        for (d, e) in ((Z8, 8), (Z1_, 1), (Z256, 256)):
            t(f"""
            v_mul_f32 v60, {f32hex(float(e))}, v{p}
            v_mul_f32 v61, {f32hex(float(e))}, v{p+1}
            v_exp_f32 v60, v60
            v_fract_f32 v61, v61
            v_cos_f32 v{d}, v61
            v_sin_f32 v{d+1}, v61
            v_mul_f32 v{d}, v{d}, v60
            v_mul_f32 v{d+1}, v{d+1}, v60
            v_sub_f32 v{d+2}, 0, v{d+1}
            """)
        def put(q, vals, neg):
            for i in range(4):
                cvt(t, PKD + i, vals[2 * i], vals[2 * i + 1])
            t(f'ds_write_b128 v7, v[{PKD}:{PKD+3}] offset:{16*q}')
            n = '-' if neg else ''
            for i in range(4):
                t(f'v_cvt_pk_bf16_f32 v{PKD+4+i}, {n}v{vals[2*i]+1}, {n}v{vals[2*i+1]+1}')
            t(f'ds_write_b128 v7, v[{PKD+4}:{PKD+7}] offset:{64 + 16*q}')
        vs = [V + 2 * i for i in range(8)]
        t(f'v_mov_b32 v{V}, 1.0\n v_mov_b32 v{V+1}, 0')
        for q in range(4):
            for i in range(8):
                if q == 0 and i == 0: continue
                if q == 0 and i == 1: t(f'v_mov_b32 v{vs[1]}, v{Z8}\n v_mov_b32 v{vs[1]+1}, v{Z8+1}')
                else: cmul(t, vs[i], vs[i - 1], Z8)
            if q == 0 and hook: hook(t)
            put(q, vs, True)
        cmul(t, Z2_, Z1_, Z1_); t(f'v_sub_f32 v{Z2_+2}, 0, v{Z2_+1}')
        cmul(t, Z4, Z2_, Z2_); t(f'v_sub_f32 v{Z4+2}, 0, v{Z4+1}')
        t('s_waitcnt lgkmcnt(0)')
        FB, FA = 64, 96
        def frags(F):
            for ks in range(8):
                t(f'ds_read_b64_tr_b16 v[{F+4*ks}:{F+4*ks+1}], v1 offset:{8*KG_ROW*ks}\n ds_read_b64_tr_b16 v[{F+4*ks+2}:{F+4*ks+3}], v1 offset:{8*KG_ROW*ks + 64}')
        frags(FB)
        cmul(t, vs[1], XA_, Z1_)
        for i in range(2, 8): cmul(t, vs[i], vs[i - 1], Z1_)
        t('s_waitcnt lgkmcnt(0)')
        put(0, [XA_] + vs[1:], False)
        cmul(t, XB_, XA_, Z256)
        cmul(t, vs[1], XB_, Z2_)
        for i in range(2, 5): cmul(t, vs[i], vs[i - 1], Z2_)
        put(1, [XB_, vs[1], vs[2], vs[2], vs[2], vs[3], vs[4], vs[4]], False)
        cmul(t, XA_, XB_, Z256); cmul(t, vs[0], XA_, Z4); cmul(t, vs[1], vs[0], Z4)
        cmul(t, XB_, XA_, Z256); cmul(t, vs[2], XB_, Z4); cmul(t, vs[3], vs[2], Z4)
        put(2, [XA_, vs[0], XB_, vs[2], vs[0], vs[1], vs[2], vs[3]], False)
        cmul(t, vs[0], XB_, Z256)
        for i in range(1, 4): cmul(t, vs[i], vs[i - 1], Z256)
        for i in range(4): cmul(t, vs[4 + i], vs[i], Z8)
        put(3, vs, False)
        t('s_waitcnt lgkmcnt(0)')
        frags(FA)
        for ks in range(8):
            t(f's_waitcnt lgkmcnt({14-2*ks})')
            cin = '0' if (ks == 0 and c == 0) else f'v[{DP}:{DP+15}]'
            t(f'v_mfma_f32_32x32x16_bf16 v[{DP}:{DP+15}], v[{FA+4*ks}:{FA+4*ks+3}], v[{FB+4*ks}:{FB+4*ks+3}], {cin}')
    EV[-1] = (EV[-1][0], '\n'.join(EV[-1][1]))
    t = K('w'); t('s_waitcnt vmcnt(2)'); post(t, 1)
    t2 = f's_waitcnt vmcnt(0)\n v_mov_b32 v10, 0\n s_mov_b64 exec, 1\n buffer_store_dword v{TAG}, v10, s[12:15], s37 offen sc1\n s_mov_b64 exec, -1'
    f7 = EV[-1][0]
    B_, B2, A_, Wt, UR, AC, P = 32, 80, 112, 144, 168, 176, 192
    fuload = 'buffer_load_dwordx2 v[176:177], v5, s[12:15], s36 offen sc1'
    t3 = f"""
    s_lshr_b32 s36, s20, 6
    s_lshl_b32 s36, s36, 9
    s_add_u32 s36, s36, {hex(WS_FU)}
    v_lshlrev_b32 v5, 3, v0
    {fuload}
    s_lshl_b32 s23, s20, 12                ; ch*4096
    s_add_u32 s44, s12, {hex(WS_UT)}
    s_addc_u32 s45, s13, 0
    s_add_u32 s44, s44, s23
    s_addc_u32 s45, s45, 0
    s_mov_b32 s46, 4096
    s_mov_b32 s47, 0x20000
    """
    for q in range(5):
        t3 += f'v_add_u32 v{180+q}, {64*q}, v0\n v_mul_u32_u24 v6, 3856, v{180+q}\n v_lshrrev_b32 v6, 16, v6\n v_sub_u32 v{180+q}, v{180+q}, v6\n v_lshlrev_b32 v{180+q}, 4, v{180+q}\n v_add_u32 v{180+q}, -16, v{180+q}\n'
    t3 += f"""
    v_mul_u32_u24 v6, 272, v8
    s_lshl_b32 s35, s22, 3
    s_add_u32 s35, s35, s39
    v_lshl_add_u32 v185, v9, 4, v6
    v_add_u32 v185, s35, v185              ; a*272 + g*16 + 8hf
    v_lshl_add_u32 v186, v9, 6, v6
    v_add_u32 v186, s35, v186              ; a*272 + g*64 + 8hf
    """
    k.lines += weave(sub(kgen, 0), EV + [(f7 + float(opt.get('kgp', 0.06)), '\n'.join(t.lines)), (min(f7 + float(opt.get('kgu', 0.2)), 0.9), t2), (0.93, t3)])
    G.stamp(2)
    if opt.get('kprio'): k(f"s_setprio {opt['kprio']}")
    poll(k, 'pfu', fuload, [176, 177], nap=2, first_issued=True)
    for q in range(5):
        k(f's_add_u32 m0, s39, {q*1024}')
        if q == 4: k('s_mov_b64 exec, 0xffff')
        k(f'buffer_load_dwordx4 v{180+q}, s[44:47], 0 offen sc1 lds')
    k('s_mov_b64 exec, -1')
    G.stamp(3)
    def uhook(t):
        t('s_waitcnt vmcnt(0)')
        for kk in range(4):
            for m in range(3): t(f'ds_read_b64 v[{Wt+6*kk+2*m}:{Wt+6*kk+2*m+1}], v185 offset:{64*kk + 8*m}')
        t('s_waitcnt lgkmcnt(8)')
        for i in range(4): t(f'ds_read_b64 v[{UR+2*i}:{UR+2*i+1}], v186 offset:{16 + 16*i}')
        t('s_waitcnt lgkmcnt(0)')
    kgen(k, 1, uhook)
    G.stamp(5)
    k(f"""
    s_mul_i32 s38, s21, 4352
    s_xor_b32 s35, s3, 1
    s_lshl_b32 s35, s35, 2
    v_add_u32 v21, s35, v22
    s_cmp_eq_u32 s22, 0
    s_cbranch_scc1 L_B_fin
    v_add_u32 v1, s39, v2
    """)
    for q in range(4): k(f'ds_write_b128 v1, v[{DP+4*q}:{DP+4*q+3}] offset:{1024*q}')
    k('s_waitcnt lgkmcnt(0)'); post(k, 100)
    k('s_branch L_B_join')
    k(f'L_B_fin:\n s_add_u32 s35, s39, {KG_WAVE}\n v_add_u32 v1, s35, v2')
    waitfor(k, 'wbp', 0, 1, 100, 32, base=21)
    for q in range(4): k(f'ds_read_b128 v[{80+4*q}:{83+4*q}], v1 offset:{1024*q}')
    k(f"""
    v_and_b32 v5, 31, v0
    v_lshlrev_b32 v5, 4, v5
    v_lshrrev_b32 v7, 5, v0
    v_xor_b32 v6, 1, v7
    v_lshl_add_u32 v5, v6, 3, v5
    s_add_u32 s35, s38, {L_KI + 256}
    v_add_u32 v5, s35, v5                  ; KI + j*16 + 8*(1-h)
    v_lshlrev_b32 v6, 2, v0
    s_add_u32 s35, s38, {L_KI}
    v_add_u32 v6, s35, v6
    s_waitcnt lgkmcnt(0)
    """)
    post(k, 100)
    for i in range(8): pks(k, 'add', 64 + 2 * i, DP + 2 * i, 80 + 2 * i)
    k('v_cmp_eq_u32 vcc, 1, v7\n v_cndmask_b32 v80, v72, v73, vcc\n v_cndmask_b32 v81, v74, v75, vcc')
    k('v_and_b32 v7, 1, v0\n v_cmp_eq_u32 vcc, 1, v7')
    for i in range(4): k(f'v_mov_b32 v{84+i}, v{76+i}\n v_mov_b32 v{88+i}, v{76+i}')
    for i in range(4): k(f'v_permlane32_swap_b32 v{84+i}, v{88+i}')
    for i in range(4): k(f'v_cndmask_b32 v{84+i}, v{84+i}, v{76+i}, vcc')
    blks = [(67, 66, 65, 64), (70, 69, 68, 68), (73, 80, 72, 72), (75, 81, 74, 74)] + [(76 + i, 76 + i, 76 + i, 84 + i) for i in range(4)]
    for b, (a0, a1, a2, a3) in enumerate(blks): cvt(k, 96 + 2 * b, a0, a1); cvt(k, 97 + 2 * b, a2, a3)
    waitfor(k, 'wbb0', 16, 4, 100, 32)
    k('v_mov_b32 v3, 0\n ds_write_b32 v6, v3')
    for b in range(8): k(f'ds_write_b64 v5, v[{96+2*b}:{97+2*b}] offset:{512*b}')
    k('s_waitcnt lgkmcnt(0)\nL_B_join:')
    post(k, 101)
    srd(k, 8, 48, 49, 0x800000)
    k(f"""
    v_lshrrev_b32 v10, 3, v0
    v_lshl_add_u32 v10, v10, 12, v20
    v_add_u32 v11, 128, v10
    v_xor_b32 v12, 64, v10
    v_add_u32 v12, 0x8000, v12
    v_add_u32 v13, 128, v12
    s_lshl_b32 s42, s28, 2
    s_add_u32 s42, s42, s32
    s_lshl_b32 s42, s42, 16
    s_add_u32 s42, s42, {7*256}
    s_lshl_b32 s43, s32, 11
    s_add_u32 s43, s43, {PI[7]*16384}
    s_mov_b32 s40, {hex(((PI_WORD << 4) | PI[7]) & 0xffffffff)}
    s_mov_b32 s41, {PI[7]}
    s_mov_b32 s44, 7
    s_mov_b32 s46, 9
    v_lshrrev_b32 v3, 3, v0
    v_and_b32 v16, 6, v3
    v_and_b32 v17, 7, v0
    v_xor_b32 v16, v16, v17
    v_lshlrev_b32 v16, 4, v16
    v_lshl_add_u32 v17, v3, 12, v16
    v_mul_u32_u24 v3, 896, v3
    v_add_u32 v16, v16, v3
    s_lshl_b32 s35, s29, 7
    s_mul_i32 s37, s32, {8*896}
    s_add_u32 s37, s37, s35
    s_getpc_b64 s[50:51]
L_pc2:
    s_add_u32 s50, s50, L_stage-L_pc2
    s_addc_u32 s51, s51, 0
    """)
    srd(k, 16, 52, 53, 896 * 896)
    LC = 216
    ldread = f'ds_read_b128 v[{LC}:{LC+3}], v22'
    def ldstep(name):
        k(f"""
        v_min3_u32 v{LC}, v{LC}, v{LC+1}, v{LC+2}
        v_min_u32 v{LC}, v{LC}, v{LC+3}
        v_cmp_gt_u32 vcc, s46, v{LC}
        s_cbranch_vccnz L_{name}_no
        s_swappc_b64 s[52:53], s[50:51]
L_{name}_no:
        """)
    k(f"""
    v_sub_u32 v5, v8, v9
    v_lshlrev_b32 v5, 4, v5
    s_add_u32 s35, s38, {L_KI + 64 + 15*256}
    v_add_u32 v5, s35, v5
    v_cmp_ne_u32 vcc, 8, v8
    v_cndmask_b32 v15, 0, -1, vcc
    v_cmp_gt_u32 vcc, 8, v8
    """)
    G.stamp(6)
    def BF(kk, rr): return Wt + 6 * kk + 2 if rr == 3 else B_ + (kk * 3 + rr) * 4
    for kk in range(4):
        w = Wt + 6 * kk
        for j in range(4):
            k(f'v_alignbit_b32 v{BF(kk,0)+j}, v{w+j+1}, v{w+j}, 16\n v_mov_b32 v{BF(kk,1)+j}, v{w+j+1}\n v_alignbit_b32 v{BF(kk,2)+j}, v{w+j+2}, v{w+j+1}, 16')
    for kk in range(4):
        for p in range(2):
            for j in range(4):
                k(f'v_cndmask_b32_dpp v{B2 + (kk*2+p)*4 + j}, v{BF(kk,2*p+1)+j}, v{BF(kk,2*p)+j}, vcc row_shr:8 row_mask:0xf bank_mask:0xf bound_ctrl:1')
    for j in range(8): k(f'v_mov_b32 v{P+j}, 0')
    def cread(buf):
        for kk in range(4):
            r = A_ + buf * 16 + kk * 4
            k(f'ds_read_b128 v[{r}:{r+3}], v5 offset:{192 - 64*kk}')
        k('v_add_u32 v5, -256, v5')
    waitfor(k, 'wbq', 0, 1, 101, LC, base=21)
    cread(0)
    G.stamp(7)
    if opt.get('kprio'): k('s_setprio 0')
    if opt.get('bprio'): k(f"s_setprio {opt['bprio']}")
    shp = lambda r: f'v_and_b32_dpp v{r}, v{r}, v15 row_shr:1 row_mask:0xf bank_mask:0xf bound_ctrl:1'
    shf = lambda r: f'v_mov_b32_dpp v{r}, v{r} row_shr:1 row_mask:0xf bank_mask:0xf bound_ctrl:1'
    k('s_mov_b32 s7, 0' + ('\n s_branch L_B_last' if opt.get('noconv') else '') + '\nL_B_pk:')
    for half in range(2):
        if half == 0: k(ldread)
        cread(1 - half)
        for j in range(4): k(shp(P + j))
        k('s_waitcnt lgkmcnt(4)')
        if half == 0: ldstep('ldp')
        for kk in range(4): mfma(k, P, A_ + half * 16 + kk * 4, B2 + (kk * 2) * 4); k(shp(P + 4 + kk))
        for kk in range(4): mfma(k, P + 4, A_ + half * 16 + kk * 4, B2 + (kk * 2 + 1) * 4)
    k('s_add_u32 s7, s7, 1\n s_cmp_lt_u32 s7, 4\n s_cbranch_scc1 L_B_pk')
    for j in range(4): k(f'v_mov_b32_dpp v{AC + j}, v{P+j} row_shr:1 row_mask:0xf bank_mask:0xf bound_ctrl:1')
    for j in range(4): k(f'v_mov_b32_dpp v{AC + 4 + j}, v{P+j} row_shl:8 row_mask:0xf bank_mask:0xf bound_ctrl:1')
    for j in range(4): k(f'v_mov_b32 v{AC + 8 + j}, v{P+4+j}')
    for j in range(4): k(f'v_mov_b32_dpp v{AC + 12 + j}, v{P+4+j} row_shl:8 row_mask:0xf bank_mask:0xf bound_ctrl:1')
    k('s_mov_b32 s7, 0\nL_B_fl:')
    for half in range(2):
        k(ldread)
        cread(1 - half)
        k('s_waitcnt lgkmcnt(4)')
        ldstep(f'ldf{half}')
        for rr in range(4):
            if rr == 3 and half == 1: k('s_add_u32 s7, s7, 1\n s_cmp_eq_u32 s7, 4\n s_cbranch_scc1 L_B_last')
            for kk in range(4):
                mfma(k, AC + 4 * rr, A_ + half * 16 + kk * 4, BF(kk, rr))
                k(shf(AC + 4 * ((rr + 1) % 4) + kk))
    k('s_branch L_B_fl\nL_B_last:\n s_nop 1')
    for kk in range(4): mfma(k, AC + 12, A_ + 16 + kk * 4, BF(kk, 3))
    G.stamp(8)
    if opt.get('bprio'): k('s_setprio 0')
    k(f"""
    s_lshl_b32 s35, s22, 3
    s_add_u32 s35, s35, s38
    s_add_u32 s35, s35, {L_U + 16}
    v_mul_u32_u24 v6, 272, v8
    v_lshl_add_u32 v7, v9, 6, v6
    v_add_u32 v7, s35, v7
    s_lshl_b32 s35, s21, 4
    s_lshr_b32 s30, s30, s35
    s_lshl_b32 s30, s30, 16
    v_mov_b32 v18, s30
    v_mov_b32 v19, s30
    """)
    its = [(UR + 2 * i + p, AC + 8 * p + i, AC + 8 * p + 4 + i, 48 + 4 * (2 * i + p), 40 + 2 * i + p) for i in range(4) for p in range(2)]
    for u, y0, y1, t, y in its: cvt(k, y, y0, y1); lo(k, t, u); hi(k, t + 1, u)
    for u, y0, y1, t, y in its: pks(k, 'mul', t, t, 18)
    for u, y0, y1, t, y in its: cvt(k, u, t, t + 1); lo(k, t + 2, y); hi(k, t + 3, y)
    for u, y0, y1, t, y in its: lo(k, t, u); hi(k, t + 1, u)
    for u, y0, y1, t, y in its: pks(k, 'add', t, t, t + 2)
    for u, y0, y1, t, y in its: cvt(k, u, t, t + 1)
    for i in range(4): k(f'ds_write_b64 v7, v[{UR+2*i}:{UR+2*i+1}] offset:{16*i}')
    k(f"""
    s_lshl_b32 s35, s22, 3
    v_add_u32 v7, s35, v9
    v_mul_u32_u24 v7, 272, v7
    v_lshl_add_u32 v7, v8, 4, v7
    s_add_u32 s35, s38, {L_U + 16}
    v_add_u32 v7, s35, v7
    s_lshl_b32 s36, s22, 11
    s_add_u32 s36, s36, s23
    s_add_u32 s36, s36, {hex(WS_AT)}
    s_waitcnt lgkmcnt(0)
    """)
    post(k, 103)
    k(ldread + '\n s_waitcnt lgkmcnt(0)'); ldstep('lde')
    waitfor(k, 'wbr', 0, 1, 103, 32, base=21)
    k(f"""
    ds_read_b128 v[32:35], v7
    ds_read_b128 v[36:39], v7 offset:{4*272}
    s_waitcnt lgkmcnt(0)
    buffer_store_dwordx4 v[32:35], v2, s[12:15], s36 offen sc1
    buffer_store_dwordx4 v[36:39], v2, s[12:15], s36 offen offset:1024 sc1
    """)
    k(f"""
    s_lshl_b32 s30, s20, 3
    s_lshl_b32 s35, s22, 2
    s_add_u32 s30, s30, s35
    s_add_u32 s30, s30, {hex(WS_FA)}
    """)
    G.stamp(9)
    G.stamp(1, '7')
    faload = 'buffer_load_dwordx2 v[96:97], v1, s[12:15], s39 offen sc1\n buffer_load_dwordx4 v[100:103], v2, s[12:15], s5 offen sc1'
    atile = f"""
    s_lshl_b32 s36, s29, 18
    s_lshl_b32 s35, s28, 7
    s_add_u32 s36, s36, s35
    s_add_u32 s36, s36, {hex(WS_AT)}
    """
    for q in range(8): atile += f's_mov_b32 m0, {L_R + 1024*q}\n s_nop 0\n buffer_load_dwordx4 v17, s[12:15], s36 offen sc1 lds\n s_add_u32 s36, s36, 0x8000\n'
    atile += f"""
    s_lshl_b32 s36, s28, 9
    s_add_u32 s36, s36, {hex(WS_G2)}
    s_mov_b32 m0, {L_R + 8192}
    s_mov_b32 exec_hi, 0
    buffer_load_dwordx4 v2, s[12:15], s36 offen sc1 lds
    s_mov_b32 exec_hi, -1
    s_mov_b32 s7, 1
    """
    k(f"""
    s_lshl_b32 s39, s29, 9
    s_add_u32 s39, s39, {hex(WS_FA)}
    s_mov_b32 s5, {hex(WS_FG)}
    v_lshlrev_b32 v1, 3, v0
    v_mov_b32 v3, 0
    s_min_u32 s7, s32, 1
    s_add_u32 s47, s44, 2
    s_mov_b32 s62, {POLL_LIMIT*16}
    s_cmp_eq_u32 s44, 23
    s_cbranch_scc1 L_B_ldd
L_B_ld:
    {ldread}
    s_waitcnt lgkmcnt(0)
    """)
    ldstep('ldl')
    k(f"""
    s_cmp_lg_u32 s44, s47
    s_cbranch_scc1 L_B_nf
    s_mov_b32 s47, 0
    s_mov_b64 exec, 1
    buffer_store_dword v{TAG}, v3, s[12:15], s30 offen sc1
    s_mov_b64 exec, -1
L_B_nf:
    s_cmp_eq_u32 s44, 23
    s_cbranch_scc1 L_B_ldd
    s_sub_u32 s62, s62, 1
    s_cbranch_scc0 L_B_ld
L_B_ldd:
    """)
    G.stamp(4, '7')
    p3setup(1)
    k(f"""
    s_setprio 1
    s_waitcnt vmcnt(0)
    s_cmp_eq_u32 s47, 0
    s_cbranch_scc1 L_B_fd
    s_mov_b64 exec, 1
    buffer_store_dword v{TAG}, v3, s[12:15], s30 offen sc1
    s_mov_b64 exec, -1
L_B_fd:
    s_cmp_eq_u32 s7, 1
    s_cbranch_scc1 L_B_nl
    {faload}
L_B_nl:
    """)
    G.stamp(10); G.stamp(2, '7'); G.stamp(8, '9')
    def facheck():
        k(f's_cmp_eq_u32 s7, 1\n s_cbranch_scc1 L_B_na\n v_cmp_ne_u32 vcc, v{TAG}, v96')
        for r in (97, 100, 101, 102, 103): k(f'v_cmp_ne_u32 s[54:55], v{TAG}, v{r}\n s_or_b64 vcc, vcc, s[54:55]')
        k('s_cbranch_vccnz L_B_na' + atile + 'L_B_na:')
    p3gemm(None, 28 - NA, facheck)
    for dt in range(4): k(f'ds_write_b128 v14, v[{AC3+4*dt}:{AC3+4*dt+3}] offset:{1024*dt}')
    k('s_cmp_eq_u32 s7, 1\n s_cbranch_scc1 L_B_late1')
    poll(k, 'pfa', faload, [96, 97, 100, 101, 102, 103], nap=2)
    k(atile + 'L_B_late1:\n s_waitcnt vmcnt(0) lgkmcnt(0)')
    G.stamp(11); G.stamp(11, '7')
    k('s_barrier')
    G.flush(16)
    k('s_endpgm')
    k('L_stage:\n s_cmp_ge_u32 s44, 16\n s_cbranch_scc1 L_st_wo')
    for j in range(4): k(spdma(j, dyn=True))
    k(f"""
    s_branch L_st_po
L_st_wo:
    s_lshl_b32 s6, s44, 2
    s_lshr_b32 s6, {hex(PI_WORD)}, s6
    s_and_b32 s6, s6, 15
    s_mul_i32 s35, s6, {128*896}
    s_add_u32 s35, s35, s37
    s_lshl_b32 s6, s6, 4
    s_add_u32 s6, s6, s32
    s_lshl_b32 s6, s6, 10
    """)
    for q in range(4):
        k(f's_add_u32 m0, s6, {4096*q}\n s_nop 0\n buffer_load_dwordx4 v16, s[16:19], s35 offen lds' + (f'\n s_add_u32 s35, s35, {32*896}' if q < 3 else ''))
    k(f"""
L_st_po:
    s_sub_u32 s35, s44, 2
    s_min_u32 s35, s35, 15
    s_max_u32 s35, s35, 6
    v_mov_b32 v23, s35
    s_add_u32 s44, s44, 1
    s_add_u32 s46, s44, 3
    s_cmp_eq_u32 s44, 23
    s_cselect_b32 s46, -1, s46
    s_waitcnt vmcnt(8)
    ds_write_b32 v29, v23 offset:16
    """)
    if opt.get('stamp') == '9':
        for n in range(7): k(f's_cmp_lg_u32 s44, {17+n}\n s_cbranch_scc1 L_t9_{n}\n s_memrealtime s[{66+2*n}:{67+2*n}]\nL_t9_{n}:')
    k('s_setpc_b64 s[52:53]')

    k('L_helper:')
    k(f"""
    s_getpc_b64 s[36:37]
L_pc:
    s_sub_u32 s36, s36, L_pc-{NAME}
    s_subb_u32 s37, s37, 0
    s_lshl_b32 s35, s3, 13
    v_lshlrev_b32 v10, 7, v0
    v_add_u32 v10, s35, v10
    v_min_u32 v10, L_end-{NAME}, v10
    global_load_dword v29, v10, s[36:37]
    v_min_u32 v1, 55, v0
    v_lshlrev_b32 v10, 4, v1
    global_load_dwordx4 v[24:27], v10, s[54:55]
    v_lshlrev_b32 v5, 12, v0
    s_lshl_b32 s35, s28, 18
    s_lshl_b32 s22, s3, 7
    s_add_u32 s35, s35, s22
    v_add_u32 v5, s35, v5
    s_and_b32 s35, s3, 1
    s_cmp_eq_u32 s35, 1
    s_cbranch_scc0 L_H_even
    v_mov_b32 v6, v7
L_H_even:
    s_lshl_b32 s20, s28, 3
    s_add_u32 s20, s20, s3
    s_mul_i32 s20, s20, {8*896}
    s_lshl_b32 s21, s3, 10
    v_lshrrev_b32 v10, 3, v1
    v_lshlrev_b32 v10, 13, v10
    v_and_b32 v1, 7, v1
    v_lshl_add_u32 v10, v1, 4, v10
    s_lshl_b32 s23, s28, 3
    s_add_u32 s23, s23, s3
    """)
    for p in range(7):
        k(f's_add_u32 m0, s21, {8192*p}\n buffer_load_dwordx4 v6, s[8:11], s20 offen lds\n s_add_u32 s20, s20, 128')
    k('s_waitcnt vmcnt(0)')
    G.stamp(1)
    for r in range(4): k(f'global_load_dword v29, v5, s[48:49] offset:{1024*r}')
    k(tagcalc + '\n s_barrier')
    K0 = int(opt.get('zk0', 6))
    k(f"""
    s_and_b32 s35, s2, 1
    s_mul_i32 s35, s35, 3
    s_add_u32 s35, s35, s32
    s_lshl_b32 s36, s35, 11
    s_add_u32 s36, s36, {hex(WS_FZ)}
    s_and_b32 s37, s28, 3
    s_lshl_b32 s37, s37, 1
    s_lshr_b32 s38, s3, 2
    s_add_u32 s37, s37, s38
    s_add_u32 s37, s37, {K0}
    s_lshl_b32 s37, s37, 13
    s_lshl_b32 s35, s35, 19
    s_add_u32 s37, s37, s35
    s_add_u32 s38, s35, {64*8192}
    v_lshlrev_b32 v1, 6, v0
    v_lshlrev_b32 v5, 7, v0
    """)
    if opt.get('zpf'):
        k('s_cmp_ge_u32 s3, 4\n s_cbranch_scc1 L_H_nz')
        poll(k, 'hfz', 'buffer_load_dwordx4 v[32:35], v1, s[12:15], s36 offen sc1', [32, 33, 34, 35], lanes='s_mov_b32 exec_hi, 0', nap=int(opt.get('znap', 8)))
        k('L_H_nz:\n s_barrier')
        G.stamp(2)
        k(f"""
L_H_z:
        buffer_load_dword v29, v5, s[12:15], s37 offen sc1
        s_add_u32 s37, s37, {8*8192}
        s_cmp_lt_u32 s37, s38
        s_cbranch_scc1 L_H_z
        """)
    for i in range(8):
        k(f"""
        s_lshl_b32 s35, s3, 2
        s_add_u32 s35, s35, {i >> 1}
        s_and_b32 s35, s35, 7
        s_lshl_b32 s35, s35, 4
        v_xor_b32 v1, s35, v10
        v_add_u32 v1, s21, v1
        ds_read_b128 v[{64+4*i}:{67+4*i}], v1 offset:{128*i}
        """)
    for j in range(4): lo(k, 16 + 2 * j, 24 + j); hi(k, 17 + 2 * j, 24 + j)
    k('v_cmp_gt_u32 vcc, 56, v0\n s_waitcnt lgkmcnt(0)')
    for i in range(8):
        t = 96 + 8 * i
        for j in range(4): lo(k, t + 2 * j, 64 + 4 * i + j); hi(k, t + 2 * j + 1, 64 + 4 * i + j)
        for j in range(4): pk(k, 'mul', t + 2 * j, t + 2 * j, 16 + 2 * j)
        for j in range(4): cvt(k, 64 + 4 * i + j, t + 2 * j, t + 2 * j + 1)
        for j in range(4): lo(k, t + 2 * j, 64 + 4 * i + j); hi(k, t + 2 * j + 1, 64 + 4 * i + j)
        pk(k, 'add', t, t, t + 2); pk(k, 'add', t + 4, t + 4, t + 6); pk(k, 'add', t, t, t + 4)
        k(f'v_add_f32 v{t}, v{t}, v{t+1}\n v_cndmask_b32 v{32+i}, 0, v{t}, vcc')
    rowsum16(k, list(range(32, 40))); xsum4(k, list(range(32, 40)), 40)
    for i in range(1, 8): k(f'v_cmp_eq_u32 vcc, {i}, v0\n v_cndmask_b32 v32, v32, v{32+i}, vcc')
    cvt(k, 32, 32, 32); lo(k, 32, 32)
    k(f'v_mul_f32 v32, {f32hex(-L2E)}, v32\n v_exp_f32 v32, v32\n v_add_f32 v32, 1.0, v32\n v_rcp_f32 v32, v32')
    cvt(k, 32, 32, 32); lo(k, 32, 32)
    k('v_sub_f32 v33, 1.0, v32')
    cvt(k, 33, 33, 33); lo(k, 33, 33)
    k(f"""
    s_lshl_b32 s36, s23, 6
    s_add_u32 s36, s36, {hex(WS_G2)}
    s_lshl_b32 s35, s23, 2
    s_add_u32 s35, s35, {hex(WS_FG)}
    v_lshlrev_b32 v1, 3, v0
    s_mov_b64 exec, 0xff
    buffer_store_dwordx2 v[32:33], v1, s[12:15], s36 offen sc1
    s_waitcnt vmcnt(0)
    s_mov_b64 exec, 1
    buffer_store_dword v{TAG}, v1, s[12:15], s35 offen sc1
    s_mov_b64 exec, -1
    s_and_b32 s35, s28, 3
    s_lshl_b32 s35, s35, 3
    s_add_u32 s35, s35, s3
    s_mul_i32 s35, s35, {28*896}
    s_and_b32 s36, s2, 1
    s_mul_i32 s36, s36, 384
    s_add_u32 s35, s35, s36
    v_min_u32 v5, 55, v0
    v_lshrrev_b32 v1, 2, v5
    v_mul_u32_u24 v1, 896, v1
    v_and_b32 v5, 3, v5
    v_lshl_add_u32 v5, v5, 7, v1
    v_add_u32 v5, s35, v5
    global_load_dword v29, v5, s[52:53]
    v_add_u32 v5, {14*896}, v5
    global_load_dword v29, v5, s[52:53]
    """)
    if opt.get('stamp'): k('s_waitcnt vmcnt(0)')
    G.stamp(3)
    G.flush(4)
    k('L_end:\n s_endpgm')
    return k

if __name__ == '__main__':
    opt = dict(a.split('=') if '=' in a else (a, 1) for a in sys.argv[2:])
    k = gen(opt)
    v, s = k.maxreg()
    ref = open('gated_mix__ssm_conv_s4d__mixer_gmlp__prompt.s.ref').read().split('\n')
    hdr = [l for l in ref if l.startswith(';') and '@launch' not in l and 'Override launch' not in l and 'grid=ceil' not in l]
    txt = '\n'.join(hdr) + f'\n; @launch grid=(256,1,1) block=(512,1,1) lds={LDS}\n'
    txt += '.amdgcn_target "amdgcn-amd-amdhsa--gfx950"\n.text\n' + k.text(align=(opt.get('align', '1') == '1')) + '.section .rodata,"a"\n' + desc(k.name, v, s)
    open(sys.argv[1], 'w').write(txt)
    print('vgpr', v, 'sgpr', s, 'lines', len(k.lines))
```

```python
import sys, struct
from asmlib import *

NAME = 'gated_mix__ssm_conv_s4d__mixer_gmlp__prompt_kernel'
WS_Z2 = 0x000000
WS_H  = 0x380000
WS_UT = 0x700000
WS_AT = 0x8C0000
WS_G2 = 0xA80000
WS_ST = 0xA90000
WS_FZ = 0xAD0000
WS_FH = 0xAD4000
WS_FA = 0xAE4000
WS_FU = 0xAE5000
WS_FG = 0xAE5E00
WS_FG = 0xAE7000
WS_EP = 0xAE6000
WS_END = 0xAF0000
SZ_Z = 3670016
STAMP_BASE = 0x2000000
L_X = 65536
L_KG = 122880
KG_ROW = 144
KG_WAVE = 64 * KG_ROW
L_U = 131072
L_KI = L_U + 2 * 4352
L_R = L_KI + 2 * 4352
L_Z1 = L_U
L_CNT = 163840 - 48
LDS = 163840
L2E = 1.4426950408889634
PI = [4, 5, 2, 3, 6, 0, 1, 7]
PI_WORD = sum(v << (4 * i) for i, v in enumerate(PI))
TAG = 28
POLL_LIMIT = 1 << 16

def f32hex(x): return hex(struct.unpack('<I', struct.pack('<f', x))[0])

def srd(k, d, lo, hi, size, add=0):
    if add: k(f's_add_u32 s{d}, s{lo}, {hex(add)}\n s_addc_u32 s{d+1}, s{hi}, 0')
    else: k(f's_mov_b32 s{d}, s{lo}\n s_mov_b32 s{d+1}, s{hi}')
    k(f's_mov_b32 s{d+2}, {hex(size)}\n s_mov_b32 s{d+3}, 0x20000')

class Gen:
    def __init__(self, opt):
        self.opt = opt
        self.k = K(NAME)
    def st(self, idx, grp='1'):
        if str(self.opt.get('stamp')) == grp or (idx == 0 and self.opt.get('stamp')): return f's_memrealtime s[{64+2*idx}:{65+2*idx}]\n'
        return ''
    def stamp(self, idx, grp='1'):
        self.k(self.st(idx, grp))
        if grp == '1' and str(self.opt.get('stamp')) == '6' and idx in self.CL:
            j = self.CL.index(idx)
            self.k(f's_memrealtime s[{66+4*j}:{67+4*j}]\n s_memtime s[{68+4*j}:{69+4*j}]')
    CL = [1, 2, 3, 4, 10, 11, 14]
    def flush(self, n, role=''):
        k = self.k
        if not self.opt.get('stamp'): return
        if self.opt.get('dbg'):
            if role != 'A': return
            k('s_load_dwordx2 s[56:57], s[0:1], 112\n s_waitcnt lgkmcnt(0)\n s_mov_b32 s58, 256\n s_mov_b32 s59, 0x20000\n s_mov_b64 exec, 1\n v_mov_b32 v1, 0')
            k('s_not_b32 s60, s64\n v_mov_b32 v2, s60\n buffer_atomic_umax v2, v1, s[56:59], 0 offen')
            for i in range(1, 16):
                k(f'v_mov_b32 v2, s{64+2*i}\n buffer_atomic_umax v2, v1, s[56:59], 0 offen offset:{4*i}')
            k('s_mov_b64 exec, -1')
            return
        k('s_waitcnt lgkmcnt(0)\n s_mov_b64 exec, 1')
        k(f's_lshl_b32 s60, s2, 3\n s_add_u32 s60, s60, s61\n s_lshl_b32 s60, s60, 6\n s_add_u32 s60, s60, {hex(STAMP_BASE)}')
        k('v_mov_b32 v1, 0')
        for i in range(n):
            k(f'v_mov_b32 v2, s{64+2*i}\n buffer_store_dword v2, v1, s[56:59], s60 offen offset:{4*i}')
        k('s_mov_b64 exec, -1')

def lo(k, d, s): k(f'v_lshlrev_b32 v{d}, 16, v{s}')
def hi(k, d, s): k(f'v_and_b32 v{d}, 0xffff0000, v{s}')
def cvt(k, d, a, b): k(f'v_cvt_pk_bf16_f32 v{d}, v{a}, v{b}')
def pk(k, op, d, a, b, c=None, mods=''):
    s = f'v_pk_{op}_f32 v[{d}:{d+1}], v[{a}:{a+1}], v[{b}:{b+1}]'
    if c is not None: s += f', v[{c}:{c+1}]'
    k(s + (' ' + mods if mods else ''))
def pks(k, op, d, a, b, c=None, neg=False, sc=True):
    if not sc:
        return pk(k, op, d, a, b, c, mods='neg_lo:[0,1] neg_hi:[0,1]' if neg else '')
    for i in range(2):
        if op == 'fma':
            k(f'v_fmac_f32 v{d+i}, v{a+i}, v{b+i}' if c == d else f'v_fma_f32 v{d+i}, v{a+i}, v{b+i}, v{c+i}')
        else: k(f"v_{'sub' if neg else op}_f32 v{d+i}, v{a+i}, v{b+i}")
def mfma(k, c, a, b, cin=None):
    k(f'v_mfma_f32_16x16x32_bf16 v[{c}:{c+3}], v[{a}:{a+3}], v[{b}:{b+3}], ' + (cin or f'v[{c}:{c+3}]'))

GC = 24
def gelu_consts(k):
    c0 = -2.0 * 0.7978845608028654 * L2E
    k(f'v_mov_b32 v24, {f32hex(c0*0.044715)}\n v_mov_b32 v25, {f32hex(c0*0.044715)}\n v_mov_b32 v26, {f32hex(c0)}\n v_mov_b32 v27, {f32hex(c0)}')
    k('v_mov_b32 v30, 1.0\n v_mov_b32 v31, 1.0')
def gelu_tiles(k, cs, t, sc=False):
    c0 = -2.0 * 0.7978845608028654 * L2E
    pairs = [(c + 2 * p, t + 4 * i + 2 * p) for i, c in enumerate(cs) for p in range(2)]
    for x, tt in pairs: cvt(k, tt, x, x + 1)
    for x, tt in pairs: lo(k, x, tt); hi(k, x + 1, tt)
    for x, tt in pairs: pks(k, 'mul', tt, x, x, sc=sc)
    for x, tt in pairs:
        if sc: k(f'v_fmaak_f32 v{tt}, v{tt}, v24, {f32hex(c0)}\n v_fmaak_f32 v{tt+1}, v{tt+1}, v24, {f32hex(c0)}')
        else: pk(k, 'fma', tt, tt, 24, 26)
    for x, tt in pairs: pks(k, 'mul', tt, tt, x, sc=sc)
    for x, tt in pairs: k(f'v_exp_f32 v{tt}, v{tt}\n v_exp_f32 v{tt+1}, v{tt+1}')
    for x, tt in pairs: pks(k, 'add', tt, tt, 30, sc=sc)
    for x, tt in pairs: k(f'v_rcp_f32 v{tt}, v{tt}\n v_rcp_f32 v{tt+1}, v{tt+1}')
    for x, tt in pairs: pks(k, 'mul', x, x, tt, sc=sc)

def rowsum16(k, regs):
    for sh in (8, 4, 2, 1):
        for r in regs: k(f'v_add_f32_dpp v{r}, v{r}, v{r} row_ror:{sh} row_mask:0xf bank_mask:0xf')
def xsum4(k, regs, t):
    for sw in ('16', '32'):
        for i, r in enumerate(regs): k(f'v_mov_b32 v{t+i}, v{r}')
        for i, r in enumerate(regs): k(f'v_permlane{sw}_swap_b32 v{r}, v{t+i}')
        for i, r in enumerate(regs): k(f'v_add_f32 v{r}, v{r}, v{t+i}')
def cmul(k, d, x, w):
    k(f'v_mul_f32 v{d}, v{x}, v{w}\n v_mul_f32 v{d+1}, v{x+1}, v{w}\n v_fmac_f32 v{d}, v{x+1}, v{w+2}\n v_fmac_f32 v{d+1}, v{x}, v{w+1}')

def poll(k, name, loads, regs, lanes=None, first_issued=False, wait0='s_waitcnt vmcnt(0)', nap=0):
    k(f's_mov_b32 s62, {POLL_LIMIT}')
    if lanes: k(lanes)
    if first_issued: k(f'{wait0}\n s_branch L_{name}_chk')
    k(f'L_{name}:')
    k(loads)
    k(f's_waitcnt vmcnt(0)\nL_{name}_chk:')
    k(f'v_cmp_ne_u32 vcc, v{TAG}, v{regs[0]}')
    for r in regs[1:]:
        k(f'v_cmp_ne_u32 s[54:55], v{TAG}, v{r}\n s_or_b64 vcc, vcc, s[54:55]')
    k(f's_cbranch_vccz L_{name}_ok\n' + (f's_sleep {nap}\n' if nap else '') + f's_sub_u32 s62, s62, 1\n s_cbranch_scc0 L_{name}\nL_{name}_ok:')
    if lanes: k('s_mov_b64 exec, -1')

def post(k, val, addr=29, tmp=23):
    k(f'v_mov_b32 v{tmp}, {val}\n ds_write_b32 v{addr}, v{tmp}')
def waitfor(k, name, off, n, val, t, base=22, sleep=True):
    k(f's_mov_b32 s62, {POLL_LIMIT*16}\nL_{name}:')
    if n == 4:
        k(f'ds_read_b128 v[{t}:{t+3}], v{base} offset:{off}\n s_waitcnt lgkmcnt(0)\n v_min3_u32 v{t}, v{t}, v{t+1}, v{t+2}\n v_min_u32 v{t}, v{t}, v{t+3}')
    else:
        k(f'ds_read_b32 v{t}, v{base} offset:{off}\n s_waitcnt lgkmcnt(0)')
    k(f'v_cmp_gt_u32 vcc, {val}, v{t}\n s_cbranch_vccz L_{name}_ok')
    if sleep: k(f's_sleep {int(sleep)}')
    k(f's_sub_u32 s62, s62, 1\n s_cbranch_scc0 L_{name}\nL_{name}_ok:')

def weave(lines, events):
    out = []; n = len(lines); ev = sorted(events, key=lambda e: e[0]); j = 0
    for i, l in enumerate(lines):
        while j < len(ev) and ev[j][0] * n <= i:
            out += [x.strip() for x in ev[j][1].split('\n') if x.strip()]; j += 1
        out.append(l)
    while j < len(ev):
        out += [x.strip() for x in ev[j][1].split('\n') if x.strip()]; j += 1
    return out

def sub(fn, *a):
    t = K('t'); fn(t, *a); return t.lines

def gen(opt):
    G = Gen(opt); k = G.k
    D = 8
    ZF = '' if opt.get('nosc1') else 'sc1'
    npf = int(opt.get('pfcode', 3))
    k(f"""
    s_cmp_ge_u32 s2, 256
    s_cbranch_scc1 L_end
    s_load_dwordx2 s[8:9], s[0:1], 0       ; x
    s_load_dwordx2 s[16:17], s[0:1], 64    ; w_in
    s_load_dwordx2 s[12:13], s[0:1], 120   ; ws
    s_load_dwordx8 s[36:43], s[0:1], 8
    s_load_dwordx4 s[44:47], s[0:1], 40
    s_load_dwordx8 s[48:55], s[0:1], 72
    s_load_dwordx2 s[26:27], s[0:1], 104   ; out
    v_lshrrev_b32 v1, 6, v0
    v_and_b32 v0, 63, v0
    v_readfirstlane_b32 s3, v1             ; wave
    s_lshr_b32 s30, s2, 3                  ; j
    s_and_b32 s29, s2, 1
    s_lshl_b32 s29, s29, 2                 ; 4*par
    s_and_b32 s31, s30, 3
    s_add_u32 s31, s31, s29
    s_lshr_b32 s35, s30, 3
    s_add_u32 s29, s29, s35
    s_and_b32 s35, s30, 7
    s_cmp_lt_u32 s30, 24
    s_cselect_b32 s31, s35, s31            ; tb&7
    s_cselect_b32 s29, s29, 3
    s_cmp_ge_u32 s30, 28
    s_cselect_b32 s29, 7, s29
    s_and_b32 s28, s2, 6
    s_lshl_b32 s28, s28, 2
    s_add_u32 s28, s28, s31
    s_min_u32 s31, s31, 6
    s_and_b32 s32, s3, 3
    v_and_b32 v8, 15, v0
    v_lshrrev_b32 v9, 4, v0
    v_lshlrev_b32 v10, 1, v9
    v_xor_b32 v10, v10, v8
    v_lshlrev_b32 v10, 4, v10
    v_mul_u32_u24 v11, 3584, v9
    v_add_u32 v10, v10, v11
    v_add_u32 v11, {4*3584}, v10
    v_xor_b32 v12, 128, v10
    v_add_u32 v12, {8*3584}, v12
    v_add_u32 v13, {4*3584}, v12
    s_mul_i32 s33, s32, {16*3584}
    s_lshl_b32 s34, s29, 8
    s_add_u32 s33, s33, s34
    s_add_u32 s33, s33, 1792
    s_lshl_b32 s34, s32, 12
    v_lshrrev_b32 v21, 3, v0
    v_and_b32 v20, 7, v0
    v_lshrrev_b32 v5, 1, v21
    v_xor_b32 v20, v20, v5
    v_lshlrev_b32 v20, 4, v20
    v_mul_u32_u24 v6, 896, v21
    v_add_u32 v6, v6, v20
    v_xor_b32 v7, 64, v6
    v_add_u32 v4, {8*896}, v7
    s_lshl_b32 s24, s28, 2
    s_add_u32 s24, s24, s32
    s_mul_i32 s24, s24, {16*896}
    s_lshl_b32 s25, s32, 11
    s_add_u32 s25, s25, {L_X}
    s_mov_b32 s10, {2048*896}
    s_mov_b32 s11, 0x20000
    s_mov_b32 s14, {hex(WS_END)}
    s_mov_b32 s15, 0x20000
    s_mov_b32 s18, {448*3584}
    s_mov_b32 s19, 0x20000
    s_mov_b32 s5, {hex(WS_EP)}
    s_cmp_eq_u32 s29, 7
    s_waitcnt lgkmcnt(0)
    """)
    if opt.get('stamp'):
        k('s_mov_b32 s61, s3'); G.stamp(0); srd(k, 56, 12, 13, 0x4000000)
    k(f"""
    s_load_dword s4, s[12:13], s5
    s_cbranch_scc1 L_helper
    s_cmp_lt_u32 s3, 4
    s_cbranch_scc1 L_A
    """)
    k(f"""
    v_mul_u32_u24 v1, 896, v8
    s_lshl_b32 s20, s29, 7
    s_add_u32 s20, s20, s24
    s_mov_b64 exec, 0xffff
    buffer_load_dword v209, v1, s[8:11], s20 offen
    s_mov_b64 exec, -1
    s_mul_i32 s20, s28, 7
    s_add_u32 s20, s20, s29                ; m
    s_lshr_b32 s21, s32, 1                 ; c2
    s_and_b32 s22, s32, 1                  ; hf
    s_lshl_b32 s23, s20, 2
    s_load_dword s30, s[46:47], s23
    s_lshl_b32 s20, s20, 1
    s_add_u32 s20, s20, s21                ; channel
    s_lshl_b32 s23, s20, 9
    s_lshl_b32 s35, s22, 8
    s_add_u32 s23, s23, s35
    v_lshlrev_b32 v1, 1, v0
    v_add_u32 v1, s23, v1
    """)
    PRM = 200
    for c in range(2):
        for i in range(4): k(f'global_load_ushort v{PRM+4*c+i}, v1, s[{36+2*i}:{37+2*i}] offset:{128*c}')
    k(f"""
    s_lshl_b32 s23, s20, 1
    v_mov_b32 v1, s23
    global_load_ushort v{PRM+8}, v1, s[44:45]
    """)
    G.stamp(1, '3')
    k('s_branch L_B')
    def w2parts(j):
        h = f's_add_u32 s35, s31, {j}\n s_cmp_ge_u32 s35, 7\n s_cselect_b32 s63, 7, 0\n s_sub_u32 s35, s35, s63\n s_lshl_b32 s63, s35, 7\n s_add_u32 s63, s63, s24\n'
        p = [h + f's_add_u32 m0, s25, {j * 8192}\n s_mul_i32 s35, s35, {64*3584}\n buffer_load_dwordx4 v6, s[8:11], s63 offen lds\n',
             f's_add_u32 m0, s25, {j * 8192 + 1024}\n s_add_u32 s35, s35, s33\n buffer_load_dwordx4 v4, s[8:11], s63 offen lds\n']
        for q in range(4):
            p.append(f's_add_u32 m0, s34, {(j & 3) * 16384 + q * 1024}\n buffer_load_dwordx4 v{10+q}, s[16:19], s35 offen lds\n')
        return p
    def w2stage(j): return ''.join(w2parts(j))
    def common2():
        k(f"""
        v_lshlrev_b32 v2, 4, v0
        v_mov_b32 v22, {L_CNT}
        s_lshl_b32 s35, s3, 2
        v_add_u32 v29, s35, v22
        """)
    tagcalc = f's_waitcnt lgkmcnt(0)\n s_mul_i32 s4, s4, 0x9E3779B1\n s_add_u32 s4, s4, 0x7F4A7C15\n v_mov_b32 v{TAG}, s4'
    def w1setup(r):
        k(f"""
        v_lshrrev_b32 v{r}, 2, v0
        v_mul_u32_u24 v{r}, 3584, v{r}
        v_lshrrev_b32 v{r+1}, 4, v0
        v_and_b32 v{r+1}, 2, v{r+1}
        v_xor_b32 v{r+1}, v{r+1}, v0
        v_and_b32 v{r+1}, 3, v{r+1}
        v_lshl_add_u32 v{r}, v{r+1}, 4, v{r}
        v_add_u32 v{r+1}, {16*3584}, v{r}
        s_lshl_b32 s38, s29, 8
        s_lshl_b32 s35, s32, 6
        s_add_u32 s38, s38, s35
        s_lshl_b32 s40, s32, 11
        """)
    def w1off(i): return [3, 0, 1, 2][(i % 8) >> 1] * 16384 + (i & 1) * 8192
    def w1dma(i, r):
        off = w1off(i)
        return (f's_mul_i32 s35, s41, {32*3584}\n s_add_u32 s35, s35, s38\n s_add_u32 m0, s40, {off}\n s_add_u32 s41, s41, 1\n'
                f'buffer_load_dwordx4 v{r}, s[16:19], s35 offen lds\n s_add_u32 m0, s40, {off+1024}\n s_cmp_eq_u32 s41, 14\n'
                f'buffer_load_dwordx4 v{r+1}, s[16:19], s35 offen lds\n s_cselect_b32 s41, 0, s41\n')
    k('L_A:')
    k(w2stage(0)); k(w2stage(1))
    if opt.get('prio', '1') != '0': k(f"s_setprio {opt.get('prio', 1)}")
    srd(k, 36, 50, 51, 4096)
    k('v_lshlrev_b32 v1, 1, v8\n s_lshl_b32 s35, s28, 7')
    BSP = [228, 229, 230, 231]
    for tt in range(4): k(f'buffer_load_ushort v{BSP[tt]}, v1, s[36:39], s35 offen offset:{32*tt}')
    common2()
    WA = 168
    k(f"""
    v_mov_b32 v23, 0
    ds_write_b32 v29, v23
    ds_write_b32 v29, v23 offset:16
    v_mov_b32 v23, 6
    ds_write_b32 v29, v23 offset:32
    v_lshrrev_b32 v14, 1, v8
    v_xor_b32 v14, v14, v9
    v_lshlrev_b32 v14, 4, v14
    v_lshl_add_u32 v14, v8, 7, v14
    v_add_u32 v14, s25, v14
    v_xor_b32 v15, 64, v14
    v_lshrrev_b32 v16, 2, v0
    v_and_b32 v17, 7, v16
    v_lshlrev_b32 v17, 5, v17
    v_and_b32 v16, 3, v16
    v_lshl_add_u32 v16, v9, 3, v16         ; 8g + r
    v_and_b32 v19, 3, v0
    v_lshlrev_b32 v18, 3, v19
    v_lshl_add_u32 v18, v16, 8, v18
    """)
    for ft in range(8): k(f'v_xor_b32 v{WA+ft}, {32*ft}, v17\n v_add_u32 v{WA+ft}, v{WA+ft}, v18')
    gelu_consts(k)
    w1setup(224)
    k(f"""
    v_lshlrev_b32 v226, 6, v16
    v_lshl_add_u32 v226, v19, 3, v226
    v_and_b32 v227, 1, v9
    v_lshl_add_u32 v226, v227, 5, v226     ; row*64 + (p ^ (g&1))*32 + 8c  (p = 0)
    v_xor_b32 v227, 32, v226
    v_add_u32 v226, s40, v226
    v_add_u32 v227, s40, v227
    s_lshl_b32 s41, s31, 1
    s_add_u32 s41, s41, 8
    s_cmp_ge_u32 s41, 14
    s_cselect_b32 s35, 14, 0
    s_sub_u32 s41, s41, s35
    s_lshl_b32 s35, s32, 2
    v_add_u32 v5, s35, v22
    """)
    XF, WF, ACC, T, CK1 = 32, 88, 120, 152, 40
    G.stamp(14, '2')
    k('s_waitcnt vmcnt(10) lgkmcnt(0)')
    G.stamp(15, '2')
    k(tagcalc + '\n s_barrier')
    G.stamp(1); G.stamp(1, '2')
    def wread(gi):
        ks = gi >> 1
        for f in range(4):
            for hh in range(2):
                r = WF + (gi & 1) * 16 + f * 4 + hh * 2
                k(f'ds_read_b64_tr_b16 v[{r}:{r+1}], v{WA + 4 * (gi & 1) + f} offset:{((ks >> 1) & 3) * 16384 + (ks & 1) * 8192 + hh * 1024}')
    def xread(i):
        k(f'ds_read_b128 v[{XF+4*(i&1)}:{XF+4*(i&1)+3}], v{14 + (i & 1)} offset:{(i >> 1) * 8192}')
    xread(0); wread(0)
    for gi in range(28):
        ks = gi >> 1; j = gi >> 2
        if gi % 4 == 3:
            k('s_waitcnt lgkmcnt(0)' + (' vmcnt(0)' if j == 0 else ''))
            if j < 6: G.stamp(2 + 2 * j, '2')
            k('s_barrier')
            if j < 6:
                G.stamp(3 + 2 * j, '2'); xread(ks + 1); wread(gi + 1)
        else:
            nx = 0
            if gi % 4 == 0: xread(ks + 1); nx = 1
            wread(gi + 1); k(f's_waitcnt lgkmcnt({8 + nx})')
        for f in range(4):
            mfma(k, ACC + 16 * (gi & 1) + 4 * f, XF + 4 * (ks & 1), WF + (gi & 1) * 16 + f * 4, '0' if ks == 0 else None)
    G.stamp(2)
    S, Q = 88, 92
    def z2epi(t):
        for h in range(2):
            cs = [ACC + 16 * h + 4 * f for f in range(4)]
            gelu_tiles(t, cs, T)
            prs = [(c + 2 * p, T + 2 * i + p) for i, c in enumerate(cs) for p in range(2)]
            for x, tt in prs: cvt(t, tt, x, x + 1)
            for x, tt in prs: lo(t, x, tt); hi(t, x + 1, tt)
            for i, c in enumerate(cs):
                for p in range(2):
                    if h == 0 and i == 0: pk(t, 'mul', Q + 2 * p, c + 2 * p, c + 2 * p)
                    else: pk(t, 'fma', Q + 2 * p, c + 2 * p, c + 2 * p, Q + 2 * p)
                    if h == 0 and i == 0: pass
                    elif h == 0 and i == 1: pk(t, 'add', S + 2 * p, ACC + 2 * p, c + 2 * p)
                    else: pk(t, 'add', S + 2 * p, S + 2 * p, c + 2 * p)
    z2epi(k)
    rowsum16(k, list(range(S, S + 8)))
    k(f"""
    v_cmp_eq_u32 vcc, 1, v19
    v_cndmask_b32 v{T}, v{S}, v{S+1}, vcc
    v_cndmask_b32 v{T+2}, v{Q}, v{Q+1}, vcc
    v_cmp_eq_u32 vcc, 2, v19
    v_cndmask_b32 v{T}, v{T}, v{S+2}, vcc
    v_cndmask_b32 v{T+2}, v{T+2}, v{Q+2}, vcc
    v_cmp_eq_u32 vcc, 3, v19
    v_cndmask_b32 v{T}, v{T}, v{S+3}, vcc
    v_cndmask_b32 v{T+2}, v{T+2}, v{Q+3}, vcc
    v_mov_b32 v{T+1}, v{TAG}
    v_mov_b32 v{T+3}, v{TAG}
    v_lshl_add_u32 v18, v9, 2, v19
    v_lshlrev_b32 v18, 4, v18              ; row*16
    s_lshl_b32 s24, s28, 2
    s_add_u32 s24, s24, s32
    s_lshl_b32 s24, s24, 11
    s_add_u32 s24, s24, {hex(WS_ST)}
    s_lshl_b32 s35, s29, 8
    s_add_u32 s35, s35, s24
    s_mov_b32 exec_lo, 0x000f000f
    s_mov_b32 exec_hi, 0x000f000f
    buffer_store_dwordx4 v[{T}:{T+3}], v18, s[12:15], s35 offen sc1
    s_mov_b64 exec, -1
    v_min_u32 v18, 2, v9
    v_lshlrev_b32 v18, 8, v18
    v_lshl_add_u32 v18, v8, 4, v18
    """)
    G.stamp(3)
    def spdma(j, dyn=False, slot=0):
        vv, off = ((10, 0), (12, 1024), (11, 8192), (13, 9216))[j]
        t = f's_add_u32 m0, s43, {off + slot * 16384}\n buffer_load_dwordx4 v{vv}, s[8:11], s42 offen lds\n'
        if j == 3:
            t += 's_add_u32 s42, s42, 256\n'
            if dyn: t += 's_lshr_b64 s[40:41], s[40:41], 4\n s_and_b32 s43, s40, 15\n s_lshl_b32 s43, s43, 3\n s_add_u32 s43, s43, s32\n s_lshl_b32 s43, s43, 11\n'
        return t
    A1, FR, ZP = 176, 64, 208
    k(f"""
    s_lshl_b32 s35, s32, 11
    v_subrev_u32 v14, s35, v14
    v_subrev_u32 v15, s35, v15
    """)
    srd(k, 8, 48, 49, 0x800000)
    k(f"""
    v_lshl_add_u32 v10, v21, 12, v20
    v_add_u32 v11, 128, v10
    v_xor_b32 v12, 64, v10
    v_add_u32 v12, 0x8000, v12
    v_add_u32 v13, 128, v12
    s_lshl_b32 s42, s28, 2
    s_add_u32 s42, s42, s32
    s_lshl_b32 s42, s42, 16                ; (64*tb + 16*a)*4096
    s_lshl_b32 s43, s32, 11
    """)
    def z1read(i):
        b = FR + (i & 1) * 24
        for p in range(2):
            for hh in range(2):
                k(f'ds_read_b64_tr_b16 v[{b+4*p+2*hh}:{b+4*p+2*hh+1}], v{226 + p} offset:{w1off(i) + 256*hh}')
        for tt in range(4):
            r = b + 8 + 4 * tt
            k(f'ds_read_b128 v[{r}:{r+3}], v{14 + (i & 1)} offset:{(i >> 1) * 8192 + tt * 2048}')
    G.stamp(1, '5')
    waitfor(k, 'wb1', 16, 1, 1, 32, base=5, sleep=False)
    G.stamp(2, '5')
    PL = 32; S, Q = 44, 48
    NP = int(opt.get('np', 7))
    stload = f'buffer_load_dwordx4 v[{PL}:{PL+3}], v2, s[12:15], s24 offen sc1\n buffer_load_dwordx4 v[{PL+4}:{PL+7}], v18, s[12:15], s24 offen offset:1024 sc1'
    def normalise():
        poll(k, 'pst', stload, [PL + 1, PL + 3, PL + 5, PL + 7], first_issued=True)
        G.stamp(5)
        k(f"""
        v_cmp_gt_u32 vcc, 3, v9
        v_cndmask_b32 v{PL+4}, 0, v{PL+4}, vcc
        v_cndmask_b32 v{PL+6}, 0, v{PL+6}, vcc
        v_add_f32 v40, v{PL}, v{PL+4}
        v_add_f32 v41, v{PL+2}, v{PL+6}
        """)
        xsum4(k, [40, 41], 42)
        k(f"""
        v_mul_f32 v40, {f32hex(1/896)}, v40
        v_mul_f32 v41, {f32hex(1/896)}, v41
        v_fma_f32 v41, -v40, v40, v41
        v_max_f32 v41, 0, v41
        """)
        cvt(k, 40, 40, 41); hi(k, 41, 40); lo(k, 40, 40)
        k(f'v_add_f32 v41, {f32hex(1e-5)}, v41')
        cvt(k, 41, 41, 41); lo(k, 41, 41)
        k('v_sqrt_f32 v41, v41')
        cvt(k, 41, 41, 41); lo(k, 41, 41)
        k('v_rcp_f32 v41, v41\n v_lshlrev_b32 v53, 4, v9')
        for r in range(4):
            k(f'ds_bpermute_b32 v{S+r}, v53, v40 offset:{4*r}\n ds_bpermute_b32 v{Q+r}, v53, v41 offset:{4*r}')
        k(f"""
        s_lshl_b32 s24, s29, 6
        s_lshl_b32 s25, s28, 1
        s_add_u32 s24, s24, s25
        s_lshr_b32 s25, s32, 1
        s_add_u32 s24, s24, s25
        s_lshl_b32 s24, s24, 13
        s_and_b32 s25, s32, 1
        s_lshl_b32 s25, s25, 9
        s_add_u32 s24, s24, s25
        s_add_u32 s25, s24, 4096
        v_lshrrev_b32 v53, 1, v9
        v_lshlrev_b32 v53, 8, v53
        v_lshl_add_u32 v53, v8, 4, v53
        v_and_b32 v54, 1, v9
        v_lshl_add_u32 v53, v54, 10, v53
        s_waitcnt lgkmcnt(0)
        """)
        for h in range(2):
            cs = [ACC + 16 * h + 4 * f for f in range(4)]
            prs = [(c + 2 * p, T + 8 * h + 2 * i + p, p) for i, c in enumerate(cs) for p in range(2)]
            for x, t, p in prs: pks(k, 'add', x, x, S + 2 * p, neg=True, sc=bool(opt.get('sca')))
            for x, t, p in prs: cvt(k, t, x, x + 1)
            for x, t, p in prs: lo(k, x, t); hi(k, x + 1, t)
            for x, t, p in prs: pks(k, 'mul', x, x, Q + 2 * p, sc=bool(opt.get('sca')))
            for x, t, p in prs: cvt(k, t, x, x + 1)
            for pr in range(2):
                o = T + 8 * h + 4 * pr
                k(f'v_permlane16_swap_b32 v{o}, v{o+2}\n v_permlane16_swap_b32 v{o+1}, v{o+3}')
            for pr in range(2):
                o = T + 8 * h + 4 * pr
                k(f'buffer_store_dwordx4 v[{o}:{o+3}], v53, s[12:15], s{24+h} offen offset:{2048*pr} sc1')

    CK1 = 56
    posts = {3: 5, 7: 6, 9: 7, 11: 8}; checks = {6: 5, 8: 6, 12: 7}
    pre = {6: [(0, 0), (0, 1)], 7: [(0, 2), (0, 3)], 8: [(1, 0), (1, 1)], 9: [(1, 2), (1, 3)], 10: [(2, 0), (2, 1)], 11: [(2, 2), (2, 3)], 12: [(3, 0), (3, 1)], 13: [(3, 2), (3, 3)]}
    assert NP == 7
    spins = []
    z1read(0)
    for i in range(14):
        if i in checks: k(f'ds_read_b128 v[{CK1}:{CK1+3}], v22')
        if i < 13:
            if i == 7: k('s_waitcnt vmcnt(14)')
            z1read(i + 1); k('s_waitcnt lgkmcnt(8)')
        else:
            k('s_waitcnt lgkmcnt(0)'); post(k, 9)
        if i in posts: post(k, posts[i])
        b = FR + (i & 1) * 24
        if i < 13: G.stamp(3 + i, '5')
        for p in range(2):
            for tt in range(4):
                mfma(k, A1 + (p * 4 + tt) * 4, b + 4 * p, b + 8 + 4 * tt, '0' if i == 0 else None)
                if p == 0 and i in checks:
                    k([f'v_min3_u32 v{CK1}, v{CK1}, v{CK1+1}, v{CK1+2}', f'v_min_u32 v{CK1}, v{CK1}, v{CK1+3}', f'v_cmp_gt_u32 vcc, {checks[i]}, v{CK1}',
                       f's_cbranch_vccnz L_z1_spin{i}\nL_z1_ok{i}:'][tt])
            if p == 0 and i < 6: k(w1dma(8 + i, 224))
            if i in pre: st, j = pre[i][p]; k(spdma(j, slot=PI[st]))
        if i in checks: spins.append((f'L_z1_spin{i}', f'L_z1_ok{i}', CK1, 0, checks[i]))
        if i == NP - 2: k(stload)
        if i == NP:
            G.stamp(4); normalise(); G.stamp(6)
        if i == NP + 3:
            k(f"""
            s_lshl_b32 s24, s29, 11
            s_add_u32 s24, s24, {hex(WS_FZ)}
            s_lshl_b32 s35, s28, 6
            s_lshl_b32 s25, s32, 2
            s_add_u32 s35, s35, s25
            v_mov_b32 v53, s35
            s_waitcnt vmcnt(6)
            s_mov_b64 exec, 1
            buffer_store_dword v{TAG}, v53, s[12:15], s24 offen sc1
            s_mov_b64 exec, -1
            """)
            G.stamp(7)
    waitfor(k, 'wa9', 0, 4, 9, 32, sleep=False)
    for st in range(4, 7):
        for j in range(4): k(spdma(j, slot=PI[st]))
    srd(k, 16, 12, 13, SZ_Z)
    ACC2, W, Z, CK = 32, 64, 96, 160
    k(f"""
    v_lshlrev_b32 v19, 6, v0
    s_lshl_b32 s33, s29, 19
    s_lshl_b32 s35, s32, 11
    s_add_u32 s34, s33, s35                ; fb*64*8192 + w*2048
    v_lshrrev_b32 v20, 1, v8
    v_xor_b32 v20, v20, v9
    v_lshlrev_b32 v20, 4, v20
    v_lshl_add_u32 v20, v8, 7, v20
    v_xor_b32 v21, 64, v20
    v_add_u32 v17, {PI[0]*16384}, v20
    v_add_u32 v18, {PI[0]*16384}, v21
    v_add_u32 v14, 8192, v2
    v_add_u32 v15, 16384, v2
    v_add_u32 v16, 24576, v2
    s_mov_b32 s38, {hex(PI_WORD)}
    s_mov_b32 s39, {hex(PI_WORD)}
    s_mov_b32 s36, 10                      ; 10 + stage
    """)
    ZV = [2, 14, 15, 16]
    for i in range(32): k(f'v_mov_b32 v{ACC2+i}, 0')
    G.stamp(8)
    k('s_cmp_lg_u32 s3, 0\n s_cbranch_scc1 L_nofz')
    poll(k, 'pfz', f'buffer_load_dwordx4 v[{CK}:{CK+3}], v19, s[12:15], s24 offen sc1', [CK, CK + 1, CK + 2, CK + 3], lanes='s_mov_b32 exec_hi, 0', nap=int(opt.get('nap', 1)))
    k('L_nofz:\n s_waitcnt vmcnt(0)')
    post(k, 10)
    waitfor(k, 'wa10', 0, 4, 10, CK, sleep=False)
    G.stamp(9)
    adv = f's_add_u32 s34, s34, {4*8192}'
    def zld(n, ft):
        r = Z + (n % D) * 8 + ft * 4
        k(f'buffer_load_dwordx4 v[{r}:{r+3}], v{ZV[n%4]}, s[16:19], s34 offen offset:{1024*ft} {ZF}')
    for n in range(D):
        zld(n, 0); zld(n, 1)
        if n % 4 == 3: k(adv)
    def w2read(n, tt):
        ks = n & 3
        r = W + (n & 1) * 16 + tt * 4
        k(f'ds_read_b128 v[{r}:{r+3}], v{17 + (ks & 1)} offset:{(ks >> 1) * 8192 + tt * 2048}')
    for tt in range(4): w2read(0, tt)
    G.stamp(10)
    def z1epi(t):
        for h in range(2):
            for q in range(2):
                cs = [A1 + 16 * h + 8 * q + 4 * f for f in range(2)]
                gelu_tiles(t, cs, 232 + 8 * q, sc=True)
                for f in range(2):
                    for p in range(2): cvt(t, ZP + 4 * (2 * q + f) + 2 * h + p, cs[f] + 2 * p, cs[f] + 2 * p + 1)
    extra = sub(z1epi)
    NPEEL = int(opt.get('peel', 3)); per = -(-len(extra) // (NPEEL * 64))
    def body(name, ride, last):
        for n in range(8):
            k(f's_waitcnt vmcnt({(D-1)*2 - (2*n if last else 0)}) lgkmcnt(0)')
            fill = [[] for _ in range(8)]
            if n % 4 == 0:
                fill[4] = ['ds_write_b32 v29, v23']
                if opt.get('stamp') == '4':
                    for it in range(8):
                        st = 2 * it + n // 4
                        if st: fill[5].append(f's_cmp_lg_u32 s36, {10+st}\n s_cbranch_scc1 L_t{name}{n}_{it}\n s_memrealtime s[{64+2*st}:{65+2*st}]\nL_t{name}{n}_{it}:')
            if not (last and n > 3):
                if n % 4 == 1:
                    fill[4] = [f'ds_read_b128 v[{CK}:{CK+3}], v22 offset:32', 'v_add_u32 v23, 1, v23']
                    fill[5] = ['s_lshr_b64 s[38:39], s[38:39], 4\n s_and_b32 s37, s38, 15\n s_lshl_b32 s37, s37, 14']
                if n % 4 == 2:
                    fill[4] = [f'v_min3_u32 v{CK}, v{CK}, v{CK+1}, v{CK+2}', 's_sub_u32 s35, s36, 9']
                    fill[5] = [f'v_min_u32 v{CK}, v{CK}, v{CK+3}', 'v_add_u32 v17, s37, v20']
                    fill[6] = [f'v_cmp_gt_u32 vcc, s35, v{CK}']
                    fill[7] = [f's_cbranch_vccnz L_{name}_spin{n}\nL_{name}_ok{n}:']
                    spins.append((f'L_{name}_spin{n}', f'L_{name}_ok{n}', CK, 32, 's35'))
                if n % 4 == 3: fill[4] += ['v_add_u32 v18, s37, v21']
            for ft in range(2):
                for tt in range(4):
                    mfma(k, ACC2 + (ft * 4 + tt) * 4, Z + (n % D) * 8 + ft * 4, W + (n & 1) * 16 + tt * 4)
                    if ft == 0 and not (last and n == 7): w2read(n + 1, tt)
                    for x in fill[4 * ft + tt]: k(x)
                    if ride:
                        for _ in range(per):
                            if extra: k(extra.pop(0))
                if not last: zld(n, ft)
            if n % 4 == 3: k(adv + '\n s_add_u32 s36, s36, 1')
    for it in range(NPEEL): body(f'pa{it}', True, False)
    assert not extra
    k('L_p2:')
    body('pb', False, False)
    k('s_cmp_lt_u32 s36, 24\n s_cbranch_scc1 L_p2')
    body('pc', False, True)
    k('s_branch L_p2_done')
    for a, b, c, off, val in spins:
        k(f"""
{a}:
        s_mov_b32 s62, {POLL_LIMIT*16}
{a}b:
        ds_read_b128 v[{c}:{c+3}], v22 offset:{off}
        s_waitcnt lgkmcnt(0)
        v_min3_u32 v{c}, v{c}, v{c+1}, v{c+2}
        v_min_u32 v{c}, v{c}, v{c+3}
        v_cmp_gt_u32 vcc, {val}, v{c}
        s_cbranch_vccz {b}
        s_sub_u32 s62, s62, 1
        s_cbranch_scc0 {a}b
        s_branch {b}
        """)
    k('L_p2_done:')
    G.stamp(11); G.stamp(1, '7'); G.stamp(1, '9')
    k(f"""
    s_mul_i32 s24, s28, {4*28}
    s_lshl_b32 s36, s29, 2
    s_add_u32 s36, s36, s32                ; kk
    s_add_u32 s24, s24, s36
    s_lshl_b32 s24, s24, 10
    s_add_u32 s24, s24, {hex(WS_H)}
    """)
    Z1R = ZP
    for tt in range(4): lo(k, BSP[tt], BSP[tt])
    for tt in range(4):
        for ft in range(2):
            for r in range(4): k(f'v_add_f32 v{ACC2+(ft*4+tt)*4+r}, v{ACC2+(ft*4+tt)*4+r}, v{BSP[tt]}')
    for tt in range(4):
        o = 96 + 24 * tt
        its = [(ACC2 + (ft * 4 + tt) * 4 + 2 * p, Z1R + 4 * tt + 2 * ft + p, o + 4 + 4 * (2 * ft + p), o + 2 * ft + p) for ft in range(2) for p in range(2)]
        for a, z, t, d in its: cvt(k, d, a, a + 1)
        for a, z, t, d in its: lo(k, t, z); hi(k, t + 1, z); lo(k, t + 2, d); hi(k, t + 3, d)
        for a, z, t, d in its: pk(k, 'mul', t, t, t + 2)
        for a, z, t, d in its: cvt(k, d, t, t + 1)
        k(f'buffer_store_dwordx4 v[{o}:{o+3}], v2, s[12:15], s24 offen sc1')
        if tt < 3: k(f's_add_u32 s24, s24, {28*1024}')
    G.stamp(12); G.stamp(2, '7')
    srd(k, 16, 26, 27, 2048 * 896)
    HB, AC3, A3 = 32, 144, 160
    HD = int(opt.get('hd', 6))
    NA = int(opt.get('na', 16))
    def p3setup(half):
        k(f"""
        s_lshl_b32 s33, s28, 2
        s_add_u32 s33, s33, s32                ; tt
        s_lshl_b32 s37, s28, 11
        s_add_u32 s37, s37, {hex(WS_FH)}
        s_mul_i32 s34, s33, {28*1024}
        s_add_u32 s34, s34, {hex(WS_H + half * NA * 1024)}
        v_lshrrev_b32 v10, 2, v0
        v_lshrrev_b32 v4, 1, v10
        v_and_b32 v4, 3, v4
        v_lshlrev_b32 v21, 5, v4
        v_and_b32 v13, 3, v0
        v_lshlrev_b32 v13, 3, v13
        v_lshl_add_u32 v13, v10, 7, v13
        s_lshl_b32 s35, s32, 12
        s_add_u32 s35, s35, {7*16384}
        v_add_u32 v14, s35, v2
        v_lshlrev_b32 v19, 6, v0
        """)
        for dt in range(4):
            k(f'v_xor_b32 v{192+dt}, {32*dt}, v21\n v_add_u32 v{192+dt}, v{192+dt}, v13')
            if half: k(f'v_add_u32 v{192+dt}, {NA*32*128}, v{192+dt}')
    def p3gemm(name, NK, hook=None):
        def aread(kk):
            for dt in range(4):
                for hh in range(2):
                    r = A3 + (kk & 1) * 16 + dt * 4 + hh * 2
                    k(f'ds_read_b64_tr_b16 v[{r}:{r+1}], v{192 + dt} offset:{(32 * kk + 16 * hh) * 128}')
        if name:
            k('s_cmp_lg_u32 s3, 0\n s_cbranch_scc1 L_nofh')
            poll(k, name, 'buffer_load_dword v20, v19, s[12:15], s37 offen sc1', [20], lanes='s_mov_b32 exec_lo, 0x0fffffff\n s_mov_b32 exec_hi, 0', nap=int(opt.get('nap', 1)))
            k('L_nofh:'); G.stamp(3, '9')
        k('s_barrier')
        G.stamp(13); G.stamp(6, '7'); G.stamp(9, '9')
        def hload(kk):
            k(f'buffer_load_dwordx4 v[{HB+4*kk}:{HB+4*kk+3}], v2, s[12:15], s34 offen offset:{1024*(kk%4)} {ZF}')
            if kk % 4 == 3: k('s_add_u32 s34, s34, 4096')
        for kk in range(HD): hload(kk)
        aread(0)
        for kk in range(NK):
            if kk < NK - 1: aread(kk + 1)
            k(f's_waitcnt vmcnt({min(HD - 1, NK - 1 - kk)}) lgkmcnt({8 if kk < NK - 1 else 0})')
            if kk in (0, 4, 8): G.stamp(7 + kk // 4, '7')
            for dt in range(4):
                mfma(k, AC3 + 4 * dt, A3 + (kk & 1) * 16 + dt * 4, HB + 4 * kk, '0' if kk == 0 else None)
            if kk + HD < NK: hload(kk + HD)
            if kk == 0 and hook: hook()
    p3setup(0)
    k(f"""
    s_lshl_b32 s36, s36, 6
    v_mov_b32 v12, s36
    {G.st(3, '7')}
    s_waitcnt vmcnt(0)
    {G.st(4, '7')}
    {G.st(2, '9')}
    s_mov_b64 exec, 1
    buffer_store_dword v{TAG}, v12, s[12:15], s37 offen sc1
    s_mov_b64 exec, -1
    s_waitcnt lgkmcnt(0)
    """)
    p3gemm('pfh', NA)
    G.stamp(14); G.stamp(11, '7')
    k(f"""
    s_lshl_b32 s36, s32, 5
    v_xor_b32 v12, s36, v21
    v_add_u32 v12, v12, v13
    v_add_u32 v12, {L_R}, v12
    s_lshl_b32 s36, s32, 7
    s_add_u32 s36, s36, {L_R + 8192}
    v_lshlrev_b32 v11, 3, v8
    v_add_u32 v11, s36, v11
    s_barrier
    {G.st(12, '7')}
    ds_read_b64 v[4:5], v11
    """)
    for dt in range(4): k(f'ds_read_b128 v[{96+4*dt}:{99+4*dt}], v14 offset:{1024*dt}')
    for dt in range(4): k(f'ds_read_b64_tr_b16 v[{32+2*dt}:{33+2*dt}], v12 offset:{2048*dt}')
    k(f"""
    v_mul_u32_u24 v10, 896, v8
    v_lshrrev_b32 v11, 1, v9
    v_lshl_add_u32 v10, v11, 4, v10
    v_and_b32 v11, 1, v9
    v_lshl_add_u32 v10, v11, 5, v10        ; t*896 + (g>>1)*16 + (g&1)*32
    s_mul_i32 s36, s33, {16*896}
    s_lshl_b32 s37, s29, 7
    s_add_u32 s36, s36, s37
    s_waitcnt lgkmcnt(0)
    v_mov_b32 v6, v4
    v_mov_b32 v7, v4
    v_mov_b32 v4, v5
    """)
    for i in range(8): pk(k, 'add', AC3 + 2 * i, AC3 + 2 * i, 96 + 2 * i)
    its = [(AC3 + 4 * dt + 2 * p, 32 + 2 * dt + p, 48 + 4 * (2 * dt + p)) for dt in range(4) for p in range(2)]
    for c, a, t in its: cvt(k, c, c, c + 1)
    for c, a, t in its: lo(k, t, a); hi(k, t + 1, a); lo(k, t + 2, c); hi(k, t + 3, c)
    for c, a, t in its: pk(k, 'mul', t, t, 6); pk(k, 'mul', t + 2, t + 2, 4)
    for c, a, t in its: cvt(k, a, t, t + 1); cvt(k, c, t + 2, t + 3)
    for c, a, t in its: lo(k, t, a); hi(k, t + 1, a); lo(k, t + 2, c); hi(k, t + 3, c)
    for c, a, t in its: pk(k, 'add', t, t, t + 2)
    for c, a, t in its: cvt(k, a, t, t + 1)
    for pr in range(2):
        o = 32 + 4 * pr
        k(f'v_permlane16_swap_b32 v{o}, v{o+2}\n v_permlane16_swap_b32 v{o+1}, v{o+3}')
    for pr in range(2):
        o = 32 + 4 * pr
        k(f'buffer_store_dwordx4 v[{o}:{o+3}], v10, s[16:19], s36 offen offset:{64*pr}')
    k(f"""
    s_lshl_b32 s35, s2, 3
    s_add_u32 s35, s35, s3
    s_cmp_lg_u32 s35, 0
    s_cbranch_scc1 L_A_fin
    s_mov_b32 s35, {hex(WS_EP)}
    v_mov_b32 v1, 0
    s_mov_b64 exec, 1
    buffer_store_dword v{TAG}, v1, s[12:15], s35 offen sc1
    s_mov_b64 exec, -1
L_A_fin:
    """)
    G.stamp(13, '7')
    if opt.get('stamp'): k('s_waitcnt vmcnt(0)')
    G.stamp(15); G.stamp(14, '7')
    G.flush(16, 'A')
    k('s_endpgm')

    k('L_B:')
    common2()
    k(f"""
    s_mul_i32 s39, s32, {KG_WAVE}
    s_add_u32 s39, s39, {L_KG}
    """)
    k(tagcalc)
    G.stamp(1, '2')
    def wb(j, w): return G.st(2 + 2 * j, '2') + (f's_waitcnt vmcnt({w})\n' if w is not None else '') + G.st(3 + 2 * j, '2') + 's_barrier\n'
    k(wb(0, None) + w2stage(2))
    w1setup(18)
    k(f"""
    s_lshl_b32 s41, s31, 1
    v_mul_u32_u24 v7, {KG_ROW}, v0
    v_add_u32 v7, s39, v7
    v_lshrrev_b32 v1, 5, v0
    v_lshrrev_b32 v3, 2, v8
    v_lshl_add_u32 v1, v1, 2, v3
    v_mul_u32_u24 v1, {KG_ROW}, v1
    v_and_b32 v3, 1, v9
    v_lshl_add_u32 v1, v3, 5, v1
    v_and_b32 v3, 3, v0
    v_lshl_add_u32 v1, v3, 3, v1
    v_add_u32 v1, s39, v1
    """)
    k(wb(1, None) + w2stage(3) + w2stage(4))
    k(f"""
    s_and_b32 s35, s28, 7
    s_lshl_b32 s35, s35, 2
    s_add_u32 s35, s35, s32
    s_mul_i32 s42, s35, {14*3584}
    s_lshl_b32 s35, s29, 8
    s_add_u32 s42, s42, s35
    v_min_u32 v16, 27, v0
    v_lshrrev_b32 v17, 1, v16
    v_mul_u32_u24 v17, 3584, v17
    v_and_b32 v16, 1, v16
    v_lshl_add_u32 v16, v16, 7, v17
    v_lshrrev_b32 v156, 2, v8
    v_lshl_add_u32 v156, v9, 3, v156         ; 8g + r
    v_lshrrev_b32 v157, 1, v156
    v_and_b32 v157, 7, v157
    v_and_b32 v158, 3, v0
    v_lshrrev_b32 v159, 1, v158
    s_lshl_b32 s35, s32, 1
    v_add_u32 v159, s35, v159
    v_xor_b32 v157, v157, v159
    v_lshlrev_b32 v157, 4, v157
    v_lshl_add_u32 v157, v156, 7, v157
    v_and_b32 v158, 1, v158
    v_lshl_add_u32 v157, v158, 3, v157
    s_add_u32 s35, s29, 7
    s_sub_u32 s35, s35, s31
    s_cmp_ge_u32 s35, 7
    s_cselect_b32 s63, 7, 0
    s_sub_u32 s35, s35, s63
    s_lshl_b32 s35, s35, 13
    s_add_u32 s35, s35, {L_X}
    v_add_u32 v157, s35, v157                ; hh = 0
    v_xor_b32 v158, 32, v157
    v_add_u32 v158, 512, v158                ; hh = 1
    v_lshlrev_b32 v159, 12, v8
    v_lshl_add_u32 v159, v9, 4, v159
    s_lshl_b32 s36, s29, 2
    s_add_u32 s36, s36, s32
    s_lshl_b32 s36, s36, 16
    s_lshl_b32 s35, s28, 7
    s_add_u32 s36, s36, s35
    s_add_u32 s36, s36, {hex(WS_UT)}
    s_lshl_b32 s37, s29, 5
    s_add_u32 s37, s37, s28
    s_lshl_b32 s37, s37, 2
    s_add_u32 s37, s37, s32
    s_lshl_b32 s37, s37, 2
    s_add_u32 s37, s37, {hex(WS_FU)}
    """)
    da = float(opt.get('kga', 0.06)); db = float(opt.get('kgb', 0.09))
    k('s_waitcnt vmcnt(18)')
    d0 = float(opt.get('kg0', 0.0))
    EV = [(d0, wb(2, 12) + w2stage(5)), (d0 + da, wb(3, 12) + w2stage(6) + f'buffer_load_dword v{PRM+9}, v16, s[16:19], s42 offen'),
          (d0 + 2 * da, wb(4, 13) + w1dma(0, 18) + w1dma(1, 18)),
          (d0 + 2 * da + db, wb(5, 11) + w1dma(2, 18) + w1dma(3, 18)),
          (d0 + 2 * da + 2 * db, wb(6, 9) + w1dma(4, 18) + w1dma(5, 18))]
    t = K('w')
    for hf in range(2):
        t(f'ds_read_b64_tr_b16 v[{160+4*hf}:{161+4*hf}], v157 offset:{4096*hf}\n ds_read_b64_tr_b16 v[{162+4*hf}:{163+4*hf}], v158 offset:{4096*hf}')
    t('s_waitcnt lgkmcnt(0)')
    t('s_barrier\n' + w1dma(6, 18) + w1dma(7, 18))
    for hf in range(2): t(f'buffer_store_dwordx4 v[{160+4*hf}:{163+4*hf}], v159, s[12:15], s36 offen offset:{64*hf} sc1')
    t(G.st(1))
    EV.append((d0 + 2 * da + 3 * db, t.lines))
    DP = 232; DT = PRM + 8
    def kgen(t, c, hook=None):
        if c == 0:
            t(f'v_lshlrev_b32 v{DT}, 16, v{DT}\n v_mul_f32 v{DT}, {f32hex(L2E)}, v{DT}\n v_exp_f32 v{DT}, v{DT}')
            cvt(t, DT, DT, DT); lo(t, DT, DT)
        Z1_, Z8, Z256, Z2_, Z4 = 32, 35, 38, 41, 44
        V, PKD, XA_, XB_ = 128, 48, 56, 58
        p = PRM + 4 * c
        t(f"""
        v_lshlrev_b32 v{p}, 16, v{p}
        v_mul_f32 v{p}, {f32hex(L2E)}, v{p}
        v_exp_f32 v{p}, v{p}
        v_lshlrev_b32 v{p+1}, 16, v{p+1}
        v_lshlrev_b32 v{p+2}, 16, v{p+2}
        v_lshlrev_b32 v{p+3}, 16, v{p+3}
        v_cvt_pk_bf16_f32 v{p}, v{p}, v{p}
        v_mul_f32 v{p+1}, v{p+1}, v{DT}
        v_lshlrev_b32 v{p}, 16, v{p}
        v_mul_f32 v{p+1}, 0.15915494, v{p+1}
        v_mul_f32 v{p}, v{p}, v{DT}
        v_add_f32 v60, v{DT}, v{DT}
        v_mul_f32 v{p}, {f32hex(-L2E)}, v{p}
        v_mul_f32 v{XA_}, v{p+2}, v60
        v_mul_f32 v{XA_+1}, v{p+3}, v60
        """)
        for (d, e) in ((Z8, 8), (Z1_, 1), (Z256, 256)):
            t(f"""
            v_mul_f32 v60, {f32hex(float(e))}, v{p}
            v_mul_f32 v61, {f32hex(float(e))}, v{p+1}
            v_exp_f32 v60, v60
            v_fract_f32 v61, v61
            v_cos_f32 v{d}, v61
            v_sin_f32 v{d+1}, v61
            v_mul_f32 v{d}, v{d}, v60
            v_mul_f32 v{d+1}, v{d+1}, v60
            v_sub_f32 v{d+2}, 0, v{d+1}
            """)
        def put(q, vals, neg):
            for i in range(4):
                cvt(t, PKD + i, vals[2 * i], vals[2 * i + 1])
            t(f'ds_write_b128 v7, v[{PKD}:{PKD+3}] offset:{16*q}')
            n = '-' if neg else ''
            for i in range(4):
                t(f'v_cvt_pk_bf16_f32 v{PKD+4+i}, {n}v{vals[2*i]+1}, {n}v{vals[2*i+1]+1}')
            t(f'ds_write_b128 v7, v[{PKD+4}:{PKD+7}] offset:{64 + 16*q}')
        vs = [V + 2 * i for i in range(8)]
        t(f'v_mov_b32 v{V}, 1.0\n v_mov_b32 v{V+1}, 0')
        for q in range(4):
            for i in range(8):
                if q == 0 and i == 0: continue
                if q == 0 and i == 1: t(f'v_mov_b32 v{vs[1]}, v{Z8}\n v_mov_b32 v{vs[1]+1}, v{Z8+1}')
                else: cmul(t, vs[i], vs[i - 1], Z8)
            if q == 0 and hook: hook(t)
            put(q, vs, True)
        cmul(t, Z2_, Z1_, Z1_); t(f'v_sub_f32 v{Z2_+2}, 0, v{Z2_+1}')
        cmul(t, Z4, Z2_, Z2_); t(f'v_sub_f32 v{Z4+2}, 0, v{Z4+1}')
        t('s_waitcnt lgkmcnt(0)')
        FB, FA = 64, 96
        def frags(F):
            for ks in range(8):
                t(f'ds_read_b64_tr_b16 v[{F+4*ks}:{F+4*ks+1}], v1 offset:{8*KG_ROW*ks}\n ds_read_b64_tr_b16 v[{F+4*ks+2}:{F+4*ks+3}], v1 offset:{8*KG_ROW*ks + 64}')
        frags(FB)
        cmul(t, vs[1], XA_, Z1_)
        for i in range(2, 8): cmul(t, vs[i], vs[i - 1], Z1_)
        t('s_waitcnt lgkmcnt(0)')
        put(0, [XA_] + vs[1:], False)
        cmul(t, XB_, XA_, Z256)
        cmul(t, vs[1], XB_, Z2_)
        for i in range(2, 5): cmul(t, vs[i], vs[i - 1], Z2_)
        put(1, [XB_, vs[1], vs[2], vs[2], vs[2], vs[3], vs[4], vs[4]], False)
        cmul(t, XA_, XB_, Z256); cmul(t, vs[0], XA_, Z4); cmul(t, vs[1], vs[0], Z4)
        cmul(t, XB_, XA_, Z256); cmul(t, vs[2], XB_, Z4); cmul(t, vs[3], vs[2], Z4)
        put(2, [XA_, vs[0], XB_, vs[2], vs[0], vs[1], vs[2], vs[3]], False)
        cmul(t, vs[0], XB_, Z256)
        for i in range(1, 4): cmul(t, vs[i], vs[i - 1], Z256)
        for i in range(4): cmul(t, vs[4 + i], vs[i], Z8)
        put(3, vs, False)
        t('s_waitcnt lgkmcnt(0)')
        frags(FA)
        for ks in range(8):
            t(f's_waitcnt lgkmcnt({14-2*ks})')
            cin = '0' if (ks == 0 and c == 0) else f'v[{DP}:{DP+15}]'
            t(f'v_mfma_f32_32x32x16_bf16 v[{DP}:{DP+15}], v[{FA+4*ks}:{FA+4*ks+3}], v[{FB+4*ks}:{FB+4*ks+3}], {cin}')
    EV[-1] = (EV[-1][0], '\n'.join(EV[-1][1]))
    t = K('w'); t('s_waitcnt vmcnt(2)'); post(t, 1)
    t2 = f's_waitcnt vmcnt(0)\n v_mov_b32 v10, 0\n s_mov_b64 exec, 1\n buffer_store_dword v{TAG}, v10, s[12:15], s37 offen sc1\n s_mov_b64 exec, -1'
    f7 = EV[-1][0]
    B_, B2, A_, Wt, UR, AC, P = 32, 80, 112, 144, 168, 176, 192
    fuload = 'buffer_load_dwordx2 v[176:177], v5, s[12:15], s36 offen sc1'
    t3 = f"""
    s_lshr_b32 s36, s20, 6
    s_lshl_b32 s36, s36, 9
    s_add_u32 s36, s36, {hex(WS_FU)}
    v_lshlrev_b32 v5, 3, v0
    {fuload}
    s_lshl_b32 s23, s20, 12                ; ch*4096
    s_add_u32 s44, s12, {hex(WS_UT)}
    s_addc_u32 s45, s13, 0
    s_add_u32 s44, s44, s23
    s_addc_u32 s45, s45, 0
    s_mov_b32 s46, 4096
    s_mov_b32 s47, 0x20000
    """
    for q in range(5):
        t3 += f'v_add_u32 v{180+q}, {64*q}, v0\n v_mul_u32_u24 v6, 3856, v{180+q}\n v_lshrrev_b32 v6, 16, v6\n v_sub_u32 v{180+q}, v{180+q}, v6\n v_lshlrev_b32 v{180+q}, 4, v{180+q}\n v_add_u32 v{180+q}, -16, v{180+q}\n'
    t3 += f"""
    v_mul_u32_u24 v6, 272, v8
    s_lshl_b32 s35, s22, 3
    s_add_u32 s35, s35, s39
    v_lshl_add_u32 v185, v9, 4, v6
    v_add_u32 v185, s35, v185              ; a*272 + g*16 + 8hf
    v_lshl_add_u32 v186, v9, 6, v6
    v_add_u32 v186, s35, v186              ; a*272 + g*64 + 8hf
    """
    k.lines += weave(sub(kgen, 0), EV + [(f7 + float(opt.get('kgp', 0.06)), '\n'.join(t.lines)), (min(f7 + float(opt.get('kgu', 0.2)), 0.9), t2), (0.93, t3)])
    G.stamp(2)
    if opt.get('kprio'): k(f"s_setprio {opt['kprio']}")
    poll(k, 'pfu', fuload, [176, 177], nap=2, first_issued=True)
    for q in range(5):
        k(f's_add_u32 m0, s39, {q*1024}')
        if q == 4: k('s_mov_b64 exec, 0xffff')
        k(f'buffer_load_dwordx4 v{180+q}, s[44:47], 0 offen sc1 lds')
    k('s_mov_b64 exec, -1')
    G.stamp(3)
    def uhook(t):
        t('s_waitcnt vmcnt(0)')
        for kk in range(4):
            for m in range(3): t(f'ds_read_b64 v[{Wt+6*kk+2*m}:{Wt+6*kk+2*m+1}], v185 offset:{64*kk + 8*m}')
        t('s_waitcnt lgkmcnt(8)')
        for i in range(4): t(f'ds_read_b64 v[{UR+2*i}:{UR+2*i+1}], v186 offset:{16 + 16*i}')
        t('s_waitcnt lgkmcnt(0)')
    kgen(k, 1, uhook)
    G.stamp(5)
    k(f"""
    s_mul_i32 s38, s21, 4352
    s_xor_b32 s35, s3, 1
    s_lshl_b32 s35, s35, 2
    v_add_u32 v21, s35, v22
    s_cmp_eq_u32 s22, 0
    s_cbranch_scc1 L_B_fin
    v_add_u32 v1, s39, v2
    """)
    for q in range(4): k(f'ds_write_b128 v1, v[{DP+4*q}:{DP+4*q+3}] offset:{1024*q}')
    k('s_waitcnt lgkmcnt(0)'); post(k, 100)
    k('s_branch L_B_join')
    k(f'L_B_fin:\n s_add_u32 s35, s39, {KG_WAVE}\n v_add_u32 v1, s35, v2')
    waitfor(k, 'wbp', 0, 1, 100, 32, base=21)
    for q in range(4): k(f'ds_read_b128 v[{80+4*q}:{83+4*q}], v1 offset:{1024*q}')
    k(f"""
    v_and_b32 v5, 31, v0
    v_lshlrev_b32 v5, 4, v5
    v_lshrrev_b32 v7, 5, v0
    v_xor_b32 v6, 1, v7
    v_lshl_add_u32 v5, v6, 3, v5
    s_add_u32 s35, s38, {L_KI + 256}
    v_add_u32 v5, s35, v5                  ; KI + j*16 + 8*(1-h)
    v_lshlrev_b32 v6, 2, v0
    s_add_u32 s35, s38, {L_KI}
    v_add_u32 v6, s35, v6
    s_waitcnt lgkmcnt(0)
    """)
    post(k, 100)
    for i in range(8): pks(k, 'add', 64 + 2 * i, DP + 2 * i, 80 + 2 * i)
    k('v_cmp_eq_u32 vcc, 1, v7\n v_cndmask_b32 v80, v72, v73, vcc\n v_cndmask_b32 v81, v74, v75, vcc')
    k('v_and_b32 v7, 1, v0\n v_cmp_eq_u32 vcc, 1, v7')
    for i in range(4): k(f'v_mov_b32 v{84+i}, v{76+i}\n v_mov_b32 v{88+i}, v{76+i}')
    for i in range(4): k(f'v_permlane32_swap_b32 v{84+i}, v{88+i}')
    for i in range(4): k(f'v_cndmask_b32 v{84+i}, v{84+i}, v{76+i}, vcc')
    blks = [(67, 66, 65, 64), (70, 69, 68, 68), (73, 80, 72, 72), (75, 81, 74, 74)] + [(76 + i, 76 + i, 76 + i, 84 + i) for i in range(4)]
    for b, (a0, a1, a2, a3) in enumerate(blks): cvt(k, 96 + 2 * b, a0, a1); cvt(k, 97 + 2 * b, a2, a3)
    waitfor(k, 'wbb0', 16, 4, 100, 32)
    k('v_mov_b32 v3, 0\n ds_write_b32 v6, v3')
    for b in range(8): k(f'ds_write_b64 v5, v[{96+2*b}:{97+2*b}] offset:{512*b}')
    k('s_waitcnt lgkmcnt(0)\nL_B_join:')
    post(k, 101)
    srd(k, 8, 48, 49, 0x800000)
    k(f"""
    v_lshrrev_b32 v10, 3, v0
    v_lshl_add_u32 v10, v10, 12, v20
    v_add_u32 v11, 128, v10
    v_xor_b32 v12, 64, v10
    v_add_u32 v12, 0x8000, v12
    v_add_u32 v13, 128, v12
    s_lshl_b32 s42, s28, 2
    s_add_u32 s42, s42, s32
    s_lshl_b32 s42, s42, 16
    s_add_u32 s42, s42, {7*256}
    s_lshl_b32 s43, s32, 11
    s_add_u32 s43, s43, {PI[7]*16384}
    s_mov_b32 s40, {hex(((PI_WORD << 4) | PI[7]) & 0xffffffff)}
    s_mov_b32 s41, {PI[7]}
    s_mov_b32 s44, 7
    s_mov_b32 s46, 9
    v_lshrrev_b32 v3, 3, v0
    v_and_b32 v16, 6, v3
    v_and_b32 v17, 7, v0
    v_xor_b32 v16, v16, v17
    v_lshlrev_b32 v16, 4, v16
    v_lshl_add_u32 v17, v3, 12, v16
    v_mul_u32_u24 v3, 896, v3
    v_add_u32 v16, v16, v3
    s_lshl_b32 s35, s29, 7
    s_mul_i32 s37, s32, {8*896}
    s_add_u32 s37, s37, s35
    s_getpc_b64 s[50:51]
L_pc2:
    s_add_u32 s50, s50, L_stage-L_pc2
    s_addc_u32 s51, s51, 0
    """)
    srd(k, 16, 52, 53, 896 * 896)
    LC = 216
    ldread = f'ds_read_b128 v[{LC}:{LC+3}], v22'
    def ldstep(name):
        k(f"""
        v_min3_u32 v{LC}, v{LC}, v{LC+1}, v{LC+2}
        v_min_u32 v{LC}, v{LC}, v{LC+3}
        v_cmp_gt_u32 vcc, s46, v{LC}
        s_cbranch_vccnz L_{name}_no
        s_swappc_b64 s[52:53], s[50:51]
L_{name}_no:
        """)
    k(f"""
    v_sub_u32 v5, v8, v9
    v_lshlrev_b32 v5, 4, v5
    s_add_u32 s35, s38, {L_KI + 64 + 15*256}
    v_add_u32 v5, s35, v5
    v_cmp_ne_u32 vcc, 8, v8
    v_cndmask_b32 v15, 0, -1, vcc
    v_cmp_gt_u32 vcc, 8, v8
    """)
    G.stamp(6)
    def BF(kk, rr): return Wt + 6 * kk + 2 if rr == 3 else B_ + (kk * 3 + rr) * 4
    for kk in range(4):
        w = Wt + 6 * kk
        for j in range(4):
            k(f'v_alignbit_b32 v{BF(kk,0)+j}, v{w+j+1}, v{w+j}, 16\n v_mov_b32 v{BF(kk,1)+j}, v{w+j+1}\n v_alignbit_b32 v{BF(kk,2)+j}, v{w+j+2}, v{w+j+1}, 16')
    for kk in range(4):
        for p in range(2):
            for j in range(4):
                k(f'v_cndmask_b32_dpp v{B2 + (kk*2+p)*4 + j}, v{BF(kk,2*p+1)+j}, v{BF(kk,2*p)+j}, vcc row_shr:8 row_mask:0xf bank_mask:0xf bound_ctrl:1')
    for j in range(8): k(f'v_mov_b32 v{P+j}, 0')
    def cread(buf):
        for kk in range(4):
            r = A_ + buf * 16 + kk * 4
            k(f'ds_read_b128 v[{r}:{r+3}], v5 offset:{192 - 64*kk}')
        k('v_add_u32 v5, -256, v5')
    waitfor(k, 'wbq', 0, 1, 101, LC, base=21)
    cread(0)
    G.stamp(7)
    if opt.get('kprio'): k('s_setprio 0')
    if opt.get('bprio'): k(f"s_setprio {opt['bprio']}")
    shp = lambda r: f'v_and_b32_dpp v{r}, v{r}, v15 row_shr:1 row_mask:0xf bank_mask:0xf bound_ctrl:1'
    shf = lambda r: f'v_mov_b32_dpp v{r}, v{r} row_shr:1 row_mask:0xf bank_mask:0xf bound_ctrl:1'
    k('s_mov_b32 s7, 0' + ('\n s_branch L_B_last' if opt.get('noconv') else '') + '\nL_B_pk:')
    for half in range(2):
        if half == 0: k(ldread)
        cread(1 - half)
        for j in range(4): k(shp(P + j))
        k('s_waitcnt lgkmcnt(4)')
        if half == 0: ldstep('ldp')
        for kk in range(4): mfma(k, P, A_ + half * 16 + kk * 4, B2 + (kk * 2) * 4); k(shp(P + 4 + kk))
        for kk in range(4): mfma(k, P + 4, A_ + half * 16 + kk * 4, B2 + (kk * 2 + 1) * 4)
    k('s_add_u32 s7, s7, 1\n s_cmp_lt_u32 s7, 4\n s_cbranch_scc1 L_B_pk')
    for j in range(4): k(f'v_mov_b32_dpp v{AC + j}, v{P+j} row_shr:1 row_mask:0xf bank_mask:0xf bound_ctrl:1')
    for j in range(4): k(f'v_mov_b32_dpp v{AC + 4 + j}, v{P+j} row_shl:8 row_mask:0xf bank_mask:0xf bound_ctrl:1')
    for j in range(4): k(f'v_mov_b32 v{AC + 8 + j}, v{P+4+j}')
    for j in range(4): k(f'v_mov_b32_dpp v{AC + 12 + j}, v{P+4+j} row_shl:8 row_mask:0xf bank_mask:0xf bound_ctrl:1')
    k('s_mov_b32 s7, 0\nL_B_fl:')
    for half in range(2):
        k(ldread)
        cread(1 - half)
        k('s_waitcnt lgkmcnt(4)')
        ldstep(f'ldf{half}')
        for rr in range(4):
            if rr == 3 and half == 1: k('s_add_u32 s7, s7, 1\n s_cmp_eq_u32 s7, 4\n s_cbranch_scc1 L_B_last')
            for kk in range(4):
                mfma(k, AC + 4 * rr, A_ + half * 16 + kk * 4, BF(kk, rr))
                k(shf(AC + 4 * ((rr + 1) % 4) + kk))
    k('s_branch L_B_fl\nL_B_last:\n s_nop 1')
    for kk in range(4): mfma(k, AC + 12, A_ + 16 + kk * 4, BF(kk, 3))
    G.stamp(8)
    if opt.get('bprio'): k('s_setprio 0')
    k(f"""
    s_lshl_b32 s35, s22, 3
    s_add_u32 s35, s35, s38
    s_add_u32 s35, s35, {L_U + 16}
    v_mul_u32_u24 v6, 272, v8
    v_lshl_add_u32 v7, v9, 6, v6
    v_add_u32 v7, s35, v7
    s_lshl_b32 s35, s21, 4
    s_lshr_b32 s30, s30, s35
    s_lshl_b32 s30, s30, 16
    v_mov_b32 v18, s30
    v_mov_b32 v19, s30
    """)
    its = [(UR + 2 * i + p, AC + 8 * p + i, AC + 8 * p + 4 + i, 48 + 4 * (2 * i + p), 40 + 2 * i + p) for i in range(4) for p in range(2)]
    for u, y0, y1, t, y in its: cvt(k, y, y0, y1); lo(k, t, u); hi(k, t + 1, u)
    for u, y0, y1, t, y in its: pks(k, 'mul', t, t, 18)
    for u, y0, y1, t, y in its: cvt(k, u, t, t + 1); lo(k, t + 2, y); hi(k, t + 3, y)
    for u, y0, y1, t, y in its: lo(k, t, u); hi(k, t + 1, u)
    for u, y0, y1, t, y in its: pks(k, 'add', t, t, t + 2)
    for u, y0, y1, t, y in its: cvt(k, u, t, t + 1)
    for i in range(4): k(f'ds_write_b64 v7, v[{UR+2*i}:{UR+2*i+1}] offset:{16*i}')
    k(f"""
    s_lshl_b32 s35, s22, 3
    v_add_u32 v7, s35, v9
    v_mul_u32_u24 v7, 272, v7
    v_lshl_add_u32 v7, v8, 4, v7
    s_add_u32 s35, s38, {L_U + 16}
    v_add_u32 v7, s35, v7
    s_lshl_b32 s36, s22, 11
    s_add_u32 s36, s36, s23
    s_add_u32 s36, s36, {hex(WS_AT)}
    s_waitcnt lgkmcnt(0)
    """)
    post(k, 103)
    k(ldread + '\n s_waitcnt lgkmcnt(0)'); ldstep('lde')
    waitfor(k, 'wbr', 0, 1, 103, 32, base=21)
    k(f"""
    ds_read_b128 v[32:35], v7
    ds_read_b128 v[36:39], v7 offset:{4*272}
    s_waitcnt lgkmcnt(0)
    buffer_store_dwordx4 v[32:35], v2, s[12:15], s36 offen sc1
    buffer_store_dwordx4 v[36:39], v2, s[12:15], s36 offen offset:1024 sc1
    """)
    k(f"""
    s_lshl_b32 s30, s20, 3
    s_lshl_b32 s35, s22, 2
    s_add_u32 s30, s30, s35
    s_add_u32 s30, s30, {hex(WS_FA)}
    """)
    G.stamp(9)
    G.stamp(1, '7')
    faload = 'buffer_load_dwordx2 v[96:97], v1, s[12:15], s39 offen sc1\n buffer_load_dwordx4 v[100:103], v2, s[12:15], s5 offen sc1'
    atile = f"""
    s_lshl_b32 s36, s29, 18
    s_lshl_b32 s35, s28, 7
    s_add_u32 s36, s36, s35
    s_add_u32 s36, s36, {hex(WS_AT)}
    """
    for q in range(8): atile += f's_mov_b32 m0, {L_R + 1024*q}\n s_nop 0\n buffer_load_dwordx4 v17, s[12:15], s36 offen sc1 lds\n s_add_u32 s36, s36, 0x8000\n'
    atile += f"""
    s_lshl_b32 s36, s28, 9
    s_add_u32 s36, s36, {hex(WS_G2)}
    s_mov_b32 m0, {L_R + 8192}
    s_mov_b32 exec_hi, 0
    buffer_load_dwordx4 v2, s[12:15], s36 offen sc1 lds
    s_mov_b32 exec_hi, -1
    s_mov_b32 s7, 1
    """
    k(f"""
    s_lshl_b32 s39, s29, 9
    s_add_u32 s39, s39, {hex(WS_FA)}
    s_mov_b32 s5, {hex(WS_FG)}
    v_lshlrev_b32 v1, 3, v0
    v_mov_b32 v3, 0
    s_min_u32 s7, s32, 1
    s_add_u32 s47, s44, 2
    s_mov_b32 s62, {POLL_LIMIT*16}
    s_cmp_eq_u32 s44, 23
    s_cbranch_scc1 L_B_ldd
L_B_ld:
    {ldread}
    s_waitcnt lgkmcnt(0)
    """)
    ldstep('ldl')
    k(f"""
    s_cmp_lg_u32 s44, s47
    s_cbranch_scc1 L_B_nf
    s_mov_b32 s47, 0
    s_mov_b64 exec, 1
    buffer_store_dword v{TAG}, v3, s[12:15], s30 offen sc1
    s_mov_b64 exec, -1
L_B_nf:
    s_cmp_eq_u32 s44, 23
    s_cbranch_scc1 L_B_ldd
    s_sub_u32 s62, s62, 1
    s_cbranch_scc0 L_B_ld
L_B_ldd:
    """)
    G.stamp(4, '7')
    p3setup(1)
    k(f"""
    s_setprio 1
    s_waitcnt vmcnt(0)
    s_cmp_eq_u32 s47, 0
    s_cbranch_scc1 L_B_fd
    s_mov_b64 exec, 1
    buffer_store_dword v{TAG}, v3, s[12:15], s30 offen sc1
    s_mov_b64 exec, -1
L_B_fd:
    s_cmp_eq_u32 s7, 1
    s_cbranch_scc1 L_B_nl
    {faload}
L_B_nl:
    """)
    G.stamp(10); G.stamp(2, '7'); G.stamp(8, '9')
    def facheck():
        k(f's_cmp_eq_u32 s7, 1\n s_cbranch_scc1 L_B_na\n v_cmp_ne_u32 vcc, v{TAG}, v96')
        for r in (97, 100, 101, 102, 103): k(f'v_cmp_ne_u32 s[54:55], v{TAG}, v{r}\n s_or_b64 vcc, vcc, s[54:55]')
        k('s_cbranch_vccnz L_B_na' + atile + 'L_B_na:')
    p3gemm(None, 28 - NA, facheck)
    for dt in range(4): k(f'ds_write_b128 v14, v[{AC3+4*dt}:{AC3+4*dt+3}] offset:{1024*dt}')
    k('s_cmp_eq_u32 s7, 1\n s_cbranch_scc1 L_B_late1')
    poll(k, 'pfa', faload, [96, 97, 100, 101, 102, 103], nap=2)
    k(atile + 'L_B_late1:\n s_waitcnt vmcnt(0) lgkmcnt(0)')
    G.stamp(11); G.stamp(11, '7')
    k('s_barrier')
    G.flush(16)
    k('s_endpgm')
    k('L_stage:\n s_cmp_ge_u32 s44, 16\n s_cbranch_scc1 L_st_wo')
    for j in range(4): k(spdma(j, dyn=True))
    k(f"""
    s_branch L_st_po
L_st_wo:
    s_lshl_b32 s6, s44, 2
    s_lshr_b32 s6, {hex(PI_WORD)}, s6
    s_and_b32 s6, s6, 15
    s_mul_i32 s35, s6, {128*896}
    s_add_u32 s35, s35, s37
    s_lshl_b32 s6, s6, 4
    s_add_u32 s6, s6, s32
    s_lshl_b32 s6, s6, 10
    """)
    for q in range(4):
        k(f's_add_u32 m0, s6, {4096*q}\n s_nop 0\n buffer_load_dwordx4 v16, s[16:19], s35 offen lds' + (f'\n s_add_u32 s35, s35, {32*896}' if q < 3 else ''))
    k(f"""
L_st_po:
    s_sub_u32 s35, s44, 2
    s_min_u32 s35, s35, 15
    s_max_u32 s35, s35, 6
    v_mov_b32 v23, s35
    s_add_u32 s44, s44, 1
    s_add_u32 s46, s44, 3
    s_cmp_eq_u32 s44, 23
    s_cselect_b32 s46, -1, s46
    s_waitcnt vmcnt(8)
    ds_write_b32 v29, v23 offset:16
    """)
    if opt.get('stamp') == '9':
        for n in range(7): k(f's_cmp_lg_u32 s44, {17+n}\n s_cbranch_scc1 L_t9_{n}\n s_memrealtime s[{66+2*n}:{67+2*n}]\nL_t9_{n}:')
    k('s_setpc_b64 s[52:53]')

    k('L_helper:')
    k(f"""
    s_getpc_b64 s[36:37]
L_pc:
    s_sub_u32 s36, s36, L_pc-{NAME}
    s_subb_u32 s37, s37, 0
    s_lshl_b32 s35, s3, 13
    v_lshlrev_b32 v10, 7, v0
    v_add_u32 v10, s35, v10
    v_min_u32 v10, L_end-{NAME}, v10
    global_load_dword v29, v10, s[36:37]
    v_min_u32 v1, 55, v0
    v_lshlrev_b32 v10, 4, v1
    global_load_dwordx4 v[24:27], v10, s[54:55]
    v_lshlrev_b32 v5, 12, v0
    s_lshl_b32 s35, s28, 18
    s_lshl_b32 s22, s3, 7
    s_add_u32 s35, s35, s22
    v_add_u32 v5, s35, v5
    s_and_b32 s35, s3, 1
    s_cmp_eq_u32 s35, 1
    s_cbranch_scc0 L_H_even
    v_mov_b32 v6, v7
L_H_even:
    s_lshl_b32 s20, s28, 3
    s_add_u32 s20, s20, s3
    s_mul_i32 s20, s20, {8*896}
    s_lshl_b32 s21, s3, 10
    v_lshrrev_b32 v10, 3, v1
    v_lshlrev_b32 v10, 13, v10
    v_and_b32 v1, 7, v1
    v_lshl_add_u32 v10, v1, 4, v10
    s_lshl_b32 s23, s28, 3
    s_add_u32 s23, s23, s3
    """)
    for p in range(7):
        k(f's_add_u32 m0, s21, {8192*p}\n buffer_load_dwordx4 v6, s[8:11], s20 offen lds\n s_add_u32 s20, s20, 128')
    k('s_waitcnt vmcnt(0)')
    G.stamp(1)
    for r in range(4): k(f'global_load_dword v29, v5, s[48:49] offset:{1024*r}')
    k(tagcalc + '\n s_barrier')
    K0 = int(opt.get('zk0', 6))
    k(f"""
    s_and_b32 s35, s2, 1
    s_mul_i32 s35, s35, 3
    s_add_u32 s35, s35, s32
    s_lshl_b32 s36, s35, 11
    s_add_u32 s36, s36, {hex(WS_FZ)}
    s_and_b32 s37, s28, 3
    s_lshl_b32 s37, s37, 1
    s_lshr_b32 s38, s3, 2
    s_add_u32 s37, s37, s38
    s_add_u32 s37, s37, {K0}
    s_lshl_b32 s37, s37, 13
    s_lshl_b32 s35, s35, 19
    s_add_u32 s37, s37, s35
    s_add_u32 s38, s35, {64*8192}
    v_lshlrev_b32 v1, 6, v0
    v_lshlrev_b32 v5, 7, v0
    """)
    if opt.get('zpf'):
        k('s_cmp_ge_u32 s3, 4\n s_cbranch_scc1 L_H_nz')
        poll(k, 'hfz', 'buffer_load_dwordx4 v[32:35], v1, s[12:15], s36 offen sc1', [32, 33, 34, 35], lanes='s_mov_b32 exec_hi, 0', nap=int(opt.get('znap', 8)))
        k('L_H_nz:\n s_barrier')
        G.stamp(2)
        k(f"""
L_H_z:
        buffer_load_dword v29, v5, s[12:15], s37 offen sc1
        s_add_u32 s37, s37, {8*8192}
        s_cmp_lt_u32 s37, s38
        s_cbranch_scc1 L_H_z
        """)
    for i in range(8):
        k(f"""
        s_lshl_b32 s35, s3, 2
        s_add_u32 s35, s35, {i >> 1}
        s_and_b32 s35, s35, 7
        s_lshl_b32 s35, s35, 4
        v_xor_b32 v1, s35, v10
        v_add_u32 v1, s21, v1
        ds_read_b128 v[{64+4*i}:{67+4*i}], v1 offset:{128*i}
        """)
    for j in range(4): lo(k, 16 + 2 * j, 24 + j); hi(k, 17 + 2 * j, 24 + j)
    k('v_cmp_gt_u32 vcc, 56, v0\n s_waitcnt lgkmcnt(0)')
    for i in range(8):
        t = 96 + 8 * i
        for j in range(4): lo(k, t + 2 * j, 64 + 4 * i + j); hi(k, t + 2 * j + 1, 64 + 4 * i + j)
        for j in range(4): pk(k, 'mul', t + 2 * j, t + 2 * j, 16 + 2 * j)
        for j in range(4): cvt(k, 64 + 4 * i + j, t + 2 * j, t + 2 * j + 1)
        for j in range(4): lo(k, t + 2 * j, 64 + 4 * i + j); hi(k, t + 2 * j + 1, 64 + 4 * i + j)
        pk(k, 'add', t, t, t + 2); pk(k, 'add', t + 4, t + 4, t + 6); pk(k, 'add', t, t, t + 4)
        k(f'v_add_f32 v{t}, v{t}, v{t+1}\n v_cndmask_b32 v{32+i}, 0, v{t}, vcc')
    rowsum16(k, list(range(32, 40))); xsum4(k, list(range(32, 40)), 40)
    for i in range(1, 8): k(f'v_cmp_eq_u32 vcc, {i}, v0\n v_cndmask_b32 v32, v32, v{32+i}, vcc')
    cvt(k, 32, 32, 32); lo(k, 32, 32)
    k(f'v_mul_f32 v32, {f32hex(-L2E)}, v32\n v_exp_f32 v32, v32\n v_add_f32 v32, 1.0, v32\n v_rcp_f32 v32, v32')
    cvt(k, 32, 32, 32); lo(k, 32, 32)
    k('v_sub_f32 v33, 1.0, v32')
    cvt(k, 33, 33, 33); lo(k, 33, 33)
    k(f"""
    s_lshl_b32 s36, s23, 6
    s_add_u32 s36, s36, {hex(WS_G2)}
    s_lshl_b32 s35, s23, 2
    s_add_u32 s35, s35, {hex(WS_FG)}
    v_lshlrev_b32 v1, 3, v0
    s_mov_b64 exec, 0xff
    buffer_store_dwordx2 v[32:33], v1, s[12:15], s36 offen sc1
    s_waitcnt vmcnt(0)
    s_mov_b64 exec, 1
    buffer_store_dword v{TAG}, v1, s[12:15], s35 offen sc1
    s_mov_b64 exec, -1
    s_and_b32 s35, s28, 3
    s_lshl_b32 s35, s35, 3
    s_add_u32 s35, s35, s3
    s_mul_i32 s35, s35, {28*896}
    s_and_b32 s36, s2, 1
    s_mul_i32 s36, s36, 384
    s_add_u32 s35, s35, s36
    v_min_u32 v5, 55, v0
    v_lshrrev_b32 v1, 2, v5
    v_mul_u32_u24 v1, 896, v1
    v_and_b32 v5, 3, v5
    v_lshl_add_u32 v5, v5, 7, v1
    v_add_u32 v5, s35, v5
    global_load_dword v29, v5, s[52:53]
    v_add_u32 v5, {14*896}, v5
    global_load_dword v29, v5, s[52:53]
    """)
    if opt.get('stamp'): k('s_waitcnt vmcnt(0)')
    G.stamp(3)
    G.flush(4)
    k('L_end:\n s_endpgm')
    return k

if __name__ == '__main__':
    opt = dict(a.split('=') if '=' in a else (a, 1) for a in sys.argv[2:])
    k = gen(opt)
    v, s = k.maxreg()
    ref = open('gated_mix__ssm_conv_s4d__mixer_gmlp__prompt.s.ref').read().split('\n')
    hdr = [l for l in ref if l.startswith(';') and '@launch' not in l and 'Override launch' not in l and 'grid=ceil' not in l]
    txt = '\n'.join(hdr) + f'\n; @launch grid=(256,1,1) block=(512,1,1) lds={LDS}\n'
    txt += '.amdgcn_target "amdgcn-amd-amdhsa--gfx950"\n.text\n' + k.text(align=(opt.get('align', '1') == '1')) + '.section .rodata,"a"\n' + desc(k.name, v, s)
    open(sys.argv[1], 'w').write(txt)
    print('vgpr', v, 'sgpr', s, 'lines', len(k.lines))
```

```python
import sys, struct
from asmlib import *

NAME = 'gated_mix__ssm_conv_s4d__mixer_gmlp__prompt_kernel'
WS_Z2 = 0x000000
WS_H  = 0x380000
WS_UT = 0x700000
WS_AT = 0x8C0000
WS_G2 = 0xA80000
WS_ST = 0xA90000
WS_FZ = 0xAD0000
WS_FH = 0xAD4000
WS_FA = 0xAE4000
WS_FU = 0xAE5000
WS_FG = 0xAE5E00
WS_FG = 0xAE7000
WS_EP = 0xAE6000
WS_END = 0xAF0000
SZ_Z = 3670016
STAMP_BASE = 0x2000000
L_X = 65536
L_KG = 122880
KG_ROW = 144
KG_WAVE = 64 * KG_ROW
L_U = 131072
L_KI = L_U + 2 * 4352
L_R = L_KI + 2 * 4352
L_Z1 = L_U
L_CNT = 163840 - 48
LDS = 163840
L2E = 1.4426950408889634
PI = [4, 5, 2, 3, 6, 0, 1, 7]
PI_WORD = sum(v << (4 * i) for i, v in enumerate(PI))
TAG = 28
POLL_LIMIT = 1 << 16

def f32hex(x): return hex(struct.unpack('<I', struct.pack('<f', x))[0])

def srd(k, d, lo, hi, size, add=0):
    if add: k(f's_add_u32 s{d}, s{lo}, {hex(add)}\n s_addc_u32 s{d+1}, s{hi}, 0')
    else: k(f's_mov_b32 s{d}, s{lo}\n s_mov_b32 s{d+1}, s{hi}')
    k(f's_mov_b32 s{d+2}, {hex(size)}\n s_mov_b32 s{d+3}, 0x20000')

class Gen:
    def __init__(self, opt):
        self.opt = opt
        self.k = K(NAME)
    def st(self, idx, grp='1'):
        if str(self.opt.get('stamp')) == grp or (idx == 0 and self.opt.get('stamp')): return f's_memrealtime s[{64+2*idx}:{65+2*idx}]\n'
        return ''
    def stamp(self, idx, grp='1'):
        self.k(self.st(idx, grp))
        if grp == '1' and str(self.opt.get('stamp')) == '6' and idx in self.CL:
            j = self.CL.index(idx)
            self.k(f's_memrealtime s[{66+4*j}:{67+4*j}]\n s_memtime s[{68+4*j}:{69+4*j}]')
    CL = [1, 2, 3, 4, 10, 11, 14]
    def flush(self, n, role=''):
        k = self.k
        if not self.opt.get('stamp'): return
        if self.opt.get('dbg'):
            if role != 'A': return
            k('s_load_dwordx2 s[56:57], s[0:1], 112\n s_waitcnt lgkmcnt(0)\n s_mov_b32 s58, 256\n s_mov_b32 s59, 0x20000\n s_mov_b64 exec, 1\n v_mov_b32 v1, 0')
            k('s_not_b32 s60, s64\n v_mov_b32 v2, s60\n buffer_atomic_umax v2, v1, s[56:59], 0 offen')
            for i in range(1, 16):
                k(f'v_mov_b32 v2, s{64+2*i}\n buffer_atomic_umax v2, v1, s[56:59], 0 offen offset:{4*i}')
            k('s_mov_b64 exec, -1')
            return
        k('s_waitcnt lgkmcnt(0)\n s_mov_b64 exec, 1')
        k(f's_lshl_b32 s60, s2, 3\n s_add_u32 s60, s60, s61\n s_lshl_b32 s60, s60, 6\n s_add_u32 s60, s60, {hex(STAMP_BASE)}')
        k('v_mov_b32 v1, 0')
        for i in range(n):
            k(f'v_mov_b32 v2, s{64+2*i}\n buffer_store_dword v2, v1, s[56:59], s60 offen offset:{4*i}')
        k('s_mov_b64 exec, -1')

def lo(k, d, s): k(f'v_lshlrev_b32 v{d}, 16, v{s}')
def hi(k, d, s): k(f'v_and_b32 v{d}, 0xffff0000, v{s}')
def cvt(k, d, a, b): k(f'v_cvt_pk_bf16_f32 v{d}, v{a}, v{b}')
def pk(k, op, d, a, b, c=None, mods=''):
    s = f'v_pk_{op}_f32 v[{d}:{d+1}], v[{a}:{a+1}], v[{b}:{b+1}]'
    if c is not None: s += f', v[{c}:{c+1}]'
    k(s + (' ' + mods if mods else ''))
def pks(k, op, d, a, b, c=None, neg=False, sc=True):
    if not sc:
        return pk(k, op, d, a, b, c, mods='neg_lo:[0,1] neg_hi:[0,1]' if neg else '')
    for i in range(2):
        if op == 'fma':
            k(f'v_fmac_f32 v{d+i}, v{a+i}, v{b+i}' if c == d else f'v_fma_f32 v{d+i}, v{a+i}, v{b+i}, v{c+i}')
        else: k(f"v_{'sub' if neg else op}_f32 v{d+i}, v{a+i}, v{b+i}")
def mfma(k, c, a, b, cin=None):
    k(f'v_mfma_f32_16x16x32_bf16 v[{c}:{c+3}], v[{a}:{a+3}], v[{b}:{b+3}], ' + (cin or f'v[{c}:{c+3}]'))

GC = 24
def gelu_consts(k):
    c0 = -2.0 * 0.7978845608028654 * L2E
    k(f'v_mov_b32 v24, {f32hex(c0*0.044715)}\n v_mov_b32 v25, {f32hex(c0*0.044715)}\n v_mov_b32 v26, {f32hex(c0)}\n v_mov_b32 v27, {f32hex(c0)}')
    k('v_mov_b32 v30, 1.0\n v_mov_b32 v31, 1.0')
def gelu_tiles(k, cs, t, sc=False):
    c0 = -2.0 * 0.7978845608028654 * L2E
    pairs = [(c + 2 * p, t + 4 * i + 2 * p) for i, c in enumerate(cs) for p in range(2)]
    for x, tt in pairs: cvt(k, tt, x, x + 1)
    for x, tt in pairs: lo(k, x, tt); hi(k, x + 1, tt)
    for x, tt in pairs: pks(k, 'mul', tt, x, x, sc=sc)
    for x, tt in pairs:
        if sc: k(f'v_fmaak_f32 v{tt}, v{tt}, v24, {f32hex(c0)}\n v_fmaak_f32 v{tt+1}, v{tt+1}, v24, {f32hex(c0)}')
        else: pk(k, 'fma', tt, tt, 24, 26)
    for x, tt in pairs: pks(k, 'mul', tt, tt, x, sc=sc)
    for x, tt in pairs: k(f'v_exp_f32 v{tt}, v{tt}\n v_exp_f32 v{tt+1}, v{tt+1}')
    for x, tt in pairs: pks(k, 'add', tt, tt, 30, sc=sc)
    for x, tt in pairs: k(f'v_rcp_f32 v{tt}, v{tt}\n v_rcp_f32 v{tt+1}, v{tt+1}')
    for x, tt in pairs: pks(k, 'mul', x, x, tt, sc=sc)

def rowsum16(k, regs):
    for sh in (8, 4, 2, 1):
        for r in regs: k(f'v_add_f32_dpp v{r}, v{r}, v{r} row_ror:{sh} row_mask:0xf bank_mask:0xf')
def xsum4(k, regs, t):
    for sw in ('16', '32'):
        for i, r in enumerate(regs): k(f'v_mov_b32 v{t+i}, v{r}')
        for i, r in enumerate(regs): k(f'v_permlane{sw}_swap_b32 v{r}, v{t+i}')
        for i, r in enumerate(regs): k(f'v_add_f32 v{r}, v{r}, v{t+i}')
def cmul(k, d, x, w):
    k(f'v_mul_f32 v{d}, v{x}, v{w}\n v_mul_f32 v{d+1}, v{x+1}, v{w}\n v_fmac_f32 v{d}, v{x+1}, v{w+2}\n v_fmac_f32 v{d+1}, v{x}, v{w+1}')

def poll(k, name, loads, regs, lanes=None, first_issued=False, wait0='s_waitcnt vmcnt(0)', nap=0):
    k(f's_mov_b32 s62, {POLL_LIMIT}')
    if lanes: k(lanes)
    if first_issued: k(f'{wait0}\n s_branch L_{name}_chk')
    k(f'L_{name}:')
    k(loads)
    k(f's_waitcnt vmcnt(0)\nL_{name}_chk:')
    k(f'v_cmp_ne_u32 vcc, v{TAG}, v{regs[0]}')
    for r in regs[1:]:
        k(f'v_cmp_ne_u32 s[54:55], v{TAG}, v{r}\n s_or_b64 vcc, vcc, s[54:55]')
    k(f's_cbranch_vccz L_{name}_ok\n' + (f's_sleep {nap}\n' if nap else '') + f's_sub_u32 s62, s62, 1\n s_cbranch_scc0 L_{name}\nL_{name}_ok:')
    if lanes: k('s_mov_b64 exec, -1')

def post(k, val, addr=29, tmp=23):
    k(f'v_mov_b32 v{tmp}, {val}\n ds_write_b32 v{addr}, v{tmp}')
def waitfor(k, name, off, n, val, t, base=22, sleep=True):
    k(f's_mov_b32 s62, {POLL_LIMIT*16}\nL_{name}:')
    if n == 4:
        k(f'ds_read_b128 v[{t}:{t+3}], v{base} offset:{off}\n s_waitcnt lgkmcnt(0)\n v_min3_u32 v{t}, v{t}, v{t+1}, v{t+2}\n v_min_u32 v{t}, v{t}, v{t+3}')
    else:
        k(f'ds_read_b32 v{t}, v{base} offset:{off}\n s_waitcnt lgkmcnt(0)')
    k(f'v_cmp_gt_u32 vcc, {val}, v{t}\n s_cbranch_vccz L_{name}_ok')
    if sleep: k(f's_sleep {int(sleep)}')
    k(f's_sub_u32 s62, s62, 1\n s_cbranch_scc0 L_{name}\nL_{name}_ok:')

def weave(lines, events):
    out = []; n = len(lines); ev = sorted(events, key=lambda e: e[0]); j = 0
    for i, l in enumerate(lines):
        while j < len(ev) and ev[j][0] * n <= i:
            out += [x.strip() for x in ev[j][1].split('\n') if x.strip()]; j += 1
        out.append(l)
    while j < len(ev):
        out += [x.strip() for x in ev[j][1].split('\n') if x.strip()]; j += 1
    return out

def sub(fn, *a):
    t = K('t'); fn(t, *a); return t.lines

def gen(opt):
    G = Gen(opt); k = G.k
    D = 8
    ZF = '' if opt.get('nosc1') else 'sc1'
    npf = int(opt.get('pfcode', 3))
    k(f"""
    s_cmp_ge_u32 s2, 256
    s_cbranch_scc1 L_end
    s_load_dwordx2 s[8:9], s[0:1], 0       ; x
    s_load_dwordx2 s[16:17], s[0:1], 64    ; w_in
    s_load_dwordx2 s[12:13], s[0:1], 120   ; ws
    s_load_dwordx8 s[36:43], s[0:1], 8
    s_load_dwordx4 s[44:47], s[0:1], 40
    s_load_dwordx8 s[48:55], s[0:1], 72
    s_load_dwordx2 s[26:27], s[0:1], 104   ; out
    v_lshrrev_b32 v1, 6, v0
    v_and_b32 v0, 63, v0
    v_readfirstlane_b32 s3, v1             ; wave
    s_lshr_b32 s30, s2, 3                  ; j
    s_and_b32 s29, s2, 1
    s_lshl_b32 s29, s29, 2                 ; 4*par
    s_and_b32 s31, s30, 3
    s_add_u32 s31, s31, s29
    s_lshr_b32 s35, s30, 3
    s_add_u32 s29, s29, s35
    s_and_b32 s35, s30, 7
    s_cmp_lt_u32 s30, 24
    s_cselect_b32 s31, s35, s31            ; tb&7
    s_cselect_b32 s29, s29, 3
    s_cmp_ge_u32 s30, 28
    s_cselect_b32 s29, 7, s29
    s_and_b32 s28, s2, 6
    s_lshl_b32 s28, s28, 2
    s_add_u32 s28, s28, s31
    s_min_u32 s31, s31, 6
    s_and_b32 s32, s3, 3
    v_and_b32 v8, 15, v0
    v_lshrrev_b32 v9, 4, v0
    v_lshlrev_b32 v10, 1, v9
    v_xor_b32 v10, v10, v8
    v_lshlrev_b32 v10, 4, v10
    v_mul_u32_u24 v11, 3584, v9
    v_add_u32 v10, v10, v11
    v_add_u32 v11, {4*3584}, v10
    v_xor_b32 v12, 128, v10
    v_add_u32 v12, {8*3584}, v12
    v_add_u32 v13, {4*3584}, v12
    s_mul_i32 s33, s32, {16*3584}
    s_lshl_b32 s34, s29, 8
    s_add_u32 s33, s33, s34
    s_add_u32 s33, s33, 1792
    s_lshl_b32 s34, s32, 12
    v_lshrrev_b32 v21, 3, v0
    v_and_b32 v20, 7, v0
    v_lshrrev_b32 v5, 1, v21
    v_xor_b32 v20, v20, v5
    v_lshlrev_b32 v20, 4, v20
    v_mul_u32_u24 v6, 896, v21
    v_add_u32 v6, v6, v20
    v_xor_b32 v7, 64, v6
    v_add_u32 v4, {8*896}, v7
    s_lshl_b32 s24, s28, 2
    s_add_u32 s24, s24, s32
    s_mul_i32 s24, s24, {16*896}
    s_lshl_b32 s25, s32, 11
    s_add_u32 s25, s25, {L_X}
    s_mov_b32 s10, {2048*896}
    s_mov_b32 s11, 0x20000
    s_mov_b32 s14, {hex(WS_END)}
    s_mov_b32 s15, 0x20000
    s_mov_b32 s18, {448*3584}
    s_mov_b32 s19, 0x20000
    s_mov_b32 s5, {hex(WS_EP)}
    s_cmp_eq_u32 s29, 7
    s_waitcnt lgkmcnt(0)
    """)
    if opt.get('stamp'):
        k('s_mov_b32 s61, s3'); G.stamp(0); srd(k, 56, 12, 13, 0x4000000)
    k(f"""
    s_load_dword s4, s[12:13], s5
    s_cbranch_scc1 L_helper
    s_cmp_lt_u32 s3, 4
    s_cbranch_scc1 L_A
    """)
    k(f"""
    v_mul_u32_u24 v1, 896, v8
    s_lshl_b32 s20, s29, 7
    s_add_u32 s20, s20, s24
    s_mov_b64 exec, 0xffff
    buffer_load_dword v209, v1, s[8:11], s20 offen
    s_mov_b64 exec, -1
    s_mul_i32 s20, s28, 7
    s_add_u32 s20, s20, s29                ; m
    s_lshr_b32 s21, s32, 1                 ; c2
    s_and_b32 s22, s32, 1                  ; hf
    s_lshl_b32 s23, s20, 2
    s_load_dword s30, s[46:47], s23
    s_lshl_b32 s20, s20, 1
    s_add_u32 s20, s20, s21                ; channel
    s_lshl_b32 s23, s20, 9
    s_lshl_b32 s35, s22, 8
    s_add_u32 s23, s23, s35
    v_lshlrev_b32 v1, 1, v0
    v_add_u32 v1, s23, v1
    """)
    PRM = 200
    for c in range(2):
        for i in range(4): k(f'global_load_ushort v{PRM+4*c+i}, v1, s[{36+2*i}:{37+2*i}] offset:{128*c}')
    k(f"""
    s_lshl_b32 s23, s20, 1
    v_mov_b32 v1, s23
    global_load_ushort v{PRM+8}, v1, s[44:45]
    """)
    if opt.get('tlb'):
        k(f"""
        v_mov_b32 v1, 0
        s_mov_b64 exec, 1
        s_lshl_b32 s35, s29, 5
        s_add_u32 s35, s35, s28
        s_lshl_b32 s35, s35, 14
        buffer_load_dword v209, v1, s[12:15], s35 offen sc1
        s_mul_i32 s35, s28, {4*28*1024}
        s_lshl_b32 s63, s29, 12
        s_add_u32 s35, s35, s63
        s_add_u32 s35, s35, {hex(WS_H)}
        buffer_load_dword v209, v1, s[12:15], s35 offen sc1
        s_lshl_b32 s35, s20, 12
        s_add_u32 s35, s35, {hex(WS_AT)}
        buffer_load_dword v209, v1, s[12:15], s35 offen sc1
        s_lshl_b32 s35, s29, 18
        s_lshl_b32 s63, s28, 7
        s_add_u32 s35, s35, s63
        s_add_u32 s35, s35, {hex(WS_UT)}
        buffer_load_dword v209, v1, s[12:15], s35 offen sc1
        global_load_dword v209, v1, s[26:27]
        global_load_dword v209, v1, s[52:53]
        s_lshl_b32 s35, s28, 18
        v_mov_b32 v1, s35
        global_load_dword v209, v1, s[48:49]
        s_mov_b64 exec, -1
        """)
    G.stamp(1, '3')
    k('s_branch L_B')
    def w2parts(j):
        h = f's_add_u32 s35, s31, {j}\n s_cmp_ge_u32 s35, 7\n s_cselect_b32 s63, 7, 0\n s_sub_u32 s35, s35, s63\n s_lshl_b32 s63, s35, 7\n s_add_u32 s63, s63, s24\n'
        p = [h + f's_add_u32 m0, s25, {j * 8192}\n s_mul_i32 s35, s35, {64*3584}\n buffer_load_dwordx4 v6, s[8:11], s63 offen lds\n',
             f's_add_u32 m0, s25, {j * 8192 + 1024}\n s_add_u32 s35, s35, s33\n buffer_load_dwordx4 v4, s[8:11], s63 offen lds\n']
        for q in range(4):
            p.append(f's_add_u32 m0, s34, {(j & 3) * 16384 + q * 1024}\n buffer_load_dwordx4 v{10+q}, s[16:19], s35 offen lds\n')
        return p
    def w2stage(j): return ''.join(w2parts(j))
    def common2():
        k(f"""
        v_lshlrev_b32 v2, 4, v0
        v_mov_b32 v22, {L_CNT}
        s_lshl_b32 s35, s3, 2
        v_add_u32 v29, s35, v22
        """)
    tagcalc = f's_waitcnt lgkmcnt(0)\n s_mul_i32 s4, s4, 0x9E3779B1\n s_add_u32 s4, s4, 0x7F4A7C15\n v_mov_b32 v{TAG}, s4'
    def w1setup(r):
        k(f"""
        v_lshrrev_b32 v{r}, 2, v0
        v_mul_u32_u24 v{r}, 3584, v{r}
        v_lshrrev_b32 v{r+1}, 4, v0
        v_and_b32 v{r+1}, 2, v{r+1}
        v_xor_b32 v{r+1}, v{r+1}, v0
        v_and_b32 v{r+1}, 3, v{r+1}
        v_lshl_add_u32 v{r}, v{r+1}, 4, v{r}
        v_add_u32 v{r+1}, {16*3584}, v{r}
        s_lshl_b32 s38, s29, 8
        s_lshl_b32 s35, s32, 6
        s_add_u32 s38, s38, s35
        s_lshl_b32 s40, s32, 11
        """)
    def w1off(i): return [3, 0, 1, 2][(i % 8) >> 1] * 16384 + (i & 1) * 8192
    def w1dma(i, r):
        off = w1off(i)
        return (f's_mul_i32 s35, s41, {32*3584}\n s_add_u32 s35, s35, s38\n s_add_u32 m0, s40, {off}\n s_add_u32 s41, s41, 1\n'
                f'buffer_load_dwordx4 v{r}, s[16:19], s35 offen lds\n s_add_u32 m0, s40, {off+1024}\n s_cmp_eq_u32 s41, 14\n'
                f'buffer_load_dwordx4 v{r+1}, s[16:19], s35 offen lds\n s_cselect_b32 s41, 0, s41\n')
    k('L_A:')
    k(w2stage(0)); k(w2stage(1))
    if opt.get('prio', '1') != '0': k(f"s_setprio {opt.get('prio', 1)}")
    srd(k, 36, 50, 51, 4096)
    k('v_lshlrev_b32 v1, 1, v8\n s_lshl_b32 s35, s28, 7')
    BSP = [228, 229, 230, 231]
    for tt in range(4): k(f'buffer_load_ushort v{BSP[tt]}, v1, s[36:39], s35 offen offset:{32*tt}')
    common2()
    WA = 168
    k(f"""
    v_mov_b32 v23, 0
    ds_write_b32 v29, v23
    ds_write_b32 v29, v23 offset:16
    v_mov_b32 v23, 6
    ds_write_b32 v29, v23 offset:32
    v_lshrrev_b32 v14, 1, v8
    v_xor_b32 v14, v14, v9
    v_lshlrev_b32 v14, 4, v14
    v_lshl_add_u32 v14, v8, 7, v14
    v_add_u32 v14, s25, v14
    v_xor_b32 v15, 64, v14
    v_lshrrev_b32 v16, 2, v0
    v_and_b32 v17, 7, v16
    v_lshlrev_b32 v17, 5, v17
    v_and_b32 v16, 3, v16
    v_lshl_add_u32 v16, v9, 3, v16         ; 8g + r
    v_and_b32 v19, 3, v0
    v_lshlrev_b32 v18, 3, v19
    v_lshl_add_u32 v18, v16, 8, v18
    """)
    for ft in range(8): k(f'v_xor_b32 v{WA+ft}, {32*ft}, v17\n v_add_u32 v{WA+ft}, v{WA+ft}, v18')
    gelu_consts(k)
    w1setup(224)
    k(f"""
    v_lshlrev_b32 v226, 6, v16
    v_lshl_add_u32 v226, v19, 3, v226
    v_and_b32 v227, 1, v9
    v_lshl_add_u32 v226, v227, 5, v226     ; row*64 + (p ^ (g&1))*32 + 8c  (p = 0)
    v_xor_b32 v227, 32, v226
    v_add_u32 v226, s40, v226
    v_add_u32 v227, s40, v227
    s_lshl_b32 s41, s31, 1
    s_add_u32 s41, s41, 8
    s_cmp_ge_u32 s41, 14
    s_cselect_b32 s35, 14, 0
    s_sub_u32 s41, s41, s35
    s_lshl_b32 s35, s32, 2
    v_add_u32 v5, s35, v22
    """)
    XF, WF, ACC, T, CK1 = 32, 88, 120, 152, 40
    G.stamp(14, '2')
    k('s_waitcnt vmcnt(10) lgkmcnt(0)')
    G.stamp(15, '2')
    k(tagcalc + '\n s_barrier')
    G.stamp(1); G.stamp(1, '2')
    def wread(gi):
        ks = gi >> 1
        for f in range(4):
            for hh in range(2):
                r = WF + (gi & 1) * 16 + f * 4 + hh * 2
                k(f'ds_read_b64_tr_b16 v[{r}:{r+1}], v{WA + 4 * (gi & 1) + f} offset:{((ks >> 1) & 3) * 16384 + (ks & 1) * 8192 + hh * 1024}')
    def xread(i):
        k(f'ds_read_b128 v[{XF+4*(i&1)}:{XF+4*(i&1)+3}], v{14 + (i & 1)} offset:{(i >> 1) * 8192}')
    xread(0); wread(0)
    for gi in range(28):
        ks = gi >> 1; j = gi >> 2
        if gi % 4 == 3:
            k('s_waitcnt lgkmcnt(0)' + (' vmcnt(0)' if j == 0 else ''))
            if j < 6: G.stamp(2 + 2 * j, '2')
            k('s_barrier')
            if j < 6:
                G.stamp(3 + 2 * j, '2'); xread(ks + 1); wread(gi + 1)
        else:
            nx = 0
            if gi % 4 == 0: xread(ks + 1); nx = 1
            wread(gi + 1); k(f's_waitcnt lgkmcnt({8 + nx})')
        for f in range(4):
            mfma(k, ACC + 16 * (gi & 1) + 4 * f, XF + 4 * (ks & 1), WF + (gi & 1) * 16 + f * 4, '0' if ks == 0 else None)
    G.stamp(2)
    S, Q = 88, 92
    def z2epi(t):
        for h in range(2):
            cs = [ACC + 16 * h + 4 * f for f in range(4)]
            gelu_tiles(t, cs, T)
            prs = [(c + 2 * p, T + 2 * i + p) for i, c in enumerate(cs) for p in range(2)]
            for x, tt in prs: cvt(t, tt, x, x + 1)
            for x, tt in prs: lo(t, x, tt); hi(t, x + 1, tt)
            for i, c in enumerate(cs):
                for p in range(2):
                    if h == 0 and i == 0: pk(t, 'mul', Q + 2 * p, c + 2 * p, c + 2 * p)
                    else: pk(t, 'fma', Q + 2 * p, c + 2 * p, c + 2 * p, Q + 2 * p)
                    if h == 0 and i == 0: pass
                    elif h == 0 and i == 1: pk(t, 'add', S + 2 * p, ACC + 2 * p, c + 2 * p)
                    else: pk(t, 'add', S + 2 * p, S + 2 * p, c + 2 * p)
    z2epi(k)
    rowsum16(k, list(range(S, S + 8)))
    k(f"""
    v_cmp_eq_u32 vcc, 1, v19
    v_cndmask_b32 v{T}, v{S}, v{S+1}, vcc
    v_cndmask_b32 v{T+2}, v{Q}, v{Q+1}, vcc
    v_cmp_eq_u32 vcc, 2, v19
    v_cndmask_b32 v{T}, v{T}, v{S+2}, vcc
    v_cndmask_b32 v{T+2}, v{T+2}, v{Q+2}, vcc
    v_cmp_eq_u32 vcc, 3, v19
    v_cndmask_b32 v{T}, v{T}, v{S+3}, vcc
    v_cndmask_b32 v{T+2}, v{T+2}, v{Q+3}, vcc
    v_mov_b32 v{T+1}, v{TAG}
    v_mov_b32 v{T+3}, v{TAG}
    v_lshl_add_u32 v18, v9, 2, v19
    v_lshlrev_b32 v18, 4, v18              ; row*16
    s_lshl_b32 s24, s28, 2
    s_add_u32 s24, s24, s32
    s_lshl_b32 s24, s24, 11
    s_add_u32 s24, s24, {hex(WS_ST)}
    s_lshl_b32 s35, s29, 8
    s_add_u32 s35, s35, s24
    s_mov_b32 exec_lo, 0x000f000f
    s_mov_b32 exec_hi, 0x000f000f
    buffer_store_dwordx4 v[{T}:{T+3}], v18, s[12:15], s35 offen sc1
    s_mov_b64 exec, -1
    v_min_u32 v18, 2, v9
    v_lshlrev_b32 v18, 8, v18
    v_lshl_add_u32 v18, v8, 4, v18
    """)
    G.stamp(3)
    def spdma(j, dyn=False, slot=0):
        vv, off = ((10, 0), (12, 1024), (11, 8192), (13, 9216))[j]
        t = f's_add_u32 m0, s43, {off + slot * 16384}\n buffer_load_dwordx4 v{vv}, s[8:11], s42 offen lds\n'
        if j == 3:
            t += 's_add_u32 s42, s42, 256\n'
            if dyn: t += 's_lshr_b64 s[40:41], s[40:41], 4\n s_and_b32 s43, s40, 15\n s_lshl_b32 s43, s43, 3\n s_add_u32 s43, s43, s32\n s_lshl_b32 s43, s43, 11\n'
        return t
    A1, FR, ZP = 176, 64, 208
    k(f"""
    s_lshl_b32 s35, s32, 11
    v_subrev_u32 v14, s35, v14
    v_subrev_u32 v15, s35, v15
    """)
    srd(k, 8, 48, 49, 0x800000)
    k(f"""
    v_lshl_add_u32 v10, v21, 12, v20
    v_add_u32 v11, 128, v10
    v_xor_b32 v12, 64, v10
    v_add_u32 v12, 0x8000, v12
    v_add_u32 v13, 128, v12
    s_lshl_b32 s42, s28, 2
    s_add_u32 s42, s42, s32
    s_lshl_b32 s42, s42, 16                ; (64*tb + 16*a)*4096
    s_lshl_b32 s43, s32, 11
    """)
    def z1read(i):
        b = FR + (i & 1) * 24
        for p in range(2):
            for hh in range(2):
                k(f'ds_read_b64_tr_b16 v[{b+4*p+2*hh}:{b+4*p+2*hh+1}], v{226 + p} offset:{w1off(i) + 256*hh}')
        for tt in range(4):
            r = b + 8 + 4 * tt
            k(f'ds_read_b128 v[{r}:{r+3}], v{14 + (i & 1)} offset:{(i >> 1) * 8192 + tt * 2048}')
    G.stamp(1, '5')
    waitfor(k, 'wb1', 16, 1, 1, 32, base=5, sleep=False)
    G.stamp(2, '5')
    PL = 32; S, Q = 44, 48
    NP = int(opt.get('np', 7))
    stload = f'buffer_load_dwordx4 v[{PL}:{PL+3}], v2, s[12:15], s24 offen sc1\n buffer_load_dwordx4 v[{PL+4}:{PL+7}], v18, s[12:15], s24 offen offset:1024 sc1'
    def normalise():
        poll(k, 'pst', stload, [PL + 1, PL + 3, PL + 5, PL + 7], first_issued=True)
        G.stamp(5)
        k(f"""
        v_cmp_gt_u32 vcc, 3, v9
        v_cndmask_b32 v{PL+4}, 0, v{PL+4}, vcc
        v_cndmask_b32 v{PL+6}, 0, v{PL+6}, vcc
        v_add_f32 v40, v{PL}, v{PL+4}
        v_add_f32 v41, v{PL+2}, v{PL+6}
        """)
        xsum4(k, [40, 41], 42)
        k(f"""
        v_mul_f32 v40, {f32hex(1/896)}, v40
        v_mul_f32 v41, {f32hex(1/896)}, v41
        v_fma_f32 v41, -v40, v40, v41
        v_max_f32 v41, 0, v41
        """)
        cvt(k, 40, 40, 41); hi(k, 41, 40); lo(k, 40, 40)
        k(f'v_add_f32 v41, {f32hex(1e-5)}, v41')
        cvt(k, 41, 41, 41); lo(k, 41, 41)
        k('v_sqrt_f32 v41, v41')
        cvt(k, 41, 41, 41); lo(k, 41, 41)
        k('v_rcp_f32 v41, v41\n v_lshlrev_b32 v53, 4, v9')
        for r in range(4):
            k(f'ds_bpermute_b32 v{S+r}, v53, v40 offset:{4*r}\n ds_bpermute_b32 v{Q+r}, v53, v41 offset:{4*r}')
        k(f"""
        s_lshl_b32 s24, s29, 6
        s_lshl_b32 s25, s28, 1
        s_add_u32 s24, s24, s25
        s_lshr_b32 s25, s32, 1
        s_add_u32 s24, s24, s25
        s_lshl_b32 s24, s24, 13
        s_and_b32 s25, s32, 1
        s_lshl_b32 s25, s25, 9
        s_add_u32 s24, s24, s25
        s_add_u32 s25, s24, 4096
        v_lshrrev_b32 v53, 1, v9
        v_lshlrev_b32 v53, 8, v53
        v_lshl_add_u32 v53, v8, 4, v53
        v_and_b32 v54, 1, v9
        v_lshl_add_u32 v53, v54, 10, v53
        s_waitcnt lgkmcnt(0)
        """)
        for h in range(2):
            cs = [ACC + 16 * h + 4 * f for f in range(4)]
            prs = [(c + 2 * p, T + 8 * h + 2 * i + p, p) for i, c in enumerate(cs) for p in range(2)]
            for x, t, p in prs: pks(k, 'add', x, x, S + 2 * p, neg=True, sc=bool(opt.get('sca')))
            for x, t, p in prs: cvt(k, t, x, x + 1)
            for x, t, p in prs: lo(k, x, t); hi(k, x + 1, t)
            for x, t, p in prs: pks(k, 'mul', x, x, Q + 2 * p, sc=bool(opt.get('sca')))
            for x, t, p in prs: cvt(k, t, x, x + 1)
            for pr in range(2):
                o = T + 8 * h + 4 * pr
                k(f'v_permlane16_swap_b32 v{o}, v{o+2}\n v_permlane16_swap_b32 v{o+1}, v{o+3}')
            for pr in range(2):
                o = T + 8 * h + 4 * pr
                k(f'buffer_store_dwordx4 v[{o}:{o+3}], v53, s[12:15], s{24+h} offen offset:{2048*pr} sc1')

    CK1 = 56
    posts = {3: 5, 7: 6, 9: 7, 11: 8}; checks = {6: 5, 8: 6, 12: 7}
    pre = {6: [(0, 0), (0, 1)], 7: [(0, 2), (0, 3)], 8: [(1, 0), (1, 1)], 9: [(1, 2), (1, 3)], 10: [(2, 0), (2, 1)], 11: [(2, 2), (2, 3)], 12: [(3, 0), (3, 1)], 13: [(3, 2), (3, 3)]}
    assert NP == 7
    spins = []
    z1read(0)
    for i in range(14):
        if i in checks: k(f'ds_read_b128 v[{CK1}:{CK1+3}], v22')
        if i < 13:
            if i == 7: k('s_waitcnt vmcnt(14)')
            z1read(i + 1); k('s_waitcnt lgkmcnt(8)')
        else:
            k('s_waitcnt lgkmcnt(0)'); post(k, 9)
        if i in posts: post(k, posts[i])
        b = FR + (i & 1) * 24
        if i < 13: G.stamp(3 + i, '5')
        for p in range(2):
            for tt in range(4):
                mfma(k, A1 + (p * 4 + tt) * 4, b + 4 * p, b + 8 + 4 * tt, '0' if i == 0 else None)
                if p == 0 and i in checks:
                    k([f'v_min3_u32 v{CK1}, v{CK1}, v{CK1+1}, v{CK1+2}', f'v_min_u32 v{CK1}, v{CK1}, v{CK1+3}', f'v_cmp_gt_u32 vcc, {checks[i]}, v{CK1}',
                       f's_cbranch_vccnz L_z1_spin{i}\nL_z1_ok{i}:'][tt])
            if p == 0 and i < 6: k(w1dma(8 + i, 224))
            if i in pre: st, j = pre[i][p]; k(spdma(j, slot=PI[st]))
        if i in checks: spins.append((f'L_z1_spin{i}', f'L_z1_ok{i}', CK1, 0, checks[i]))
        if i == NP - 2: k(stload)
        if i == NP:
            G.stamp(4); normalise(); G.stamp(6)
        if i == NP + 3:
            k(f"""
            s_lshl_b32 s24, s29, 11
            s_add_u32 s24, s24, {hex(WS_FZ)}
            s_lshl_b32 s35, s28, 6
            s_lshl_b32 s25, s32, 2
            s_add_u32 s35, s35, s25
            v_mov_b32 v53, s35
            s_waitcnt vmcnt(6)
            s_mov_b64 exec, 1
            buffer_store_dword v{TAG}, v53, s[12:15], s24 offen sc1
            s_mov_b64 exec, -1
            """)
            G.stamp(7)
    waitfor(k, 'wa9', 0, 4, 9, 32, sleep=False)
    for st in range(4, 7):
        for j in range(4): k(spdma(j, slot=PI[st]))
    srd(k, 16, 12, 13, SZ_Z)
    ACC2, W, Z, CK = 32, 64, 96, 160
    k(f"""
    v_lshlrev_b32 v19, 6, v0
    s_lshl_b32 s33, s29, 19
    s_lshl_b32 s35, s32, 11
    s_add_u32 s34, s33, s35                ; fb*64*8192 + w*2048
    v_lshrrev_b32 v20, 1, v8
    v_xor_b32 v20, v20, v9
    v_lshlrev_b32 v20, 4, v20
    v_lshl_add_u32 v20, v8, 7, v20
    v_xor_b32 v21, 64, v20
    v_add_u32 v17, {PI[0]*16384}, v20
    v_add_u32 v18, {PI[0]*16384}, v21
    v_add_u32 v14, 8192, v2
    v_add_u32 v15, 16384, v2
    v_add_u32 v16, 24576, v2
    s_mov_b32 s38, {hex(PI_WORD)}
    s_mov_b32 s39, {hex(PI_WORD)}
    s_mov_b32 s36, 10                      ; 10 + stage
    """)
    ZV = [2, 14, 15, 16]
    for i in range(32): k(f'v_mov_b32 v{ACC2+i}, 0')
    G.stamp(8)
    k('s_cmp_lg_u32 s3, 0\n s_cbranch_scc1 L_nofz')
    poll(k, 'pfz', f'buffer_load_dwordx4 v[{CK}:{CK+3}], v19, s[12:15], s24 offen sc1', [CK, CK + 1, CK + 2, CK + 3], lanes='s_mov_b32 exec_hi, 0', nap=int(opt.get('nap', 1)))
    k('L_nofz:\n s_waitcnt vmcnt(0)')
    post(k, 10)
    waitfor(k, 'wa10', 0, 4, 10, CK, sleep=False)
    G.stamp(9)
    adv = f's_add_u32 s34, s34, {4*8192}'
    def zld(n, ft):
        r = Z + (n % D) * 8 + ft * 4
        k(f'buffer_load_dwordx4 v[{r}:{r+3}], v{ZV[n%4]}, s[16:19], s34 offen offset:{1024*ft} {ZF}')
    for n in range(D):
        zld(n, 0); zld(n, 1)
        if n % 4 == 3: k(adv)
    def w2read(n, tt):
        ks = n & 3
        r = W + (n & 1) * 16 + tt * 4
        k(f'ds_read_b128 v[{r}:{r+3}], v{17 + (ks & 1)} offset:{(ks >> 1) * 8192 + tt * 2048}')
    for tt in range(4): w2read(0, tt)
    G.stamp(10)
    def z1epi(t):
        for h in range(2):
            for q in range(2):
                cs = [A1 + 16 * h + 8 * q + 4 * f for f in range(2)]
                gelu_tiles(t, cs, 232 + 8 * q, sc=True)
                for f in range(2):
                    for p in range(2): cvt(t, ZP + 4 * (2 * q + f) + 2 * h + p, cs[f] + 2 * p, cs[f] + 2 * p + 1)
    extra = sub(z1epi)
    NPEEL = int(opt.get('peel', 3)); per = -(-len(extra) // (NPEEL * 64))
    def body(name, ride, last):
        for n in range(8):
            k(f's_waitcnt vmcnt({(D-1)*2 - (2*n if last else 0)}) lgkmcnt(0)')
            fill = [[] for _ in range(8)]
            if n % 4 == 0:
                fill[4] = ['ds_write_b32 v29, v23']
                if opt.get('stamp') == '4':
                    for it in range(8):
                        st = 2 * it + n // 4
                        if st: fill[5].append(f's_cmp_lg_u32 s36, {10+st}\n s_cbranch_scc1 L_t{name}{n}_{it}\n s_memrealtime s[{64+2*st}:{65+2*st}]\nL_t{name}{n}_{it}:')
            if not (last and n > 3):
                if n % 4 == 1:
                    fill[4] = [f'ds_read_b128 v[{CK}:{CK+3}], v22 offset:32', 'v_add_u32 v23, 1, v23']
                    fill[5] = ['s_lshr_b64 s[38:39], s[38:39], 4\n s_and_b32 s37, s38, 15\n s_lshl_b32 s37, s37, 14']
                if n % 4 == 2:
                    fill[4] = [f'v_min3_u32 v{CK}, v{CK}, v{CK+1}, v{CK+2}', 's_sub_u32 s35, s36, 9']
                    fill[5] = [f'v_min_u32 v{CK}, v{CK}, v{CK+3}', 'v_add_u32 v17, s37, v20']
                    fill[6] = [f'v_cmp_gt_u32 vcc, s35, v{CK}']
                    fill[7] = [f's_cbranch_vccnz L_{name}_spin{n}\nL_{name}_ok{n}:']
                    spins.append((f'L_{name}_spin{n}', f'L_{name}_ok{n}', CK, 32, 's35'))
                if n % 4 == 3: fill[4] += ['v_add_u32 v18, s37, v21']
            for ft in range(2):
                for tt in range(4):
                    mfma(k, ACC2 + (ft * 4 + tt) * 4, Z + (n % D) * 8 + ft * 4, W + (n & 1) * 16 + tt * 4)
                    if ft == 0 and not (last and n == 7): w2read(n + 1, tt)
                    for x in fill[4 * ft + tt]: k(x)
                    if ride:
                        for _ in range(per):
                            if extra: k(extra.pop(0))
                if not last: zld(n, ft)
            if n % 4 == 3: k(adv + '\n s_add_u32 s36, s36, 1')
    for it in range(NPEEL): body(f'pa{it}', True, False)
    assert not extra
    k('L_p2:')
    body('pb', False, False)
    k('s_cmp_lt_u32 s36, 24\n s_cbranch_scc1 L_p2')
    body('pc', False, True)
    k('s_branch L_p2_done')
    for a, b, c, off, val in spins:
        k(f"""
{a}:
        s_mov_b32 s62, {POLL_LIMIT*16}
{a}b:
        ds_read_b128 v[{c}:{c+3}], v22 offset:{off}
        s_waitcnt lgkmcnt(0)
        v_min3_u32 v{c}, v{c}, v{c+1}, v{c+2}
        v_min_u32 v{c}, v{c}, v{c+3}
        v_cmp_gt_u32 vcc, {val}, v{c}
        s_cbranch_vccz {b}
        s_sub_u32 s62, s62, 1
        s_cbranch_scc0 {a}b
        s_branch {b}
        """)
    k('L_p2_done:')
    G.stamp(11); G.stamp(1, '7'); G.stamp(1, '9')
    k(f"""
    s_mul_i32 s24, s28, {4*28}
    s_lshl_b32 s36, s29, 2
    s_add_u32 s36, s36, s32                ; kk
    s_add_u32 s24, s24, s36
    s_lshl_b32 s24, s24, 10
    s_add_u32 s24, s24, {hex(WS_H)}
    """)
    Z1R = ZP
    for tt in range(4): lo(k, BSP[tt], BSP[tt])
    for tt in range(4):
        for ft in range(2):
            for r in range(4): k(f'v_add_f32 v{ACC2+(ft*4+tt)*4+r}, v{ACC2+(ft*4+tt)*4+r}, v{BSP[tt]}')
    for tt in range(4):
        o = 96 + 24 * tt
        its = [(ACC2 + (ft * 4 + tt) * 4 + 2 * p, Z1R + 4 * tt + 2 * ft + p, o + 4 + 4 * (2 * ft + p), o + 2 * ft + p) for ft in range(2) for p in range(2)]
        for a, z, t, d in its: cvt(k, d, a, a + 1)
        for a, z, t, d in its: lo(k, t, z); hi(k, t + 1, z); lo(k, t + 2, d); hi(k, t + 3, d)
        for a, z, t, d in its: pk(k, 'mul', t, t, t + 2)
        for a, z, t, d in its: cvt(k, d, t, t + 1)
        k(f'buffer_store_dwordx4 v[{o}:{o+3}], v2, s[12:15], s24 offen sc1')
        if tt < 3: k(f's_add_u32 s24, s24, {28*1024}')
    G.stamp(12); G.stamp(2, '7')
    srd(k, 16, 26, 27, 2048 * 896)
    HB, AC3, A3 = 32, 144, 160
    HD = int(opt.get('hd', 6))
    NA = int(opt.get('na', 16))
    def p3setup(half):
        k(f"""
        s_lshl_b32 s33, s28, 2
        s_add_u32 s33, s33, s32                ; tt
        s_lshl_b32 s37, s28, 11
        s_add_u32 s37, s37, {hex(WS_FH)}
        s_mul_i32 s34, s33, {28*1024}
        s_add_u32 s34, s34, {hex(WS_H + half * NA * 1024)}
        v_lshrrev_b32 v10, 2, v0
        v_lshrrev_b32 v4, 1, v10
        v_and_b32 v4, 3, v4
        v_lshlrev_b32 v21, 5, v4
        v_and_b32 v13, 3, v0
        v_lshlrev_b32 v13, 3, v13
        v_lshl_add_u32 v13, v10, 7, v13
        s_lshl_b32 s35, s32, 12
        s_add_u32 s35, s35, {7*16384}
        v_add_u32 v14, s35, v2
        v_lshlrev_b32 v19, 6, v0
        """)
        for dt in range(4):
            k(f'v_xor_b32 v{192+dt}, {32*dt}, v21\n v_add_u32 v{192+dt}, v{192+dt}, v13')
            if half: k(f'v_add_u32 v{192+dt}, {NA*32*128}, v{192+dt}')
    def p3gemm(name, NK, hook=None):
        def aread(kk):
            for dt in range(4):
                for hh in range(2):
                    r = A3 + (kk & 1) * 16 + dt * 4 + hh * 2
                    k(f'ds_read_b64_tr_b16 v[{r}:{r+1}], v{192 + dt} offset:{(32 * kk + 16 * hh) * 128}')
        if name:
            k('s_cmp_lg_u32 s3, 0\n s_cbranch_scc1 L_nofh')
            poll(k, name, 'buffer_load_dword v20, v19, s[12:15], s37 offen sc1', [20], lanes='s_mov_b32 exec_lo, 0x0fffffff\n s_mov_b32 exec_hi, 0', nap=int(opt.get('nap', 1)))
            k('L_nofh:'); G.stamp(3, '9')
        k('s_barrier')
        G.stamp(13); G.stamp(6, '7'); G.stamp(9, '9')
        def hload(kk):
            k(f'buffer_load_dwordx4 v[{HB+4*kk}:{HB+4*kk+3}], v2, s[12:15], s34 offen offset:{1024*(kk%4)} {ZF}')
            if kk % 4 == 3: k('s_add_u32 s34, s34, 4096')
        for kk in range(HD): hload(kk)
        aread(0)
        for kk in range(NK):
            if kk < NK - 1: aread(kk + 1)
            k(f's_waitcnt vmcnt({min(HD - 1, NK - 1 - kk)}) lgkmcnt({8 if kk < NK - 1 else 0})')
            if kk in (0, 4, 8): G.stamp(7 + kk // 4, '7')
            for dt in range(4):
                mfma(k, AC3 + 4 * dt, A3 + (kk & 1) * 16 + dt * 4, HB + 4 * kk, '0' if kk == 0 else None)
            if kk + HD < NK: hload(kk + HD)
            if kk == 0 and hook: hook()
    p3setup(0)
    k(f"""
    s_lshl_b32 s36, s36, 6
    v_mov_b32 v12, s36
    {G.st(3, '7')}
    s_waitcnt vmcnt(0)
    {G.st(4, '7')}
    {G.st(2, '9')}
    s_mov_b64 exec, 1
    buffer_store_dword v{TAG}, v12, s[12:15], s37 offen sc1
    s_mov_b64 exec, -1
    s_waitcnt lgkmcnt(0)
    """)
    p3gemm('pfh', NA)
    G.stamp(14); G.stamp(11, '7')
    k(f"""
    s_lshl_b32 s36, s32, 5
    v_xor_b32 v12, s36, v21
    v_add_u32 v12, v12, v13
    v_add_u32 v12, {L_R}, v12
    s_lshl_b32 s36, s32, 7
    s_add_u32 s36, s36, {L_R + 8192}
    v_lshlrev_b32 v11, 3, v8
    v_add_u32 v11, s36, v11
    s_barrier
    {G.st(12, '7')}
    ds_read_b64 v[4:5], v11
    """)
    for dt in range(4): k(f'ds_read_b128 v[{96+4*dt}:{99+4*dt}], v14 offset:{1024*dt}')
    for dt in range(4): k(f'ds_read_b64_tr_b16 v[{32+2*dt}:{33+2*dt}], v12 offset:{2048*dt}')
    k(f"""
    v_mul_u32_u24 v10, 896, v8
    v_lshrrev_b32 v11, 1, v9
    v_lshl_add_u32 v10, v11, 4, v10
    v_and_b32 v11, 1, v9
    v_lshl_add_u32 v10, v11, 5, v10        ; t*896 + (g>>1)*16 + (g&1)*32
    s_mul_i32 s36, s33, {16*896}
    s_lshl_b32 s37, s29, 7
    s_add_u32 s36, s36, s37
    s_waitcnt lgkmcnt(0)
    v_mov_b32 v6, v4
    v_mov_b32 v7, v4
    v_mov_b32 v4, v5
    """)
    for i in range(8): pk(k, 'add', AC3 + 2 * i, AC3 + 2 * i, 96 + 2 * i)
    its = [(AC3 + 4 * dt + 2 * p, 32 + 2 * dt + p, 48 + 4 * (2 * dt + p)) for dt in range(4) for p in range(2)]
    for c, a, t in its: cvt(k, c, c, c + 1)
    for c, a, t in its: lo(k, t, a); hi(k, t + 1, a); lo(k, t + 2, c); hi(k, t + 3, c)
    for c, a, t in its: pk(k, 'mul', t, t, 6); pk(k, 'mul', t + 2, t + 2, 4)
    for c, a, t in its: cvt(k, a, t, t + 1); cvt(k, c, t + 2, t + 3)
    for c, a, t in its: lo(k, t, a); hi(k, t + 1, a); lo(k, t + 2, c); hi(k, t + 3, c)
    for c, a, t in its: pk(k, 'add', t, t, t + 2)
    for c, a, t in its: cvt(k, a, t, t + 1)
    for pr in range(2):
        o = 32 + 4 * pr
        k(f'v_permlane16_swap_b32 v{o}, v{o+2}\n v_permlane16_swap_b32 v{o+1}, v{o+3}')
    for pr in range(2):
        o = 32 + 4 * pr
        k(f'buffer_store_dwordx4 v[{o}:{o+3}], v10, s[16:19], s36 offen offset:{64*pr}')
    k(f"""
    s_lshl_b32 s35, s2, 3
    s_add_u32 s35, s35, s3
    s_cmp_lg_u32 s35, 0
    s_cbranch_scc1 L_A_fin
    s_mov_b32 s35, {hex(WS_EP)}
    v_mov_b32 v1, 0
    s_mov_b64 exec, 1
    buffer_store_dword v{TAG}, v1, s[12:15], s35 offen sc1
    s_mov_b64 exec, -1
L_A_fin:
    """)
    G.stamp(13, '7')
    if opt.get('stamp'): k('s_waitcnt vmcnt(0)')
    G.stamp(15); G.stamp(14, '7')
    G.flush(16, 'A')
    k('s_endpgm')

    k('L_B:')
    common2()
    k(f"""
    s_mul_i32 s39, s32, {KG_WAVE}
    s_add_u32 s39, s39, {L_KG}
    """)
    k(tagcalc)
    G.stamp(1, '2')
    def wb(j, w): return G.st(2 + 2 * j, '2') + (f's_waitcnt vmcnt({w})\n' if w is not None else '') + G.st(3 + 2 * j, '2') + 's_barrier\n'
    k(wb(0, None) + w2stage(2))
    w1setup(18)
    k(f"""
    s_lshl_b32 s41, s31, 1
    v_mul_u32_u24 v7, {KG_ROW}, v0
    v_add_u32 v7, s39, v7
    v_lshrrev_b32 v1, 5, v0
    v_lshrrev_b32 v3, 2, v8
    v_lshl_add_u32 v1, v1, 2, v3
    v_mul_u32_u24 v1, {KG_ROW}, v1
    v_and_b32 v3, 1, v9
    v_lshl_add_u32 v1, v3, 5, v1
    v_and_b32 v3, 3, v0
    v_lshl_add_u32 v1, v3, 3, v1
    v_add_u32 v1, s39, v1
    """)
    k(wb(1, None) + w2stage(3) + w2stage(4))
    k(f"""
    s_and_b32 s35, s28, 7
    s_lshl_b32 s35, s35, 2
    s_add_u32 s35, s35, s32
    s_mul_i32 s42, s35, {14*3584}
    s_lshl_b32 s35, s29, 8
    s_add_u32 s42, s42, s35
    v_min_u32 v16, 27, v0
    v_lshrrev_b32 v17, 1, v16
    v_mul_u32_u24 v17, 3584, v17
    v_and_b32 v16, 1, v16
    v_lshl_add_u32 v16, v16, 7, v17
    v_lshrrev_b32 v156, 2, v8
    v_lshl_add_u32 v156, v9, 3, v156         ; 8g + r
    v_lshrrev_b32 v157, 1, v156
    v_and_b32 v157, 7, v157
    v_and_b32 v158, 3, v0
    v_lshrrev_b32 v159, 1, v158
    s_lshl_b32 s35, s32, 1
    v_add_u32 v159, s35, v159
    v_xor_b32 v157, v157, v159
    v_lshlrev_b32 v157, 4, v157
    v_lshl_add_u32 v157, v156, 7, v157
    v_and_b32 v158, 1, v158
    v_lshl_add_u32 v157, v158, 3, v157
    s_add_u32 s35, s29, 7
    s_sub_u32 s35, s35, s31
    s_cmp_ge_u32 s35, 7
    s_cselect_b32 s63, 7, 0
    s_sub_u32 s35, s35, s63
    s_lshl_b32 s35, s35, 13
    s_add_u32 s35, s35, {L_X}
    v_add_u32 v157, s35, v157                ; hh = 0
    v_xor_b32 v158, 32, v157
    v_add_u32 v158, 512, v158                ; hh = 1
    v_lshlrev_b32 v159, 12, v8
    v_lshl_add_u32 v159, v9, 4, v159
    s_lshl_b32 s36, s29, 2
    s_add_u32 s36, s36, s32
    s_lshl_b32 s36, s36, 16
    s_lshl_b32 s35, s28, 7
    s_add_u32 s36, s36, s35
    s_add_u32 s36, s36, {hex(WS_UT)}
    s_lshl_b32 s37, s29, 5
    s_add_u32 s37, s37, s28
    s_lshl_b32 s37, s37, 2
    s_add_u32 s37, s37, s32
    s_lshl_b32 s37, s37, 2
    s_add_u32 s37, s37, {hex(WS_FU)}
    """)
    da = float(opt.get('kga', 0.06)); db = float(opt.get('kgb', 0.09))
    k('s_waitcnt vmcnt(18)')
    d0 = float(opt.get('kg0', 0.0))
    EV = [(d0, wb(2, 12) + w2stage(5)), (d0 + da, wb(3, 12) + w2stage(6) + f'buffer_load_dword v{PRM+9}, v16, s[16:19], s42 offen'),
          (d0 + 2 * da, wb(4, 13) + w1dma(0, 18) + w1dma(1, 18)),
          (d0 + 2 * da + db, wb(5, 11) + w1dma(2, 18) + w1dma(3, 18)),
          (d0 + 2 * da + 2 * db, wb(6, 9) + w1dma(4, 18) + w1dma(5, 18))]
    t = K('w')
    for hf in range(2):
        t(f'ds_read_b64_tr_b16 v[{160+4*hf}:{161+4*hf}], v157 offset:{4096*hf}\n ds_read_b64_tr_b16 v[{162+4*hf}:{163+4*hf}], v158 offset:{4096*hf}')
    t('s_waitcnt lgkmcnt(0)')
    t('s_barrier\n' + w1dma(6, 18) + w1dma(7, 18))
    for hf in range(2): t(f'buffer_store_dwordx4 v[{160+4*hf}:{163+4*hf}], v159, s[12:15], s36 offen offset:{64*hf} sc1')
    t(G.st(1))
    EV.append((d0 + 2 * da + 3 * db, t.lines))
    DP = 232; DT = PRM + 8
    def kgen(t, c, hook=None):
        if c == 0:
            t(f'v_lshlrev_b32 v{DT}, 16, v{DT}\n v_mul_f32 v{DT}, {f32hex(L2E)}, v{DT}\n v_exp_f32 v{DT}, v{DT}')
            cvt(t, DT, DT, DT); lo(t, DT, DT)
        Z1_, Z8, Z256, Z2_, Z4 = 32, 35, 38, 41, 44
        V, PKD, XA_, XB_ = 128, 48, 56, 58
        p = PRM + 4 * c
        t(f"""
        v_lshlrev_b32 v{p}, 16, v{p}
        v_mul_f32 v{p}, {f32hex(L2E)}, v{p}
        v_exp_f32 v{p}, v{p}
        v_lshlrev_b32 v{p+1}, 16, v{p+1}
        v_lshlrev_b32 v{p+2}, 16, v{p+2}
        v_lshlrev_b32 v{p+3}, 16, v{p+3}
        v_cvt_pk_bf16_f32 v{p}, v{p}, v{p}
        v_mul_f32 v{p+1}, v{p+1}, v{DT}
        v_lshlrev_b32 v{p}, 16, v{p}
        v_mul_f32 v{p+1}, 0.15915494, v{p+1}
        v_mul_f32 v{p}, v{p}, v{DT}
        v_add_f32 v60, v{DT}, v{DT}
        v_mul_f32 v{p}, {f32hex(-L2E)}, v{p}
        v_mul_f32 v{XA_}, v{p+2}, v60
        v_mul_f32 v{XA_+1}, v{p+3}, v60
        """)
        for (d, e) in ((Z8, 8), (Z1_, 1), (Z256, 256)):
            t(f"""
            v_mul_f32 v60, {f32hex(float(e))}, v{p}
            v_mul_f32 v61, {f32hex(float(e))}, v{p+1}
            v_exp_f32 v60, v60
            v_fract_f32 v61, v61
            v_cos_f32 v{d}, v61
            v_sin_f32 v{d+1}, v61
            v_mul_f32 v{d}, v{d}, v60
            v_mul_f32 v{d+1}, v{d+1}, v60
            v_sub_f32 v{d+2}, 0, v{d+1}
            """)
        def put(q, vals, neg):
            for i in range(4):
                cvt(t, PKD + i, vals[2 * i], vals[2 * i + 1])
            t(f'ds_write_b128 v7, v[{PKD}:{PKD+3}] offset:{16*q}')
            n = '-' if neg else ''
            for i in range(4):
                t(f'v_cvt_pk_bf16_f32 v{PKD+4+i}, {n}v{vals[2*i]+1}, {n}v{vals[2*i+1]+1}')
            t(f'ds_write_b128 v7, v[{PKD+4}:{PKD+7}] offset:{64 + 16*q}')
        vs = [V + 2 * i for i in range(8)]
        t(f'v_mov_b32 v{V}, 1.0\n v_mov_b32 v{V+1}, 0')
        for q in range(4):
            for i in range(8):
                if q == 0 and i == 0: continue
                if q == 0 and i == 1: t(f'v_mov_b32 v{vs[1]}, v{Z8}\n v_mov_b32 v{vs[1]+1}, v{Z8+1}')
                else: cmul(t, vs[i], vs[i - 1], Z8)
            if q == 0 and hook: hook(t)
            put(q, vs, True)
        cmul(t, Z2_, Z1_, Z1_); t(f'v_sub_f32 v{Z2_+2}, 0, v{Z2_+1}')
        cmul(t, Z4, Z2_, Z2_); t(f'v_sub_f32 v{Z4+2}, 0, v{Z4+1}')
        t('s_waitcnt lgkmcnt(0)')
        FB, FA = 64, 96
        def frags(F):
            for ks in range(8):
                t(f'ds_read_b64_tr_b16 v[{F+4*ks}:{F+4*ks+1}], v1 offset:{8*KG_ROW*ks}\n ds_read_b64_tr_b16 v[{F+4*ks+2}:{F+4*ks+3}], v1 offset:{8*KG_ROW*ks + 64}')
        frags(FB)
        cmul(t, vs[1], XA_, Z1_)
        for i in range(2, 8): cmul(t, vs[i], vs[i - 1], Z1_)
        t('s_waitcnt lgkmcnt(0)')
        put(0, [XA_] + vs[1:], False)
        cmul(t, XB_, XA_, Z256)
        cmul(t, vs[1], XB_, Z2_)
        for i in range(2, 5): cmul(t, vs[i], vs[i - 1], Z2_)
        put(1, [XB_, vs[1], vs[2], vs[2], vs[2], vs[3], vs[4], vs[4]], False)
        cmul(t, XA_, XB_, Z256); cmul(t, vs[0], XA_, Z4); cmul(t, vs[1], vs[0], Z4)
        cmul(t, XB_, XA_, Z256); cmul(t, vs[2], XB_, Z4); cmul(t, vs[3], vs[2], Z4)
        put(2, [XA_, vs[0], XB_, vs[2], vs[0], vs[1], vs[2], vs[3]], False)
        cmul(t, vs[0], XB_, Z256)
        for i in range(1, 4): cmul(t, vs[i], vs[i - 1], Z256)
        for i in range(4): cmul(t, vs[4 + i], vs[i], Z8)
        put(3, vs, False)
        t('s_waitcnt lgkmcnt(0)')
        frags(FA)
        for ks in range(8):
            t(f's_waitcnt lgkmcnt({14-2*ks})')
            cin = '0' if (ks == 0 and c == 0) else f'v[{DP}:{DP+15}]'
            t(f'v_mfma_f32_32x32x16_bf16 v[{DP}:{DP+15}], v[{FA+4*ks}:{FA+4*ks+3}], v[{FB+4*ks}:{FB+4*ks+3}], {cin}')
    EV[-1] = (EV[-1][0], '\n'.join(EV[-1][1]))
    t = K('w'); t('s_waitcnt vmcnt(2)'); post(t, 1)
    t2 = f's_waitcnt vmcnt(0)\n v_mov_b32 v10, 0\n s_mov_b64 exec, 1\n buffer_store_dword v{TAG}, v10, s[12:15], s37 offen sc1\n s_mov_b64 exec, -1'
    f7 = EV[-1][0]
    B_, B2, A_, Wt, UR, AC, P = 32, 80, 112, 144, 168, 176, 192
    fuload = 'buffer_load_dwordx2 v[176:177], v5, s[12:15], s36 offen sc1'
    t3 = f"""
    s_lshr_b32 s36, s20, 6
    s_lshl_b32 s36, s36, 9
    s_add_u32 s36, s36, {hex(WS_FU)}
    v_lshlrev_b32 v5, 3, v0
    {fuload}
    s_lshl_b32 s23, s20, 12                ; ch*4096
    s_add_u32 s44, s12, {hex(WS_UT)}
    s_addc_u32 s45, s13, 0
    s_add_u32 s44, s44, s23
    s_addc_u32 s45, s45, 0
    s_mov_b32 s46, 4096
    s_mov_b32 s47, 0x20000
    """
    for q in range(5):
        t3 += f'v_add_u32 v{180+q}, {64*q}, v0\n v_mul_u32_u24 v6, 3856, v{180+q}\n v_lshrrev_b32 v6, 16, v6\n v_sub_u32 v{180+q}, v{180+q}, v6\n v_lshlrev_b32 v{180+q}, 4, v{180+q}\n v_add_u32 v{180+q}, -16, v{180+q}\n'
    t3 += f"""
    v_mul_u32_u24 v6, 272, v8
    s_lshl_b32 s35, s22, 3
    s_add_u32 s35, s35, s39
    v_lshl_add_u32 v185, v9, 4, v6
    v_add_u32 v185, s35, v185              ; a*272 + g*16 + 8hf
    v_lshl_add_u32 v186, v9, 6, v6
    v_add_u32 v186, s35, v186              ; a*272 + g*64 + 8hf
    """
    k.lines += weave(sub(kgen, 0), EV + [(f7 + float(opt.get('kgp', 0.06)), '\n'.join(t.lines)), (min(f7 + float(opt.get('kgu', 0.2)), 0.9), t2), (0.93, t3)])
    G.stamp(2)
    if opt.get('kprio'): k(f"s_setprio {opt['kprio']}")
    poll(k, 'pfu', fuload, [176, 177], nap=2, first_issued=True)
    for q in range(5):
        k(f's_add_u32 m0, s39, {q*1024}')
        if q == 4: k('s_mov_b64 exec, 0xffff')
        k(f'buffer_load_dwordx4 v{180+q}, s[44:47], 0 offen sc1 lds')
    k('s_mov_b64 exec, -1')
    G.stamp(3)
    def uhook(t):
        t('s_waitcnt vmcnt(0)')
        for kk in range(4):
            for m in range(3): t(f'ds_read_b64 v[{Wt+6*kk+2*m}:{Wt+6*kk+2*m+1}], v185 offset:{64*kk + 8*m}')
        t('s_waitcnt lgkmcnt(8)')
        for i in range(4): t(f'ds_read_b64 v[{UR+2*i}:{UR+2*i+1}], v186 offset:{16 + 16*i}')
        t('s_waitcnt lgkmcnt(0)')
    kgen(k, 1, uhook)
    G.stamp(5)
    k(f"""
    s_mul_i32 s38, s21, 4352
    s_xor_b32 s35, s3, 1
    s_lshl_b32 s35, s35, 2
    v_add_u32 v21, s35, v22
    s_cmp_eq_u32 s22, 0
    s_cbranch_scc1 L_B_fin
    v_add_u32 v1, s39, v2
    """)
    for q in range(4): k(f'ds_write_b128 v1, v[{DP+4*q}:{DP+4*q+3}] offset:{1024*q}')
    k('s_waitcnt lgkmcnt(0)'); post(k, 100)
    k('s_branch L_B_join')
    k(f'L_B_fin:\n s_add_u32 s35, s39, {KG_WAVE}\n v_add_u32 v1, s35, v2')
    waitfor(k, 'wbp', 0, 1, 100, 32, base=21)
    for q in range(4): k(f'ds_read_b128 v[{80+4*q}:{83+4*q}], v1 offset:{1024*q}')
    k(f"""
    v_and_b32 v5, 31, v0
    v_lshlrev_b32 v5, 4, v5
    v_lshrrev_b32 v7, 5, v0
    v_xor_b32 v6, 1, v7
    v_lshl_add_u32 v5, v6, 3, v5
    s_add_u32 s35, s38, {L_KI + 256}
    v_add_u32 v5, s35, v5                  ; KI + j*16 + 8*(1-h)
    v_lshlrev_b32 v6, 2, v0
    s_add_u32 s35, s38, {L_KI}
    v_add_u32 v6, s35, v6
    s_waitcnt lgkmcnt(0)
    """)
    post(k, 100)
    for i in range(8): pks(k, 'add', 64 + 2 * i, DP + 2 * i, 80 + 2 * i)
    k('v_cmp_eq_u32 vcc, 1, v7\n v_cndmask_b32 v80, v72, v73, vcc\n v_cndmask_b32 v81, v74, v75, vcc')
    k('v_and_b32 v7, 1, v0\n v_cmp_eq_u32 vcc, 1, v7')
    for i in range(4): k(f'v_mov_b32 v{84+i}, v{76+i}\n v_mov_b32 v{88+i}, v{76+i}')
    for i in range(4): k(f'v_permlane32_swap_b32 v{84+i}, v{88+i}')
    for i in range(4): k(f'v_cndmask_b32 v{84+i}, v{84+i}, v{76+i}, vcc')
    blks = [(67, 66, 65, 64), (70, 69, 68, 68), (73, 80, 72, 72), (75, 81, 74, 74)] + [(76 + i, 76 + i, 76 + i, 84 + i) for i in range(4)]
    for b, (a0, a1, a2, a3) in enumerate(blks): cvt(k, 96 + 2 * b, a0, a1); cvt(k, 97 + 2 * b, a2, a3)
    waitfor(k, 'wbb0', 16, 4, 100, 32)
    k('v_mov_b32 v3, 0\n ds_write_b32 v6, v3')
    for b in range(8): k(f'ds_write_b64 v5, v[{96+2*b}:{97+2*b}] offset:{512*b}')
    k('s_waitcnt lgkmcnt(0)\nL_B_join:')
    post(k, 101)
    srd(k, 8, 48, 49, 0x800000)
    k(f"""
    v_lshrrev_b32 v10, 3, v0
    v_lshl_add_u32 v10, v10, 12, v20
    v_add_u32 v11, 128, v10
    v_xor_b32 v12, 64, v10
    v_add_u32 v12, 0x8000, v12
    v_add_u32 v13, 128, v12
    s_lshl_b32 s42, s28, 2
    s_add_u32 s42, s42, s32
    s_lshl_b32 s42, s42, 16
    s_add_u32 s42, s42, {7*256}
    s_lshl_b32 s43, s32, 11
    s_add_u32 s43, s43, {PI[7]*16384}
    s_mov_b32 s40, {hex(((PI_WORD << 4) | PI[7]) & 0xffffffff)}
    s_mov_b32 s41, {PI[7]}
    s_mov_b32 s44, 7
    s_mov_b32 s46, 9
    v_lshrrev_b32 v3, 3, v0
    v_and_b32 v16, 6, v3
    v_and_b32 v17, 7, v0
    v_xor_b32 v16, v16, v17
    v_lshlrev_b32 v16, 4, v16
    v_lshl_add_u32 v17, v3, 12, v16
    v_mul_u32_u24 v3, 896, v3
    v_add_u32 v16, v16, v3
    s_lshl_b32 s35, s29, 7
    s_mul_i32 s37, s32, {8*896}
    s_add_u32 s37, s37, s35
    s_getpc_b64 s[50:51]
L_pc2:
    s_add_u32 s50, s50, L_stage-L_pc2
    s_addc_u32 s51, s51, 0
    """)
    srd(k, 16, 52, 53, 896 * 896)
    LC = 216
    ldread = f'ds_read_b128 v[{LC}:{LC+3}], v22'
    def ldstep(name):
        k(f"""
        v_min3_u32 v{LC}, v{LC}, v{LC+1}, v{LC+2}
        v_min_u32 v{LC}, v{LC}, v{LC+3}
        v_cmp_gt_u32 vcc, s46, v{LC}
        s_cbranch_vccnz L_{name}_no
        s_swappc_b64 s[52:53], s[50:51]
L_{name}_no:
        """)
    k(f"""
    v_sub_u32 v5, v8, v9
    v_lshlrev_b32 v5, 4, v5
    s_add_u32 s35, s38, {L_KI + 64 + 15*256}
    v_add_u32 v5, s35, v5
    v_cmp_ne_u32 vcc, 8, v8
    v_cndmask_b32 v15, 0, -1, vcc
    v_cmp_gt_u32 vcc, 8, v8
    """)
    G.stamp(6)
    def BF(kk, rr): return Wt + 6 * kk + 2 if rr == 3 else B_ + (kk * 3 + rr) * 4
    for kk in range(4):
        w = Wt + 6 * kk
        for j in range(4):
            k(f'v_alignbit_b32 v{BF(kk,0)+j}, v{w+j+1}, v{w+j}, 16\n v_mov_b32 v{BF(kk,1)+j}, v{w+j+1}\n v_alignbit_b32 v{BF(kk,2)+j}, v{w+j+2}, v{w+j+1}, 16')
    for kk in range(4):
        for p in range(2):
            for j in range(4):
                k(f'v_cndmask_b32_dpp v{B2 + (kk*2+p)*4 + j}, v{BF(kk,2*p+1)+j}, v{BF(kk,2*p)+j}, vcc row_shr:8 row_mask:0xf bank_mask:0xf bound_ctrl:1')
    for j in range(8): k(f'v_mov_b32 v{P+j}, 0')
    def cread(buf):
        for kk in range(4):
            r = A_ + buf * 16 + kk * 4
            k(f'ds_read_b128 v[{r}:{r+3}], v5 offset:{192 - 64*kk}')
        k('v_add_u32 v5, -256, v5')
    waitfor(k, 'wbq', 0, 1, 101, LC, base=21)
    cread(0)
    G.stamp(7)
    if opt.get('kprio'): k('s_setprio 0')
    if opt.get('bprio'): k(f"s_setprio {opt['bprio']}")
    shp = lambda r: f'v_and_b32_dpp v{r}, v{r}, v15 row_shr:1 row_mask:0xf bank_mask:0xf bound_ctrl:1'
    shf = lambda r: f'v_mov_b32_dpp v{r}, v{r} row_shr:1 row_mask:0xf bank_mask:0xf bound_ctrl:1'
    k('s_mov_b32 s7, 0' + ('\n s_branch L_B_last' if opt.get('noconv') else '') + '\nL_B_pk:')
    for half in range(2):
        if half == 0: k(ldread)
        cread(1 - half)
        for j in range(4): k(shp(P + j))
        k('s_waitcnt lgkmcnt(4)')
        if half == 0: ldstep('ldp')
        for kk in range(4): mfma(k, P, A_ + half * 16 + kk * 4, B2 + (kk * 2) * 4); k(shp(P + 4 + kk))
        for kk in range(4): mfma(k, P + 4, A_ + half * 16 + kk * 4, B2 + (kk * 2 + 1) * 4)
    k('s_add_u32 s7, s7, 1\n s_cmp_lt_u32 s7, 4\n s_cbranch_scc1 L_B_pk')
    for j in range(4): k(f'v_mov_b32_dpp v{AC + j}, v{P+j} row_shr:1 row_mask:0xf bank_mask:0xf bound_ctrl:1')
    for j in range(4): k(f'v_mov_b32_dpp v{AC + 4 + j}, v{P+j} row_shl:8 row_mask:0xf bank_mask:0xf bound_ctrl:1')
    for j in range(4): k(f'v_mov_b32 v{AC + 8 + j}, v{P+4+j}')
    for j in range(4): k(f'v_mov_b32_dpp v{AC + 12 + j}, v{P+4+j} row_shl:8 row_mask:0xf bank_mask:0xf bound_ctrl:1')
    k('s_mov_b32 s7, 0\nL_B_fl:')
    for half in range(2):
        k(ldread)
        cread(1 - half)
        k('s_waitcnt lgkmcnt(4)')
        ldstep(f'ldf{half}')
        for rr in range(4):
            if rr == 3 and half == 1: k('s_add_u32 s7, s7, 1\n s_cmp_eq_u32 s7, 4\n s_cbranch_scc1 L_B_last')
            for kk in range(4):
                mfma(k, AC + 4 * rr, A_ + half * 16 + kk * 4, BF(kk, rr))
                k(shf(AC + 4 * ((rr + 1) % 4) + kk))
    k('s_branch L_B_fl\nL_B_last:\n s_nop 1')
    for kk in range(4): mfma(k, AC + 12, A_ + 16 + kk * 4, BF(kk, 3))
    G.stamp(8)
    if opt.get('bprio'): k('s_setprio 0')
    k(f"""
    s_lshl_b32 s35, s22, 3
    s_add_u32 s35, s35, s38
    s_add_u32 s35, s35, {L_U + 16}
    v_mul_u32_u24 v6, 272, v8
    v_lshl_add_u32 v7, v9, 6, v6
    v_add_u32 v7, s35, v7
    s_lshl_b32 s35, s21, 4
    s_lshr_b32 s30, s30, s35
    s_lshl_b32 s30, s30, 16
    v_mov_b32 v18, s30
    v_mov_b32 v19, s30
    """)
    its = [(UR + 2 * i + p, AC + 8 * p + i, AC + 8 * p + 4 + i, 48 + 4 * (2 * i + p), 40 + 2 * i + p) for i in range(4) for p in range(2)]
    for u, y0, y1, t, y in its: cvt(k, y, y0, y1); lo(k, t, u); hi(k, t + 1, u)
    for u, y0, y1, t, y in its: pks(k, 'mul', t, t, 18)
    for u, y0, y1, t, y in its: cvt(k, u, t, t + 1); lo(k, t + 2, y); hi(k, t + 3, y)
    for u, y0, y1, t, y in its: lo(k, t, u); hi(k, t + 1, u)
    for u, y0, y1, t, y in its: pks(k, 'add', t, t, t + 2)
    for u, y0, y1, t, y in its: cvt(k, u, t, t + 1)
    for i in range(4): k(f'ds_write_b64 v7, v[{UR+2*i}:{UR+2*i+1}] offset:{16*i}')
    k(f"""
    s_lshl_b32 s35, s22, 3
    v_add_u32 v7, s35, v9
    v_mul_u32_u24 v7, 272, v7
    v_lshl_add_u32 v7, v8, 4, v7
    s_add_u32 s35, s38, {L_U + 16}
    v_add_u32 v7, s35, v7
    s_lshl_b32 s36, s22, 11
    s_add_u32 s36, s36, s23
    s_add_u32 s36, s36, {hex(WS_AT)}
    s_waitcnt lgkmcnt(0)
    """)
    post(k, 103)
    k(ldread + '\n s_waitcnt lgkmcnt(0)'); ldstep('lde')
    waitfor(k, 'wbr', 0, 1, 103, 32, base=21)
    k(f"""
    ds_read_b128 v[32:35], v7
    ds_read_b128 v[36:39], v7 offset:{4*272}
    s_waitcnt lgkmcnt(0)
    buffer_store_dwordx4 v[32:35], v2, s[12:15], s36 offen sc1
    buffer_store_dwordx4 v[36:39], v2, s[12:15], s36 offen offset:1024 sc1
    """)
    k(f"""
    s_lshl_b32 s30, s20, 3
    s_lshl_b32 s35, s22, 2
    s_add_u32 s30, s30, s35
    s_add_u32 s30, s30, {hex(WS_FA)}
    """)
    G.stamp(9)
    G.stamp(1, '7')
    faload = 'buffer_load_dwordx2 v[96:97], v1, s[12:15], s39 offen sc1\n buffer_load_dwordx4 v[100:103], v2, s[12:15], s5 offen sc1'
    atile = f"""
    s_lshl_b32 s36, s29, 18
    s_lshl_b32 s35, s28, 7
    s_add_u32 s36, s36, s35
    s_add_u32 s36, s36, {hex(WS_AT)}
    """
    for q in range(8): atile += f's_mov_b32 m0, {L_R + 1024*q}\n s_nop 0\n buffer_load_dwordx4 v17, s[12:15], s36 offen sc1 lds\n s_add_u32 s36, s36, 0x8000\n'
    atile += f"""
    s_lshl_b32 s36, s28, 9
    s_add_u32 s36, s36, {hex(WS_G2)}
    s_mov_b32 m0, {L_R + 8192}
    s_mov_b32 exec_hi, 0
    buffer_load_dwordx4 v2, s[12:15], s36 offen sc1 lds
    s_mov_b32 exec_hi, -1
    s_mov_b32 s7, 1
    """
    k(f"""
    s_lshl_b32 s39, s29, 9
    s_add_u32 s39, s39, {hex(WS_FA)}
    s_mov_b32 s5, {hex(WS_FG)}
    v_lshlrev_b32 v1, 3, v0
    v_mov_b32 v3, 0
    s_min_u32 s7, s32, 1
    s_add_u32 s47, s44, 2
    s_mov_b32 s62, {POLL_LIMIT*16}
    s_cmp_eq_u32 s44, 23
    s_cbranch_scc1 L_B_ldd
L_B_ld:
    {ldread}
    s_waitcnt lgkmcnt(0)
    """)
    ldstep('ldl')
    k(f"""
    s_cmp_lg_u32 s44, s47
    s_cbranch_scc1 L_B_nf
    s_mov_b32 s47, 0
    s_mov_b64 exec, 1
    buffer_store_dword v{TAG}, v3, s[12:15], s30 offen sc1
    s_mov_b64 exec, -1
L_B_nf:
    s_cmp_eq_u32 s44, 23
    s_cbranch_scc1 L_B_ldd
    s_sub_u32 s62, s62, 1
    s_cbranch_scc0 L_B_ld
L_B_ldd:
    """)
    G.stamp(4, '7')
    p3setup(1)
    k(f"""
    s_setprio 1
    s_waitcnt vmcnt(0)
    s_cmp_eq_u32 s47, 0
    s_cbranch_scc1 L_B_fd
    s_mov_b64 exec, 1
    buffer_store_dword v{TAG}, v3, s[12:15], s30 offen sc1
    s_mov_b64 exec, -1
L_B_fd:
    s_cmp_eq_u32 s7, 1
    s_cbranch_scc1 L_B_nl
    {faload}
L_B_nl:
    """)
    G.stamp(10); G.stamp(2, '7'); G.stamp(8, '9')
    def facheck():
        k(f's_cmp_eq_u32 s7, 1\n s_cbranch_scc1 L_B_na\n v_cmp_ne_u32 vcc, v{TAG}, v96')
        for r in (97, 100, 101, 102, 103): k(f'v_cmp_ne_u32 s[54:55], v{TAG}, v{r}\n s_or_b64 vcc, vcc, s[54:55]')
        k('s_cbranch_vccnz L_B_na' + atile + 'L_B_na:')
    p3gemm(None, 28 - NA, facheck)
    for dt in range(4): k(f'ds_write_b128 v14, v[{AC3+4*dt}:{AC3+4*dt+3}] offset:{1024*dt}')
    k('s_cmp_eq_u32 s7, 1\n s_cbranch_scc1 L_B_late1')
    poll(k, 'pfa', faload, [96, 97, 100, 101, 102, 103], nap=2)
    k(atile + 'L_B_late1:\n s_waitcnt vmcnt(0) lgkmcnt(0)')
    G.stamp(11); G.stamp(11, '7')
    k('s_barrier')
    G.flush(16)
    k('s_endpgm')
    k('L_stage:\n s_cmp_ge_u32 s44, 16\n s_cbranch_scc1 L_st_wo')
    for j in range(4): k(spdma(j, dyn=True))
    k(f"""
    s_branch L_st_po
L_st_wo:
    s_lshl_b32 s6, s44, 2
    s_lshr_b32 s6, {hex(PI_WORD)}, s6
    s_and_b32 s6, s6, 15
    s_mul_i32 s35, s6, {128*896}
    s_add_u32 s35, s35, s37
    s_lshl_b32 s6, s6, 4
    s_add_u32 s6, s6, s32
    s_lshl_b32 s6, s6, 10
    """)
    for q in range(4):
        k(f's_add_u32 m0, s6, {4096*q}\n s_nop 0\n buffer_load_dwordx4 v16, s[16:19], s35 offen lds' + (f'\n s_add_u32 s35, s35, {32*896}' if q < 3 else ''))
    k(f"""
L_st_po:
    s_sub_u32 s35, s44, 2
    s_min_u32 s35, s35, 15
    s_max_u32 s35, s35, 6
    v_mov_b32 v23, s35
    s_add_u32 s44, s44, 1
    s_add_u32 s46, s44, 3
    s_cmp_eq_u32 s44, 23
    s_cselect_b32 s46, -1, s46
    s_waitcnt vmcnt(8)
    ds_write_b32 v29, v23 offset:16
    """)
    if opt.get('stamp') == '9':
        for n in range(7): k(f's_cmp_lg_u32 s44, {17+n}\n s_cbranch_scc1 L_t9_{n}\n s_memrealtime s[{66+2*n}:{67+2*n}]\nL_t9_{n}:')
    k('s_setpc_b64 s[52:53]')

    k('L_helper:')
    k(f"""
    s_getpc_b64 s[36:37]
L_pc:
    s_sub_u32 s36, s36, L_pc-{NAME}
    s_subb_u32 s37, s37, 0
    s_lshl_b32 s35, s3, 13
    v_lshlrev_b32 v10, 7, v0
    v_add_u32 v10, s35, v10
    v_min_u32 v10, L_end-{NAME}, v10
    global_load_dword v29, v10, s[36:37]
    v_min_u32 v1, 55, v0
    v_lshlrev_b32 v10, 4, v1
    global_load_dwordx4 v[24:27], v10, s[54:55]
    v_lshlrev_b32 v5, 12, v0
    s_lshl_b32 s35, s28, 18
    s_lshl_b32 s22, s3, 7
    s_add_u32 s35, s35, s22
    v_add_u32 v5, s35, v5
    s_and_b32 s35, s3, 1
    s_cmp_eq_u32 s35, 1
    s_cbranch_scc0 L_H_even
    v_mov_b32 v6, v7
L_H_even:
    s_lshl_b32 s20, s28, 3
    s_add_u32 s20, s20, s3
    s_mul_i32 s20, s20, {8*896}
    s_lshl_b32 s21, s3, 10
    v_lshrrev_b32 v10, 3, v1
    v_lshlrev_b32 v10, 13, v10
    v_and_b32 v1, 7, v1
    v_lshl_add_u32 v10, v1, 4, v10
    s_lshl_b32 s23, s28, 3
    s_add_u32 s23, s23, s3
    """)
    for p in range(7):
        k(f's_add_u32 m0, s21, {8192*p}\n buffer_load_dwordx4 v6, s[8:11], s20 offen lds\n s_add_u32 s20, s20, 128')
    k('s_waitcnt vmcnt(0)')
    G.stamp(1)
    for r in range(4): k(f'global_load_dword v29, v5, s[48:49] offset:{1024*r}')
    k(tagcalc + '\n s_barrier')
    K0 = int(opt.get('zk0', 6))
    k(f"""
    s_and_b32 s35, s2, 1
    s_mul_i32 s35, s35, 3
    s_add_u32 s35, s35, s32
    s_lshl_b32 s36, s35, 11
    s_add_u32 s36, s36, {hex(WS_FZ)}
    s_and_b32 s37, s28, 3
    s_lshl_b32 s37, s37, 1
    s_lshr_b32 s38, s3, 2
    s_add_u32 s37, s37, s38
    s_add_u32 s37, s37, {K0}
    s_lshl_b32 s37, s37, 13
    s_lshl_b32 s35, s35, 19
    s_add_u32 s37, s37, s35
    s_add_u32 s38, s35, {64*8192}
    v_lshlrev_b32 v1, 6, v0
    v_lshlrev_b32 v5, 7, v0
    """)
    if opt.get('zpf'):
        k('s_cmp_ge_u32 s3, 4\n s_cbranch_scc1 L_H_nz')
        poll(k, 'hfz', 'buffer_load_dwordx4 v[32:35], v1, s[12:15], s36 offen sc1', [32, 33, 34, 35], lanes='s_mov_b32 exec_hi, 0', nap=int(opt.get('znap', 8)))
        k('L_H_nz:\n s_barrier')
        G.stamp(2)
        k(f"""
L_H_z:
        buffer_load_dword v29, v5, s[12:15], s37 offen sc1
        s_add_u32 s37, s37, {8*8192}
        s_cmp_lt_u32 s37, s38
        s_cbranch_scc1 L_H_z
        """)
    for i in range(8):
        k(f"""
        s_lshl_b32 s35, s3, 2
        s_add_u32 s35, s35, {i >> 1}
        s_and_b32 s35, s35, 7
        s_lshl_b32 s35, s35, 4
        v_xor_b32 v1, s35, v10
        v_add_u32 v1, s21, v1
        ds_read_b128 v[{64+4*i}:{67+4*i}], v1 offset:{128*i}
        """)
    for j in range(4): lo(k, 16 + 2 * j, 24 + j); hi(k, 17 + 2 * j, 24 + j)
    k('v_cmp_gt_u32 vcc, 56, v0\n s_waitcnt lgkmcnt(0)')
    for i in range(8):
        t = 96 + 8 * i
        for j in range(4): lo(k, t + 2 * j, 64 + 4 * i + j); hi(k, t + 2 * j + 1, 64 + 4 * i + j)
        for j in range(4): pk(k, 'mul', t + 2 * j, t + 2 * j, 16 + 2 * j)
        for j in range(4): cvt(k, 64 + 4 * i + j, t + 2 * j, t + 2 * j + 1)
        for j in range(4): lo(k, t + 2 * j, 64 + 4 * i + j); hi(k, t + 2 * j + 1, 64 + 4 * i + j)
        pk(k, 'add', t, t, t + 2); pk(k, 'add', t + 4, t + 4, t + 6); pk(k, 'add', t, t, t + 4)
        k(f'v_add_f32 v{t}, v{t}, v{t+1}\n v_cndmask_b32 v{32+i}, 0, v{t}, vcc')
    rowsum16(k, list(range(32, 40))); xsum4(k, list(range(32, 40)), 40)
    for i in range(1, 8): k(f'v_cmp_eq_u32 vcc, {i}, v0\n v_cndmask_b32 v32, v32, v{32+i}, vcc')
    cvt(k, 32, 32, 32); lo(k, 32, 32)
    k(f'v_mul_f32 v32, {f32hex(-L2E)}, v32\n v_exp_f32 v32, v32\n v_add_f32 v32, 1.0, v32\n v_rcp_f32 v32, v32')
    cvt(k, 32, 32, 32); lo(k, 32, 32)
    k('v_sub_f32 v33, 1.0, v32')
    cvt(k, 33, 33, 33); lo(k, 33, 33)
    k(f"""
    s_lshl_b32 s36, s23, 6
    s_add_u32 s36, s36, {hex(WS_G2)}
    s_lshl_b32 s35, s23, 2
    s_add_u32 s35, s35, {hex(WS_FG)}
    v_lshlrev_b32 v1, 3, v0
    s_mov_b64 exec, 0xff
    buffer_store_dwordx2 v[32:33], v1, s[12:15], s36 offen sc1
    s_waitcnt vmcnt(0)
    s_mov_b64 exec, 1
    buffer_store_dword v{TAG}, v1, s[12:15], s35 offen sc1
    s_mov_b64 exec, -1
    s_and_b32 s35, s28, 3
    s_lshl_b32 s35, s35, 3
    s_add_u32 s35, s35, s3
    s_mul_i32 s35, s35, {28*896}
    s_and_b32 s36, s2, 1
    s_mul_i32 s36, s36, 384
    s_add_u32 s35, s35, s36
    v_min_u32 v5, 55, v0
    v_lshrrev_b32 v1, 2, v5
    v_mul_u32_u24 v1, 896, v1
    v_and_b32 v5, 3, v5
    v_lshl_add_u32 v5, v5, 7, v1
    v_add_u32 v5, s35, v5
    global_load_dword v29, v5, s[52:53]
    v_add_u32 v5, {14*896}, v5
    global_load_dword v29, v5, s[52:53]
    """)
    if opt.get('stamp'): k('s_waitcnt vmcnt(0)')
    G.stamp(3)
    G.flush(4)
    k('L_end:\n s_endpgm')
    return k

if __name__ == '__main__':
    opt = dict(a.split('=') if '=' in a else (a, 1) for a in sys.argv[2:])
    k = gen(opt)
    v, s = k.maxreg()
    ref = open('gated_mix__ssm_conv_s4d__mixer_gmlp__prompt.s.ref').read().split('\n')
    hdr = [l for l in ref if l.startswith(';') and '@launch' not in l and 'Override launch' not in l and 'grid=ceil' not in l]
    txt = '\n'.join(hdr) + f'\n; @launch grid=(256,1,1) block=(512,1,1) lds={LDS}\n'
    txt += '.amdgcn_target "amdgcn-amd-amdhsa--gfx950"\n.text\n' + k.text(align=(opt.get('align', '1') == '1')) + '.section .rodata,"a"\n' + desc(k.name, v, s)
    open(sys.argv[1], 'w').write(txt)
    print('vgpr', v, 'sgpr', s, 'lines', len(k.lines))
```

```python
import sys, struct
from asmlib import *

NAME = 'gated_mix__ssm_conv_s4d__mixer_gmlp__prompt_kernel'
WS_Z2 = 0x000000
WS_H  = 0x380000
WS_UT = 0x700000
WS_AT = 0x8C0000
WS_G2 = 0xA80000
WS_ST = 0xA90000
WS_FZ = 0xAD0000
WS_FH = 0xAD4000
WS_FA = 0xAE4000
WS_FU = 0xAE5000
WS_FG = 0xAE5E00
WS_FG = 0xAE7000
WS_EP = 0xAE6000
WS_END = 0xAF0000
SZ_Z = 3670016
STAMP_BASE = 0x2000000
L_X = 65536
L_KG = 122880
KG_ROW = 144
KG_WAVE = 64 * KG_ROW
L_U = 131072
L_KI = L_U + 2 * 4352
L_R = L_KI + 2 * 4352
L_Z1 = L_U
L_CNT = 163840 - 48
LDS = 163840
L2E = 1.4426950408889634
PI = [4, 5, 2, 3, 6, 0, 1, 7]
PI_WORD = sum(v << (4 * i) for i, v in enumerate(PI))
TAG = 28
POLL_LIMIT = 1 << 16

def f32hex(x): return hex(struct.unpack('<I', struct.pack('<f', x))[0])

def srd(k, d, lo, hi, size, add=0):
    if add: k(f's_add_u32 s{d}, s{lo}, {hex(add)}\n s_addc_u32 s{d+1}, s{hi}, 0')
    else: k(f's_mov_b32 s{d}, s{lo}\n s_mov_b32 s{d+1}, s{hi}')
    k(f's_mov_b32 s{d+2}, {hex(size)}\n s_mov_b32 s{d+3}, 0x20000')

class Gen:
    def __init__(self, opt):
        self.opt = opt
        self.k = K(NAME)
    def st(self, idx, grp='1'):
        if str(self.opt.get('stamp')) == grp or (idx == 0 and self.opt.get('stamp')): return f's_memrealtime s[{64+2*idx}:{65+2*idx}]\n'
        return ''
    def stamp(self, idx, grp='1'):
        self.k(self.st(idx, grp))
        if grp == '1' and str(self.opt.get('stamp')) == '6' and idx in self.CL:
            j = self.CL.index(idx)
            self.k(f's_memrealtime s[{66+4*j}:{67+4*j}]\n s_memtime s[{68+4*j}:{69+4*j}]')
    CL = [1, 2, 3, 4, 10, 11, 14]
    def flush(self, n, role=''):
        k = self.k
        if not self.opt.get('stamp'): return
        if self.opt.get('dbg'):
            if role != 'A': return
            k('s_load_dwordx2 s[56:57], s[0:1], 112\n s_waitcnt lgkmcnt(0)\n s_mov_b32 s58, 256\n s_mov_b32 s59, 0x20000\n s_mov_b64 exec, 1\n v_mov_b32 v1, 0')
            k('s_not_b32 s60, s64\n v_mov_b32 v2, s60\n buffer_atomic_umax v2, v1, s[56:59], 0 offen')
            for i in range(1, 16):
                k(f'v_mov_b32 v2, s{64+2*i}\n buffer_atomic_umax v2, v1, s[56:59], 0 offen offset:{4*i}')
            k('s_mov_b64 exec, -1')
            return
        k('s_waitcnt lgkmcnt(0)\n s_mov_b64 exec, 1')
        k(f's_lshl_b32 s60, s2, 3\n s_add_u32 s60, s60, s61\n s_lshl_b32 s60, s60, 6\n s_add_u32 s60, s60, {hex(STAMP_BASE)}')
        k('v_mov_b32 v1, 0')
        for i in range(n):
            k(f'v_mov_b32 v2, s{64+2*i}\n buffer_store_dword v2, v1, s[56:59], s60 offen offset:{4*i}')
        k('s_mov_b64 exec, -1')

def lo(k, d, s): k(f'v_lshlrev_b32 v{d}, 16, v{s}')
def hi(k, d, s): k(f'v_and_b32 v{d}, 0xffff0000, v{s}')
def cvt(k, d, a, b): k(f'v_cvt_pk_bf16_f32 v{d}, v{a}, v{b}')
def pk(k, op, d, a, b, c=None, mods=''):
    s = f'v_pk_{op}_f32 v[{d}:{d+1}], v[{a}:{a+1}], v[{b}:{b+1}]'
    if c is not None: s += f', v[{c}:{c+1}]'
    k(s + (' ' + mods if mods else ''))
def pks(k, op, d, a, b, c=None, neg=False, sc=True):
    if not sc:
        return pk(k, op, d, a, b, c, mods='neg_lo:[0,1] neg_hi:[0,1]' if neg else '')
    for i in range(2):
        if op == 'fma':
            k(f'v_fmac_f32 v{d+i}, v{a+i}, v{b+i}' if c == d else f'v_fma_f32 v{d+i}, v{a+i}, v{b+i}, v{c+i}')
        else: k(f"v_{'sub' if neg else op}_f32 v{d+i}, v{a+i}, v{b+i}")
def mfma(k, c, a, b, cin=None):
    k(f'v_mfma_f32_16x16x32_bf16 v[{c}:{c+3}], v[{a}:{a+3}], v[{b}:{b+3}], ' + (cin or f'v[{c}:{c+3}]'))

GC = 24
def gelu_consts(k):
    c0 = -2.0 * 0.7978845608028654 * L2E
    k(f'v_mov_b32 v24, {f32hex(c0*0.044715)}\n v_mov_b32 v25, {f32hex(c0*0.044715)}\n v_mov_b32 v26, {f32hex(c0)}\n v_mov_b32 v27, {f32hex(c0)}')
    k('v_mov_b32 v30, 1.0\n v_mov_b32 v31, 1.0')
def gelu_tiles(k, cs, t, sc=False):
    c0 = -2.0 * 0.7978845608028654 * L2E
    pairs = [(c + 2 * p, t + 4 * i + 2 * p) for i, c in enumerate(cs) for p in range(2)]
    for x, tt in pairs: cvt(k, tt, x, x + 1)
    for x, tt in pairs: lo(k, x, tt); hi(k, x + 1, tt)
    for x, tt in pairs: pks(k, 'mul', tt, x, x, sc=sc)
    for x, tt in pairs:
        if sc: k(f'v_fmaak_f32 v{tt}, v{tt}, v24, {f32hex(c0)}\n v_fmaak_f32 v{tt+1}, v{tt+1}, v24, {f32hex(c0)}')
        else: pk(k, 'fma', tt, tt, 24, 26)
    for x, tt in pairs: pks(k, 'mul', tt, tt, x, sc=sc)
    for x, tt in pairs: k(f'v_exp_f32 v{tt}, v{tt}\n v_exp_f32 v{tt+1}, v{tt+1}')
    for x, tt in pairs: pks(k, 'add', tt, tt, 30, sc=sc)
    for x, tt in pairs: k(f'v_rcp_f32 v{tt}, v{tt}\n v_rcp_f32 v{tt+1}, v{tt+1}')
    for x, tt in pairs: pks(k, 'mul', x, x, tt, sc=sc)

def rowsum16(k, regs):
    for sh in (8, 4, 2, 1):
        for r in regs: k(f'v_add_f32_dpp v{r}, v{r}, v{r} row_ror:{sh} row_mask:0xf bank_mask:0xf')
def xsum4(k, regs, t):
    for sw in ('16', '32'):
        for i, r in enumerate(regs): k(f'v_mov_b32 v{t+i}, v{r}')
        for i, r in enumerate(regs): k(f'v_permlane{sw}_swap_b32 v{r}, v{t+i}')
        for i, r in enumerate(regs): k(f'v_add_f32 v{r}, v{r}, v{t+i}')
def cmul(k, d, x, w):
    k(f'v_mul_f32 v{d}, v{x}, v{w}\n v_mul_f32 v{d+1}, v{x+1}, v{w}\n v_fmac_f32 v{d}, v{x+1}, v{w+2}\n v_fmac_f32 v{d+1}, v{x}, v{w+1}')

def poll(k, name, loads, regs, lanes=None, first_issued=False, wait0='s_waitcnt vmcnt(0)', nap=0):
    k(f's_mov_b32 s62, {POLL_LIMIT}')
    if lanes: k(lanes)
    if first_issued: k(f'{wait0}\n s_branch L_{name}_chk')
    k(f'L_{name}:')
    k(loads)
    k(f's_waitcnt vmcnt(0)\nL_{name}_chk:')
    k(f'v_cmp_ne_u32 vcc, v{TAG}, v{regs[0]}')
    for r in regs[1:]:
        k(f'v_cmp_ne_u32 s[54:55], v{TAG}, v{r}\n s_or_b64 vcc, vcc, s[54:55]')
    k(f's_cbranch_vccz L_{name}_ok\n' + (f's_sleep {nap}\n' if nap else '') + f's_sub_u32 s62, s62, 1\n s_cbranch_scc0 L_{name}\nL_{name}_ok:')
    if lanes: k('s_mov_b64 exec, -1')

def post(k, val, addr=29, tmp=23):
    k(f'v_mov_b32 v{tmp}, {val}\n ds_write_b32 v{addr}, v{tmp}')
def waitfor(k, name, off, n, val, t, base=22, sleep=True):
    k(f's_mov_b32 s62, {POLL_LIMIT*16}\nL_{name}:')
    if n == 4:
        k(f'ds_read_b128 v[{t}:{t+3}], v{base} offset:{off}\n s_waitcnt lgkmcnt(0)\n v_min3_u32 v{t}, v{t}, v{t+1}, v{t+2}\n v_min_u32 v{t}, v{t}, v{t+3}')
    else:
        k(f'ds_read_b32 v{t}, v{base} offset:{off}\n s_waitcnt lgkmcnt(0)')
    k(f'v_cmp_gt_u32 vcc, {val}, v{t}\n s_cbranch_vccz L_{name}_ok')
    if sleep: k(f's_sleep {int(sleep)}')
    k(f's_sub_u32 s62, s62, 1\n s_cbranch_scc0 L_{name}\nL_{name}_ok:')

def weave(lines, events):
    out = []; n = len(lines); ev = sorted(events, key=lambda e: e[0]); j = 0
    for i, l in enumerate(lines):
        while j < len(ev) and ev[j][0] * n <= i:
            out += [x.strip() for x in ev[j][1].split('\n') if x.strip()]; j += 1
        out.append(l)
    while j < len(ev):
        out += [x.strip() for x in ev[j][1].split('\n') if x.strip()]; j += 1
    return out

def sub(fn, *a):
    t = K('t'); fn(t, *a); return t.lines

def gen(opt):
    G = Gen(opt); k = G.k
    D = 8
    ZF = '' if opt.get('nosc1') else 'sc1'
    npf = int(opt.get('pfcode', 3))
    k(f"""
    s_cmp_ge_u32 s2, 256
    s_cbranch_scc1 L_end
    {'s_memrealtime s[64:65]' if opt.get('hold') else ''}
    s_load_dwordx2 s[8:9], s[0:1], 0       ; x
    s_load_dwordx2 s[16:17], s[0:1], 64    ; w_in
    s_load_dwordx2 s[12:13], s[0:1], 120   ; ws
    s_load_dwordx8 s[36:43], s[0:1], 8
    s_load_dwordx4 s[44:47], s[0:1], 40
    s_load_dwordx8 s[48:55], s[0:1], 72
    s_load_dwordx2 s[26:27], s[0:1], 104   ; out
    v_lshrrev_b32 v1, 6, v0
    v_and_b32 v0, 63, v0
    v_readfirstlane_b32 s3, v1             ; wave
    s_lshr_b32 s30, s2, 3                  ; j
    s_and_b32 s29, s2, 1
    s_lshl_b32 s29, s29, 2                 ; 4*par
    s_and_b32 s31, s30, 3
    s_add_u32 s31, s31, s29
    s_lshr_b32 s35, s30, 3
    s_add_u32 s29, s29, s35
    s_and_b32 s35, s30, 7
    s_cmp_lt_u32 s30, 24
    s_cselect_b32 s31, s35, s31            ; tb&7
    s_cselect_b32 s29, s29, 3
    s_cmp_ge_u32 s30, 28
    s_cselect_b32 s29, 7, s29
    s_and_b32 s28, s2, 6
    s_lshl_b32 s28, s28, 2
    s_add_u32 s28, s28, s31
    s_min_u32 s31, s31, 6
    s_and_b32 s32, s3, 3
    v_and_b32 v8, 15, v0
    v_lshrrev_b32 v9, 4, v0
    v_lshlrev_b32 v10, 1, v9
    v_xor_b32 v10, v10, v8
    v_lshlrev_b32 v10, 4, v10
    v_mul_u32_u24 v11, 3584, v9
    v_add_u32 v10, v10, v11
    v_add_u32 v11, {4*3584}, v10
    v_xor_b32 v12, 128, v10
    v_add_u32 v12, {8*3584}, v12
    v_add_u32 v13, {4*3584}, v12
    s_mul_i32 s33, s32, {16*3584}
    s_lshl_b32 s34, s29, 8
    s_add_u32 s33, s33, s34
    s_add_u32 s33, s33, 1792
    s_lshl_b32 s34, s32, 12
    v_lshrrev_b32 v21, 3, v0
    v_and_b32 v20, 7, v0
    v_lshrrev_b32 v5, 1, v21
    v_xor_b32 v20, v20, v5
    v_lshlrev_b32 v20, 4, v20
    v_mul_u32_u24 v6, 896, v21
    v_add_u32 v6, v6, v20
    v_xor_b32 v7, 64, v6
    v_add_u32 v4, {8*896}, v7
    s_lshl_b32 s24, s28, 2
    s_add_u32 s24, s24, s32
    s_mul_i32 s24, s24, {16*896}
    s_lshl_b32 s25, s32, 11
    s_add_u32 s25, s25, {L_X}
    s_mov_b32 s10, {2048*896}
    s_mov_b32 s11, 0x20000
    s_mov_b32 s14, {hex(WS_END)}
    s_mov_b32 s15, 0x20000
    s_mov_b32 s18, {448*3584}
    s_mov_b32 s19, 0x20000
    s_mov_b32 s5, {hex(WS_EP)}
    s_cmp_eq_u32 s29, 7
    s_waitcnt lgkmcnt(0)
    """)
    if opt.get('stamp'):
        k('s_mov_b32 s61, s3'); G.stamp(0); srd(k, 56, 12, 13, 0x4000000)
    k(f"""
    s_load_dword s4, s[12:13], s5
    s_cbranch_scc1 L_helper
    s_cmp_lt_u32 s3, 4
    s_cbranch_scc1 L_A
    """)
    k(f"""
    v_mul_u32_u24 v1, 896, v8
    s_lshl_b32 s20, s29, 7
    s_add_u32 s20, s20, s24
    s_mov_b64 exec, 0xffff
    buffer_load_dword v209, v1, s[8:11], s20 offen
    s_mov_b64 exec, -1
    s_mul_i32 s20, s28, 7
    s_add_u32 s20, s20, s29                ; m
    s_lshr_b32 s21, s32, 1                 ; c2
    s_and_b32 s22, s32, 1                  ; hf
    s_lshl_b32 s23, s20, 2
    s_load_dword s30, s[46:47], s23
    s_lshl_b32 s20, s20, 1
    s_add_u32 s20, s20, s21                ; channel
    s_lshl_b32 s23, s20, 9
    s_lshl_b32 s35, s22, 8
    s_add_u32 s23, s23, s35
    v_lshlrev_b32 v1, 1, v0
    v_add_u32 v1, s23, v1
    """)
    PRM = 200
    for c in range(2):
        for i in range(4): k(f'global_load_ushort v{PRM+4*c+i}, v1, s[{36+2*i}:{37+2*i}] offset:{128*c}')
    k(f"""
    s_lshl_b32 s23, s20, 1
    v_mov_b32 v1, s23
    global_load_ushort v{PRM+8}, v1, s[44:45]
    """)
    if opt.get('tlb'):
        k(f"""
        v_mov_b32 v1, 0
        s_mov_b64 exec, 1
        s_lshl_b32 s35, s29, 5
        s_add_u32 s35, s35, s28
        s_lshl_b32 s35, s35, 14
        buffer_load_dword v209, v1, s[12:15], s35 offen sc1
        s_mul_i32 s35, s28, {4*28*1024}
        s_lshl_b32 s63, s29, 12
        s_add_u32 s35, s35, s63
        s_add_u32 s35, s35, {hex(WS_H)}
        buffer_load_dword v209, v1, s[12:15], s35 offen sc1
        s_lshl_b32 s35, s20, 12
        s_add_u32 s35, s35, {hex(WS_AT)}
        buffer_load_dword v209, v1, s[12:15], s35 offen sc1
        s_lshl_b32 s35, s29, 18
        s_lshl_b32 s63, s28, 7
        s_add_u32 s35, s35, s63
        s_add_u32 s35, s35, {hex(WS_UT)}
        buffer_load_dword v209, v1, s[12:15], s35 offen sc1
        global_load_dword v209, v1, s[26:27]
        global_load_dword v209, v1, s[52:53]
        s_lshl_b32 s35, s28, 18
        v_mov_b32 v1, s35
        global_load_dword v209, v1, s[48:49]
        s_mov_b64 exec, -1
        """)
    G.stamp(1, '3')
    k('s_branch L_B')
    def w2parts(j):
        h = f's_add_u32 s35, s31, {j}\n s_cmp_ge_u32 s35, 7\n s_cselect_b32 s63, 7, 0\n s_sub_u32 s35, s35, s63\n s_lshl_b32 s63, s35, 7\n s_add_u32 s63, s63, s24\n'
        p = [h + f's_add_u32 m0, s25, {j * 8192}\n s_mul_i32 s35, s35, {64*3584}\n buffer_load_dwordx4 v6, s[8:11], s63 offen lds\n',
             f's_add_u32 m0, s25, {j * 8192 + 1024}\n s_add_u32 s35, s35, s33\n buffer_load_dwordx4 v4, s[8:11], s63 offen lds\n']
        for q in range(4):
            p.append(f's_add_u32 m0, s34, {(j & 3) * 16384 + q * 1024}\n buffer_load_dwordx4 v{10+q}, s[16:19], s35 offen lds\n')
        return p
    def w2stage(j): return ''.join(w2parts(j))
    def common2():
        k(f"""
        v_lshlrev_b32 v2, 4, v0
        v_mov_b32 v22, {L_CNT}
        s_lshl_b32 s35, s3, 2
        v_add_u32 v29, s35, v22
        """)
    tagcalc = f's_waitcnt lgkmcnt(0)\n s_mul_i32 s4, s4, 0x9E3779B1\n s_add_u32 s4, s4, 0x7F4A7C15\n v_mov_b32 v{TAG}, s4'
    def w1setup(r):
        k(f"""
        v_lshrrev_b32 v{r}, 2, v0
        v_mul_u32_u24 v{r}, 3584, v{r}
        v_lshrrev_b32 v{r+1}, 4, v0
        v_and_b32 v{r+1}, 2, v{r+1}
        v_xor_b32 v{r+1}, v{r+1}, v0
        v_and_b32 v{r+1}, 3, v{r+1}
        v_lshl_add_u32 v{r}, v{r+1}, 4, v{r}
        v_add_u32 v{r+1}, {16*3584}, v{r}
        s_lshl_b32 s38, s29, 8
        s_lshl_b32 s35, s32, 6
        s_add_u32 s38, s38, s35
        s_lshl_b32 s40, s32, 11
        """)
    def w1off(i): return [3, 0, 1, 2][(i % 8) >> 1] * 16384 + (i & 1) * 8192
    def w1dma(i, r):
        off = w1off(i)
        return (f's_mul_i32 s35, s41, {32*3584}\n s_add_u32 s35, s35, s38\n s_add_u32 m0, s40, {off}\n s_add_u32 s41, s41, 1\n'
                f'buffer_load_dwordx4 v{r}, s[16:19], s35 offen lds\n s_add_u32 m0, s40, {off+1024}\n s_cmp_eq_u32 s41, 14\n'
                f'buffer_load_dwordx4 v{r+1}, s[16:19], s35 offen lds\n s_cselect_b32 s41, 0, s41\n')
    k('L_A:')
    k(w2stage(0)); k(w2stage(1))
    if opt.get('prio', '1') != '0': k(f"s_setprio {opt.get('prio', 1)}")
    srd(k, 36, 50, 51, 4096)
    k('v_lshlrev_b32 v1, 1, v8\n s_lshl_b32 s35, s28, 7')
    BSP = [228, 229, 230, 231]
    for tt in range(4): k(f'buffer_load_ushort v{BSP[tt]}, v1, s[36:39], s35 offen offset:{32*tt}')
    common2()
    WA = 168
    k(f"""
    v_mov_b32 v23, 0
    ds_write_b32 v29, v23
    ds_write_b32 v29, v23 offset:16
    v_mov_b32 v23, 6
    ds_write_b32 v29, v23 offset:32
    v_lshrrev_b32 v14, 1, v8
    v_xor_b32 v14, v14, v9
    v_lshlrev_b32 v14, 4, v14
    v_lshl_add_u32 v14, v8, 7, v14
    v_add_u32 v14, s25, v14
    v_xor_b32 v15, 64, v14
    v_lshrrev_b32 v16, 2, v0
    v_and_b32 v17, 7, v16
    v_lshlrev_b32 v17, 5, v17
    v_and_b32 v16, 3, v16
    v_lshl_add_u32 v16, v9, 3, v16         ; 8g + r
    v_and_b32 v19, 3, v0
    v_lshlrev_b32 v18, 3, v19
    v_lshl_add_u32 v18, v16, 8, v18
    """)
    for ft in range(8): k(f'v_xor_b32 v{WA+ft}, {32*ft}, v17\n v_add_u32 v{WA+ft}, v{WA+ft}, v18')
    gelu_consts(k)
    w1setup(224)
    k(f"""
    v_lshlrev_b32 v226, 6, v16
    v_lshl_add_u32 v226, v19, 3, v226
    v_and_b32 v227, 1, v9
    v_lshl_add_u32 v226, v227, 5, v226     ; row*64 + (p ^ (g&1))*32 + 8c  (p = 0)
    v_xor_b32 v227, 32, v226
    v_add_u32 v226, s40, v226
    v_add_u32 v227, s40, v227
    s_lshl_b32 s41, s31, 1
    s_add_u32 s41, s41, 8
    s_cmp_ge_u32 s41, 14
    s_cselect_b32 s35, 14, 0
    s_sub_u32 s41, s41, s35
    s_lshl_b32 s35, s32, 2
    v_add_u32 v5, s35, v22
    """)
    XF, WF, ACC, T, CK1 = 32, 88, 120, 152, 40
    G.stamp(14, '2')
    k('s_waitcnt vmcnt(10) lgkmcnt(0)')
    G.stamp(15, '2')
    k(tagcalc + '\n s_barrier')
    G.stamp(1); G.stamp(1, '2')
    def wread(gi):
        ks = gi >> 1
        for f in range(4):
            for hh in range(2):
                r = WF + (gi & 1) * 16 + f * 4 + hh * 2
                k(f'ds_read_b64_tr_b16 v[{r}:{r+1}], v{WA + 4 * (gi & 1) + f} offset:{((ks >> 1) & 3) * 16384 + (ks & 1) * 8192 + hh * 1024}')
    def xread(i):
        k(f'ds_read_b128 v[{XF+4*(i&1)}:{XF+4*(i&1)+3}], v{14 + (i & 1)} offset:{(i >> 1) * 8192}')
    xread(0); wread(0)
    for gi in range(28):
        ks = gi >> 1; j = gi >> 2
        if gi % 4 == 3:
            k('s_waitcnt lgkmcnt(0)' + (' vmcnt(0)' if j == 0 else ''))
            if j < 6: G.stamp(2 + 2 * j, '2')
            k('s_barrier')
            if j < 6:
                G.stamp(3 + 2 * j, '2'); xread(ks + 1); wread(gi + 1)
        else:
            nx = 0
            if gi % 4 == 0: xread(ks + 1); nx = 1
            wread(gi + 1); k(f's_waitcnt lgkmcnt({8 + nx})')
        for f in range(4):
            mfma(k, ACC + 16 * (gi & 1) + 4 * f, XF + 4 * (ks & 1), WF + (gi & 1) * 16 + f * 4, '0' if ks == 0 else None)
    G.stamp(2)
    S, Q = 88, 92
    def z2epi(t):
        for h in range(2):
            cs = [ACC + 16 * h + 4 * f for f in range(4)]
            gelu_tiles(t, cs, T)
            prs = [(c + 2 * p, T + 2 * i + p) for i, c in enumerate(cs) for p in range(2)]
            for x, tt in prs: cvt(t, tt, x, x + 1)
            for x, tt in prs: lo(t, x, tt); hi(t, x + 1, tt)
            for i, c in enumerate(cs):
                for p in range(2):
                    if h == 0 and i == 0: pk(t, 'mul', Q + 2 * p, c + 2 * p, c + 2 * p)
                    else: pk(t, 'fma', Q + 2 * p, c + 2 * p, c + 2 * p, Q + 2 * p)
                    if h == 0 and i == 0: pass
                    elif h == 0 and i == 1: pk(t, 'add', S + 2 * p, ACC + 2 * p, c + 2 * p)
                    else: pk(t, 'add', S + 2 * p, S + 2 * p, c + 2 * p)
    z2epi(k)
    rowsum16(k, list(range(S, S + 8)))
    k(f"""
    v_cmp_eq_u32 vcc, 1, v19
    v_cndmask_b32 v{T}, v{S}, v{S+1}, vcc
    v_cndmask_b32 v{T+2}, v{Q}, v{Q+1}, vcc
    v_cmp_eq_u32 vcc, 2, v19
    v_cndmask_b32 v{T}, v{T}, v{S+2}, vcc
    v_cndmask_b32 v{T+2}, v{T+2}, v{Q+2}, vcc
    v_cmp_eq_u32 vcc, 3, v19
    v_cndmask_b32 v{T}, v{T}, v{S+3}, vcc
    v_cndmask_b32 v{T+2}, v{T+2}, v{Q+3}, vcc
    v_mov_b32 v{T+1}, v{TAG}
    v_mov_b32 v{T+3}, v{TAG}
    v_lshl_add_u32 v18, v9, 2, v19
    v_lshlrev_b32 v18, 4, v18              ; row*16
    s_lshl_b32 s24, s28, 2
    s_add_u32 s24, s24, s32
    s_lshl_b32 s24, s24, 11
    s_add_u32 s24, s24, {hex(WS_ST)}
    s_lshl_b32 s35, s29, 8
    s_add_u32 s35, s35, s24
    s_mov_b32 exec_lo, 0x000f000f
    s_mov_b32 exec_hi, 0x000f000f
    buffer_store_dwordx4 v[{T}:{T+3}], v18, s[12:15], s35 offen sc1
    s_mov_b64 exec, -1
    v_min_u32 v18, 2, v9
    v_lshlrev_b32 v18, 8, v18
    v_lshl_add_u32 v18, v8, 4, v18
    """)
    G.stamp(3)
    def spdma(j, dyn=False, slot=0):
        vv, off = ((10, 0), (12, 1024), (11, 8192), (13, 9216))[j]
        t = f's_add_u32 m0, s43, {off + slot * 16384}\n buffer_load_dwordx4 v{vv}, s[8:11], s42 offen lds\n'
        if j == 3:
            t += 's_add_u32 s42, s42, 256\n'
            if dyn: t += 's_lshr_b64 s[40:41], s[40:41], 4\n s_and_b32 s43, s40, 15\n s_lshl_b32 s43, s43, 3\n s_add_u32 s43, s43, s32\n s_lshl_b32 s43, s43, 11\n'
        return t
    A1, FR, ZP = 176, 64, 208
    k(f"""
    s_lshl_b32 s35, s32, 11
    v_subrev_u32 v14, s35, v14
    v_subrev_u32 v15, s35, v15
    """)
    srd(k, 8, 48, 49, 0x800000)
    k(f"""
    v_lshl_add_u32 v10, v21, 12, v20
    v_add_u32 v11, 128, v10
    v_xor_b32 v12, 64, v10
    v_add_u32 v12, 0x8000, v12
    v_add_u32 v13, 128, v12
    s_lshl_b32 s42, s28, 2
    s_add_u32 s42, s42, s32
    s_lshl_b32 s42, s42, 16                ; (64*tb + 16*a)*4096
    s_lshl_b32 s43, s32, 11
    """)
    def z1read(i):
        b = FR + (i & 1) * 24
        for p in range(2):
            for hh in range(2):
                k(f'ds_read_b64_tr_b16 v[{b+4*p+2*hh}:{b+4*p+2*hh+1}], v{226 + p} offset:{w1off(i) + 256*hh}')
        for tt in range(4):
            r = b + 8 + 4 * tt
            k(f'ds_read_b128 v[{r}:{r+3}], v{14 + (i & 1)} offset:{(i >> 1) * 8192 + tt * 2048}')
    G.stamp(1, '5')
    waitfor(k, 'wb1', 16, 1, 1, 32, base=5, sleep=False)
    G.stamp(2, '5')
    PL = 32; S, Q = 44, 48
    NP = int(opt.get('np', 7))
    stload = f'buffer_load_dwordx4 v[{PL}:{PL+3}], v2, s[12:15], s24 offen sc1\n buffer_load_dwordx4 v[{PL+4}:{PL+7}], v18, s[12:15], s24 offen offset:1024 sc1'
    def normalise():
        poll(k, 'pst', stload, [PL + 1, PL + 3, PL + 5, PL + 7], first_issued=True)
        G.stamp(5)
        k(f"""
        v_cmp_gt_u32 vcc, 3, v9
        v_cndmask_b32 v{PL+4}, 0, v{PL+4}, vcc
        v_cndmask_b32 v{PL+6}, 0, v{PL+6}, vcc
        v_add_f32 v40, v{PL}, v{PL+4}
        v_add_f32 v41, v{PL+2}, v{PL+6}
        """)
        xsum4(k, [40, 41], 42)
        k(f"""
        v_mul_f32 v40, {f32hex(1/896)}, v40
        v_mul_f32 v41, {f32hex(1/896)}, v41
        v_fma_f32 v41, -v40, v40, v41
        v_max_f32 v41, 0, v41
        """)
        cvt(k, 40, 40, 41); hi(k, 41, 40); lo(k, 40, 40)
        k(f'v_add_f32 v41, {f32hex(1e-5)}, v41')
        cvt(k, 41, 41, 41); lo(k, 41, 41)
        k('v_sqrt_f32 v41, v41')
        cvt(k, 41, 41, 41); lo(k, 41, 41)
        k('v_rcp_f32 v41, v41\n v_lshlrev_b32 v53, 4, v9')
        for r in range(4):
            k(f'ds_bpermute_b32 v{S+r}, v53, v40 offset:{4*r}\n ds_bpermute_b32 v{Q+r}, v53, v41 offset:{4*r}')
        k(f"""
        s_lshl_b32 s24, s29, 6
        s_lshl_b32 s25, s28, 1
        s_add_u32 s24, s24, s25
        s_lshr_b32 s25, s32, 1
        s_add_u32 s24, s24, s25
        s_lshl_b32 s24, s24, 13
        s_and_b32 s25, s32, 1
        s_lshl_b32 s25, s25, 9
        s_add_u32 s24, s24, s25
        s_add_u32 s25, s24, 4096
        v_lshrrev_b32 v53, 1, v9
        v_lshlrev_b32 v53, 8, v53
        v_lshl_add_u32 v53, v8, 4, v53
        v_and_b32 v54, 1, v9
        v_lshl_add_u32 v53, v54, 10, v53
        s_waitcnt lgkmcnt(0)
        """)
        for h in range(2):
            cs = [ACC + 16 * h + 4 * f for f in range(4)]
            prs = [(c + 2 * p, T + 8 * h + 2 * i + p, p) for i, c in enumerate(cs) for p in range(2)]
            for x, t, p in prs: pks(k, 'add', x, x, S + 2 * p, neg=True, sc=bool(opt.get('sca')))
            for x, t, p in prs: cvt(k, t, x, x + 1)
            for x, t, p in prs: lo(k, x, t); hi(k, x + 1, t)
            for x, t, p in prs: pks(k, 'mul', x, x, Q + 2 * p, sc=bool(opt.get('sca')))
            for x, t, p in prs: cvt(k, t, x, x + 1)
            for pr in range(2):
                o = T + 8 * h + 4 * pr
                k(f'v_permlane16_swap_b32 v{o}, v{o+2}\n v_permlane16_swap_b32 v{o+1}, v{o+3}')
            for pr in range(2):
                o = T + 8 * h + 4 * pr
                k(f'buffer_store_dwordx4 v[{o}:{o+3}], v53, s[12:15], s{24+h} offen offset:{2048*pr} sc1')

    CK1 = 56
    posts = {3: 5, 7: 6, 9: 7, 11: 8}; checks = {6: 5, 8: 6, 12: 7}
    pre = {6: [(0, 0), (0, 1)], 7: [(0, 2), (0, 3)], 8: [(1, 0), (1, 1)], 9: [(1, 2), (1, 3)], 10: [(2, 0), (2, 1)], 11: [(2, 2), (2, 3)], 12: [(3, 0), (3, 1)], 13: [(3, 2), (3, 3)]}
    assert NP == 7
    spins = []
    z1read(0)
    for i in range(14):
        if i in checks: k(f'ds_read_b128 v[{CK1}:{CK1+3}], v22')
        if i < 13:
            if i == 7: k('s_waitcnt vmcnt(14)')
            z1read(i + 1); k('s_waitcnt lgkmcnt(8)')
        else:
            k('s_waitcnt lgkmcnt(0)'); post(k, 9)
        if i in posts: post(k, posts[i])
        b = FR + (i & 1) * 24
        if i < 13: G.stamp(3 + i, '5')
        for p in range(2):
            for tt in range(4):
                mfma(k, A1 + (p * 4 + tt) * 4, b + 4 * p, b + 8 + 4 * tt, '0' if i == 0 else None)
                if p == 0 and i in checks:
                    k([f'v_min3_u32 v{CK1}, v{CK1}, v{CK1+1}, v{CK1+2}', f'v_min_u32 v{CK1}, v{CK1}, v{CK1+3}', f'v_cmp_gt_u32 vcc, {checks[i]}, v{CK1}',
                       f's_cbranch_vccnz L_z1_spin{i}\nL_z1_ok{i}:'][tt])
            if p == 0 and i < 6: k(w1dma(8 + i, 224))
            if i in pre: st, j = pre[i][p]; k(spdma(j, slot=PI[st]))
        if i in checks: spins.append((f'L_z1_spin{i}', f'L_z1_ok{i}', CK1, 0, checks[i]))
        if i == NP - 2: k(stload)
        if i == NP:
            G.stamp(4); normalise(); G.stamp(6)
        if i == NP + 3:
            k(f"""
            s_lshl_b32 s24, s29, 11
            s_add_u32 s24, s24, {hex(WS_FZ)}
            s_lshl_b32 s35, s28, 6
            s_lshl_b32 s25, s32, 2
            s_add_u32 s35, s35, s25
            v_mov_b32 v53, s35
            s_waitcnt vmcnt(6)
            s_mov_b64 exec, 1
            buffer_store_dword v{TAG}, v53, s[12:15], s24 offen sc1
            s_mov_b64 exec, -1
            """)
            G.stamp(7)
    waitfor(k, 'wa9', 0, 4, 9, 32, sleep=False)
    for st in range(4, 7):
        for j in range(4): k(spdma(j, slot=PI[st]))
    srd(k, 16, 12, 13, SZ_Z)
    ACC2, W, Z, CK = 32, 64, 96, 160
    k(f"""
    v_lshlrev_b32 v19, 6, v0
    s_lshl_b32 s33, s29, 19
    s_lshl_b32 s35, s32, 11
    s_add_u32 s34, s33, s35                ; fb*64*8192 + w*2048
    v_lshrrev_b32 v20, 1, v8
    v_xor_b32 v20, v20, v9
    v_lshlrev_b32 v20, 4, v20
    v_lshl_add_u32 v20, v8, 7, v20
    v_xor_b32 v21, 64, v20
    v_add_u32 v17, {PI[0]*16384}, v20
    v_add_u32 v18, {PI[0]*16384}, v21
    v_add_u32 v14, 8192, v2
    v_add_u32 v15, 16384, v2
    v_add_u32 v16, 24576, v2
    s_mov_b32 s38, {hex(PI_WORD)}
    s_mov_b32 s39, {hex(PI_WORD)}
    s_mov_b32 s36, 10                      ; 10 + stage
    """)
    ZV = [2, 14, 15, 16]
    for i in range(32): k(f'v_mov_b32 v{ACC2+i}, 0')
    G.stamp(8)
    k('s_cmp_lg_u32 s3, 0\n s_cbranch_scc1 L_nofz')
    poll(k, 'pfz', f'buffer_load_dwordx4 v[{CK}:{CK+3}], v19, s[12:15], s24 offen sc1', [CK, CK + 1, CK + 2, CK + 3], lanes='s_mov_b32 exec_hi, 0', nap=int(opt.get('nap', 1)))
    k('L_nofz:\n s_waitcnt vmcnt(0)')
    post(k, 10)
    waitfor(k, 'wa10', 0, 4, 10, CK, sleep=False)
    G.stamp(9)
    adv = f's_add_u32 s34, s34, {4*8192}'
    def zld(n, ft):
        r = Z + (n % D) * 8 + ft * 4
        k(f'buffer_load_dwordx4 v[{r}:{r+3}], v{ZV[n%4]}, s[16:19], s34 offen offset:{1024*ft} {ZF}')
    for n in range(D):
        zld(n, 0); zld(n, 1)
        if n % 4 == 3: k(adv)
    def w2read(n, tt):
        ks = n & 3
        r = W + (n & 1) * 16 + tt * 4
        k(f'ds_read_b128 v[{r}:{r+3}], v{17 + (ks & 1)} offset:{(ks >> 1) * 8192 + tt * 2048}')
    for tt in range(4): w2read(0, tt)
    G.stamp(10)
    def z1epi(t):
        for h in range(2):
            for q in range(2):
                cs = [A1 + 16 * h + 8 * q + 4 * f for f in range(2)]
                gelu_tiles(t, cs, 232 + 8 * q, sc=True)
                for f in range(2):
                    for p in range(2): cvt(t, ZP + 4 * (2 * q + f) + 2 * h + p, cs[f] + 2 * p, cs[f] + 2 * p + 1)
    extra = sub(z1epi)
    NPEEL = int(opt.get('peel', 3)); per = -(-len(extra) // (NPEEL * 64))
    def body(name, ride, last):
        for n in range(8):
            k(f's_waitcnt vmcnt({(D-1)*2 - (2*n if last else 0)}) lgkmcnt(0)')
            fill = [[] for _ in range(8)]
            if n % 4 == 0:
                fill[4] = ['ds_write_b32 v29, v23']
                if opt.get('stamp') == '4':
                    for it in range(8):
                        st = 2 * it + n // 4
                        if st: fill[5].append(f's_cmp_lg_u32 s36, {10+st}\n s_cbranch_scc1 L_t{name}{n}_{it}\n s_memrealtime s[{64+2*st}:{65+2*st}]\nL_t{name}{n}_{it}:')
            if not (last and n > 3):
                if n % 4 == 1:
                    fill[4] = [f'ds_read_b128 v[{CK}:{CK+3}], v22 offset:32', 'v_add_u32 v23, 1, v23']
                    fill[5] = ['s_lshr_b64 s[38:39], s[38:39], 4\n s_and_b32 s37, s38, 15\n s_lshl_b32 s37, s37, 14']
                if n % 4 == 2:
                    fill[4] = [f'v_min3_u32 v{CK}, v{CK}, v{CK+1}, v{CK+2}', 's_sub_u32 s35, s36, 9']
                    fill[5] = [f'v_min_u32 v{CK}, v{CK}, v{CK+3}', 'v_add_u32 v17, s37, v20']
                    fill[6] = [f'v_cmp_gt_u32 vcc, s35, v{CK}']
                    fill[7] = [f's_cbranch_vccnz L_{name}_spin{n}\nL_{name}_ok{n}:']
                    spins.append((f'L_{name}_spin{n}', f'L_{name}_ok{n}', CK, 32, 's35'))
                if n % 4 == 3: fill[4] += ['v_add_u32 v18, s37, v21']
            for ft in range(2):
                for tt in range(4):
                    mfma(k, ACC2 + (ft * 4 + tt) * 4, Z + (n % D) * 8 + ft * 4, W + (n & 1) * 16 + tt * 4)
                    if ft == 0 and not (last and n == 7): w2read(n + 1, tt)
                    for x in fill[4 * ft + tt]: k(x)
                    if ride:
                        for _ in range(per):
                            if extra: k(extra.pop(0))
                if not last: zld(n, ft)
            if n % 4 == 3: k(adv + '\n s_add_u32 s36, s36, 1')
    for it in range(NPEEL): body(f'pa{it}', True, False)
    assert not extra
    k('L_p2:')
    body('pb', False, False)
    k('s_cmp_lt_u32 s36, 24\n s_cbranch_scc1 L_p2')
    body('pc', False, True)
    k('s_branch L_p2_done')
    for a, b, c, off, val in spins:
        k(f"""
{a}:
        s_mov_b32 s62, {POLL_LIMIT*16}
{a}b:
        ds_read_b128 v[{c}:{c+3}], v22 offset:{off}
        s_waitcnt lgkmcnt(0)
        v_min3_u32 v{c}, v{c}, v{c+1}, v{c+2}
        v_min_u32 v{c}, v{c}, v{c+3}
        v_cmp_gt_u32 vcc, {val}, v{c}
        s_cbranch_vccz {b}
        s_sub_u32 s62, s62, 1
        s_cbranch_scc0 {a}b
        s_branch {b}
        """)
    k('L_p2_done:')
    G.stamp(11); G.stamp(1, '7'); G.stamp(1, '9')
    k(f"""
    s_mul_i32 s24, s28, {4*28}
    s_lshl_b32 s36, s29, 2
    s_add_u32 s36, s36, s32                ; kk
    s_add_u32 s24, s24, s36
    s_lshl_b32 s24, s24, 10
    s_add_u32 s24, s24, {hex(WS_H)}
    """)
    Z1R = ZP
    for tt in range(4): lo(k, BSP[tt], BSP[tt])
    for tt in range(4):
        for ft in range(2):
            for r in range(4): k(f'v_add_f32 v{ACC2+(ft*4+tt)*4+r}, v{ACC2+(ft*4+tt)*4+r}, v{BSP[tt]}')
    for tt in range(4):
        o = 96 + 24 * tt
        its = [(ACC2 + (ft * 4 + tt) * 4 + 2 * p, Z1R + 4 * tt + 2 * ft + p, o + 4 + 4 * (2 * ft + p), o + 2 * ft + p) for ft in range(2) for p in range(2)]
        for a, z, t, d in its: cvt(k, d, a, a + 1)
        for a, z, t, d in its: lo(k, t, z); hi(k, t + 1, z); lo(k, t + 2, d); hi(k, t + 3, d)
        for a, z, t, d in its: pk(k, 'mul', t, t, t + 2)
        for a, z, t, d in its: cvt(k, d, t, t + 1)
        k(f'buffer_store_dwordx4 v[{o}:{o+3}], v2, s[12:15], s24 offen sc1')
        if tt < 3: k(f's_add_u32 s24, s24, {28*1024}')
    G.stamp(12); G.stamp(2, '7')
    srd(k, 16, 26, 27, 2048 * 896)
    HB, AC3, A3 = 32, 144, 160
    HD = int(opt.get('hd', 6))
    NA = int(opt.get('na', 16))
    def p3setup(half):
        k(f"""
        s_lshl_b32 s33, s28, 2
        s_add_u32 s33, s33, s32                ; tt
        s_lshl_b32 s37, s28, 11
        s_add_u32 s37, s37, {hex(WS_FH)}
        s_mul_i32 s34, s33, {28*1024}
        s_add_u32 s34, s34, {hex(WS_H + half * NA * 1024)}
        v_lshrrev_b32 v10, 2, v0
        v_lshrrev_b32 v4, 1, v10
        v_and_b32 v4, 3, v4
        v_lshlrev_b32 v21, 5, v4
        v_and_b32 v13, 3, v0
        v_lshlrev_b32 v13, 3, v13
        v_lshl_add_u32 v13, v10, 7, v13
        s_lshl_b32 s35, s32, 12
        s_add_u32 s35, s35, {7*16384}
        v_add_u32 v14, s35, v2
        v_lshlrev_b32 v19, 6, v0
        """)
        for dt in range(4):
            k(f'v_xor_b32 v{192+dt}, {32*dt}, v21\n v_add_u32 v{192+dt}, v{192+dt}, v13')
            if half: k(f'v_add_u32 v{192+dt}, {NA*32*128}, v{192+dt}')
    def p3gemm(name, NK, hook=None):
        def aread(kk):
            for dt in range(4):
                for hh in range(2):
                    r = A3 + (kk & 1) * 16 + dt * 4 + hh * 2
                    k(f'ds_read_b64_tr_b16 v[{r}:{r+1}], v{192 + dt} offset:{(32 * kk + 16 * hh) * 128}')
        if name:
            k('s_cmp_lg_u32 s3, 0\n s_cbranch_scc1 L_nofh')
            poll(k, name, 'buffer_load_dword v20, v19, s[12:15], s37 offen sc1', [20], lanes='s_mov_b32 exec_lo, 0x0fffffff\n s_mov_b32 exec_hi, 0', nap=int(opt.get('nap', 1)))
            k('L_nofh:'); G.stamp(3, '9')
        k('s_barrier')
        G.stamp(13); G.stamp(6, '7'); G.stamp(9, '9')
        def hload(kk):
            k(f'buffer_load_dwordx4 v[{HB+4*kk}:{HB+4*kk+3}], v2, s[12:15], s34 offen offset:{1024*(kk%4)} {ZF}')
            if kk % 4 == 3: k('s_add_u32 s34, s34, 4096')
        for kk in range(HD): hload(kk)
        aread(0)
        for kk in range(NK):
            if kk < NK - 1: aread(kk + 1)
            k(f's_waitcnt vmcnt({min(HD - 1, NK - 1 - kk)}) lgkmcnt({8 if kk < NK - 1 else 0})')
            if kk in (0, 4, 8): G.stamp(7 + kk // 4, '7')
            for dt in range(4):
                mfma(k, AC3 + 4 * dt, A3 + (kk & 1) * 16 + dt * 4, HB + 4 * kk, '0' if kk == 0 else None)
            if kk + HD < NK: hload(kk + HD)
            if kk == 0 and hook: hook()
    p3setup(0)
    k(f"""
    s_lshl_b32 s36, s36, 6
    v_mov_b32 v12, s36
    {G.st(3, '7')}
    s_waitcnt vmcnt(0)
    {G.st(4, '7')}
    {G.st(2, '9')}
    s_mov_b64 exec, 1
    buffer_store_dword v{TAG}, v12, s[12:15], s37 offen sc1
    s_mov_b64 exec, -1
    s_waitcnt lgkmcnt(0)
    """)
    p3gemm('pfh', NA)
    G.stamp(14); G.stamp(11, '7')
    k(f"""
    s_lshl_b32 s36, s32, 5
    v_xor_b32 v12, s36, v21
    v_add_u32 v12, v12, v13
    v_add_u32 v12, {L_R}, v12
    s_lshl_b32 s36, s32, 7
    s_add_u32 s36, s36, {L_R + 8192}
    v_lshlrev_b32 v11, 3, v8
    v_add_u32 v11, s36, v11
    s_barrier
    {G.st(12, '7')}
    ds_read_b64 v[4:5], v11
    """)
    for dt in range(4): k(f'ds_read_b128 v[{96+4*dt}:{99+4*dt}], v14 offset:{1024*dt}')
    for dt in range(4): k(f'ds_read_b64_tr_b16 v[{32+2*dt}:{33+2*dt}], v12 offset:{2048*dt}')
    k(f"""
    v_mul_u32_u24 v10, 896, v8
    v_lshrrev_b32 v11, 1, v9
    v_lshl_add_u32 v10, v11, 4, v10
    v_and_b32 v11, 1, v9
    v_lshl_add_u32 v10, v11, 5, v10        ; t*896 + (g>>1)*16 + (g&1)*32
    s_mul_i32 s36, s33, {16*896}
    s_lshl_b32 s37, s29, 7
    s_add_u32 s36, s36, s37
    s_waitcnt lgkmcnt(0)
    v_mov_b32 v6, v4
    v_mov_b32 v7, v4
    v_mov_b32 v4, v5
    """)
    for i in range(8): pk(k, 'add', AC3 + 2 * i, AC3 + 2 * i, 96 + 2 * i)
    its = [(AC3 + 4 * dt + 2 * p, 32 + 2 * dt + p, 48 + 4 * (2 * dt + p)) for dt in range(4) for p in range(2)]
    for c, a, t in its: cvt(k, c, c, c + 1)
    for c, a, t in its: lo(k, t, a); hi(k, t + 1, a); lo(k, t + 2, c); hi(k, t + 3, c)
    for c, a, t in its: pk(k, 'mul', t, t, 6); pk(k, 'mul', t + 2, t + 2, 4)
    for c, a, t in its: cvt(k, a, t, t + 1); cvt(k, c, t + 2, t + 3)
    for c, a, t in its: lo(k, t, a); hi(k, t + 1, a); lo(k, t + 2, c); hi(k, t + 3, c)
    for c, a, t in its: pk(k, 'add', t, t, t + 2)
    for c, a, t in its: cvt(k, a, t, t + 1)
    for pr in range(2):
        o = 32 + 4 * pr
        k(f'v_permlane16_swap_b32 v{o}, v{o+2}\n v_permlane16_swap_b32 v{o+1}, v{o+3}')
    for pr in range(2):
        o = 32 + 4 * pr
        k(f'buffer_store_dwordx4 v[{o}:{o+3}], v10, s[16:19], s36 offen offset:{64*pr}')
    k(f"""
    s_lshl_b32 s35, s2, 3
    s_add_u32 s35, s35, s3
    s_cmp_lg_u32 s35, 0
    s_cbranch_scc1 L_A_fin
    s_mov_b32 s35, {hex(WS_EP)}
    v_mov_b32 v1, 0
    s_mov_b64 exec, 1
    buffer_store_dword v{TAG}, v1, s[12:15], s35 offen sc1
    s_mov_b64 exec, -1
L_A_fin:
    """)
    if opt.get('hold'):
        k(f"""
L_hold:
        s_memrealtime s[66:67]
        s_waitcnt lgkmcnt(0)
        s_sub_u32 s66, s66, s64
        s_cmp_lt_u32 s66, {opt['hold']}
        s_cbranch_scc1 L_hold
        """)
    G.stamp(13, '7')
    if opt.get('stamp'): k('s_waitcnt vmcnt(0)')
    G.stamp(15); G.stamp(14, '7')
    G.flush(16, 'A')
    k('s_endpgm')

    k('L_B:')
    common2()
    k(f"""
    s_mul_i32 s39, s32, {KG_WAVE}
    s_add_u32 s39, s39, {L_KG}
    """)
    k(tagcalc)
    G.stamp(1, '2')
    def wb(j, w): return G.st(2 + 2 * j, '2') + (f's_waitcnt vmcnt({w})\n' if w is not None else '') + G.st(3 + 2 * j, '2') + 's_barrier\n'
    k(wb(0, None) + w2stage(2))
    w1setup(18)
    k(f"""
    s_lshl_b32 s41, s31, 1
    v_mul_u32_u24 v7, {KG_ROW}, v0
    v_add_u32 v7, s39, v7
    v_lshrrev_b32 v1, 5, v0
    v_lshrrev_b32 v3, 2, v8
    v_lshl_add_u32 v1, v1, 2, v3
    v_mul_u32_u24 v1, {KG_ROW}, v1
    v_and_b32 v3, 1, v9
    v_lshl_add_u32 v1, v3, 5, v1
    v_and_b32 v3, 3, v0
    v_lshl_add_u32 v1, v3, 3, v1
    v_add_u32 v1, s39, v1
    """)
    k(wb(1, None) + w2stage(3) + w2stage(4))
    k(f"""
    s_and_b32 s35, s28, 7
    s_lshl_b32 s35, s35, 2
    s_add_u32 s35, s35, s32
    s_mul_i32 s42, s35, {14*3584}
    s_lshl_b32 s35, s29, 8
    s_add_u32 s42, s42, s35
    v_min_u32 v16, 27, v0
    v_lshrrev_b32 v17, 1, v16
    v_mul_u32_u24 v17, 3584, v17
    v_and_b32 v16, 1, v16
    v_lshl_add_u32 v16, v16, 7, v17
    v_lshrrev_b32 v156, 2, v8
    v_lshl_add_u32 v156, v9, 3, v156         ; 8g + r
    v_lshrrev_b32 v157, 1, v156
    v_and_b32 v157, 7, v157
    v_and_b32 v158, 3, v0
    v_lshrrev_b32 v159, 1, v158
    s_lshl_b32 s35, s32, 1
    v_add_u32 v159, s35, v159
    v_xor_b32 v157, v157, v159
    v_lshlrev_b32 v157, 4, v157
    v_lshl_add_u32 v157, v156, 7, v157
    v_and_b32 v158, 1, v158
    v_lshl_add_u32 v157, v158, 3, v157
    s_add_u32 s35, s29, 7
    s_sub_u32 s35, s35, s31
    s_cmp_ge_u32 s35, 7
    s_cselect_b32 s63, 7, 0
    s_sub_u32 s35, s35, s63
    s_lshl_b32 s35, s35, 13
    s_add_u32 s35, s35, {L_X}
    v_add_u32 v157, s35, v157                ; hh = 0
    v_xor_b32 v158, 32, v157
    v_add_u32 v158, 512, v158                ; hh = 1
    v_lshlrev_b32 v159, 12, v8
    v_lshl_add_u32 v159, v9, 4, v159
    s_lshl_b32 s36, s29, 2
    s_add_u32 s36, s36, s32
    s_lshl_b32 s36, s36, 16
    s_lshl_b32 s35, s28, 7
    s_add_u32 s36, s36, s35
    s_add_u32 s36, s36, {hex(WS_UT)}
    s_lshl_b32 s37, s29, 5
    s_add_u32 s37, s37, s28
    s_lshl_b32 s37, s37, 2
    s_add_u32 s37, s37, s32
    s_lshl_b32 s37, s37, 2
    s_add_u32 s37, s37, {hex(WS_FU)}
    """)
    da = float(opt.get('kga', 0.06)); db = float(opt.get('kgb', 0.09))
    k('s_waitcnt vmcnt(18)')
    d0 = float(opt.get('kg0', 0.0))
    EV = [(d0, wb(2, 12) + w2stage(5)), (d0 + da, wb(3, 12) + w2stage(6) + f'buffer_load_dword v{PRM+9}, v16, s[16:19], s42 offen'),
          (d0 + 2 * da, wb(4, 13) + w1dma(0, 18) + w1dma(1, 18)),
          (d0 + 2 * da + db, wb(5, 11) + w1dma(2, 18) + w1dma(3, 18)),
          (d0 + 2 * da + 2 * db, wb(6, 9) + w1dma(4, 18) + w1dma(5, 18))]
    t = K('w')
    for hf in range(2):
        t(f'ds_read_b64_tr_b16 v[{160+4*hf}:{161+4*hf}], v157 offset:{4096*hf}\n ds_read_b64_tr_b16 v[{162+4*hf}:{163+4*hf}], v158 offset:{4096*hf}')
    t('s_waitcnt lgkmcnt(0)')
    t('s_barrier\n' + w1dma(6, 18) + w1dma(7, 18))
    for hf in range(2): t(f'buffer_store_dwordx4 v[{160+4*hf}:{163+4*hf}], v159, s[12:15], s36 offen offset:{64*hf} sc1')
    t(G.st(1))
    EV.append((d0 + 2 * da + 3 * db, t.lines))
    DP = 232; DT = PRM + 8
    def kgen(t, c, hook=None):
        if c == 0:
            t(f'v_lshlrev_b32 v{DT}, 16, v{DT}\n v_mul_f32 v{DT}, {f32hex(L2E)}, v{DT}\n v_exp_f32 v{DT}, v{DT}')
            cvt(t, DT, DT, DT); lo(t, DT, DT)
        Z1_, Z8, Z256, Z2_, Z4 = 32, 35, 38, 41, 44
        V, PKD, XA_, XB_ = 128, 48, 56, 58
        p = PRM + 4 * c
        t(f"""
        v_lshlrev_b32 v{p}, 16, v{p}
        v_mul_f32 v{p}, {f32hex(L2E)}, v{p}
        v_exp_f32 v{p}, v{p}
        v_lshlrev_b32 v{p+1}, 16, v{p+1}
        v_lshlrev_b32 v{p+2}, 16, v{p+2}
        v_lshlrev_b32 v{p+3}, 16, v{p+3}
        v_cvt_pk_bf16_f32 v{p}, v{p}, v{p}
        v_mul_f32 v{p+1}, v{p+1}, v{DT}
        v_lshlrev_b32 v{p}, 16, v{p}
        v_mul_f32 v{p+1}, 0.15915494, v{p+1}
        v_mul_f32 v{p}, v{p}, v{DT}
        v_add_f32 v60, v{DT}, v{DT}
        v_mul_f32 v{p}, {f32hex(-L2E)}, v{p}
        v_mul_f32 v{XA_}, v{p+2}, v60
        v_mul_f32 v{XA_+1}, v{p+3}, v60
        """)
        for (d, e) in ((Z8, 8), (Z1_, 1), (Z256, 256)):
            t(f"""
            v_mul_f32 v60, {f32hex(float(e))}, v{p}
            v_mul_f32 v61, {f32hex(float(e))}, v{p+1}
            v_exp_f32 v60, v60
            v_fract_f32 v61, v61
            v_cos_f32 v{d}, v61
            v_sin_f32 v{d+1}, v61
            v_mul_f32 v{d}, v{d}, v60
            v_mul_f32 v{d+1}, v{d+1}, v60
            v_sub_f32 v{d+2}, 0, v{d+1}
            """)
        def put(q, vals, neg):
            for i in range(4):
                cvt(t, PKD + i, vals[2 * i], vals[2 * i + 1])
            t(f'ds_write_b128 v7, v[{PKD}:{PKD+3}] offset:{16*q}')
            n = '-' if neg else ''
            for i in range(4):
                t(f'v_cvt_pk_bf16_f32 v{PKD+4+i}, {n}v{vals[2*i]+1}, {n}v{vals[2*i+1]+1}')
            t(f'ds_write_b128 v7, v[{PKD+4}:{PKD+7}] offset:{64 + 16*q}')
        vs = [V + 2 * i for i in range(8)]
        t(f'v_mov_b32 v{V}, 1.0\n v_mov_b32 v{V+1}, 0')
        for q in range(4):
            for i in range(8):
                if q == 0 and i == 0: continue
                if q == 0 and i == 1: t(f'v_mov_b32 v{vs[1]}, v{Z8}\n v_mov_b32 v{vs[1]+1}, v{Z8+1}')
                else: cmul(t, vs[i], vs[i - 1], Z8)
            if q == 0 and hook: hook(t)
            put(q, vs, True)
        cmul(t, Z2_, Z1_, Z1_); t(f'v_sub_f32 v{Z2_+2}, 0, v{Z2_+1}')
        cmul(t, Z4, Z2_, Z2_); t(f'v_sub_f32 v{Z4+2}, 0, v{Z4+1}')
        t('s_waitcnt lgkmcnt(0)')
        FB, FA = 64, 96
        def frags(F):
            for ks in range(8):
                t(f'ds_read_b64_tr_b16 v[{F+4*ks}:{F+4*ks+1}], v1 offset:{8*KG_ROW*ks}\n ds_read_b64_tr_b16 v[{F+4*ks+2}:{F+4*ks+3}], v1 offset:{8*KG_ROW*ks + 64}')
        frags(FB)
        cmul(t, vs[1], XA_, Z1_)
        for i in range(2, 8): cmul(t, vs[i], vs[i - 1], Z1_)
        t('s_waitcnt lgkmcnt(0)')
        put(0, [XA_] + vs[1:], False)
        cmul(t, XB_, XA_, Z256)
        cmul(t, vs[1], XB_, Z2_)
        for i in range(2, 5): cmul(t, vs[i], vs[i - 1], Z2_)
        put(1, [XB_, vs[1], vs[2], vs[2], vs[2], vs[3], vs[4], vs[4]], False)
        cmul(t, XA_, XB_, Z256); cmul(t, vs[0], XA_, Z4); cmul(t, vs[1], vs[0], Z4)
        cmul(t, XB_, XA_, Z256); cmul(t, vs[2], XB_, Z4); cmul(t, vs[3], vs[2], Z4)
        put(2, [XA_, vs[0], XB_, vs[2], vs[0], vs[1], vs[2], vs[3]], False)
        cmul(t, vs[0], XB_, Z256)
        for i in range(1, 4): cmul(t, vs[i], vs[i - 1], Z256)
        for i in range(4): cmul(t, vs[4 + i], vs[i], Z8)
        put(3, vs, False)
        t('s_waitcnt lgkmcnt(0)')
        frags(FA)
        for ks in range(8):
            t(f's_waitcnt lgkmcnt({14-2*ks})')
            cin = '0' if (ks == 0 and c == 0) else f'v[{DP}:{DP+15}]'
            t(f'v_mfma_f32_32x32x16_bf16 v[{DP}:{DP+15}], v[{FA+4*ks}:{FA+4*ks+3}], v[{FB+4*ks}:{FB+4*ks+3}], {cin}')
    EV[-1] = (EV[-1][0], '\n'.join(EV[-1][1]))
    t = K('w'); t('s_waitcnt vmcnt(2)'); post(t, 1)
    t2 = f's_waitcnt vmcnt(0)\n v_mov_b32 v10, 0\n s_mov_b64 exec, 1\n buffer_store_dword v{TAG}, v10, s[12:15], s37 offen sc1\n s_mov_b64 exec, -1'
    f7 = EV[-1][0]
    B_, B2, A_, Wt, UR, AC, P = 32, 80, 112, 144, 168, 176, 192
    fuload = 'buffer_load_dwordx2 v[176:177], v5, s[12:15], s36 offen sc1'
    t3 = f"""
    s_lshr_b32 s36, s20, 6
    s_lshl_b32 s36, s36, 9
    s_add_u32 s36, s36, {hex(WS_FU)}
    v_lshlrev_b32 v5, 3, v0
    {fuload}
    s_lshl_b32 s23, s20, 12                ; ch*4096
    s_add_u32 s44, s12, {hex(WS_UT)}
    s_addc_u32 s45, s13, 0
    s_add_u32 s44, s44, s23
    s_addc_u32 s45, s45, 0
    s_mov_b32 s46, 4096
    s_mov_b32 s47, 0x20000
    """
    for q in range(5):
        t3 += f'v_add_u32 v{180+q}, {64*q}, v0\n v_mul_u32_u24 v6, 3856, v{180+q}\n v_lshrrev_b32 v6, 16, v6\n v_sub_u32 v{180+q}, v{180+q}, v6\n v_lshlrev_b32 v{180+q}, 4, v{180+q}\n v_add_u32 v{180+q}, -16, v{180+q}\n'
    t3 += f"""
    v_mul_u32_u24 v6, 272, v8
    s_lshl_b32 s35, s22, 3
    s_add_u32 s35, s35, s39
    v_lshl_add_u32 v185, v9, 4, v6
    v_add_u32 v185, s35, v185              ; a*272 + g*16 + 8hf
    v_lshl_add_u32 v186, v9, 6, v6
    v_add_u32 v186, s35, v186              ; a*272 + g*64 + 8hf
    """
    k.lines += weave(sub(kgen, 0), EV + [(f7 + float(opt.get('kgp', 0.06)), '\n'.join(t.lines)), (min(f7 + float(opt.get('kgu', 0.2)), 0.9), t2), (0.93, t3)])
    G.stamp(2)
    if opt.get('kprio'): k(f"s_setprio {opt['kprio']}")
    poll(k, 'pfu', fuload, [176, 177], nap=2, first_issued=True)
    for q in range(5):
        k(f's_add_u32 m0, s39, {q*1024}')
        if q == 4: k('s_mov_b64 exec, 0xffff')
        k(f'buffer_load_dwordx4 v{180+q}, s[44:47], 0 offen sc1 lds')
    k('s_mov_b64 exec, -1')
    G.stamp(3)
    def uhook(t):
        t('s_waitcnt vmcnt(0)')
        for kk in range(4):
            for m in range(3): t(f'ds_read_b64 v[{Wt+6*kk+2*m}:{Wt+6*kk+2*m+1}], v185 offset:{64*kk + 8*m}')
        t('s_waitcnt lgkmcnt(8)')
        for i in range(4): t(f'ds_read_b64 v[{UR+2*i}:{UR+2*i+1}], v186 offset:{16 + 16*i}')
        t('s_waitcnt lgkmcnt(0)')
    kgen(k, 1, uhook)
    G.stamp(5)
    k(f"""
    s_mul_i32 s38, s21, 4352
    s_xor_b32 s35, s3, 1
    s_lshl_b32 s35, s35, 2
    v_add_u32 v21, s35, v22
    s_cmp_eq_u32 s22, 0
    s_cbranch_scc1 L_B_fin
    v_add_u32 v1, s39, v2
    """)
    for q in range(4): k(f'ds_write_b128 v1, v[{DP+4*q}:{DP+4*q+3}] offset:{1024*q}')
    k('s_waitcnt lgkmcnt(0)'); post(k, 100)
    k('s_branch L_B_join')
    k(f'L_B_fin:\n s_add_u32 s35, s39, {KG_WAVE}\n v_add_u32 v1, s35, v2')
    waitfor(k, 'wbp', 0, 1, 100, 32, base=21)
    for q in range(4): k(f'ds_read_b128 v[{80+4*q}:{83+4*q}], v1 offset:{1024*q}')
    k(f"""
    v_and_b32 v5, 31, v0
    v_lshlrev_b32 v5, 4, v5
    v_lshrrev_b32 v7, 5, v0
    v_xor_b32 v6, 1, v7
    v_lshl_add_u32 v5, v6, 3, v5
    s_add_u32 s35, s38, {L_KI + 256}
    v_add_u32 v5, s35, v5                  ; KI + j*16 + 8*(1-h)
    v_lshlrev_b32 v6, 2, v0
    s_add_u32 s35, s38, {L_KI}
    v_add_u32 v6, s35, v6
    s_waitcnt lgkmcnt(0)
    """)
    post(k, 100)
    for i in range(8): pks(k, 'add', 64 + 2 * i, DP + 2 * i, 80 + 2 * i)
    k('v_cmp_eq_u32 vcc, 1, v7\n v_cndmask_b32 v80, v72, v73, vcc\n v_cndmask_b32 v81, v74, v75, vcc')
    k('v_and_b32 v7, 1, v0\n v_cmp_eq_u32 vcc, 1, v7')
    for i in range(4): k(f'v_mov_b32 v{84+i}, v{76+i}\n v_mov_b32 v{88+i}, v{76+i}')
    for i in range(4): k(f'v_permlane32_swap_b32 v{84+i}, v{88+i}')
    for i in range(4): k(f'v_cndmask_b32 v{84+i}, v{84+i}, v{76+i}, vcc')
    blks = [(67, 66, 65, 64), (70, 69, 68, 68), (73, 80, 72, 72), (75, 81, 74, 74)] + [(76 + i, 76 + i, 76 + i, 84 + i) for i in range(4)]
    for b, (a0, a1, a2, a3) in enumerate(blks): cvt(k, 96 + 2 * b, a0, a1); cvt(k, 97 + 2 * b, a2, a3)
    waitfor(k, 'wbb0', 16, 4, 100, 32)
    k('v_mov_b32 v3, 0\n ds_write_b32 v6, v3')
    for b in range(8): k(f'ds_write_b64 v5, v[{96+2*b}:{97+2*b}] offset:{512*b}')
    k('s_waitcnt lgkmcnt(0)\nL_B_join:')
    post(k, 101)
    srd(k, 8, 48, 49, 0x800000)
    k(f"""
    v_lshrrev_b32 v10, 3, v0
    v_lshl_add_u32 v10, v10, 12, v20
    v_add_u32 v11, 128, v10
    v_xor_b32 v12, 64, v10
    v_add_u32 v12, 0x8000, v12
    v_add_u32 v13, 128, v12
    s_lshl_b32 s42, s28, 2
    s_add_u32 s42, s42, s32
    s_lshl_b32 s42, s42, 16
    s_add_u32 s42, s42, {7*256}
    s_lshl_b32 s43, s32, 11
    s_add_u32 s43, s43, {PI[7]*16384}
    s_mov_b32 s40, {hex(((PI_WORD << 4) | PI[7]) & 0xffffffff)}
    s_mov_b32 s41, {PI[7]}
    s_mov_b32 s44, 7
    s_mov_b32 s46, 9
    v_lshrrev_b32 v3, 3, v0
    v_and_b32 v16, 6, v3
    v_and_b32 v17, 7, v0
    v_xor_b32 v16, v16, v17
    v_lshlrev_b32 v16, 4, v16
    v_lshl_add_u32 v17, v3, 12, v16
    v_mul_u32_u24 v3, 896, v3
    v_add_u32 v16, v16, v3
    s_lshl_b32 s35, s29, 7
    s_mul_i32 s37, s32, {8*896}
    s_add_u32 s37, s37, s35
    s_getpc_b64 s[50:51]
L_pc2:
    s_add_u32 s50, s50, L_stage-L_pc2
    s_addc_u32 s51, s51, 0
    """)
    srd(k, 16, 52, 53, 896 * 896)
    LC = 216
    ldread = f'ds_read_b128 v[{LC}:{LC+3}], v22'
    def ldstep(name):
        k(f"""
        v_min3_u32 v{LC}, v{LC}, v{LC+1}, v{LC+2}
        v_min_u32 v{LC}, v{LC}, v{LC+3}
        v_cmp_gt_u32 vcc, s46, v{LC}
        s_cbranch_vccnz L_{name}_no
        s_swappc_b64 s[52:53], s[50:51]
L_{name}_no:
        """)
    k(f"""
    v_sub_u32 v5, v8, v9
    v_lshlrev_b32 v5, 4, v5
    s_add_u32 s35, s38, {L_KI + 64 + 15*256}
    v_add_u32 v5, s35, v5
    v_cmp_ne_u32 vcc, 8, v8
    v_cndmask_b32 v15, 0, -1, vcc
    v_cmp_gt_u32 vcc, 8, v8
    """)
    G.stamp(6)
    def BF(kk, rr): return Wt + 6 * kk + 2 if rr == 3 else B_ + (kk * 3 + rr) * 4
    for kk in range(4):
        w = Wt + 6 * kk
        for j in range(4):
            k(f'v_alignbit_b32 v{BF(kk,0)+j}, v{w+j+1}, v{w+j}, 16\n v_mov_b32 v{BF(kk,1)+j}, v{w+j+1}\n v_alignbit_b32 v{BF(kk,2)+j}, v{w+j+2}, v{w+j+1}, 16')
    for kk in range(4):
        for p in range(2):
            for j in range(4):
                k(f'v_cndmask_b32_dpp v{B2 + (kk*2+p)*4 + j}, v{BF(kk,2*p+1)+j}, v{BF(kk,2*p)+j}, vcc row_shr:8 row_mask:0xf bank_mask:0xf bound_ctrl:1')
    for j in range(8): k(f'v_mov_b32 v{P+j}, 0')
    def cread(buf):
        for kk in range(4):
            r = A_ + buf * 16 + kk * 4
            k(f'ds_read_b128 v[{r}:{r+3}], v5 offset:{192 - 64*kk}')
        k('v_add_u32 v5, -256, v5')
    waitfor(k, 'wbq', 0, 1, 101, LC, base=21)
    cread(0)
    G.stamp(7)
    if opt.get('kprio'): k('s_setprio 0')
    if opt.get('bprio'): k(f"s_setprio {opt['bprio']}")
    shp = lambda r: f'v_and_b32_dpp v{r}, v{r}, v15 row_shr:1 row_mask:0xf bank_mask:0xf bound_ctrl:1'
    shf = lambda r: f'v_mov_b32_dpp v{r}, v{r} row_shr:1 row_mask:0xf bank_mask:0xf bound_ctrl:1'
    k('s_mov_b32 s7, 0' + ('\n s_branch L_B_last' if opt.get('noconv') else '') + '\nL_B_pk:')
    for half in range(2):
        if half == 0: k(ldread)
        cread(1 - half)
        for j in range(4): k(shp(P + j))
        k('s_waitcnt lgkmcnt(4)')
        if half == 0: ldstep('ldp')
        for kk in range(4): mfma(k, P, A_ + half * 16 + kk * 4, B2 + (kk * 2) * 4); k(shp(P + 4 + kk))
        for kk in range(4): mfma(k, P + 4, A_ + half * 16 + kk * 4, B2 + (kk * 2 + 1) * 4)
    k('s_add_u32 s7, s7, 1\n s_cmp_lt_u32 s7, 4\n s_cbranch_scc1 L_B_pk')
    for j in range(4): k(f'v_mov_b32_dpp v{AC + j}, v{P+j} row_shr:1 row_mask:0xf bank_mask:0xf bound_ctrl:1')
    for j in range(4): k(f'v_mov_b32_dpp v{AC + 4 + j}, v{P+j} row_shl:8 row_mask:0xf bank_mask:0xf bound_ctrl:1')
    for j in range(4): k(f'v_mov_b32 v{AC + 8 + j}, v{P+4+j}')
    for j in range(4): k(f'v_mov_b32_dpp v{AC + 12 + j}, v{P+4+j} row_shl:8 row_mask:0xf bank_mask:0xf bound_ctrl:1')
    k('s_mov_b32 s7, 0\nL_B_fl:')
    for half in range(2):
        k(ldread)
        cread(1 - half)
        k('s_waitcnt lgkmcnt(4)')
        ldstep(f'ldf{half}')
        for rr in range(4):
            if rr == 3 and half == 1: k('s_add_u32 s7, s7, 1\n s_cmp_eq_u32 s7, 4\n s_cbranch_scc1 L_B_last')
            for kk in range(4):
                mfma(k, AC + 4 * rr, A_ + half * 16 + kk * 4, BF(kk, rr))
                k(shf(AC + 4 * ((rr + 1) % 4) + kk))
    k('s_branch L_B_fl\nL_B_last:\n s_nop 1')
    for kk in range(4): mfma(k, AC + 12, A_ + 16 + kk * 4, BF(kk, 3))
    G.stamp(8)
    if opt.get('bprio'): k('s_setprio 0')
    k(f"""
    s_lshl_b32 s35, s22, 3
    s_add_u32 s35, s35, s38
    s_add_u32 s35, s35, {L_U + 16}
    v_mul_u32_u24 v6, 272, v8
    v_lshl_add_u32 v7, v9, 6, v6
    v_add_u32 v7, s35, v7
    s_lshl_b32 s35, s21, 4
    s_lshr_b32 s30, s30, s35
    s_lshl_b32 s30, s30, 16
    v_mov_b32 v18, s30
    v_mov_b32 v19, s30
    """)
    its = [(UR + 2 * i + p, AC + 8 * p + i, AC + 8 * p + 4 + i, 48 + 4 * (2 * i + p), 40 + 2 * i + p) for i in range(4) for p in range(2)]
    for u, y0, y1, t, y in its: cvt(k, y, y0, y1); lo(k, t, u); hi(k, t + 1, u)
    for u, y0, y1, t, y in its: pks(k, 'mul', t, t, 18)
    for u, y0, y1, t, y in its: cvt(k, u, t, t + 1); lo(k, t + 2, y); hi(k, t + 3, y)
    for u, y0, y1, t, y in its: lo(k, t, u); hi(k, t + 1, u)
    for u, y0, y1, t, y in its: pks(k, 'add', t, t, t + 2)
    for u, y0, y1, t, y in its: cvt(k, u, t, t + 1)
    for i in range(4): k(f'ds_write_b64 v7, v[{UR+2*i}:{UR+2*i+1}] offset:{16*i}')
    k(f"""
    s_lshl_b32 s35, s22, 3
    v_add_u32 v7, s35, v9
    v_mul_u32_u24 v7, 272, v7
    v_lshl_add_u32 v7, v8, 4, v7
    s_add_u32 s35, s38, {L_U + 16}
    v_add_u32 v7, s35, v7
    s_lshl_b32 s36, s22, 11
    s_add_u32 s36, s36, s23
    s_add_u32 s36, s36, {hex(WS_AT)}
    s_waitcnt lgkmcnt(0)
    """)
    post(k, 103)
    k(ldread + '\n s_waitcnt lgkmcnt(0)'); ldstep('lde')
    waitfor(k, 'wbr', 0, 1, 103, 32, base=21)
    k(f"""
    ds_read_b128 v[32:35], v7
    ds_read_b128 v[36:39], v7 offset:{4*272}
    s_waitcnt lgkmcnt(0)
    buffer_store_dwordx4 v[32:35], v2, s[12:15], s36 offen sc1
    buffer_store_dwordx4 v[36:39], v2, s[12:15], s36 offen offset:1024 sc1
    """)
    k(f"""
    s_lshl_b32 s30, s20, 3
    s_lshl_b32 s35, s22, 2
    s_add_u32 s30, s30, s35
    s_add_u32 s30, s30, {hex(WS_FA)}
    """)
    G.stamp(9)
    G.stamp(1, '7')
    faload = 'buffer_load_dwordx2 v[96:97], v1, s[12:15], s39 offen sc1\n buffer_load_dwordx4 v[100:103], v2, s[12:15], s5 offen sc1'
    atile = f"""
    s_lshl_b32 s36, s29, 18
    s_lshl_b32 s35, s28, 7
    s_add_u32 s36, s36, s35
    s_add_u32 s36, s36, {hex(WS_AT)}
    """
    for q in range(8): atile += f's_mov_b32 m0, {L_R + 1024*q}\n s_nop 0\n buffer_load_dwordx4 v17, s[12:15], s36 offen sc1 lds\n s_add_u32 s36, s36, 0x8000\n'
    atile += f"""
    s_lshl_b32 s36, s28, 9
    s_add_u32 s36, s36, {hex(WS_G2)}
    s_mov_b32 m0, {L_R + 8192}
    s_mov_b32 exec_hi, 0
    buffer_load_dwordx4 v2, s[12:15], s36 offen sc1 lds
    s_mov_b32 exec_hi, -1
    s_mov_b32 s7, 1
    """
    k(f"""
    s_lshl_b32 s39, s29, 9
    s_add_u32 s39, s39, {hex(WS_FA)}
    s_mov_b32 s5, {hex(WS_FG)}
    v_lshlrev_b32 v1, 3, v0
    v_mov_b32 v3, 0
    s_min_u32 s7, s32, 1
    s_add_u32 s47, s44, 2
    s_mov_b32 s62, {POLL_LIMIT*16}
    s_cmp_eq_u32 s44, 23
    s_cbranch_scc1 L_B_ldd
L_B_ld:
    {ldread}
    s_waitcnt lgkmcnt(0)
    """)
    ldstep('ldl')
    k(f"""
    s_cmp_lg_u32 s44, s47
    s_cbranch_scc1 L_B_nf
    s_mov_b32 s47, 0
    s_mov_b64 exec, 1
    buffer_store_dword v{TAG}, v3, s[12:15], s30 offen sc1
    s_mov_b64 exec, -1
L_B_nf:
    s_cmp_eq_u32 s44, 23
    s_cbranch_scc1 L_B_ldd
    s_sub_u32 s62, s62, 1
    s_cbranch_scc0 L_B_ld
L_B_ldd:
    """)
    G.stamp(4, '7')
    p3setup(1)
    k(f"""
    s_setprio 1
    s_waitcnt vmcnt(0)
    s_cmp_eq_u32 s47, 0
    s_cbranch_scc1 L_B_fd
    s_mov_b64 exec, 1
    buffer_store_dword v{TAG}, v3, s[12:15], s30 offen sc1
    s_mov_b64 exec, -1
L_B_fd:
    s_cmp_eq_u32 s7, 1
    s_cbranch_scc1 L_B_nl
    {faload}
L_B_nl:
    """)
    G.stamp(10); G.stamp(2, '7'); G.stamp(8, '9')
    def facheck():
        k(f's_cmp_eq_u32 s7, 1\n s_cbranch_scc1 L_B_na\n v_cmp_ne_u32 vcc, v{TAG}, v96')
        for r in (97, 100, 101, 102, 103): k(f'v_cmp_ne_u32 s[54:55], v{TAG}, v{r}\n s_or_b64 vcc, vcc, s[54:55]')
        k('s_cbranch_vccnz L_B_na' + atile + 'L_B_na:')
    p3gemm(None, 28 - NA, facheck)
    for dt in range(4): k(f'ds_write_b128 v14, v[{AC3+4*dt}:{AC3+4*dt+3}] offset:{1024*dt}')
    k('s_cmp_eq_u32 s7, 1\n s_cbranch_scc1 L_B_late1')
    poll(k, 'pfa', faload, [96, 97, 100, 101, 102, 103], nap=2)
    k(atile + 'L_B_late1:\n s_waitcnt vmcnt(0) lgkmcnt(0)')
    G.stamp(11); G.stamp(11, '7')
    k('s_barrier')
    G.flush(16)
    k('s_endpgm')
    k('L_stage:\n s_cmp_ge_u32 s44, 16\n s_cbranch_scc1 L_st_wo')
    for j in range(4): k(spdma(j, dyn=True))
    k(f"""
    s_branch L_st_po
L_st_wo:
    s_lshl_b32 s6, s44, 2
    s_lshr_b32 s6, {hex(PI_WORD)}, s6
    s_and_b32 s6, s6, 15
    s_mul_i32 s35, s6, {128*896}
    s_add_u32 s35, s35, s37
    s_lshl_b32 s6, s6, 4
    s_add_u32 s6, s6, s32
    s_lshl_b32 s6, s6, 10
    """)
    for q in range(4):
        k(f's_add_u32 m0, s6, {4096*q}\n s_nop 0\n buffer_load_dwordx4 v16, s[16:19], s35 offen lds' + (f'\n s_add_u32 s35, s35, {32*896}' if q < 3 else ''))
    k(f"""
L_st_po:
    s_sub_u32 s35, s44, 2
    s_min_u32 s35, s35, 15
    s_max_u32 s35, s35, 6
    v_mov_b32 v23, s35
    s_add_u32 s44, s44, 1
    s_add_u32 s46, s44, 3
    s_cmp_eq_u32 s44, 23
    s_cselect_b32 s46, -1, s46
    s_waitcnt vmcnt(8)
    ds_write_b32 v29, v23 offset:16
    """)
    if opt.get('stamp') == '9':
        for n in range(7): k(f's_cmp_lg_u32 s44, {17+n}\n s_cbranch_scc1 L_t9_{n}\n s_memrealtime s[{66+2*n}:{67+2*n}]\nL_t9_{n}:')
    k('s_setpc_b64 s[52:53]')

    k('L_helper:')
    k(f"""
    s_getpc_b64 s[36:37]
L_pc:
    s_sub_u32 s36, s36, L_pc-{NAME}
    s_subb_u32 s37, s37, 0
    s_lshl_b32 s35, s3, 13
    v_lshlrev_b32 v10, 7, v0
    v_add_u32 v10, s35, v10
    v_min_u32 v10, L_end-{NAME}, v10
    global_load_dword v29, v10, s[36:37]
    v_min_u32 v1, 55, v0
    v_lshlrev_b32 v10, 4, v1
    global_load_dwordx4 v[24:27], v10, s[54:55]
    v_lshlrev_b32 v5, 12, v0
    s_lshl_b32 s35, s28, 18
    s_lshl_b32 s22, s3, 7
    s_add_u32 s35, s35, s22
    v_add_u32 v5, s35, v5
    s_and_b32 s35, s3, 1
    s_cmp_eq_u32 s35, 1
    s_cbranch_scc0 L_H_even
    v_mov_b32 v6, v7
L_H_even:
    s_lshl_b32 s20, s28, 3
    s_add_u32 s20, s20, s3
    s_mul_i32 s20, s20, {8*896}
    s_lshl_b32 s21, s3, 10
    v_lshrrev_b32 v10, 3, v1
    v_lshlrev_b32 v10, 13, v10
    v_and_b32 v1, 7, v1
    v_lshl_add_u32 v10, v1, 4, v10
    s_lshl_b32 s23, s28, 3
    s_add_u32 s23, s23, s3
    """)
    for p in range(7):
        k(f's_add_u32 m0, s21, {8192*p}\n buffer_load_dwordx4 v6, s[8:11], s20 offen lds\n s_add_u32 s20, s20, 128')
    k('s_waitcnt vmcnt(0)')
    G.stamp(1)
    for r in range(4): k(f'global_load_dword v29, v5, s[48:49] offset:{1024*r}')
    k(tagcalc + '\n s_barrier')
    K0 = int(opt.get('zk0', 6))
    k(f"""
    s_and_b32 s35, s2, 1
    s_mul_i32 s35, s35, 3
    s_add_u32 s35, s35, s32
    s_lshl_b32 s36, s35, 11
    s_add_u32 s36, s36, {hex(WS_FZ)}
    s_and_b32 s37, s28, 3
    s_lshl_b32 s37, s37, 1
    s_lshr_b32 s38, s3, 2
    s_add_u32 s37, s37, s38
    s_add_u32 s37, s37, {K0}
    s_lshl_b32 s37, s37, 13
    s_lshl_b32 s35, s35, 19
    s_add_u32 s37, s37, s35
    s_add_u32 s38, s35, {64*8192}
    v_lshlrev_b32 v1, 6, v0
    v_lshlrev_b32 v5, 7, v0
    """)
    if opt.get('zpf'):
        k('s_cmp_ge_u32 s3, 4\n s_cbranch_scc1 L_H_nz')
        poll(k, 'hfz', 'buffer_load_dwordx4 v[32:35], v1, s[12:15], s36 offen sc1', [32, 33, 34, 35], lanes='s_mov_b32 exec_hi, 0', nap=int(opt.get('znap', 8)))
        k('L_H_nz:\n s_barrier')
        G.stamp(2)
        k(f"""
L_H_z:
        buffer_load_dword v29, v5, s[12:15], s37 offen sc1
        s_add_u32 s37, s37, {8*8192}
        s_cmp_lt_u32 s37, s38
        s_cbranch_scc1 L_H_z
        """)
    for i in range(8):
        k(f"""
        s_lshl_b32 s35, s3, 2
        s_add_u32 s35, s35, {i >> 1}
        s_and_b32 s35, s35, 7
        s_lshl_b32 s35, s35, 4
        v_xor_b32 v1, s35, v10
        v_add_u32 v1, s21, v1
        ds_read_b128 v[{64+4*i}:{67+4*i}], v1 offset:{128*i}
        """)
    for j in range(4): lo(k, 16 + 2 * j, 24 + j); hi(k, 17 + 2 * j, 24 + j)
    k('v_cmp_gt_u32 vcc, 56, v0\n s_waitcnt lgkmcnt(0)')
    for i in range(8):
        t = 96 + 8 * i
        for j in range(4): lo(k, t + 2 * j, 64 + 4 * i + j); hi(k, t + 2 * j + 1, 64 + 4 * i + j)
        for j in range(4): pk(k, 'mul', t + 2 * j, t + 2 * j, 16 + 2 * j)
        for j in range(4): cvt(k, 64 + 4 * i + j, t + 2 * j, t + 2 * j + 1)
        for j in range(4): lo(k, t + 2 * j, 64 + 4 * i + j); hi(k, t + 2 * j + 1, 64 + 4 * i + j)
        pk(k, 'add', t, t, t + 2); pk(k, 'add', t + 4, t + 4, t + 6); pk(k, 'add', t, t, t + 4)
        k(f'v_add_f32 v{t}, v{t}, v{t+1}\n v_cndmask_b32 v{32+i}, 0, v{t}, vcc')
    rowsum16(k, list(range(32, 40))); xsum4(k, list(range(32, 40)), 40)
    for i in range(1, 8): k(f'v_cmp_eq_u32 vcc, {i}, v0\n v_cndmask_b32 v32, v32, v{32+i}, vcc')
    cvt(k, 32, 32, 32); lo(k, 32, 32)
    k(f'v_mul_f32 v32, {f32hex(-L2E)}, v32\n v_exp_f32 v32, v32\n v_add_f32 v32, 1.0, v32\n v_rcp_f32 v32, v32')
    cvt(k, 32, 32, 32); lo(k, 32, 32)
    k('v_sub_f32 v33, 1.0, v32')
    cvt(k, 33, 33, 33); lo(k, 33, 33)
    k(f"""
    s_lshl_b32 s36, s23, 6
    s_add_u32 s36, s36, {hex(WS_G2)}
    s_lshl_b32 s35, s23, 2
    s_add_u32 s35, s35, {hex(WS_FG)}
    v_lshlrev_b32 v1, 3, v0
    s_mov_b64 exec, 0xff
    buffer_store_dwordx2 v[32:33], v1, s[12:15], s36 offen sc1
    s_waitcnt vmcnt(0)
    s_mov_b64 exec, 1
    buffer_store_dword v{TAG}, v1, s[12:15], s35 offen sc1
    s_mov_b64 exec, -1
    s_and_b32 s35, s28, 3
    s_lshl_b32 s35, s35, 3
    s_add_u32 s35, s35, s3
    s_mul_i32 s35, s35, {28*896}
    s_and_b32 s36, s2, 1
    s_mul_i32 s36, s36, 384
    s_add_u32 s35, s35, s36
    v_min_u32 v5, 55, v0
    v_lshrrev_b32 v1, 2, v5
    v_mul_u32_u24 v1, 896, v1
    v_and_b32 v5, 3, v5
    v_lshl_add_u32 v5, v5, 7, v1
    v_add_u32 v5, s35, v5
    global_load_dword v29, v5, s[52:53]
    v_add_u32 v5, {14*896}, v5
    global_load_dword v29, v5, s[52:53]
    """)
    if opt.get('stamp'): k('s_waitcnt vmcnt(0)')
    G.stamp(3)
    G.flush(4)
    k('L_end:\n s_endpgm')
    return k

if __name__ == '__main__':
    opt = dict(a.split('=') if '=' in a else (a, 1) for a in sys.argv[2:])
    k = gen(opt)
    v, s = k.maxreg()
    ref = open('gated_mix__ssm_conv_s4d__mixer_gmlp__prompt.s.ref').read().split('\n')
    hdr = [l for l in ref if l.startswith(';') and '@launch' not in l and 'Override launch' not in l and 'grid=ceil' not in l]
    txt = '\n'.join(hdr) + (f'\n; @launch kernel={NAME} grid=(256,1,1) block=(512,1,1) lds={LDS}\n' if opt.get('list') else f'\n; @launch grid=(256,1,1) block=(512,1,1) lds={LDS}\n')
    txt += '.amdgcn_target "amdgcn-amd-amdhsa--gfx950"\n.text\n' + k.text(align=(opt.get('align', '1') == '1')) + '.section .rodata,"a"\n' + desc(k.name, v, s)
    open(sys.argv[1], 'w').write(txt)
    print('vgpr', v, 'sgpr', s, 'lines', len(k.lines))
```

```python
import sys, struct
from asmlib import *

NAME = 'gated_mix__ssm_conv_s4d__mixer_gmlp__prompt_kernel'
WS_Z2 = 0x000000
WS_H  = 0x380000
WS_UT = 0x700000
WS_AT = 0x8C0000
WS_G2 = 0xA80000
WS_ST = 0xA90000
WS_FZ = 0xAD0000
WS_FH = 0xAD4000
WS_FA = 0xAE4000
WS_FU = 0xAE5000
WS_FG = 0xAE5E00
WS_FG = 0xAE7000
WS_EP = 0xAE6000
WS_END = 0xAF0000
SZ_Z = 3670016
STAMP_BASE = 0x2000000
L_X = 65536
L_KG = 122880
KG_ROW = 144
KG_WAVE = 64 * KG_ROW
L_U = 131072
L_KI = L_U + 2 * 4352
L_R = L_KI + 2 * 4352
L_Z1 = L_U
L_CNT = 163840 - 48
LDS = 163840
L2E = 1.4426950408889634
PI = [4, 5, 2, 3, 6, 0, 1, 7]
PI_WORD = sum(v << (4 * i) for i, v in enumerate(PI))
TAG = 28
POLL_LIMIT = 1 << 16

def f32hex(x): return hex(struct.unpack('<I', struct.pack('<f', x))[0])

def srd(k, d, lo, hi, size, add=0):
    if add: k(f's_add_u32 s{d}, s{lo}, {hex(add)}\n s_addc_u32 s{d+1}, s{hi}, 0')
    else: k(f's_mov_b32 s{d}, s{lo}\n s_mov_b32 s{d+1}, s{hi}')
    k(f's_mov_b32 s{d+2}, {hex(size)}\n s_mov_b32 s{d+3}, 0x20000')

class Gen:
    def __init__(self, opt):
        self.opt = opt
        self.k = K(NAME)
    def st(self, idx, grp='1'):
        if str(self.opt.get('stamp')) == grp or (idx == 0 and self.opt.get('stamp')): return f's_memrealtime s[{64+2*idx}:{65+2*idx}]\n'
        return ''
    def stamp(self, idx, grp='1'):
        self.k(self.st(idx, grp))
        if grp == '1' and str(self.opt.get('stamp')) == '6' and idx in self.CL:
            j = self.CL.index(idx)
            self.k(f's_memrealtime s[{66+4*j}:{67+4*j}]\n s_memtime s[{68+4*j}:{69+4*j}]')
    CL = [1, 2, 3, 4, 10, 11, 14]
    def flush(self, n, role=''):
        k = self.k
        if not self.opt.get('stamp'): return
        if self.opt.get('dbg'):
            if role != 'A': return
            k('s_load_dwordx2 s[56:57], s[0:1], 112\n s_waitcnt lgkmcnt(0)\n s_mov_b32 s58, 256\n s_mov_b32 s59, 0x20000\n s_mov_b64 exec, 1\n v_mov_b32 v1, 0')
            k('s_not_b32 s60, s64\n v_mov_b32 v2, s60\n buffer_atomic_umax v2, v1, s[56:59], 0 offen')
            for i in range(1, 16):
                k(f'v_mov_b32 v2, s{64+2*i}\n buffer_atomic_umax v2, v1, s[56:59], 0 offen offset:{4*i}')
            k('s_mov_b64 exec, -1')
            return
        k('s_waitcnt lgkmcnt(0)\n s_mov_b64 exec, 1')
        k(f's_lshl_b32 s60, s2, 3\n s_add_u32 s60, s60, s61\n s_lshl_b32 s60, s60, 6\n s_add_u32 s60, s60, {hex(STAMP_BASE)}')
        k('v_mov_b32 v1, 0')
        for i in range(n):
            k(f'v_mov_b32 v2, s{64+2*i}\n buffer_store_dword v2, v1, s[56:59], s60 offen offset:{4*i}')
        k('s_mov_b64 exec, -1')

def lo(k, d, s): k(f'v_lshlrev_b32 v{d}, 16, v{s}')
def hi(k, d, s): k(f'v_and_b32 v{d}, 0xffff0000, v{s}')
def cvt(k, d, a, b): k(f'v_cvt_pk_bf16_f32 v{d}, v{a}, v{b}')
def pk(k, op, d, a, b, c=None, mods=''):
    s = f'v_pk_{op}_f32 v[{d}:{d+1}], v[{a}:{a+1}], v[{b}:{b+1}]'
    if c is not None: s += f', v[{c}:{c+1}]'
    k(s + (' ' + mods if mods else ''))
def pks(k, op, d, a, b, c=None, neg=False, sc=True):
    if not sc:
        return pk(k, op, d, a, b, c, mods='neg_lo:[0,1] neg_hi:[0,1]' if neg else '')
    for i in range(2):
        if op == 'fma':
            k(f'v_fmac_f32 v{d+i}, v{a+i}, v{b+i}' if c == d else f'v_fma_f32 v{d+i}, v{a+i}, v{b+i}, v{c+i}')
        else: k(f"v_{'sub' if neg else op}_f32 v{d+i}, v{a+i}, v{b+i}")
def mfma(k, c, a, b, cin=None):
    k(f'v_mfma_f32_16x16x32_bf16 v[{c}:{c+3}], v[{a}:{a+3}], v[{b}:{b+3}], ' + (cin or f'v[{c}:{c+3}]'))

GC = 24
def gelu_consts(k):
    c0 = -2.0 * 0.7978845608028654 * L2E
    k(f'v_mov_b32 v24, {f32hex(c0*0.044715)}\n v_mov_b32 v25, {f32hex(c0*0.044715)}\n v_mov_b32 v26, {f32hex(c0)}\n v_mov_b32 v27, {f32hex(c0)}')
    k('v_mov_b32 v30, 1.0\n v_mov_b32 v31, 1.0')
def gelu_tiles(k, cs, t, sc=False):
    c0 = -2.0 * 0.7978845608028654 * L2E
    pairs = [(c + 2 * p, t + 4 * i + 2 * p) for i, c in enumerate(cs) for p in range(2)]
    for x, tt in pairs: cvt(k, tt, x, x + 1)
    for x, tt in pairs: lo(k, x, tt); hi(k, x + 1, tt)
    for x, tt in pairs: pks(k, 'mul', tt, x, x, sc=sc)
    for x, tt in pairs:
        if sc: k(f'v_fmaak_f32 v{tt}, v{tt}, v24, {f32hex(c0)}\n v_fmaak_f32 v{tt+1}, v{tt+1}, v24, {f32hex(c0)}')
        else: pk(k, 'fma', tt, tt, 24, 26)
    for x, tt in pairs: pks(k, 'mul', tt, tt, x, sc=sc)
    for x, tt in pairs: k(f'v_exp_f32 v{tt}, v{tt}\n v_exp_f32 v{tt+1}, v{tt+1}')
    for x, tt in pairs: pks(k, 'add', tt, tt, 30, sc=sc)
    for x, tt in pairs: k(f'v_rcp_f32 v{tt}, v{tt}\n v_rcp_f32 v{tt+1}, v{tt+1}')
    for x, tt in pairs: pks(k, 'mul', x, x, tt, sc=sc)

def rowsum16(k, regs):
    for sh in (8, 4, 2, 1):
        for r in regs: k(f'v_add_f32_dpp v{r}, v{r}, v{r} row_ror:{sh} row_mask:0xf bank_mask:0xf')
def xsum4(k, regs, t):
    for sw in ('16', '32'):
        for i, r in enumerate(regs): k(f'v_mov_b32 v{t+i}, v{r}')
        for i, r in enumerate(regs): k(f'v_permlane{sw}_swap_b32 v{r}, v{t+i}')
        for i, r in enumerate(regs): k(f'v_add_f32 v{r}, v{r}, v{t+i}')
def cmul(k, d, x, w):
    k(f'v_mul_f32 v{d}, v{x}, v{w}\n v_mul_f32 v{d+1}, v{x+1}, v{w}\n v_fmac_f32 v{d}, v{x+1}, v{w+2}\n v_fmac_f32 v{d+1}, v{x}, v{w+1}')

def poll(k, name, loads, regs, lanes=None, first_issued=False, wait0='s_waitcnt vmcnt(0)', nap=0):
    k(f's_mov_b32 s62, {POLL_LIMIT}')
    if lanes: k(lanes)
    if first_issued: k(f'{wait0}\n s_branch L_{name}_chk')
    k(f'L_{name}:')
    k(loads)
    k(f's_waitcnt vmcnt(0)\nL_{name}_chk:')
    k(f'v_cmp_ne_u32 vcc, v{TAG}, v{regs[0]}')
    for r in regs[1:]:
        k(f'v_cmp_ne_u32 s[54:55], v{TAG}, v{r}\n s_or_b64 vcc, vcc, s[54:55]')
    k(f's_cbranch_vccz L_{name}_ok\n' + (f's_sleep {nap}\n' if nap else '') + f's_sub_u32 s62, s62, 1\n s_cbranch_scc0 L_{name}\nL_{name}_ok:')
    if lanes: k('s_mov_b64 exec, -1')

def post(k, val, addr=29, tmp=23):
    k(f'v_mov_b32 v{tmp}, {val}\n ds_write_b32 v{addr}, v{tmp}')
def waitfor(k, name, off, n, val, t, base=22, sleep=True):
    k(f's_mov_b32 s62, {POLL_LIMIT*16}\nL_{name}:')
    if n == 4:
        k(f'ds_read_b128 v[{t}:{t+3}], v{base} offset:{off}\n s_waitcnt lgkmcnt(0)\n v_min3_u32 v{t}, v{t}, v{t+1}, v{t+2}\n v_min_u32 v{t}, v{t}, v{t+3}')
    else:
        k(f'ds_read_b32 v{t}, v{base} offset:{off}\n s_waitcnt lgkmcnt(0)')
    k(f'v_cmp_gt_u32 vcc, {val}, v{t}\n s_cbranch_vccz L_{name}_ok')
    if sleep: k(f's_sleep {int(sleep)}')
    k(f's_sub_u32 s62, s62, 1\n s_cbranch_scc0 L_{name}\nL_{name}_ok:')

def weave(lines, events):
    out = []; n = len(lines); ev = sorted(events, key=lambda e: e[0]); j = 0
    for i, l in enumerate(lines):
        while j < len(ev) and ev[j][0] * n <= i:
            out += [x.strip() for x in ev[j][1].split('\n') if x.strip()]; j += 1
        out.append(l)
    while j < len(ev):
        out += [x.strip() for x in ev[j][1].split('\n') if x.strip()]; j += 1
    return out

def sub(fn, *a):
    t = K('t'); fn(t, *a); return t.lines

def gen(opt):
    G = Gen(opt); k = G.k
    D = 8
    ZF = '' if opt.get('nosc1') else 'sc1'
    npf = int(opt.get('pfcode', 3))
    k(f"""
    s_cmp_ge_u32 s2, 256
    s_cbranch_scc1 L_end
    {'s_memrealtime s[64:65]' if opt.get('hold') else ''}
    s_load_dwordx2 s[8:9], s[0:1], 0       ; x
    s_load_dwordx2 s[16:17], s[0:1], 64    ; w_in
    s_load_dwordx2 s[12:13], s[0:1], 120   ; ws
    s_load_dwordx8 s[36:43], s[0:1], 8
    s_load_dwordx4 s[44:47], s[0:1], 40
    s_load_dwordx8 s[48:55], s[0:1], 72
    s_load_dwordx2 s[26:27], s[0:1], 104   ; out
    v_lshrrev_b32 v1, 6, v0
    v_and_b32 v0, 63, v0
    v_readfirstlane_b32 s3, v1             ; wave
    s_lshr_b32 s30, s2, 3                  ; j
    s_and_b32 s29, s2, 1
    s_lshl_b32 s29, s29, 2                 ; 4*par
    s_and_b32 s31, s30, 3
    s_add_u32 s31, s31, s29
    s_lshr_b32 s35, s30, 3
    s_add_u32 s29, s29, s35
    s_and_b32 s35, s30, 7
    s_cmp_lt_u32 s30, 24
    s_cselect_b32 s31, s35, s31            ; tb&7
    s_cselect_b32 s29, s29, 3
    s_cmp_ge_u32 s30, 28
    s_cselect_b32 s29, 7, s29
    s_and_b32 s28, s2, 6
    s_lshl_b32 s28, s28, 2
    s_add_u32 s28, s28, s31
    s_min_u32 s31, s31, 6
    s_and_b32 s32, s3, 3
    v_and_b32 v8, 15, v0
    v_lshrrev_b32 v9, 4, v0
    v_lshlrev_b32 v10, 1, v9
    v_xor_b32 v10, v10, v8
    v_lshlrev_b32 v10, 4, v10
    v_mul_u32_u24 v11, 3584, v9
    v_add_u32 v10, v10, v11
    v_add_u32 v11, {4*3584}, v10
    v_xor_b32 v12, 128, v10
    v_add_u32 v12, {8*3584}, v12
    v_add_u32 v13, {4*3584}, v12
    s_mul_i32 s33, s32, {16*3584}
    s_lshl_b32 s34, s29, 8
    s_add_u32 s33, s33, s34
    s_add_u32 s33, s33, 1792
    s_lshl_b32 s34, s32, 12
    v_lshrrev_b32 v21, 3, v0
    v_and_b32 v20, 7, v0
    v_lshrrev_b32 v5, 1, v21
    v_xor_b32 v20, v20, v5
    v_lshlrev_b32 v20, 4, v20
    v_mul_u32_u24 v6, 896, v21
    v_add_u32 v6, v6, v20
    v_xor_b32 v7, 64, v6
    v_add_u32 v4, {8*896}, v7
    s_lshl_b32 s24, s28, 2
    s_add_u32 s24, s24, s32
    s_mul_i32 s24, s24, {16*896}
    s_lshl_b32 s25, s32, 11
    s_add_u32 s25, s25, {L_X}
    s_mov_b32 s10, {2048*896}
    s_mov_b32 s11, 0x20000
    s_mov_b32 s14, {hex(WS_END)}
    s_mov_b32 s15, 0x20000
    s_mov_b32 s18, {448*3584}
    s_mov_b32 s19, 0x20000
    s_mov_b32 s5, {hex(WS_EP)}
    s_cmp_eq_u32 s29, 7
    s_waitcnt lgkmcnt(0)
    """)
    if opt.get('stamp'):
        k('s_mov_b32 s61, s3'); G.stamp(0); srd(k, 56, 12, 13, 0x4000000)
    k(f"""
    s_load_dword s4, s[12:13], s5
    s_cbranch_scc1 L_helper
    s_cmp_lt_u32 s3, 4
    s_cbranch_scc1 L_A
    """)
    k(f"""
    v_mul_u32_u24 v1, 896, v8
    s_lshl_b32 s20, s29, 7
    s_add_u32 s20, s20, s24
    s_mov_b64 exec, 0xffff
    buffer_load_dword v209, v1, s[8:11], s20 offen
    s_mov_b64 exec, -1
    s_mul_i32 s20, s28, 7
    s_add_u32 s20, s20, s29                ; m
    s_lshr_b32 s21, s32, 1                 ; c2
    s_and_b32 s22, s32, 1                  ; hf
    s_lshl_b32 s23, s20, 2
    s_load_dword s30, s[46:47], s23
    s_lshl_b32 s20, s20, 1
    s_add_u32 s20, s20, s21                ; channel
    s_lshl_b32 s23, s20, 9
    s_lshl_b32 s35, s22, 8
    s_add_u32 s23, s23, s35
    v_lshlrev_b32 v1, 1, v0
    v_add_u32 v1, s23, v1
    """)
    PRM = 200
    for c in range(2):
        for i in range(4): k(f'global_load_ushort v{PRM+4*c+i}, v1, s[{36+2*i}:{37+2*i}] offset:{128*c}')
    k(f"""
    s_lshl_b32 s23, s20, 1
    v_mov_b32 v1, s23
    global_load_ushort v{PRM+8}, v1, s[44:45]
    """)
    if opt.get('tlb'):
        k(f"""
        v_mov_b32 v1, 0
        s_mov_b64 exec, 1
        s_lshl_b32 s35, s29, 5
        s_add_u32 s35, s35, s28
        s_lshl_b32 s35, s35, 14
        buffer_load_dword v209, v1, s[12:15], s35 offen sc1
        s_mul_i32 s35, s28, {4*28*1024}
        s_lshl_b32 s63, s29, 12
        s_add_u32 s35, s35, s63
        s_add_u32 s35, s35, {hex(WS_H)}
        buffer_load_dword v209, v1, s[12:15], s35 offen sc1
        s_lshl_b32 s35, s20, 12
        s_add_u32 s35, s35, {hex(WS_AT)}
        buffer_load_dword v209, v1, s[12:15], s35 offen sc1
        s_lshl_b32 s35, s29, 18
        s_lshl_b32 s63, s28, 7
        s_add_u32 s35, s35, s63
        s_add_u32 s35, s35, {hex(WS_UT)}
        buffer_load_dword v209, v1, s[12:15], s35 offen sc1
        global_load_dword v209, v1, s[26:27]
        global_load_dword v209, v1, s[52:53]
        s_lshl_b32 s35, s28, 18
        v_mov_b32 v1, s35
        global_load_dword v209, v1, s[48:49]
        s_mov_b64 exec, -1
        """)
    G.stamp(1, '3')
    k('s_branch L_B')
    def w2parts(j):
        h = f's_add_u32 s35, s31, {j}\n s_cmp_ge_u32 s35, 7\n s_cselect_b32 s63, 7, 0\n s_sub_u32 s35, s35, s63\n s_lshl_b32 s63, s35, 7\n s_add_u32 s63, s63, s24\n'
        p = [h + f's_add_u32 m0, s25, {j * 8192}\n s_mul_i32 s35, s35, {64*3584}\n buffer_load_dwordx4 v6, s[8:11], s63 offen lds\n',
             f's_add_u32 m0, s25, {j * 8192 + 1024}\n s_add_u32 s35, s35, s33\n buffer_load_dwordx4 v4, s[8:11], s63 offen lds\n']
        for q in range(4):
            p.append(f's_add_u32 m0, s34, {(j & 3) * 16384 + q * 1024}\n buffer_load_dwordx4 v{10+q}, s[16:19], s35 offen lds\n')
        return p
    def w2stage(j): return ''.join(w2parts(j))
    def common2():
        k(f"""
        v_lshlrev_b32 v2, 4, v0
        v_mov_b32 v22, {L_CNT}
        s_lshl_b32 s35, s3, 2
        v_add_u32 v29, s35, v22
        """)
    tagcalc = f's_waitcnt lgkmcnt(0)\n s_mul_i32 s4, s4, 0x9E3779B1\n s_add_u32 s4, s4, 0x7F4A7C15\n v_mov_b32 v{TAG}, s4'
    def w1setup(r):
        k(f"""
        v_lshrrev_b32 v{r}, 2, v0
        v_mul_u32_u24 v{r}, 3584, v{r}
        v_lshrrev_b32 v{r+1}, 4, v0
        v_and_b32 v{r+1}, 2, v{r+1}
        v_xor_b32 v{r+1}, v{r+1}, v0
        v_and_b32 v{r+1}, 3, v{r+1}
        v_lshl_add_u32 v{r}, v{r+1}, 4, v{r}
        v_add_u32 v{r+1}, {16*3584}, v{r}
        s_lshl_b32 s38, s29, 8
        s_lshl_b32 s35, s32, 6
        s_add_u32 s38, s38, s35
        s_lshl_b32 s40, s32, 11
        """)
    def w1off(i): return [3, 0, 1, 2][(i % 8) >> 1] * 16384 + (i & 1) * 8192
    def w1dma(i, r):
        off = w1off(i)
        return (f's_mul_i32 s35, s41, {32*3584}\n s_add_u32 s35, s35, s38\n s_add_u32 m0, s40, {off}\n s_add_u32 s41, s41, 1\n'
                f'buffer_load_dwordx4 v{r}, s[16:19], s35 offen lds\n s_add_u32 m0, s40, {off+1024}\n s_cmp_eq_u32 s41, 14\n'
                f'buffer_load_dwordx4 v{r+1}, s[16:19], s35 offen lds\n s_cselect_b32 s41, 0, s41\n')
    k('L_A:')
    if opt.get('ghold'):
        k('s_load_dwordx2 s[68:69], s[0:1], 112\n s_waitcnt lgkmcnt(0)\n s_mov_b32 s70, 256\n s_mov_b32 s71, 0x20000\n s_cmp_lg_u32 s3, 0\n s_cbranch_scc1 L_gh0')
        k('s_not_b32 s66, s64\n v_mov_b32 v100, s66\n v_mov_b32 v101, 0\n s_mov_b64 exec, 1\n buffer_atomic_umax v100, v101, s[68:71], 0 offen\n s_mov_b64 exec, -1\n s_waitcnt vmcnt(0)\nL_gh0:')
    k(w2stage(0)); k(w2stage(1))
    if opt.get('prio', '1') != '0': k(f"s_setprio {opt.get('prio', 1)}")
    srd(k, 36, 50, 51, 4096)
    k('v_lshlrev_b32 v1, 1, v8\n s_lshl_b32 s35, s28, 7')
    BSP = [228, 229, 230, 231]
    for tt in range(4): k(f'buffer_load_ushort v{BSP[tt]}, v1, s[36:39], s35 offen offset:{32*tt}')
    common2()
    WA = 168
    k(f"""
    v_mov_b32 v23, 0
    ds_write_b32 v29, v23
    ds_write_b32 v29, v23 offset:16
    v_mov_b32 v23, 6
    ds_write_b32 v29, v23 offset:32
    v_lshrrev_b32 v14, 1, v8
    v_xor_b32 v14, v14, v9
    v_lshlrev_b32 v14, 4, v14
    v_lshl_add_u32 v14, v8, 7, v14
    v_add_u32 v14, s25, v14
    v_xor_b32 v15, 64, v14
    v_lshrrev_b32 v16, 2, v0
    v_and_b32 v17, 7, v16
    v_lshlrev_b32 v17, 5, v17
    v_and_b32 v16, 3, v16
    v_lshl_add_u32 v16, v9, 3, v16         ; 8g + r
    v_and_b32 v19, 3, v0
    v_lshlrev_b32 v18, 3, v19
    v_lshl_add_u32 v18, v16, 8, v18
    """)
    for ft in range(8): k(f'v_xor_b32 v{WA+ft}, {32*ft}, v17\n v_add_u32 v{WA+ft}, v{WA+ft}, v18')
    gelu_consts(k)
    w1setup(224)
    k(f"""
    v_lshlrev_b32 v226, 6, v16
    v_lshl_add_u32 v226, v19, 3, v226
    v_and_b32 v227, 1, v9
    v_lshl_add_u32 v226, v227, 5, v226     ; row*64 + (p ^ (g&1))*32 + 8c  (p = 0)
    v_xor_b32 v227, 32, v226
    v_add_u32 v226, s40, v226
    v_add_u32 v227, s40, v227
    s_lshl_b32 s41, s31, 1
    s_add_u32 s41, s41, 8
    s_cmp_ge_u32 s41, 14
    s_cselect_b32 s35, 14, 0
    s_sub_u32 s41, s41, s35
    s_lshl_b32 s35, s32, 2
    v_add_u32 v5, s35, v22
    """)
    XF, WF, ACC, T, CK1 = 32, 88, 120, 152, 40
    G.stamp(14, '2')
    k('s_waitcnt vmcnt(10) lgkmcnt(0)')
    G.stamp(15, '2')
    k(tagcalc + '\n s_barrier')
    G.stamp(1); G.stamp(1, '2')
    def wread(gi):
        ks = gi >> 1
        for f in range(4):
            for hh in range(2):
                r = WF + (gi & 1) * 16 + f * 4 + hh * 2
                k(f'ds_read_b64_tr_b16 v[{r}:{r+1}], v{WA + 4 * (gi & 1) + f} offset:{((ks >> 1) & 3) * 16384 + (ks & 1) * 8192 + hh * 1024}')
    def xread(i):
        k(f'ds_read_b128 v[{XF+4*(i&1)}:{XF+4*(i&1)+3}], v{14 + (i & 1)} offset:{(i >> 1) * 8192}')
    xread(0); wread(0)
    for gi in range(28):
        ks = gi >> 1; j = gi >> 2
        if gi % 4 == 3:
            k('s_waitcnt lgkmcnt(0)' + (' vmcnt(0)' if j == 0 else ''))
            if j < 6: G.stamp(2 + 2 * j, '2')
            k('s_barrier')
            if j < 6:
                G.stamp(3 + 2 * j, '2'); xread(ks + 1); wread(gi + 1)
        else:
            nx = 0
            if gi % 4 == 0: xread(ks + 1); nx = 1
            wread(gi + 1); k(f's_waitcnt lgkmcnt({8 + nx})')
        for f in range(4):
            mfma(k, ACC + 16 * (gi & 1) + 4 * f, XF + 4 * (ks & 1), WF + (gi & 1) * 16 + f * 4, '0' if ks == 0 else None)
    G.stamp(2)
    S, Q = 88, 92
    def z2epi(t):
        for h in range(2):
            cs = [ACC + 16 * h + 4 * f for f in range(4)]
            gelu_tiles(t, cs, T)
            prs = [(c + 2 * p, T + 2 * i + p) for i, c in enumerate(cs) for p in range(2)]
            for x, tt in prs: cvt(t, tt, x, x + 1)
            for x, tt in prs: lo(t, x, tt); hi(t, x + 1, tt)
            for i, c in enumerate(cs):
                for p in range(2):
                    if h == 0 and i == 0: pk(t, 'mul', Q + 2 * p, c + 2 * p, c + 2 * p)
                    else: pk(t, 'fma', Q + 2 * p, c + 2 * p, c + 2 * p, Q + 2 * p)
                    if h == 0 and i == 0: pass
                    elif h == 0 and i == 1: pk(t, 'add', S + 2 * p, ACC + 2 * p, c + 2 * p)
                    else: pk(t, 'add', S + 2 * p, S + 2 * p, c + 2 * p)
    z2epi(k)
    rowsum16(k, list(range(S, S + 8)))
    k(f"""
    v_cmp_eq_u32 vcc, 1, v19
    v_cndmask_b32 v{T}, v{S}, v{S+1}, vcc
    v_cndmask_b32 v{T+2}, v{Q}, v{Q+1}, vcc
    v_cmp_eq_u32 vcc, 2, v19
    v_cndmask_b32 v{T}, v{T}, v{S+2}, vcc
    v_cndmask_b32 v{T+2}, v{T+2}, v{Q+2}, vcc
    v_cmp_eq_u32 vcc, 3, v19
    v_cndmask_b32 v{T}, v{T}, v{S+3}, vcc
    v_cndmask_b32 v{T+2}, v{T+2}, v{Q+3}, vcc
    v_mov_b32 v{T+1}, v{TAG}
    v_mov_b32 v{T+3}, v{TAG}
    v_lshl_add_u32 v18, v9, 2, v19
    v_lshlrev_b32 v18, 4, v18              ; row*16
    s_lshl_b32 s24, s28, 2
    s_add_u32 s24, s24, s32
    s_lshl_b32 s24, s24, 11
    s_add_u32 s24, s24, {hex(WS_ST)}
    s_lshl_b32 s35, s29, 8
    s_add_u32 s35, s35, s24
    s_mov_b32 exec_lo, 0x000f000f
    s_mov_b32 exec_hi, 0x000f000f
    buffer_store_dwordx4 v[{T}:{T+3}], v18, s[12:15], s35 offen sc1
    s_mov_b64 exec, -1
    v_min_u32 v18, 2, v9
    v_lshlrev_b32 v18, 8, v18
    v_lshl_add_u32 v18, v8, 4, v18
    """)
    G.stamp(3)
    def spdma(j, dyn=False, slot=0):
        vv, off = ((10, 0), (12, 1024), (11, 8192), (13, 9216))[j]
        t = f's_add_u32 m0, s43, {off + slot * 16384}\n buffer_load_dwordx4 v{vv}, s[8:11], s42 offen lds\n'
        if j == 3:
            t += 's_add_u32 s42, s42, 256\n'
            if dyn: t += 's_lshr_b64 s[40:41], s[40:41], 4\n s_and_b32 s43, s40, 15\n s_lshl_b32 s43, s43, 3\n s_add_u32 s43, s43, s32\n s_lshl_b32 s43, s43, 11\n'
        return t
    A1, FR, ZP = 176, 64, 208
    k(f"""
    s_lshl_b32 s35, s32, 11
    v_subrev_u32 v14, s35, v14
    v_subrev_u32 v15, s35, v15
    """)
    srd(k, 8, 48, 49, 0x800000)
    k(f"""
    v_lshl_add_u32 v10, v21, 12, v20
    v_add_u32 v11, 128, v10
    v_xor_b32 v12, 64, v10
    v_add_u32 v12, 0x8000, v12
    v_add_u32 v13, 128, v12
    s_lshl_b32 s42, s28, 2
    s_add_u32 s42, s42, s32
    s_lshl_b32 s42, s42, 16                ; (64*tb + 16*a)*4096
    s_lshl_b32 s43, s32, 11
    """)
    def z1read(i):
        b = FR + (i & 1) * 24
        for p in range(2):
            for hh in range(2):
                k(f'ds_read_b64_tr_b16 v[{b+4*p+2*hh}:{b+4*p+2*hh+1}], v{226 + p} offset:{w1off(i) + 256*hh}')
        for tt in range(4):
            r = b + 8 + 4 * tt
            k(f'ds_read_b128 v[{r}:{r+3}], v{14 + (i & 1)} offset:{(i >> 1) * 8192 + tt * 2048}')
    G.stamp(1, '5')
    waitfor(k, 'wb1', 16, 1, 1, 32, base=5, sleep=False)
    G.stamp(2, '5')
    PL = 32; S, Q = 44, 48
    NP = int(opt.get('np', 7))
    stload = f'buffer_load_dwordx4 v[{PL}:{PL+3}], v2, s[12:15], s24 offen sc1\n buffer_load_dwordx4 v[{PL+4}:{PL+7}], v18, s[12:15], s24 offen offset:1024 sc1'
    def normalise():
        poll(k, 'pst', stload, [PL + 1, PL + 3, PL + 5, PL + 7], first_issued=True)
        G.stamp(5)
        k(f"""
        v_cmp_gt_u32 vcc, 3, v9
        v_cndmask_b32 v{PL+4}, 0, v{PL+4}, vcc
        v_cndmask_b32 v{PL+6}, 0, v{PL+6}, vcc
        v_add_f32 v40, v{PL}, v{PL+4}
        v_add_f32 v41, v{PL+2}, v{PL+6}
        """)
        xsum4(k, [40, 41], 42)
        k(f"""
        v_mul_f32 v40, {f32hex(1/896)}, v40
        v_mul_f32 v41, {f32hex(1/896)}, v41
        v_fma_f32 v41, -v40, v40, v41
        v_max_f32 v41, 0, v41
        """)
        cvt(k, 40, 40, 41); hi(k, 41, 40); lo(k, 40, 40)
        k(f'v_add_f32 v41, {f32hex(1e-5)}, v41')
        cvt(k, 41, 41, 41); lo(k, 41, 41)
        k('v_sqrt_f32 v41, v41')
        cvt(k, 41, 41, 41); lo(k, 41, 41)
        k('v_rcp_f32 v41, v41\n v_lshlrev_b32 v53, 4, v9')
        for r in range(4):
            k(f'ds_bpermute_b32 v{S+r}, v53, v40 offset:{4*r}\n ds_bpermute_b32 v{Q+r}, v53, v41 offset:{4*r}')
        k(f"""
        s_lshl_b32 s24, s29, 6
        s_lshl_b32 s25, s28, 1
        s_add_u32 s24, s24, s25
        s_lshr_b32 s25, s32, 1
        s_add_u32 s24, s24, s25
        s_lshl_b32 s24, s24, 13
        s_and_b32 s25, s32, 1
        s_lshl_b32 s25, s25, 9
        s_add_u32 s24, s24, s25
        s_add_u32 s25, s24, 4096
        v_lshrrev_b32 v53, 1, v9
        v_lshlrev_b32 v53, 8, v53
        v_lshl_add_u32 v53, v8, 4, v53
        v_and_b32 v54, 1, v9
        v_lshl_add_u32 v53, v54, 10, v53
        s_waitcnt lgkmcnt(0)
        """)
        for h in range(2):
            cs = [ACC + 16 * h + 4 * f for f in range(4)]
            prs = [(c + 2 * p, T + 8 * h + 2 * i + p, p) for i, c in enumerate(cs) for p in range(2)]
            for x, t, p in prs: pks(k, 'add', x, x, S + 2 * p, neg=True, sc=bool(opt.get('sca')))
            for x, t, p in prs: cvt(k, t, x, x + 1)
            for x, t, p in prs: lo(k, x, t); hi(k, x + 1, t)
            for x, t, p in prs: pks(k, 'mul', x, x, Q + 2 * p, sc=bool(opt.get('sca')))
            for x, t, p in prs: cvt(k, t, x, x + 1)
            for pr in range(2):
                o = T + 8 * h + 4 * pr
                k(f'v_permlane16_swap_b32 v{o}, v{o+2}\n v_permlane16_swap_b32 v{o+1}, v{o+3}')
            for pr in range(2):
                o = T + 8 * h + 4 * pr
                k(f'buffer_store_dwordx4 v[{o}:{o+3}], v53, s[12:15], s{24+h} offen offset:{2048*pr} sc1')

    CK1 = 56
    posts = {3: 5, 7: 6, 9: 7, 11: 8}; checks = {6: 5, 8: 6, 12: 7}
    pre = {6: [(0, 0), (0, 1)], 7: [(0, 2), (0, 3)], 8: [(1, 0), (1, 1)], 9: [(1, 2), (1, 3)], 10: [(2, 0), (2, 1)], 11: [(2, 2), (2, 3)], 12: [(3, 0), (3, 1)], 13: [(3, 2), (3, 3)]}
    assert NP == 7
    spins = []
    z1read(0)
    for i in range(14):
        if i in checks: k(f'ds_read_b128 v[{CK1}:{CK1+3}], v22')
        if i < 13:
            if i == 7: k('s_waitcnt vmcnt(14)')
            z1read(i + 1); k('s_waitcnt lgkmcnt(8)')
        else:
            k('s_waitcnt lgkmcnt(0)'); post(k, 9)
        if i in posts: post(k, posts[i])
        b = FR + (i & 1) * 24
        if i < 13: G.stamp(3 + i, '5')
        for p in range(2):
            for tt in range(4):
                mfma(k, A1 + (p * 4 + tt) * 4, b + 4 * p, b + 8 + 4 * tt, '0' if i == 0 else None)
                if p == 0 and i in checks:
                    k([f'v_min3_u32 v{CK1}, v{CK1}, v{CK1+1}, v{CK1+2}', f'v_min_u32 v{CK1}, v{CK1}, v{CK1+3}', f'v_cmp_gt_u32 vcc, {checks[i]}, v{CK1}',
                       f's_cbranch_vccnz L_z1_spin{i}\nL_z1_ok{i}:'][tt])
            if p == 0 and i < 6: k(w1dma(8 + i, 224))
            if i in pre: st, j = pre[i][p]; k(spdma(j, slot=PI[st]))
        if i in checks: spins.append((f'L_z1_spin{i}', f'L_z1_ok{i}', CK1, 0, checks[i]))
        if i == NP - 2: k(stload)
        if i == NP:
            G.stamp(4); normalise(); G.stamp(6)
        if i == NP + 3:
            k(f"""
            s_lshl_b32 s24, s29, 11
            s_add_u32 s24, s24, {hex(WS_FZ)}
            s_lshl_b32 s35, s28, 6
            s_lshl_b32 s25, s32, 2
            s_add_u32 s35, s35, s25
            v_mov_b32 v53, s35
            s_waitcnt vmcnt(6)
            s_mov_b64 exec, 1
            buffer_store_dword v{TAG}, v53, s[12:15], s24 offen sc1
            s_mov_b64 exec, -1
            """)
            G.stamp(7)
    waitfor(k, 'wa9', 0, 4, 9, 32, sleep=False)
    for st in range(4, 7):
        for j in range(4): k(spdma(j, slot=PI[st]))
    srd(k, 16, 12, 13, SZ_Z)
    ACC2, W, Z, CK = 32, 64, 96, 160
    k(f"""
    v_lshlrev_b32 v19, 6, v0
    s_lshl_b32 s33, s29, 19
    s_lshl_b32 s35, s32, 11
    s_add_u32 s34, s33, s35                ; fb*64*8192 + w*2048
    v_lshrrev_b32 v20, 1, v8
    v_xor_b32 v20, v20, v9
    v_lshlrev_b32 v20, 4, v20
    v_lshl_add_u32 v20, v8, 7, v20
    v_xor_b32 v21, 64, v20
    v_add_u32 v17, {PI[0]*16384}, v20
    v_add_u32 v18, {PI[0]*16384}, v21
    v_add_u32 v14, 8192, v2
    v_add_u32 v15, 16384, v2
    v_add_u32 v16, 24576, v2
    s_mov_b32 s38, {hex(PI_WORD)}
    s_mov_b32 s39, {hex(PI_WORD)}
    s_mov_b32 s36, 10                      ; 10 + stage
    """)
    ZV = [2, 14, 15, 16]
    for i in range(32): k(f'v_mov_b32 v{ACC2+i}, 0')
    G.stamp(8)
    k('s_cmp_lg_u32 s3, 0\n s_cbranch_scc1 L_nofz')
    poll(k, 'pfz', f'buffer_load_dwordx4 v[{CK}:{CK+3}], v19, s[12:15], s24 offen sc1', [CK, CK + 1, CK + 2, CK + 3], lanes='s_mov_b32 exec_hi, 0', nap=int(opt.get('nap', 1)))
    k('L_nofz:\n s_waitcnt vmcnt(0)')
    post(k, 10)
    waitfor(k, 'wa10', 0, 4, 10, CK, sleep=False)
    G.stamp(9)
    adv = f's_add_u32 s34, s34, {4*8192}'
    def zld(n, ft):
        r = Z + (n % D) * 8 + ft * 4
        k(f'buffer_load_dwordx4 v[{r}:{r+3}], v{ZV[n%4]}, s[16:19], s34 offen offset:{1024*ft} {ZF}')
    for n in range(D):
        zld(n, 0); zld(n, 1)
        if n % 4 == 3: k(adv)
    def w2read(n, tt):
        ks = n & 3
        r = W + (n & 1) * 16 + tt * 4
        k(f'ds_read_b128 v[{r}:{r+3}], v{17 + (ks & 1)} offset:{(ks >> 1) * 8192 + tt * 2048}')
    for tt in range(4): w2read(0, tt)
    G.stamp(10)
    def z1epi(t):
        for h in range(2):
            for q in range(2):
                cs = [A1 + 16 * h + 8 * q + 4 * f for f in range(2)]
                gelu_tiles(t, cs, 232 + 8 * q, sc=True)
                for f in range(2):
                    for p in range(2): cvt(t, ZP + 4 * (2 * q + f) + 2 * h + p, cs[f] + 2 * p, cs[f] + 2 * p + 1)
    extra = sub(z1epi)
    NPEEL = int(opt.get('peel', 3)); per = -(-len(extra) // (NPEEL * 64))
    def body(name, ride, last):
        for n in range(8):
            k(f's_waitcnt vmcnt({(D-1)*2 - (2*n if last else 0)}) lgkmcnt(0)')
            fill = [[] for _ in range(8)]
            if n % 4 == 0:
                fill[4] = ['ds_write_b32 v29, v23']
                if opt.get('stamp') == '4':
                    for it in range(8):
                        st = 2 * it + n // 4
                        if st: fill[5].append(f's_cmp_lg_u32 s36, {10+st}\n s_cbranch_scc1 L_t{name}{n}_{it}\n s_memrealtime s[{64+2*st}:{65+2*st}]\nL_t{name}{n}_{it}:')
            if not (last and n > 3):
                if n % 4 == 1:
                    fill[4] = [f'ds_read_b128 v[{CK}:{CK+3}], v22 offset:32', 'v_add_u32 v23, 1, v23']
                    fill[5] = ['s_lshr_b64 s[38:39], s[38:39], 4\n s_and_b32 s37, s38, 15\n s_lshl_b32 s37, s37, 14']
                if n % 4 == 2:
                    fill[4] = [f'v_min3_u32 v{CK}, v{CK}, v{CK+1}, v{CK+2}', 's_sub_u32 s35, s36, 9']
                    fill[5] = [f'v_min_u32 v{CK}, v{CK}, v{CK+3}', 'v_add_u32 v17, s37, v20']
                    fill[6] = [f'v_cmp_gt_u32 vcc, s35, v{CK}']
                    fill[7] = [f's_cbranch_vccnz L_{name}_spin{n}\nL_{name}_ok{n}:']
                    spins.append((f'L_{name}_spin{n}', f'L_{name}_ok{n}', CK, 32, 's35'))
                if n % 4 == 3: fill[4] += ['v_add_u32 v18, s37, v21']
            for ft in range(2):
                for tt in range(4):
                    mfma(k, ACC2 + (ft * 4 + tt) * 4, Z + (n % D) * 8 + ft * 4, W + (n & 1) * 16 + tt * 4)
                    if ft == 0 and not (last and n == 7): w2read(n + 1, tt)
                    for x in fill[4 * ft + tt]: k(x)
                    if ride:
                        for _ in range(per):
                            if extra: k(extra.pop(0))
                if not last: zld(n, ft)
            if n % 4 == 3: k(adv + '\n s_add_u32 s36, s36, 1')
    for it in range(NPEEL): body(f'pa{it}', True, False)
    assert not extra
    k('L_p2:')
    body('pb', False, False)
    k('s_cmp_lt_u32 s36, 24\n s_cbranch_scc1 L_p2')
    body('pc', False, True)
    k('s_branch L_p2_done')
    for a, b, c, off, val in spins:
        k(f"""
{a}:
        s_mov_b32 s62, {POLL_LIMIT*16}
{a}b:
        ds_read_b128 v[{c}:{c+3}], v22 offset:{off}
        s_waitcnt lgkmcnt(0)
        v_min3_u32 v{c}, v{c}, v{c+1}, v{c+2}
        v_min_u32 v{c}, v{c}, v{c+3}
        v_cmp_gt_u32 vcc, {val}, v{c}
        s_cbranch_vccz {b}
        s_sub_u32 s62, s62, 1
        s_cbranch_scc0 {a}b
        s_branch {b}
        """)
    k('L_p2_done:')
    G.stamp(11); G.stamp(1, '7'); G.stamp(1, '9')
    k(f"""
    s_mul_i32 s24, s28, {4*28}
    s_lshl_b32 s36, s29, 2
    s_add_u32 s36, s36, s32                ; kk
    s_add_u32 s24, s24, s36
    s_lshl_b32 s24, s24, 10
    s_add_u32 s24, s24, {hex(WS_H)}
    """)
    Z1R = ZP
    for tt in range(4): lo(k, BSP[tt], BSP[tt])
    for tt in range(4):
        for ft in range(2):
            for r in range(4): k(f'v_add_f32 v{ACC2+(ft*4+tt)*4+r}, v{ACC2+(ft*4+tt)*4+r}, v{BSP[tt]}')
    for tt in range(4):
        o = 96 + 24 * tt
        its = [(ACC2 + (ft * 4 + tt) * 4 + 2 * p, Z1R + 4 * tt + 2 * ft + p, o + 4 + 4 * (2 * ft + p), o + 2 * ft + p) for ft in range(2) for p in range(2)]
        for a, z, t, d in its: cvt(k, d, a, a + 1)
        for a, z, t, d in its: lo(k, t, z); hi(k, t + 1, z); lo(k, t + 2, d); hi(k, t + 3, d)
        for a, z, t, d in its: pk(k, 'mul', t, t, t + 2)
        for a, z, t, d in its: cvt(k, d, t, t + 1)
        k(f'buffer_store_dwordx4 v[{o}:{o+3}], v2, s[12:15], s24 offen sc1')
        if tt < 3: k(f's_add_u32 s24, s24, {28*1024}')
    G.stamp(12); G.stamp(2, '7')
    srd(k, 16, 26, 27, 2048 * 896)
    HB, AC3, A3 = 32, 144, 160
    HD = int(opt.get('hd', 6))
    NA = int(opt.get('na', 16))
    def p3setup(half):
        k(f"""
        s_lshl_b32 s33, s28, 2
        s_add_u32 s33, s33, s32                ; tt
        s_lshl_b32 s37, s28, 11
        s_add_u32 s37, s37, {hex(WS_FH)}
        s_mul_i32 s34, s33, {28*1024}
        s_add_u32 s34, s34, {hex(WS_H + half * NA * 1024)}
        v_lshrrev_b32 v10, 2, v0
        v_lshrrev_b32 v4, 1, v10
        v_and_b32 v4, 3, v4
        v_lshlrev_b32 v21, 5, v4
        v_and_b32 v13, 3, v0
        v_lshlrev_b32 v13, 3, v13
        v_lshl_add_u32 v13, v10, 7, v13
        s_lshl_b32 s35, s32, 12
        s_add_u32 s35, s35, {7*16384}
        v_add_u32 v14, s35, v2
        v_lshlrev_b32 v19, 6, v0
        """)
        for dt in range(4):
            k(f'v_xor_b32 v{192+dt}, {32*dt}, v21\n v_add_u32 v{192+dt}, v{192+dt}, v13')
            if half: k(f'v_add_u32 v{192+dt}, {NA*32*128}, v{192+dt}')
    def p3gemm(name, NK, hook=None):
        def aread(kk):
            for dt in range(4):
                for hh in range(2):
                    r = A3 + (kk & 1) * 16 + dt * 4 + hh * 2
                    k(f'ds_read_b64_tr_b16 v[{r}:{r+1}], v{192 + dt} offset:{(32 * kk + 16 * hh) * 128}')
        if name:
            k('s_cmp_lg_u32 s3, 0\n s_cbranch_scc1 L_nofh')
            poll(k, name, 'buffer_load_dword v20, v19, s[12:15], s37 offen sc1', [20], lanes='s_mov_b32 exec_lo, 0x0fffffff\n s_mov_b32 exec_hi, 0', nap=int(opt.get('nap', 1)))
            k('L_nofh:'); G.stamp(3, '9')
        k('s_barrier')
        G.stamp(13); G.stamp(6, '7'); G.stamp(9, '9')
        def hload(kk):
            k(f'buffer_load_dwordx4 v[{HB+4*kk}:{HB+4*kk+3}], v2, s[12:15], s34 offen offset:{1024*(kk%4)} {ZF}')
            if kk % 4 == 3: k('s_add_u32 s34, s34, 4096')
        for kk in range(HD): hload(kk)
        aread(0)
        for kk in range(NK):
            if kk < NK - 1: aread(kk + 1)
            k(f's_waitcnt vmcnt({min(HD - 1, NK - 1 - kk)}) lgkmcnt({8 if kk < NK - 1 else 0})')
            if kk in (0, 4, 8): G.stamp(7 + kk // 4, '7')
            for dt in range(4):
                mfma(k, AC3 + 4 * dt, A3 + (kk & 1) * 16 + dt * 4, HB + 4 * kk, '0' if kk == 0 else None)
            if kk + HD < NK: hload(kk + HD)
            if kk == 0 and hook: hook()
    p3setup(0)
    k(f"""
    s_lshl_b32 s36, s36, 6
    v_mov_b32 v12, s36
    {G.st(3, '7')}
    s_waitcnt vmcnt(0)
    {G.st(4, '7')}
    {G.st(2, '9')}
    s_mov_b64 exec, 1
    buffer_store_dword v{TAG}, v12, s[12:15], s37 offen sc1
    s_mov_b64 exec, -1
    s_waitcnt lgkmcnt(0)
    """)
    p3gemm('pfh', NA)
    G.stamp(14); G.stamp(11, '7')
    k(f"""
    s_lshl_b32 s36, s32, 5
    v_xor_b32 v12, s36, v21
    v_add_u32 v12, v12, v13
    v_add_u32 v12, {L_R}, v12
    s_lshl_b32 s36, s32, 7
    s_add_u32 s36, s36, {L_R + 8192}
    v_lshlrev_b32 v11, 3, v8
    v_add_u32 v11, s36, v11
    s_barrier
    {G.st(12, '7')}
    ds_read_b64 v[4:5], v11
    """)
    for dt in range(4): k(f'ds_read_b128 v[{96+4*dt}:{99+4*dt}], v14 offset:{1024*dt}')
    for dt in range(4): k(f'ds_read_b64_tr_b16 v[{32+2*dt}:{33+2*dt}], v12 offset:{2048*dt}')
    k(f"""
    v_mul_u32_u24 v10, 896, v8
    v_lshrrev_b32 v11, 1, v9
    v_lshl_add_u32 v10, v11, 4, v10
    v_and_b32 v11, 1, v9
    v_lshl_add_u32 v10, v11, 5, v10        ; t*896 + (g>>1)*16 + (g&1)*32
    s_mul_i32 s36, s33, {16*896}
    s_lshl_b32 s37, s29, 7
    s_add_u32 s36, s36, s37
    s_waitcnt lgkmcnt(0)
    v_mov_b32 v6, v4
    v_mov_b32 v7, v4
    v_mov_b32 v4, v5
    """)
    for i in range(8): pk(k, 'add', AC3 + 2 * i, AC3 + 2 * i, 96 + 2 * i)
    its = [(AC3 + 4 * dt + 2 * p, 32 + 2 * dt + p, 48 + 4 * (2 * dt + p)) for dt in range(4) for p in range(2)]
    for c, a, t in its: cvt(k, c, c, c + 1)
    for c, a, t in its: lo(k, t, a); hi(k, t + 1, a); lo(k, t + 2, c); hi(k, t + 3, c)
    for c, a, t in its: pk(k, 'mul', t, t, 6); pk(k, 'mul', t + 2, t + 2, 4)
    for c, a, t in its: cvt(k, a, t, t + 1); cvt(k, c, t + 2, t + 3)
    for c, a, t in its: lo(k, t, a); hi(k, t + 1, a); lo(k, t + 2, c); hi(k, t + 3, c)
    for c, a, t in its: pk(k, 'add', t, t, t + 2)
    for c, a, t in its: cvt(k, a, t, t + 1)
    for pr in range(2):
        o = 32 + 4 * pr
        k(f'v_permlane16_swap_b32 v{o}, v{o+2}\n v_permlane16_swap_b32 v{o+1}, v{o+3}')
    for pr in range(2):
        o = 32 + 4 * pr
        k(f'buffer_store_dwordx4 v[{o}:{o+3}], v10, s[16:19], s36 offen offset:{64*pr}')
    k(f"""
    s_lshl_b32 s35, s2, 3
    s_add_u32 s35, s35, s3
    s_cmp_lg_u32 s35, 0
    s_cbranch_scc1 L_A_fin
    s_mov_b32 s35, {hex(WS_EP)}
    v_mov_b32 v1, 0
    s_mov_b64 exec, 1
    buffer_store_dword v{TAG}, v1, s[12:15], s35 offen sc1
    s_mov_b64 exec, -1
L_A_fin:
    """)
    if opt.get('ghold'):
        k('v_mov_b32 v101, 0\n buffer_load_dword v100, v101, s[68:71], 0 offen sc1\n s_waitcnt vmcnt(0)\n v_readfirstlane_b32 s64, v100\n s_nop 3\n s_not_b32 s64, s64')
    if opt.get('hold'):
        k(f"""
L_hold:
        s_memrealtime s[66:67]
        s_waitcnt lgkmcnt(0)
        s_sub_u32 s66, s66, s64
        s_cmp_lt_u32 s66, {opt['hold']}
        s_cbranch_scc1 L_hold
        """)
    G.stamp(13, '7')
    if opt.get('stamp'): k('s_waitcnt vmcnt(0)')
    G.stamp(15); G.stamp(14, '7')
    G.flush(16, 'A')
    k('s_endpgm')

    k('L_B:')
    common2()
    k(f"""
    s_mul_i32 s39, s32, {KG_WAVE}
    s_add_u32 s39, s39, {L_KG}
    """)
    k(tagcalc)
    G.stamp(1, '2')
    def wb(j, w): return G.st(2 + 2 * j, '2') + (f's_waitcnt vmcnt({w})\n' if w is not None else '') + G.st(3 + 2 * j, '2') + 's_barrier\n'
    k(wb(0, None) + w2stage(2))
    w1setup(18)
    k(f"""
    s_lshl_b32 s41, s31, 1
    v_mul_u32_u24 v7, {KG_ROW}, v0
    v_add_u32 v7, s39, v7
    v_lshrrev_b32 v1, 5, v0
    v_lshrrev_b32 v3, 2, v8
    v_lshl_add_u32 v1, v1, 2, v3
    v_mul_u32_u24 v1, {KG_ROW}, v1
    v_and_b32 v3, 1, v9
    v_lshl_add_u32 v1, v3, 5, v1
    v_and_b32 v3, 3, v0
    v_lshl_add_u32 v1, v3, 3, v1
    v_add_u32 v1, s39, v1
    """)
    k(wb(1, None) + w2stage(3) + w2stage(4))
    k(f"""
    s_and_b32 s35, s28, 7
    s_lshl_b32 s35, s35, 2
    s_add_u32 s35, s35, s32
    s_mul_i32 s42, s35, {14*3584}
    s_lshl_b32 s35, s29, 8
    s_add_u32 s42, s42, s35
    v_min_u32 v16, 27, v0
    v_lshrrev_b32 v17, 1, v16
    v_mul_u32_u24 v17, 3584, v17
    v_and_b32 v16, 1, v16
    v_lshl_add_u32 v16, v16, 7, v17
    v_lshrrev_b32 v156, 2, v8
    v_lshl_add_u32 v156, v9, 3, v156         ; 8g + r
    v_lshrrev_b32 v157, 1, v156
    v_and_b32 v157, 7, v157
    v_and_b32 v158, 3, v0
    v_lshrrev_b32 v159, 1, v158
    s_lshl_b32 s35, s32, 1
    v_add_u32 v159, s35, v159
    v_xor_b32 v157, v157, v159
    v_lshlrev_b32 v157, 4, v157
    v_lshl_add_u32 v157, v156, 7, v157
    v_and_b32 v158, 1, v158
    v_lshl_add_u32 v157, v158, 3, v157
    s_add_u32 s35, s29, 7
    s_sub_u32 s35, s35, s31
    s_cmp_ge_u32 s35, 7
    s_cselect_b32 s63, 7, 0
    s_sub_u32 s35, s35, s63
    s_lshl_b32 s35, s35, 13
    s_add_u32 s35, s35, {L_X}
    v_add_u32 v157, s35, v157                ; hh = 0
    v_xor_b32 v158, 32, v157
    v_add_u32 v158, 512, v158                ; hh = 1
    v_lshlrev_b32 v159, 12, v8
    v_lshl_add_u32 v159, v9, 4, v159
    s_lshl_b32 s36, s29, 2
    s_add_u32 s36, s36, s32
    s_lshl_b32 s36, s36, 16
    s_lshl_b32 s35, s28, 7
    s_add_u32 s36, s36, s35
    s_add_u32 s36, s36, {hex(WS_UT)}
    s_lshl_b32 s37, s29, 5
    s_add_u32 s37, s37, s28
    s_lshl_b32 s37, s37, 2
    s_add_u32 s37, s37, s32
    s_lshl_b32 s37, s37, 2
    s_add_u32 s37, s37, {hex(WS_FU)}
    """)
    da = float(opt.get('kga', 0.06)); db = float(opt.get('kgb', 0.09))
    k('s_waitcnt vmcnt(18)')
    d0 = float(opt.get('kg0', 0.0))
    EV = [(d0, wb(2, 12) + w2stage(5)), (d0 + da, wb(3, 12) + w2stage(6) + f'buffer_load_dword v{PRM+9}, v16, s[16:19], s42 offen'),
          (d0 + 2 * da, wb(4, 13) + w1dma(0, 18) + w1dma(1, 18)),
          (d0 + 2 * da + db, wb(5, 11) + w1dma(2, 18) + w1dma(3, 18)),
          (d0 + 2 * da + 2 * db, wb(6, 9) + w1dma(4, 18) + w1dma(5, 18))]
    t = K('w')
    for hf in range(2):
        t(f'ds_read_b64_tr_b16 v[{160+4*hf}:{161+4*hf}], v157 offset:{4096*hf}\n ds_read_b64_tr_b16 v[{162+4*hf}:{163+4*hf}], v158 offset:{4096*hf}')
    t('s_waitcnt lgkmcnt(0)')
    t('s_barrier\n' + w1dma(6, 18) + w1dma(7, 18))
    for hf in range(2): t(f'buffer_store_dwordx4 v[{160+4*hf}:{163+4*hf}], v159, s[12:15], s36 offen offset:{64*hf} sc1')
    t(G.st(1))
    EV.append((d0 + 2 * da + 3 * db, t.lines))
    DP = 232; DT = PRM + 8
    def kgen(t, c, hook=None):
        if c == 0:
            t(f'v_lshlrev_b32 v{DT}, 16, v{DT}\n v_mul_f32 v{DT}, {f32hex(L2E)}, v{DT}\n v_exp_f32 v{DT}, v{DT}')
            cvt(t, DT, DT, DT); lo(t, DT, DT)
        Z1_, Z8, Z256, Z2_, Z4 = 32, 35, 38, 41, 44
        V, PKD, XA_, XB_ = 128, 48, 56, 58
        p = PRM + 4 * c
        t(f"""
        v_lshlrev_b32 v{p}, 16, v{p}
        v_mul_f32 v{p}, {f32hex(L2E)}, v{p}
        v_exp_f32 v{p}, v{p}
        v_lshlrev_b32 v{p+1}, 16, v{p+1}
        v_lshlrev_b32 v{p+2}, 16, v{p+2}
        v_lshlrev_b32 v{p+3}, 16, v{p+3}
        v_cvt_pk_bf16_f32 v{p}, v{p}, v{p}
        v_mul_f32 v{p+1}, v{p+1}, v{DT}
        v_lshlrev_b32 v{p}, 16, v{p}
        v_mul_f32 v{p+1}, 0.15915494, v{p+1}
        v_mul_f32 v{p}, v{p}, v{DT}
        v_add_f32 v60, v{DT}, v{DT}
        v_mul_f32 v{p}, {f32hex(-L2E)}, v{p}
        v_mul_f32 v{XA_}, v{p+2}, v60
        v_mul_f32 v{XA_+1}, v{p+3}, v60
        """)
        for (d, e) in ((Z8, 8), (Z1_, 1), (Z256, 256)):
            t(f"""
            v_mul_f32 v60, {f32hex(float(e))}, v{p}
            v_mul_f32 v61, {f32hex(float(e))}, v{p+1}
            v_exp_f32 v60, v60
            v_fract_f32 v61, v61
            v_cos_f32 v{d}, v61
            v_sin_f32 v{d+1}, v61
            v_mul_f32 v{d}, v{d}, v60
            v_mul_f32 v{d+1}, v{d+1}, v60
            v_sub_f32 v{d+2}, 0, v{d+1}
            """)
        def put(q, vals, neg):
            for i in range(4):
                cvt(t, PKD + i, vals[2 * i], vals[2 * i + 1])
            t(f'ds_write_b128 v7, v[{PKD}:{PKD+3}] offset:{16*q}')
            n = '-' if neg else ''
            for i in range(4):
                t(f'v_cvt_pk_bf16_f32 v{PKD+4+i}, {n}v{vals[2*i]+1}, {n}v{vals[2*i+1]+1}')
            t(f'ds_write_b128 v7, v[{PKD+4}:{PKD+7}] offset:{64 + 16*q}')
        vs = [V + 2 * i for i in range(8)]
        t(f'v_mov_b32 v{V}, 1.0\n v_mov_b32 v{V+1}, 0')
        for q in range(4):
            for i in range(8):
                if q == 0 and i == 0: continue
                if q == 0 and i == 1: t(f'v_mov_b32 v{vs[1]}, v{Z8}\n v_mov_b32 v{vs[1]+1}, v{Z8+1}')
                else: cmul(t, vs[i], vs[i - 1], Z8)
            if q == 0 and hook: hook(t)
            put(q, vs, True)
        cmul(t, Z2_, Z1_, Z1_); t(f'v_sub_f32 v{Z2_+2}, 0, v{Z2_+1}')
        cmul(t, Z4, Z2_, Z2_); t(f'v_sub_f32 v{Z4+2}, 0, v{Z4+1}')
        t('s_waitcnt lgkmcnt(0)')
        FB, FA = 64, 96
        def frags(F):
            for ks in range(8):
                t(f'ds_read_b64_tr_b16 v[{F+4*ks}:{F+4*ks+1}], v1 offset:{8*KG_ROW*ks}\n ds_read_b64_tr_b16 v[{F+4*ks+2}:{F+4*ks+3}], v1 offset:{8*KG_ROW*ks + 64}')
        frags(FB)
        cmul(t, vs[1], XA_, Z1_)
        for i in range(2, 8): cmul(t, vs[i], vs[i - 1], Z1_)
        t('s_waitcnt lgkmcnt(0)')
        put(0, [XA_] + vs[1:], False)
        cmul(t, XB_, XA_, Z256)
        cmul(t, vs[1], XB_, Z2_)
        for i in range(2, 5): cmul(t, vs[i], vs[i - 1], Z2_)
        put(1, [XB_, vs[1], vs[2], vs[2], vs[2], vs[3], vs[4], vs[4]], False)
        cmul(t, XA_, XB_, Z256); cmul(t, vs[0], XA_, Z4); cmul(t, vs[1], vs[0], Z4)
        cmul(t, XB_, XA_, Z256); cmul(t, vs[2], XB_, Z4); cmul(t, vs[3], vs[2], Z4)
        put(2, [XA_, vs[0], XB_, vs[2], vs[0], vs[1], vs[2], vs[3]], False)
        cmul(t, vs[0], XB_, Z256)
        for i in range(1, 4): cmul(t, vs[i], vs[i - 1], Z256)
        for i in range(4): cmul(t, vs[4 + i], vs[i], Z8)
        put(3, vs, False)
        t('s_waitcnt lgkmcnt(0)')
        frags(FA)
        for ks in range(8):
            t(f's_waitcnt lgkmcnt({14-2*ks})')
            cin = '0' if (ks == 0 and c == 0) else f'v[{DP}:{DP+15}]'
            t(f'v_mfma_f32_32x32x16_bf16 v[{DP}:{DP+15}], v[{FA+4*ks}:{FA+4*ks+3}], v[{FB+4*ks}:{FB+4*ks+3}], {cin}')
    EV[-1] = (EV[-1][0], '\n'.join(EV[-1][1]))
    t = K('w'); t('s_waitcnt vmcnt(2)'); post(t, 1)
    t2 = f's_waitcnt vmcnt(0)\n v_mov_b32 v10, 0\n s_mov_b64 exec, 1\n buffer_store_dword v{TAG}, v10, s[12:15], s37 offen sc1\n s_mov_b64 exec, -1'
    f7 = EV[-1][0]
    B_, B2, A_, Wt, UR, AC, P = 32, 80, 112, 144, 168, 176, 192
    fuload = 'buffer_load_dwordx2 v[176:177], v5, s[12:15], s36 offen sc1'
    t3 = f"""
    s_lshr_b32 s36, s20, 6
    s_lshl_b32 s36, s36, 9
    s_add_u32 s36, s36, {hex(WS_FU)}
    v_lshlrev_b32 v5, 3, v0
    {fuload}
    s_lshl_b32 s23, s20, 12                ; ch*4096
    s_add_u32 s44, s12, {hex(WS_UT)}
    s_addc_u32 s45, s13, 0
    s_add_u32 s44, s44, s23
    s_addc_u32 s45, s45, 0
    s_mov_b32 s46, 4096
    s_mov_b32 s47, 0x20000
    """
    for q in range(5):
        t3 += f'v_add_u32 v{180+q}, {64*q}, v0\n v_mul_u32_u24 v6, 3856, v{180+q}\n v_lshrrev_b32 v6, 16, v6\n v_sub_u32 v{180+q}, v{180+q}, v6\n v_lshlrev_b32 v{180+q}, 4, v{180+q}\n v_add_u32 v{180+q}, -16, v{180+q}\n'
    t3 += f"""
    v_mul_u32_u24 v6, 272, v8
    s_lshl_b32 s35, s22, 3
    s_add_u32 s35, s35, s39
    v_lshl_add_u32 v185, v9, 4, v6
    v_add_u32 v185, s35, v185              ; a*272 + g*16 + 8hf
    v_lshl_add_u32 v186, v9, 6, v6
    v_add_u32 v186, s35, v186              ; a*272 + g*64 + 8hf
    """
    k.lines += weave(sub(kgen, 0), EV + [(f7 + float(opt.get('kgp', 0.06)), '\n'.join(t.lines)), (min(f7 + float(opt.get('kgu', 0.2)), 0.9), t2), (0.93, t3)])
    G.stamp(2)
    if opt.get('kprio'): k(f"s_setprio {opt['kprio']}")
    poll(k, 'pfu', fuload, [176, 177], nap=2, first_issued=True)
    for q in range(5):
        k(f's_add_u32 m0, s39, {q*1024}')
        if q == 4: k('s_mov_b64 exec, 0xffff')
        k(f'buffer_load_dwordx4 v{180+q}, s[44:47], 0 offen sc1 lds')
    k('s_mov_b64 exec, -1')
    G.stamp(3)
    def uhook(t):
        t('s_waitcnt vmcnt(0)')
        for kk in range(4):
            for m in range(3): t(f'ds_read_b64 v[{Wt+6*kk+2*m}:{Wt+6*kk+2*m+1}], v185 offset:{64*kk + 8*m}')
        t('s_waitcnt lgkmcnt(8)')
        for i in range(4): t(f'ds_read_b64 v[{UR+2*i}:{UR+2*i+1}], v186 offset:{16 + 16*i}')
        t('s_waitcnt lgkmcnt(0)')
    kgen(k, 1, uhook)
    G.stamp(5)
    k(f"""
    s_mul_i32 s38, s21, 4352
    s_xor_b32 s35, s3, 1
    s_lshl_b32 s35, s35, 2
    v_add_u32 v21, s35, v22
    s_cmp_eq_u32 s22, 0
    s_cbranch_scc1 L_B_fin
    v_add_u32 v1, s39, v2
    """)
    for q in range(4): k(f'ds_write_b128 v1, v[{DP+4*q}:{DP+4*q+3}] offset:{1024*q}')
    k('s_waitcnt lgkmcnt(0)'); post(k, 100)
    k('s_branch L_B_join')
    k(f'L_B_fin:\n s_add_u32 s35, s39, {KG_WAVE}\n v_add_u32 v1, s35, v2')
    waitfor(k, 'wbp', 0, 1, 100, 32, base=21)
    for q in range(4): k(f'ds_read_b128 v[{80+4*q}:{83+4*q}], v1 offset:{1024*q}')
    k(f"""
    v_and_b32 v5, 31, v0
    v_lshlrev_b32 v5, 4, v5
    v_lshrrev_b32 v7, 5, v0
    v_xor_b32 v6, 1, v7
    v_lshl_add_u32 v5, v6, 3, v5
    s_add_u32 s35, s38, {L_KI + 256}
    v_add_u32 v5, s35, v5                  ; KI + j*16 + 8*(1-h)
    v_lshlrev_b32 v6, 2, v0
    s_add_u32 s35, s38, {L_KI}
    v_add_u32 v6, s35, v6
    s_waitcnt lgkmcnt(0)
    """)
    post(k, 100)
    for i in range(8): pks(k, 'add', 64 + 2 * i, DP + 2 * i, 80 + 2 * i)
    k('v_cmp_eq_u32 vcc, 1, v7\n v_cndmask_b32 v80, v72, v73, vcc\n v_cndmask_b32 v81, v74, v75, vcc')
    k('v_and_b32 v7, 1, v0\n v_cmp_eq_u32 vcc, 1, v7')
    for i in range(4): k(f'v_mov_b32 v{84+i}, v{76+i}\n v_mov_b32 v{88+i}, v{76+i}')
    for i in range(4): k(f'v_permlane32_swap_b32 v{84+i}, v{88+i}')
    for i in range(4): k(f'v_cndmask_b32 v{84+i}, v{84+i}, v{76+i}, vcc')
    blks = [(67, 66, 65, 64), (70, 69, 68, 68), (73, 80, 72, 72), (75, 81, 74, 74)] + [(76 + i, 76 + i, 76 + i, 84 + i) for i in range(4)]
    for b, (a0, a1, a2, a3) in enumerate(blks): cvt(k, 96 + 2 * b, a0, a1); cvt(k, 97 + 2 * b, a2, a3)
    waitfor(k, 'wbb0', 16, 4, 100, 32)
    k('v_mov_b32 v3, 0\n ds_write_b32 v6, v3')
    for b in range(8): k(f'ds_write_b64 v5, v[{96+2*b}:{97+2*b}] offset:{512*b}')
    k('s_waitcnt lgkmcnt(0)\nL_B_join:')
    post(k, 101)
    srd(k, 8, 48, 49, 0x800000)
    k(f"""
    v_lshrrev_b32 v10, 3, v0
    v_lshl_add_u32 v10, v10, 12, v20
    v_add_u32 v11, 128, v10
    v_xor_b32 v12, 64, v10
    v_add_u32 v12, 0x8000, v12
    v_add_u32 v13, 128, v12
    s_lshl_b32 s42, s28, 2
    s_add_u32 s42, s42, s32
    s_lshl_b32 s42, s42, 16
    s_add_u32 s42, s42, {7*256}
    s_lshl_b32 s43, s32, 11
    s_add_u32 s43, s43, {PI[7]*16384}
    s_mov_b32 s40, {hex(((PI_WORD << 4) | PI[7]) & 0xffffffff)}
    s_mov_b32 s41, {PI[7]}
    s_mov_b32 s44, 7
    s_mov_b32 s46, 9
    v_lshrrev_b32 v3, 3, v0
    v_and_b32 v16, 6, v3
    v_and_b32 v17, 7, v0
    v_xor_b32 v16, v16, v17
    v_lshlrev_b32 v16, 4, v16
    v_lshl_add_u32 v17, v3, 12, v16
    v_mul_u32_u24 v3, 896, v3
    v_add_u32 v16, v16, v3
    s_lshl_b32 s35, s29, 7
    s_mul_i32 s37, s32, {8*896}
    s_add_u32 s37, s37, s35
    s_getpc_b64 s[50:51]
L_pc2:
    s_add_u32 s50, s50, L_stage-L_pc2
    s_addc_u32 s51, s51, 0
    """)
    srd(k, 16, 52, 53, 896 * 896)
    LC = 216
    ldread = f'ds_read_b128 v[{LC}:{LC+3}], v22'
    def ldstep(name):
        k(f"""
        v_min3_u32 v{LC}, v{LC}, v{LC+1}, v{LC+2}
        v_min_u32 v{LC}, v{LC}, v{LC+3}
        v_cmp_gt_u32 vcc, s46, v{LC}
        s_cbranch_vccnz L_{name}_no
        s_swappc_b64 s[52:53], s[50:51]
L_{name}_no:
        """)
    k(f"""
    v_sub_u32 v5, v8, v9
    v_lshlrev_b32 v5, 4, v5
    s_add_u32 s35, s38, {L_KI + 64 + 15*256}
    v_add_u32 v5, s35, v5
    v_cmp_ne_u32 vcc, 8, v8
    v_cndmask_b32 v15, 0, -1, vcc
    v_cmp_gt_u32 vcc, 8, v8
    """)
    G.stamp(6)
    def BF(kk, rr): return Wt + 6 * kk + 2 if rr == 3 else B_ + (kk * 3 + rr) * 4
    for kk in range(4):
        w = Wt + 6 * kk
        for j in range(4):
            k(f'v_alignbit_b32 v{BF(kk,0)+j}, v{w+j+1}, v{w+j}, 16\n v_mov_b32 v{BF(kk,1)+j}, v{w+j+1}\n v_alignbit_b32 v{BF(kk,2)+j}, v{w+j+2}, v{w+j+1}, 16')
    for kk in range(4):
        for p in range(2):
            for j in range(4):
                k(f'v_cndmask_b32_dpp v{B2 + (kk*2+p)*4 + j}, v{BF(kk,2*p+1)+j}, v{BF(kk,2*p)+j}, vcc row_shr:8 row_mask:0xf bank_mask:0xf bound_ctrl:1')
    for j in range(8): k(f'v_mov_b32 v{P+j}, 0')
    def cread(buf):
        for kk in range(4):
            r = A_ + buf * 16 + kk * 4
            k(f'ds_read_b128 v[{r}:{r+3}], v5 offset:{192 - 64*kk}')
        k('v_add_u32 v5, -256, v5')
    waitfor(k, 'wbq', 0, 1, 101, LC, base=21)
    cread(0)
    G.stamp(7)
    if opt.get('kprio'): k('s_setprio 0')
    if opt.get('bprio'): k(f"s_setprio {opt['bprio']}")
    shp = lambda r: f'v_and_b32_dpp v{r}, v{r}, v15 row_shr:1 row_mask:0xf bank_mask:0xf bound_ctrl:1'
    shf = lambda r: f'v_mov_b32_dpp v{r}, v{r} row_shr:1 row_mask:0xf bank_mask:0xf bound_ctrl:1'
    k('s_mov_b32 s7, 0' + ('\n s_branch L_B_last' if opt.get('noconv') else '') + '\nL_B_pk:')
    for half in range(2):
        if half == 0: k(ldread)
        cread(1 - half)
        for j in range(4): k(shp(P + j))
        k('s_waitcnt lgkmcnt(4)')
        if half == 0: ldstep('ldp')
        for kk in range(4): mfma(k, P, A_ + half * 16 + kk * 4, B2 + (kk * 2) * 4); k(shp(P + 4 + kk))
        for kk in range(4): mfma(k, P + 4, A_ + half * 16 + kk * 4, B2 + (kk * 2 + 1) * 4)
    k('s_add_u32 s7, s7, 1\n s_cmp_lt_u32 s7, 4\n s_cbranch_scc1 L_B_pk')
    for j in range(4): k(f'v_mov_b32_dpp v{AC + j}, v{P+j} row_shr:1 row_mask:0xf bank_mask:0xf bound_ctrl:1')
    for j in range(4): k(f'v_mov_b32_dpp v{AC + 4 + j}, v{P+j} row_shl:8 row_mask:0xf bank_mask:0xf bound_ctrl:1')
    for j in range(4): k(f'v_mov_b32 v{AC + 8 + j}, v{P+4+j}')
    for j in range(4): k(f'v_mov_b32_dpp v{AC + 12 + j}, v{P+4+j} row_shl:8 row_mask:0xf bank_mask:0xf bound_ctrl:1')
    k('s_mov_b32 s7, 0\nL_B_fl:')
    for half in range(2):
        k(ldread)
        cread(1 - half)
        k('s_waitcnt lgkmcnt(4)')
        ldstep(f'ldf{half}')
        for rr in range(4):
            if rr == 3 and half == 1: k('s_add_u32 s7, s7, 1\n s_cmp_eq_u32 s7, 4\n s_cbranch_scc1 L_B_last')
            for kk in range(4):
                mfma(k, AC + 4 * rr, A_ + half * 16 + kk * 4, BF(kk, rr))
                k(shf(AC + 4 * ((rr + 1) % 4) + kk))
    k('s_branch L_B_fl\nL_B_last:\n s_nop 1')
    for kk in range(4): mfma(k, AC + 12, A_ + 16 + kk * 4, BF(kk, 3))
    G.stamp(8)
    if opt.get('bprio'): k('s_setprio 0')
    k(f"""
    s_lshl_b32 s35, s22, 3
    s_add_u32 s35, s35, s38
    s_add_u32 s35, s35, {L_U + 16}
    v_mul_u32_u24 v6, 272, v8
    v_lshl_add_u32 v7, v9, 6, v6
    v_add_u32 v7, s35, v7
    s_lshl_b32 s35, s21, 4
    s_lshr_b32 s30, s30, s35
    s_lshl_b32 s30, s30, 16
    v_mov_b32 v18, s30
    v_mov_b32 v19, s30
    """)
    its = [(UR + 2 * i + p, AC + 8 * p + i, AC + 8 * p + 4 + i, 48 + 4 * (2 * i + p), 40 + 2 * i + p) for i in range(4) for p in range(2)]
    for u, y0, y1, t, y in its: cvt(k, y, y0, y1); lo(k, t, u); hi(k, t + 1, u)
    for u, y0, y1, t, y in its: pks(k, 'mul', t, t, 18)
    for u, y0, y1, t, y in its: cvt(k, u, t, t + 1); lo(k, t + 2, y); hi(k, t + 3, y)
    for u, y0, y1, t, y in its: lo(k, t, u); hi(k, t + 1, u)
    for u, y0, y1, t, y in its: pks(k, 'add', t, t, t + 2)
    for u, y0, y1, t, y in its: cvt(k, u, t, t + 1)
    for i in range(4): k(f'ds_write_b64 v7, v[{UR+2*i}:{UR+2*i+1}] offset:{16*i}')
    k(f"""
    s_lshl_b32 s35, s22, 3
    v_add_u32 v7, s35, v9
    v_mul_u32_u24 v7, 272, v7
    v_lshl_add_u32 v7, v8, 4, v7
    s_add_u32 s35, s38, {L_U + 16}
    v_add_u32 v7, s35, v7
    s_lshl_b32 s36, s22, 11
    s_add_u32 s36, s36, s23
    s_add_u32 s36, s36, {hex(WS_AT)}
    s_waitcnt lgkmcnt(0)
    """)
    post(k, 103)
    k(ldread + '\n s_waitcnt lgkmcnt(0)'); ldstep('lde')
    waitfor(k, 'wbr', 0, 1, 103, 32, base=21)
    k(f"""
    ds_read_b128 v[32:35], v7
    ds_read_b128 v[36:39], v7 offset:{4*272}
    s_waitcnt lgkmcnt(0)
    buffer_store_dwordx4 v[32:35], v2, s[12:15], s36 offen sc1
    buffer_store_dwordx4 v[36:39], v2, s[12:15], s36 offen offset:1024 sc1
    """)
    k(f"""
    s_lshl_b32 s30, s20, 3
    s_lshl_b32 s35, s22, 2
    s_add_u32 s30, s30, s35
    s_add_u32 s30, s30, {hex(WS_FA)}
    """)
    G.stamp(9)
    G.stamp(1, '7')
    faload = 'buffer_load_dwordx2 v[96:97], v1, s[12:15], s39 offen sc1\n buffer_load_dwordx4 v[100:103], v2, s[12:15], s5 offen sc1'
    atile = f"""
    s_lshl_b32 s36, s29, 18
    s_lshl_b32 s35, s28, 7
    s_add_u32 s36, s36, s35
    s_add_u32 s36, s36, {hex(WS_AT)}
    """
    for q in range(8): atile += f's_mov_b32 m0, {L_R + 1024*q}\n s_nop 0\n buffer_load_dwordx4 v17, s[12:15], s36 offen sc1 lds\n s_add_u32 s36, s36, 0x8000\n'
    atile += f"""
    s_lshl_b32 s36, s28, 9
    s_add_u32 s36, s36, {hex(WS_G2)}
    s_mov_b32 m0, {L_R + 8192}
    s_mov_b32 exec_hi, 0
    buffer_load_dwordx4 v2, s[12:15], s36 offen sc1 lds
    s_mov_b32 exec_hi, -1
    s_mov_b32 s7, 1
    """
    k(f"""
    s_lshl_b32 s39, s29, 9
    s_add_u32 s39, s39, {hex(WS_FA)}
    s_mov_b32 s5, {hex(WS_FG)}
    v_lshlrev_b32 v1, 3, v0
    v_mov_b32 v3, 0
    s_min_u32 s7, s32, 1
    s_add_u32 s47, s44, 2
    s_mov_b32 s62, {POLL_LIMIT*16}
    s_cmp_eq_u32 s44, 23
    s_cbranch_scc1 L_B_ldd
L_B_ld:
    {ldread}
    s_waitcnt lgkmcnt(0)
    """)
    ldstep('ldl')
    k(f"""
    s_cmp_lg_u32 s44, s47
    s_cbranch_scc1 L_B_nf
    s_mov_b32 s47, 0
    s_mov_b64 exec, 1
    buffer_store_dword v{TAG}, v3, s[12:15], s30 offen sc1
    s_mov_b64 exec, -1
L_B_nf:
    s_cmp_eq_u32 s44, 23
    s_cbranch_scc1 L_B_ldd
    s_sub_u32 s62, s62, 1
    s_cbranch_scc0 L_B_ld
L_B_ldd:
    """)
    G.stamp(4, '7')
    p3setup(1)
    k(f"""
    s_setprio 1
    s_waitcnt vmcnt(0)
    s_cmp_eq_u32 s47, 0
    s_cbranch_scc1 L_B_fd
    s_mov_b64 exec, 1
    buffer_store_dword v{TAG}, v3, s[12:15], s30 offen sc1
    s_mov_b64 exec, -1
L_B_fd:
    s_cmp_eq_u32 s7, 1
    s_cbranch_scc1 L_B_nl
    {faload}
L_B_nl:
    """)
    G.stamp(10); G.stamp(2, '7'); G.stamp(8, '9')
    def facheck():
        k(f's_cmp_eq_u32 s7, 1\n s_cbranch_scc1 L_B_na\n v_cmp_ne_u32 vcc, v{TAG}, v96')
        for r in (97, 100, 101, 102, 103): k(f'v_cmp_ne_u32 s[54:55], v{TAG}, v{r}\n s_or_b64 vcc, vcc, s[54:55]')
        k('s_cbranch_vccnz L_B_na' + atile + 'L_B_na:')
    p3gemm(None, 28 - NA, facheck)
    for dt in range(4): k(f'ds_write_b128 v14, v[{AC3+4*dt}:{AC3+4*dt+3}] offset:{1024*dt}')
    k('s_cmp_eq_u32 s7, 1\n s_cbranch_scc1 L_B_late1')
    poll(k, 'pfa', faload, [96, 97, 100, 101, 102, 103], nap=2)
    k(atile + 'L_B_late1:\n s_waitcnt vmcnt(0) lgkmcnt(0)')
    G.stamp(11); G.stamp(11, '7')
    k('s_barrier')
    G.flush(16)
    k('s_endpgm')
    k('L_stage:\n s_cmp_ge_u32 s44, 16\n s_cbranch_scc1 L_st_wo')
    for j in range(4): k(spdma(j, dyn=True))
    k(f"""
    s_branch L_st_po
L_st_wo:
    s_lshl_b32 s6, s44, 2
    s_lshr_b32 s6, {hex(PI_WORD)}, s6
    s_and_b32 s6, s6, 15
    s_mul_i32 s35, s6, {128*896}
    s_add_u32 s35, s35, s37
    s_lshl_b32 s6, s6, 4
    s_add_u32 s6, s6, s32
    s_lshl_b32 s6, s6, 10
    """)
    for q in range(4):
        k(f's_add_u32 m0, s6, {4096*q}\n s_nop 0\n buffer_load_dwordx4 v16, s[16:19], s35 offen lds' + (f'\n s_add_u32 s35, s35, {32*896}' if q < 3 else ''))
    k(f"""
L_st_po:
    s_sub_u32 s35, s44, 2
    s_min_u32 s35, s35, 15
    s_max_u32 s35, s35, 6
    v_mov_b32 v23, s35
    s_add_u32 s44, s44, 1
    s_add_u32 s46, s44, 3
    s_cmp_eq_u32 s44, 23
    s_cselect_b32 s46, -1, s46
    s_waitcnt vmcnt(8)
    ds_write_b32 v29, v23 offset:16
    """)
    if opt.get('stamp') == '9':
        for n in range(7): k(f's_cmp_lg_u32 s44, {17+n}\n s_cbranch_scc1 L_t9_{n}\n s_memrealtime s[{66+2*n}:{67+2*n}]\nL_t9_{n}:')
    k('s_setpc_b64 s[52:53]')

    k('L_helper:')
    k(f"""
    s_getpc_b64 s[36:37]
L_pc:
    s_sub_u32 s36, s36, L_pc-{NAME}
    s_subb_u32 s37, s37, 0
    s_lshl_b32 s35, s3, 13
    v_lshlrev_b32 v10, 7, v0
    v_add_u32 v10, s35, v10
    v_min_u32 v10, L_end-{NAME}, v10
    global_load_dword v29, v10, s[36:37]
    v_min_u32 v1, 55, v0
    v_lshlrev_b32 v10, 4, v1
    global_load_dwordx4 v[24:27], v10, s[54:55]
    v_lshlrev_b32 v5, 12, v0
    s_lshl_b32 s35, s28, 18
    s_lshl_b32 s22, s3, 7
    s_add_u32 s35, s35, s22
    v_add_u32 v5, s35, v5
    s_and_b32 s35, s3, 1
    s_cmp_eq_u32 s35, 1
    s_cbranch_scc0 L_H_even
    v_mov_b32 v6, v7
L_H_even:
    s_lshl_b32 s20, s28, 3
    s_add_u32 s20, s20, s3
    s_mul_i32 s20, s20, {8*896}
    s_lshl_b32 s21, s3, 10
    v_lshrrev_b32 v10, 3, v1
    v_lshlrev_b32 v10, 13, v10
    v_and_b32 v1, 7, v1
    v_lshl_add_u32 v10, v1, 4, v10
    s_lshl_b32 s23, s28, 3
    s_add_u32 s23, s23, s3
    """)
    for p in range(7):
        k(f's_add_u32 m0, s21, {8192*p}\n buffer_load_dwordx4 v6, s[8:11], s20 offen lds\n s_add_u32 s20, s20, 128')
    k('s_waitcnt vmcnt(0)')
    G.stamp(1)
    for r in range(4): k(f'global_load_dword v29, v5, s[48:49] offset:{1024*r}')
    k(tagcalc + '\n s_barrier')
    K0 = int(opt.get('zk0', 6))
    k(f"""
    s_and_b32 s35, s2, 1
    s_mul_i32 s35, s35, 3
    s_add_u32 s35, s35, s32
    s_lshl_b32 s36, s35, 11
    s_add_u32 s36, s36, {hex(WS_FZ)}
    s_and_b32 s37, s28, 3
    s_lshl_b32 s37, s37, 1
    s_lshr_b32 s38, s3, 2
    s_add_u32 s37, s37, s38
    s_add_u32 s37, s37, {K0}
    s_lshl_b32 s37, s37, 13
    s_lshl_b32 s35, s35, 19
    s_add_u32 s37, s37, s35
    s_add_u32 s38, s35, {64*8192}
    v_lshlrev_b32 v1, 6, v0
    v_lshlrev_b32 v5, 7, v0
    """)
    if opt.get('zpf'):
        k('s_cmp_ge_u32 s3, 4\n s_cbranch_scc1 L_H_nz')
        poll(k, 'hfz', 'buffer_load_dwordx4 v[32:35], v1, s[12:15], s36 offen sc1', [32, 33, 34, 35], lanes='s_mov_b32 exec_hi, 0', nap=int(opt.get('znap', 8)))
        k('L_H_nz:\n s_barrier')
        G.stamp(2)
        k(f"""
L_H_z:
        buffer_load_dword v29, v5, s[12:15], s37 offen sc1
        s_add_u32 s37, s37, {8*8192}
        s_cmp_lt_u32 s37, s38
        s_cbranch_scc1 L_H_z
        """)
    for i in range(8):
        k(f"""
        s_lshl_b32 s35, s3, 2
        s_add_u32 s35, s35, {i >> 1}
        s_and_b32 s35, s35, 7
        s_lshl_b32 s35, s35, 4
        v_xor_b32 v1, s35, v10
        v_add_u32 v1, s21, v1
        ds_read_b128 v[{64+4*i}:{67+4*i}], v1 offset:{128*i}
        """)
    for j in range(4): lo(k, 16 + 2 * j, 24 + j); hi(k, 17 + 2 * j, 24 + j)
    k('v_cmp_gt_u32 vcc, 56, v0\n s_waitcnt lgkmcnt(0)')
    for i in range(8):
        t = 96 + 8 * i
        for j in range(4): lo(k, t + 2 * j, 64 + 4 * i + j); hi(k, t + 2 * j + 1, 64 + 4 * i + j)
        for j in range(4): pk(k, 'mul', t + 2 * j, t + 2 * j, 16 + 2 * j)
        for j in range(4): cvt(k, 64 + 4 * i + j, t + 2 * j, t + 2 * j + 1)
        for j in range(4): lo(k, t + 2 * j, 64 + 4 * i + j); hi(k, t + 2 * j + 1, 64 + 4 * i + j)
        pk(k, 'add', t, t, t + 2); pk(k, 'add', t + 4, t + 4, t + 6); pk(k, 'add', t, t, t + 4)
        k(f'v_add_f32 v{t}, v{t}, v{t+1}\n v_cndmask_b32 v{32+i}, 0, v{t}, vcc')
    rowsum16(k, list(range(32, 40))); xsum4(k, list(range(32, 40)), 40)
    for i in range(1, 8): k(f'v_cmp_eq_u32 vcc, {i}, v0\n v_cndmask_b32 v32, v32, v{32+i}, vcc')
    cvt(k, 32, 32, 32); lo(k, 32, 32)
    k(f'v_mul_f32 v32, {f32hex(-L2E)}, v32\n v_exp_f32 v32, v32\n v_add_f32 v32, 1.0, v32\n v_rcp_f32 v32, v32')
    cvt(k, 32, 32, 32); lo(k, 32, 32)
    k('v_sub_f32 v33, 1.0, v32')
    cvt(k, 33, 33, 33); lo(k, 33, 33)
    k(f"""
    s_lshl_b32 s36, s23, 6
    s_add_u32 s36, s36, {hex(WS_G2)}
    s_lshl_b32 s35, s23, 2
    s_add_u32 s35, s35, {hex(WS_FG)}
    v_lshlrev_b32 v1, 3, v0
    s_mov_b64 exec, 0xff
    buffer_store_dwordx2 v[32:33], v1, s[12:15], s36 offen sc1
    s_waitcnt vmcnt(0)
    s_mov_b64 exec, 1
    buffer_store_dword v{TAG}, v1, s[12:15], s35 offen sc1
    s_mov_b64 exec, -1
    s_and_b32 s35, s28, 3
    s_lshl_b32 s35, s35, 3
    s_add_u32 s35, s35, s3
    s_mul_i32 s35, s35, {28*896}
    s_and_b32 s36, s2, 1
    s_mul_i32 s36, s36, 384
    s_add_u32 s35, s35, s36
    v_min_u32 v5, 55, v0
    v_lshrrev_b32 v1, 2, v5
    v_mul_u32_u24 v1, 896, v1
    v_and_b32 v5, 3, v5
    v_lshl_add_u32 v5, v5, 7, v1
    v_add_u32 v5, s35, v5
    global_load_dword v29, v5, s[52:53]
    v_add_u32 v5, {14*896}, v5
    global_load_dword v29, v5, s[52:53]
    """)
    if opt.get('stamp'): k('s_waitcnt vmcnt(0)')
    G.stamp(3)
    G.flush(4)
    k('L_end:\n s_endpgm')
    return k

if __name__ == '__main__':
    opt = dict(a.split('=') if '=' in a else (a, 1) for a in sys.argv[2:])
    k = gen(opt)
    v, s = k.maxreg()
    ref = open('gated_mix__ssm_conv_s4d__mixer_gmlp__prompt.s.ref').read().split('\n')
    hdr = [l for l in ref if l.startswith(';') and '@launch' not in l and 'Override launch' not in l and 'grid=ceil' not in l]
    txt = '\n'.join(hdr) + (f'\n; @launch kernel={NAME} grid=(256,1,1) block=(512,1,1) lds={LDS}\n' if opt.get('list') else f'\n; @launch grid=(256,1,1) block=(512,1,1) lds={LDS}\n')
    txt += '.amdgcn_target "amdgcn-amd-amdhsa--gfx950"\n.text\n' + k.text(align=(opt.get('align', '1') == '1')) + '.section .rodata,"a"\n' + desc(k.name, v, s)
    open(sys.argv[1], 'w').write(txt)
    print('vgpr', v, 'sgpr', s, 'lines', len(k.lines))
```

```python
import sys, struct
from asmlib import *

NAME = 'gated_mix__ssm_conv_s4d__mixer_gmlp__prompt_kernel'
WS_Z2 = 0x000000
WS_H  = 0x380000
WS_UT = 0x700000
WS_AT = 0x8C0000
WS_G2 = 0xA80000
WS_ST = 0xA90000
WS_FZ = 0xAD0000
WS_FH = 0xAD4000
WS_FA = 0xAE4000
WS_FU = 0xAE5000
WS_FG = 0xAE5E00
WS_FG = 0xAE7000
WS_EP = 0xAE6000
WS_END = 0xAF0000
SZ_Z = 3670016
STAMP_BASE = 0x2000000
L_X = 65536
L_KG = 122880
KG_ROW = 144
KG_WAVE = 64 * KG_ROW
L_U = 131072
L_KI = L_U + 2 * 4352
L_R = L_KI + 2 * 4352
L_Z1 = L_U
L_CNT = 163840 - 48
LDS = 163840
L2E = 1.4426950408889634
PI = [4, 5, 2, 3, 6, 0, 1, 7]
PI_WORD = sum(v << (4 * i) for i, v in enumerate(PI))
TAG = 28
POLL_LIMIT = 1 << 16

def f32hex(x): return hex(struct.unpack('<I', struct.pack('<f', x))[0])

def srd(k, d, lo, hi, size, add=0):
    if add: k(f's_add_u32 s{d}, s{lo}, {hex(add)}\n s_addc_u32 s{d+1}, s{hi}, 0')
    else: k(f's_mov_b32 s{d}, s{lo}\n s_mov_b32 s{d+1}, s{hi}')
    k(f's_mov_b32 s{d+2}, {hex(size)}\n s_mov_b32 s{d+3}, 0x20000')

class Gen:
    def __init__(self, opt):
        self.opt = opt
        self.k = K(NAME)
    def st(self, idx, grp='1'):
        if str(self.opt.get('stamp')) == grp or (idx == 0 and self.opt.get('stamp')): return f's_memrealtime s[{64+2*idx}:{65+2*idx}]\n'
        return ''
    def stamp(self, idx, grp='1'):
        self.k(self.st(idx, grp))
        if grp == '1' and str(self.opt.get('stamp')) == '6' and idx in self.CL:
            j = self.CL.index(idx)
            self.k(f's_memrealtime s[{66+4*j}:{67+4*j}]\n s_memtime s[{68+4*j}:{69+4*j}]')
    CL = [1, 2, 3, 4, 10, 11, 14]
    def flush(self, n):
        k = self.k
        if not self.opt.get('stamp'): return
        k('s_waitcnt lgkmcnt(0)\n s_mov_b64 exec, 1')
        k(f's_lshl_b32 s60, s2, 3\n s_add_u32 s60, s60, s61\n s_lshl_b32 s60, s60, 6\n s_add_u32 s60, s60, {hex(STAMP_BASE)}')
        k('v_mov_b32 v1, 0')
        for i in range(n):
            k(f'v_mov_b32 v2, s{64+2*i}\n buffer_store_dword v2, v1, s[56:59], s60 offen offset:{4*i}')
        k('s_mov_b64 exec, -1')

def lo(k, d, s): k(f'v_lshlrev_b32 v{d}, 16, v{s}')
def hi(k, d, s): k(f'v_and_b32 v{d}, 0xffff0000, v{s}')
def cvt(k, d, a, b): k(f'v_cvt_pk_bf16_f32 v{d}, v{a}, v{b}')
def pk(k, op, d, a, b, c=None, mods=''):
    s = f'v_pk_{op}_f32 v[{d}:{d+1}], v[{a}:{a+1}], v[{b}:{b+1}]'
    if c is not None: s += f', v[{c}:{c+1}]'
    k(s + (' ' + mods if mods else ''))
def pks(k, op, d, a, b, c=None, neg=False, sc=True):
    if not sc:
        return pk(k, op, d, a, b, c, mods='neg_lo:[0,1] neg_hi:[0,1]' if neg else '')
    for i in range(2):
        if op == 'fma':
            k(f'v_fmac_f32 v{d+i}, v{a+i}, v{b+i}' if c == d else f'v_fma_f32 v{d+i}, v{a+i}, v{b+i}, v{c+i}')
        else: k(f"v_{'sub' if neg else op}_f32 v{d+i}, v{a+i}, v{b+i}")
def mfma(k, c, a, b, cin=None):
    k(f'v_mfma_f32_16x16x32_bf16 v[{c}:{c+3}], v[{a}:{a+3}], v[{b}:{b+3}], ' + (cin or f'v[{c}:{c+3}]'))

GC = 24
def gelu_consts(k):
    c0 = -2.0 * 0.7978845608028654 * L2E
    k(f'v_mov_b32 v24, {f32hex(c0*0.044715)}\n v_mov_b32 v25, {f32hex(c0*0.044715)}\n v_mov_b32 v26, {f32hex(c0)}\n v_mov_b32 v27, {f32hex(c0)}')
    k('v_mov_b32 v30, 1.0\n v_mov_b32 v31, 1.0')
def gelu_tiles(k, cs, t, sc=False):
    c0 = -2.0 * 0.7978845608028654 * L2E
    pairs = [(c + 2 * p, t + 4 * i + 2 * p) for i, c in enumerate(cs) for p in range(2)]
    for x, tt in pairs: cvt(k, tt, x, x + 1)
    for x, tt in pairs: lo(k, x, tt); hi(k, x + 1, tt)
    for x, tt in pairs: pks(k, 'mul', tt, x, x, sc=sc)
    for x, tt in pairs:
        if sc: k(f'v_fmaak_f32 v{tt}, v{tt}, v24, {f32hex(c0)}\n v_fmaak_f32 v{tt+1}, v{tt+1}, v24, {f32hex(c0)}')
        else: pk(k, 'fma', tt, tt, 24, 26)
    for x, tt in pairs: pks(k, 'mul', tt, tt, x, sc=sc)
    for x, tt in pairs: k(f'v_exp_f32 v{tt}, v{tt}\n v_exp_f32 v{tt+1}, v{tt+1}')
    for x, tt in pairs: pks(k, 'add', tt, tt, 30, sc=sc)
    for x, tt in pairs: k(f'v_rcp_f32 v{tt}, v{tt}\n v_rcp_f32 v{tt+1}, v{tt+1}')
    for x, tt in pairs: pks(k, 'mul', x, x, tt, sc=sc)

def rowsum16(k, regs):
    for sh in (8, 4, 2, 1):
        for r in regs: k(f'v_add_f32_dpp v{r}, v{r}, v{r} row_ror:{sh} row_mask:0xf bank_mask:0xf')
def xsum4(k, regs, t):
    for sw in ('16', '32'):
        for i, r in enumerate(regs): k(f'v_mov_b32 v{t+i}, v{r}')
        for i, r in enumerate(regs): k(f'v_permlane{sw}_swap_b32 v{r}, v{t+i}')
        for i, r in enumerate(regs): k(f'v_add_f32 v{r}, v{r}, v{t+i}')
def cmul(k, d, x, w):
    k(f'v_mul_f32 v{d}, v{x}, v{w}\n v_mul_f32 v{d+1}, v{x+1}, v{w}\n v_fmac_f32 v{d}, v{x+1}, v{w+2}\n v_fmac_f32 v{d+1}, v{x}, v{w+1}')

def poll(k, name, loads, regs, lanes=None, first_issued=False, wait0='s_waitcnt vmcnt(0)', nap=0):
    k(f's_mov_b32 s62, {POLL_LIMIT}')
    if lanes: k(lanes)
    if first_issued: k(f'{wait0}\n s_branch L_{name}_chk')
    k(f'L_{name}:')
    k(loads)
    k(f's_waitcnt vmcnt(0)\nL_{name}_chk:')
    k(f'v_cmp_ne_u32 vcc, v{TAG}, v{regs[0]}')
    for r in regs[1:]:
        k(f'v_cmp_ne_u32 s[54:55], v{TAG}, v{r}\n s_or_b64 vcc, vcc, s[54:55]')
    k(f's_cbranch_vccz L_{name}_ok\n' + (f's_sleep {nap}\n' if nap else '') + f's_sub_u32 s62, s62, 1\n s_cbranch_scc0 L_{name}\nL_{name}_ok:')
    if lanes: k('s_mov_b64 exec, -1')

def post(k, val, addr=29, tmp=23):
    k(f'v_mov_b32 v{tmp}, {val}\n ds_write_b32 v{addr}, v{tmp}')
def waitfor(k, name, off, n, val, t, base=22, sleep=True):
    k(f's_mov_b32 s62, {POLL_LIMIT*16}\nL_{name}:')
    if n == 4:
        k(f'ds_read_b128 v[{t}:{t+3}], v{base} offset:{off}\n s_waitcnt lgkmcnt(0)\n v_min3_u32 v{t}, v{t}, v{t+1}, v{t+2}\n v_min_u32 v{t}, v{t}, v{t+3}')
    else:
        k(f'ds_read_b32 v{t}, v{base} offset:{off}\n s_waitcnt lgkmcnt(0)')
    k(f'v_cmp_gt_u32 vcc, {val}, v{t}\n s_cbranch_vccz L_{name}_ok')
    if sleep: k(f's_sleep {int(sleep)}')
    k(f's_sub_u32 s62, s62, 1\n s_cbranch_scc0 L_{name}\nL_{name}_ok:')

def weave(lines, events):
    out = []; n = len(lines); ev = sorted(events, key=lambda e: e[0]); j = 0
    for i, l in enumerate(lines):
        while j < len(ev) and ev[j][0] * n <= i:
            out += [x.strip() for x in ev[j][1].split('\n') if x.strip()]; j += 1
        out.append(l)
    while j < len(ev):
        out += [x.strip() for x in ev[j][1].split('\n') if x.strip()]; j += 1
    return out

def sub(fn, *a):
    t = K('t'); fn(t, *a); return t.lines

def gen(opt):
    G = Gen(opt); k = G.k
    D = 8
    ZF = '' if opt.get('nosc1') else 'sc1'
    npf = int(opt.get('pfcode', 3))
    k(f"""
    s_cmp_ge_u32 s2, 256
    s_cbranch_scc1 L_end
    s_load_dwordx2 s[8:9], s[0:1], 0       ; x
    s_load_dwordx2 s[16:17], s[0:1], 64    ; w_in
    s_load_dwordx2 s[12:13], s[0:1], 120   ; ws
    s_load_dwordx8 s[36:43], s[0:1], 8
    s_load_dwordx4 s[44:47], s[0:1], 40
    s_load_dwordx8 s[48:55], s[0:1], 72
    s_load_dwordx2 s[26:27], s[0:1], 104   ; out
    v_lshrrev_b32 v1, 6, v0
    v_and_b32 v0, 63, v0
    v_readfirstlane_b32 s3, v1             ; wave
    s_lshr_b32 s30, s2, 3                  ; j
    s_and_b32 s29, s2, 1
    s_lshl_b32 s29, s29, 2                 ; 4*par
    s_and_b32 s31, s30, 3
    s_add_u32 s31, s31, s29
    s_lshr_b32 s35, s30, 3
    s_add_u32 s29, s29, s35
    s_and_b32 s35, s30, 7
    s_cmp_lt_u32 s30, 24
    s_cselect_b32 s31, s35, s31            ; tb&7
    s_cselect_b32 s29, s29, 3
    s_cmp_ge_u32 s30, 28
    s_cselect_b32 s29, 7, s29
    s_and_b32 s28, s2, 6
    s_lshl_b32 s28, s28, 2
    s_add_u32 s28, s28, s31
    s_min_u32 s31, s31, 6
    s_and_b32 s32, s3, 3
    v_and_b32 v8, 15, v0
    v_lshrrev_b32 v9, 4, v0
    v_lshlrev_b32 v10, 1, v9
    v_xor_b32 v10, v10, v8
    v_lshlrev_b32 v10, 4, v10
    v_mul_u32_u24 v11, 3584, v9
    v_add_u32 v10, v10, v11
    v_add_u32 v11, {4*3584}, v10
    v_xor_b32 v12, 128, v10
    v_add_u32 v12, {8*3584}, v12
    v_add_u32 v13, {4*3584}, v12
    s_mul_i32 s33, s32, {16*3584}
    s_lshl_b32 s34, s29, 8
    s_add_u32 s33, s33, s34
    s_add_u32 s33, s33, 1792
    s_lshl_b32 s34, s32, 12
    v_lshrrev_b32 v21, 3, v0
    v_and_b32 v20, 7, v0
    v_lshrrev_b32 v5, 1, v21
    v_xor_b32 v20, v20, v5
    v_lshlrev_b32 v20, 4, v20
    v_mul_u32_u24 v6, 896, v21
    v_add_u32 v6, v6, v20
    v_xor_b32 v7, 64, v6
    v_add_u32 v4, {8*896}, v7
    s_lshl_b32 s24, s28, 2
    s_add_u32 s24, s24, s32
    s_mul_i32 s24, s24, {16*896}
    s_lshl_b32 s25, s32, 11
    s_add_u32 s25, s25, {L_X}
    s_mov_b32 s10, {2048*896}
    s_mov_b32 s11, 0x20000
    s_mov_b32 s14, {hex(WS_END)}
    s_mov_b32 s15, 0x20000
    s_mov_b32 s18, {448*3584}
    s_mov_b32 s19, 0x20000
    s_mov_b32 s5, {hex(WS_EP)}
    s_cmp_eq_u32 s29, 7
    s_waitcnt lgkmcnt(0)
    """)
    if opt.get('stamp'):
        k('s_mov_b32 s61, s3'); G.stamp(0); srd(k, 56, 12, 13, 0x4000000)
    k(f"""
    s_load_dword s4, s[12:13], s5
    s_cbranch_scc1 L_helper
    s_cmp_lt_u32 s3, 4
    s_cbranch_scc1 L_A
    """)
    k(f"""
    v_mul_u32_u24 v1, 896, v8
    s_lshl_b32 s20, s29, 7
    s_add_u32 s20, s20, s24
    s_mov_b64 exec, 0xffff
    buffer_load_dword v209, v1, s[8:11], s20 offen
    s_mov_b64 exec, -1
    s_mul_i32 s20, s28, 7
    s_add_u32 s20, s20, s29                ; m
    s_lshr_b32 s21, s32, 1                 ; c2
    s_and_b32 s22, s32, 1                  ; hf
    s_lshl_b32 s23, s20, 2
    s_load_dword s30, s[46:47], s23
    s_lshl_b32 s20, s20, 1
    s_add_u32 s20, s20, s21                ; channel
    s_lshl_b32 s23, s20, 9
    s_lshl_b32 s35, s22, 8
    s_add_u32 s23, s23, s35
    v_lshlrev_b32 v1, 1, v0
    v_add_u32 v1, s23, v1
    """)
    PRM = 200
    for c in range(2):
        for i in range(4): k(f'global_load_ushort v{PRM+4*c+i}, v1, s[{36+2*i}:{37+2*i}] offset:{128*c}')
    k(f"""
    s_lshl_b32 s23, s20, 1
    v_mov_b32 v1, s23
    global_load_ushort v{PRM+8}, v1, s[44:45]
    """)
    G.stamp(1, '3')
    k('s_branch L_B')
    def w2parts(j):
        h = f's_add_u32 s35, s31, {j}\n s_cmp_ge_u32 s35, 7\n s_cselect_b32 s63, 7, 0\n s_sub_u32 s35, s35, s63\n s_lshl_b32 s63, s35, 7\n s_add_u32 s63, s63, s24\n'
        p = [h + f's_add_u32 m0, s25, {j * 8192}\n s_mul_i32 s35, s35, {64*3584}\n buffer_load_dwordx4 v6, s[8:11], s63 offen lds\n',
             f's_add_u32 m0, s25, {j * 8192 + 1024}\n s_add_u32 s35, s35, s33\n buffer_load_dwordx4 v4, s[8:11], s63 offen lds\n']
        for q in range(4):
            p.append(f's_add_u32 m0, s34, {(j & 3) * 16384 + q * 1024}\n buffer_load_dwordx4 v{10+q}, s[16:19], s35 offen lds\n')
        return p
    def w2stage(j): return ''.join(w2parts(j))
    def common2():
        k(f"""
        v_lshlrev_b32 v2, 4, v0
        v_mov_b32 v22, {L_CNT}
        s_lshl_b32 s35, s3, 2
        v_add_u32 v29, s35, v22
        """)
    tagcalc = f's_waitcnt lgkmcnt(0)\n s_mul_i32 s4, s4, 0x9E3779B1\n s_add_u32 s4, s4, 0x7F4A7C15\n v_mov_b32 v{TAG}, s4'
    def w1setup(r):
        k(f"""
        v_lshrrev_b32 v{r}, 2, v0
        v_mul_u32_u24 v{r}, 3584, v{r}
        v_lshrrev_b32 v{r+1}, 4, v0
        v_and_b32 v{r+1}, 2, v{r+1}
        v_xor_b32 v{r+1}, v{r+1}, v0
        v_and_b32 v{r+1}, 3, v{r+1}
        v_lshl_add_u32 v{r}, v{r+1}, 4, v{r}
        v_add_u32 v{r+1}, {16*3584}, v{r}
        s_lshl_b32 s38, s29, 8
        s_lshl_b32 s35, s32, 6
        s_add_u32 s38, s38, s35
        s_lshl_b32 s40, s32, 11
        """)
    def w1off(i): return [3, 0, 1, 2][(i % 8) >> 1] * 16384 + (i & 1) * 8192
    def w1dma(i, r):
        off = w1off(i)
        return (f's_mul_i32 s35, s41, {32*3584}\n s_add_u32 s35, s35, s38\n s_add_u32 m0, s40, {off}\n s_add_u32 s41, s41, 1\n'
                f'buffer_load_dwordx4 v{r}, s[16:19], s35 offen lds\n s_add_u32 m0, s40, {off+1024}\n s_cmp_eq_u32 s41, 14\n'
                f'buffer_load_dwordx4 v{r+1}, s[16:19], s35 offen lds\n s_cselect_b32 s41, 0, s41\n')
    k('L_A:')
    k(w2stage(0)); k(w2stage(1))
    if opt.get('prio', '1') != '0': k(f"s_setprio {opt.get('prio', 1)}")
    srd(k, 36, 50, 51, 4096)
    k('v_lshlrev_b32 v1, 1, v8\n s_lshl_b32 s35, s28, 7')
    BSP = [228, 229, 230, 231]
    for tt in range(4): k(f'buffer_load_ushort v{BSP[tt]}, v1, s[36:39], s35 offen offset:{32*tt}')
    common2()
    WA = 168
    k(f"""
    v_mov_b32 v23, 0
    ds_write_b32 v29, v23
    ds_write_b32 v29, v23 offset:16
    v_mov_b32 v23, 6
    ds_write_b32 v29, v23 offset:32
    v_lshrrev_b32 v14, 1, v8
    v_xor_b32 v14, v14, v9
    v_lshlrev_b32 v14, 4, v14
    v_lshl_add_u32 v14, v8, 7, v14
    v_add_u32 v14, s25, v14
    v_xor_b32 v15, 64, v14
    v_lshrrev_b32 v16, 2, v0
    v_and_b32 v17, 7, v16
    v_lshlrev_b32 v17, 5, v17
    v_and_b32 v16, 3, v16
    v_lshl_add_u32 v16, v9, 3, v16         ; 8g + r
    v_and_b32 v19, 3, v0
    v_lshlrev_b32 v18, 3, v19
    v_lshl_add_u32 v18, v16, 8, v18
    """)
    for ft in range(8): k(f'v_xor_b32 v{WA+ft}, {32*ft}, v17\n v_add_u32 v{WA+ft}, v{WA+ft}, v18')
    gelu_consts(k)
    w1setup(224)
    k(f"""
    v_lshlrev_b32 v226, 6, v16
    v_lshl_add_u32 v226, v19, 3, v226
    v_and_b32 v227, 1, v9
    v_lshl_add_u32 v226, v227, 5, v226     ; row*64 + (p ^ (g&1))*32 + 8c  (p = 0)
    v_xor_b32 v227, 32, v226
    v_add_u32 v226, s40, v226
    v_add_u32 v227, s40, v227
    s_lshl_b32 s41, s31, 1
    s_add_u32 s41, s41, 8
    s_cmp_ge_u32 s41, 14
    s_cselect_b32 s35, 14, 0
    s_sub_u32 s41, s41, s35
    s_lshl_b32 s35, s32, 2
    v_add_u32 v5, s35, v22
    """)
    XF, WF, ACC, T, CK1 = 32, 88, 120, 152, 40
    G.stamp(14, '2')
    k('s_waitcnt vmcnt(10) lgkmcnt(0)')
    G.stamp(15, '2')
    k(tagcalc + '\n s_barrier')
    G.stamp(1); G.stamp(1, '2')
    def wread(gi):
        ks = gi >> 1
        for f in range(4):
            for hh in range(2):
                r = WF + (gi & 1) * 16 + f * 4 + hh * 2
                k(f'ds_read_b64_tr_b16 v[{r}:{r+1}], v{WA + 4 * (gi & 1) + f} offset:{((ks >> 1) & 3) * 16384 + (ks & 1) * 8192 + hh * 1024}')
    def xread(i):
        k(f'ds_read_b128 v[{XF+4*(i&1)}:{XF+4*(i&1)+3}], v{14 + (i & 1)} offset:{(i >> 1) * 8192}')
    xread(0); wread(0)
    IL = opt.get('il', '1') == '1'
    def wread1(gi, f):
        ks = gi >> 1
        for hh in range(2):
            r = WF + (gi & 1) * 16 + f * 4 + hh * 2
            k(f'ds_read_b64_tr_b16 v[{r}:{r+1}], v{WA + 4 * (gi & 1) + f} offset:{((ks >> 1) & 3) * 16384 + (ks & 1) * 8192 + hh * 1024}')
    for gi in range(28):
        ks = gi >> 1; j = gi >> 2
        if gi % 4 == 3:
            k('s_waitcnt lgkmcnt(0)' + (' vmcnt(0)' if j == 0 else ''))
            if j < 6: G.stamp(2 + 2 * j, '2')
            k('s_barrier')
            if j < 6:
                G.stamp(3 + 2 * j, '2'); xread(ks + 1)
                if not IL: wread(gi + 1)
        elif not IL:
            nx = 0
            if gi % 4 == 0: xread(ks + 1); nx = 1
            wread(gi + 1); k(f's_waitcnt lgkmcnt({8 + nx})')
        for f in range(4):
            if IL and gi % 4 != 3: k(f's_waitcnt lgkmcnt({6 + (1 if gi % 4 == 1 and f < 3 else 0)})')
            mfma(k, ACC + 16 * (gi & 1) + 4 * f, XF + 4 * (ks & 1), WF + (gi & 1) * 16 + f * 4, '0' if ks == 0 else None)
            if IL and gi < 27: wread1(gi + 1, f)
            if IL and gi % 4 == 0 and f == 3: xread(ks + 1)
    G.stamp(2)
    S, Q = 88, 92
    def z2epi(t):
        for h in range(2):
            cs = [ACC + 16 * h + 4 * f for f in range(4)]
            gelu_tiles(t, cs, T)
            prs = [(c + 2 * p, T + 2 * i + p) for i, c in enumerate(cs) for p in range(2)]
            for x, tt in prs: cvt(t, tt, x, x + 1)
            for x, tt in prs: lo(t, x, tt); hi(t, x + 1, tt)
            for i, c in enumerate(cs):
                for p in range(2):
                    if h == 0 and i == 0: pk(t, 'mul', Q + 2 * p, c + 2 * p, c + 2 * p)
                    else: pk(t, 'fma', Q + 2 * p, c + 2 * p, c + 2 * p, Q + 2 * p)
                    if h == 0 and i == 0: pass
                    elif h == 0 and i == 1: pk(t, 'add', S + 2 * p, ACC + 2 * p, c + 2 * p)
                    else: pk(t, 'add', S + 2 * p, S + 2 * p, c + 2 * p)
    z2epi(k)
    rowsum16(k, list(range(S, S + 8)))
    k(f"""
    v_cmp_eq_u32 vcc, 1, v19
    v_cndmask_b32 v{T}, v{S}, v{S+1}, vcc
    v_cndmask_b32 v{T+2}, v{Q}, v{Q+1}, vcc
    v_cmp_eq_u32 vcc, 2, v19
    v_cndmask_b32 v{T}, v{T}, v{S+2}, vcc
    v_cndmask_b32 v{T+2}, v{T+2}, v{Q+2}, vcc
    v_cmp_eq_u32 vcc, 3, v19
    v_cndmask_b32 v{T}, v{T}, v{S+3}, vcc
    v_cndmask_b32 v{T+2}, v{T+2}, v{Q+3}, vcc
    v_mov_b32 v{T+1}, v{TAG}
    v_mov_b32 v{T+3}, v{TAG}
    v_lshl_add_u32 v18, v9, 2, v19
    v_lshlrev_b32 v18, 4, v18              ; row*16
    s_lshl_b32 s24, s28, 2
    s_add_u32 s24, s24, s32
    s_lshl_b32 s24, s24, 11
    s_add_u32 s24, s24, {hex(WS_ST)}
    s_lshl_b32 s35, s29, 8
    s_add_u32 s35, s35, s24
    """)
    if opt.get('sent'): waitfor(k, 'wbs', 16, 4, 1, 32, sleep=False)
    k(f"""
    s_mov_b32 exec_lo, 0x000f000f
    s_mov_b32 exec_hi, 0x000f000f
    buffer_store_dwordx4 v[{T}:{T+3}], v18, s[12:15], s35 offen sc1
    s_mov_b64 exec, -1
    v_min_u32 v18, 2, v9
    v_lshlrev_b32 v18, 8, v18
    v_lshl_add_u32 v18, v8, 4, v18
    """)
    G.stamp(3)
    def spdma(j, dyn=False, slot=0):
        vv, off = ((10, 0), (12, 1024), (11, 8192), (13, 9216))[j]
        t = f's_add_u32 m0, s43, {off + slot * 16384}\n buffer_load_dwordx4 v{vv}, s[8:11], s42 offen lds\n'
        if j == 3:
            t += 's_add_u32 s42, s42, 256\n'
            if dyn: t += 's_lshr_b64 s[40:41], s[40:41], 4\n s_and_b32 s43, s40, 15\n s_lshl_b32 s43, s43, 3\n s_add_u32 s43, s43, s32\n s_lshl_b32 s43, s43, 11\n'
        return t
    A1, FR, ZP = 176, 64, 208
    k(f"""
    s_lshl_b32 s35, s32, 11
    v_subrev_u32 v14, s35, v14
    v_subrev_u32 v15, s35, v15
    """)
    srd(k, 8, 48, 49, 0x800000)
    k(f"""
    v_lshl_add_u32 v10, v21, 12, v20
    v_add_u32 v11, 128, v10
    v_xor_b32 v12, 64, v10
    v_add_u32 v12, 0x8000, v12
    v_add_u32 v13, 128, v12
    s_lshl_b32 s42, s28, 2
    s_add_u32 s42, s42, s32
    s_lshl_b32 s42, s42, 16                ; (64*tb + 16*a)*4096
    s_lshl_b32 s43, s32, 11
    """)
    def z1read(i):
        b = FR + (i & 1) * 24
        for p in range(2):
            for hh in range(2):
                k(f'ds_read_b64_tr_b16 v[{b+4*p+2*hh}:{b+4*p+2*hh+1}], v{226 + p} offset:{w1off(i) + 256*hh}')
        for tt in range(4):
            r = b + 8 + 4 * tt
            k(f'ds_read_b128 v[{r}:{r+3}], v{14 + (i & 1)} offset:{(i >> 1) * 8192 + tt * 2048}')
    G.stamp(1, '5')
    if not opt.get('sent'): waitfor(k, 'wb1', 16, 1, 1, 32, base=5, sleep=False)
    G.stamp(2, '5')
    PL = 32; S, Q = 44, 48
    NP = int(opt.get('np', 7))
    stload = f'buffer_load_dwordx4 v[{PL}:{PL+3}], v2, s[12:15], s24 offen sc1\n buffer_load_dwordx4 v[{PL+4}:{PL+7}], v18, s[12:15], s24 offen offset:1024 sc1'
    def normalise():
        poll(k, 'pst', stload, [PL + 1, PL + 3, PL + 5, PL + 7], first_issued=True)
        G.stamp(5)
        k(f"""
        v_cmp_gt_u32 vcc, 3, v9
        v_cndmask_b32 v{PL+4}, 0, v{PL+4}, vcc
        v_cndmask_b32 v{PL+6}, 0, v{PL+6}, vcc
        v_add_f32 v40, v{PL}, v{PL+4}
        v_add_f32 v41, v{PL+2}, v{PL+6}
        """)
        xsum4(k, [40, 41], 42)
        k(f"""
        v_mul_f32 v40, {f32hex(1/896)}, v40
        v_mul_f32 v41, {f32hex(1/896)}, v41
        v_fma_f32 v41, -v40, v40, v41
        v_max_f32 v41, 0, v41
        """)
        cvt(k, 40, 40, 41); hi(k, 41, 40); lo(k, 40, 40)
        k(f'v_add_f32 v41, {f32hex(1e-5)}, v41')
        cvt(k, 41, 41, 41); lo(k, 41, 41)
        k('v_sqrt_f32 v41, v41')
        cvt(k, 41, 41, 41); lo(k, 41, 41)
        k('v_rcp_f32 v41, v41\n v_lshlrev_b32 v53, 4, v9')
        for r in range(4):
            k(f'ds_bpermute_b32 v{S+r}, v53, v40 offset:{4*r}\n ds_bpermute_b32 v{Q+r}, v53, v41 offset:{4*r}')
        k(f"""
        s_lshl_b32 s24, s29, 6
        s_lshl_b32 s25, s28, 1
        s_add_u32 s24, s24, s25
        s_lshr_b32 s25, s32, 1
        s_add_u32 s24, s24, s25
        s_lshl_b32 s24, s24, 13
        s_and_b32 s25, s32, 1
        s_lshl_b32 s25, s25, 9
        s_add_u32 s24, s24, s25
        s_add_u32 s25, s24, 4096
        v_lshrrev_b32 v53, 1, v9
        v_lshlrev_b32 v53, 8, v53
        v_lshl_add_u32 v53, v8, 4, v53
        v_and_b32 v54, 1, v9
        v_lshl_add_u32 v53, v54, 10, v53
        s_waitcnt lgkmcnt(0)
        """)
        for h in range(2):
            cs = [ACC + 16 * h + 4 * f for f in range(4)]
            prs = [(c + 2 * p, T + 8 * h + 2 * i + p, p) for i, c in enumerate(cs) for p in range(2)]
            for x, t, p in prs: pks(k, 'add', x, x, S + 2 * p, neg=True, sc=bool(opt.get('sca')))
            for x, t, p in prs: cvt(k, t, x, x + 1)
            for x, t, p in prs: lo(k, x, t); hi(k, x + 1, t)
            for x, t, p in prs: pks(k, 'mul', x, x, Q + 2 * p, sc=bool(opt.get('sca')))
            for x, t, p in prs: cvt(k, t, x, x + 1)
            for pr in range(2):
                o = T + 8 * h + 4 * pr
                k(f'v_permlane16_swap_b32 v{o}, v{o+2}\n v_permlane16_swap_b32 v{o+1}, v{o+3}')
            for pr in range(2):
                o = T + 8 * h + 4 * pr
                k(f'buffer_store_dwordx4 v[{o}:{o+3}], v53, s[12:15], s{24+h} offen offset:{2048*pr} sc1')

    CK1 = 56
    posts = {3: 5, 7: 6, 9: 7, 11: 8}; checks = {6: 5, 8: 6, 12: 7}
    pre = {6: [(0, 0), (0, 1)], 7: [(0, 2), (0, 3)], 8: [(1, 0), (1, 1)], 9: [(1, 2), (1, 3)], 10: [(2, 0), (2, 1)], 11: [(2, 2), (2, 3)], 12: [(3, 0), (3, 1)], 13: [(3, 2), (3, 3)]}
    assert NP == 7
    spins = []
    def sub2(fn, *a):
        n0 = len(k.lines); fn(*a); r = k.lines[n0:]; del k.lines[n0:]; return r
    z1read(0)
    for i in range(14):
        if i in checks: k(f'ds_read_b128 v[{CK1}:{CK1+3}], v22')
        if i < 13:
            if i == 7: k('s_waitcnt vmcnt(14)')
            if IL: k('s_waitcnt lgkmcnt(0)')
            else: z1read(i + 1); k('s_waitcnt lgkmcnt(8)')
        else:
            k('s_waitcnt lgkmcnt(0)'); post(k, 9)
        rd = sub2(z1read, i + 1) if (IL and i < 13) else []
        if i in posts: post(k, posts[i])
        b = FR + (i & 1) * 24
        if i < 13: G.stamp(3 + i, '5')
        for p in range(2):
            for tt in range(4):
                mfma(k, A1 + (p * 4 + tt) * 4, b + 4 * p, b + 8 + 4 * tt, '0' if i == 0 else None)
                for _ in range(2):
                    if rd: k(rd.pop(0))
                if p == 0 and i in checks:
                    k([f'v_min3_u32 v{CK1}, v{CK1}, v{CK1+1}, v{CK1+2}', f'v_min_u32 v{CK1}, v{CK1}, v{CK1+3}', f'v_cmp_gt_u32 vcc, {checks[i]}, v{CK1}',
                       f's_cbranch_vccnz L_z1_spin{i}\nL_z1_ok{i}:'][tt])
            if p == 0 and i < 6: k(w1dma(8 + i, 224))
            if i in pre: st, j = pre[i][p]; k(spdma(j, slot=PI[st]))
        if i in checks: spins.append((f'L_z1_spin{i}', f'L_z1_ok{i}', CK1, 0, checks[i]))
        if i == NP - 2: k(stload)
        if i == NP:
            G.stamp(4); normalise(); G.stamp(6)
        if i == NP + 3:
            k(f"""
            s_lshl_b32 s24, s29, 11
            s_add_u32 s24, s24, {hex(WS_FZ)}
            s_lshl_b32 s35, s28, 6
            s_lshl_b32 s25, s32, 2
            s_add_u32 s35, s35, s25
            v_mov_b32 v53, s35
            s_waitcnt vmcnt(6)
            s_mov_b64 exec, 1
            buffer_store_dword v{TAG}, v53, s[12:15], s24 offen sc1
            s_mov_b64 exec, -1
            """)
            G.stamp(7)
    waitfor(k, 'wa9', 0, 4, 9, 32, sleep=False)
    def z1pre(t):
        for h in range(2):
            cs = [A1 + 16 * h + 4 * f for f in range(4)]
            gelu_tiles(t, cs, 64, sc=bool(opt.get('sca')))
            for tt in range(4):
                for p in range(2): cvt(t, ZP + 4 * tt + 2 * h + p, cs[tt] + 2 * p, cs[tt] + 2 * p + 1)
    k.lines += weave(sub(z1pre) if int(opt.get('peel', 0)) == 0 else [], [(i / 20.0, spdma(i % 4, slot=PI[4 + i // 4])) for i in range(12)])
    srd(k, 16, 12, 13, SZ_Z)
    ACC2, W, Z, CK = 32, 64, 96, 160
    k(f"""
    v_lshlrev_b32 v19, 6, v0
    s_lshl_b32 s33, s29, 19
    s_lshl_b32 s35, s32, 11
    s_add_u32 s34, s33, s35                ; fb*64*8192 + w*2048
    v_lshrrev_b32 v20, 1, v8
    v_xor_b32 v20, v20, v9
    v_lshlrev_b32 v20, 4, v20
    v_lshl_add_u32 v20, v8, 7, v20
    v_xor_b32 v21, 64, v20
    v_add_u32 v17, {PI[0]*16384}, v20
    v_add_u32 v18, {PI[0]*16384}, v21
    v_add_u32 v14, 8192, v2
    v_add_u32 v15, 16384, v2
    v_add_u32 v16, 24576, v2
    s_mov_b32 s38, {hex(PI_WORD)}
    s_mov_b32 s39, {hex(PI_WORD)}
    s_mov_b32 s36, 10                      ; 10 + stage
    """)
    ZV = [2, 14, 15, 16]
    for i in range(32): k(f'v_mov_b32 v{ACC2+i}, 0')
    G.stamp(8)
    k('s_cmp_lg_u32 s3, 0\n s_cbranch_scc1 L_nofz')
    poll(k, 'pfz', f'buffer_load_dwordx4 v[{CK}:{CK+3}], v19, s[12:15], s24 offen sc1', [CK, CK + 1, CK + 2, CK + 3], lanes='s_mov_b32 exec_hi, 0', nap=int(opt.get('nap', 1)))
    k('L_nofz:\n s_waitcnt vmcnt(0)')
    post(k, 10)
    waitfor(k, 'wa10', 0, 4, 10, CK, sleep=False)
    G.stamp(9)
    adv = f's_add_u32 s34, s34, {4*8192}'
    def zld(n, ft):
        r = Z + (n % D) * 8 + ft * 4
        k(f'buffer_load_dwordx4 v[{r}:{r+3}], v{ZV[n%4]}, s[16:19], s34 offen offset:{1024*ft} {ZF}')
    for n in range(D):
        zld(n, 0); zld(n, 1)
        if n % 4 == 3: k(adv)
    def w2read(n, tt):
        ks = n & 3
        r = W + (n & 1) * 16 + tt * 4
        k(f'ds_read_b128 v[{r}:{r+3}], v{17 + (ks & 1)} offset:{(ks >> 1) * 8192 + tt * 2048}')
    for tt in range(4): w2read(0, tt)
    G.stamp(10)
    def z1epi(t):
        for h in range(2):
            for q in range(2):
                cs = [A1 + 16 * h + 8 * q + 4 * f for f in range(2)]
                gelu_tiles(t, cs, 232 + 8 * q, sc=True)
                for f in range(2):
                    for p in range(2): cvt(t, ZP + 4 * (2 * q + f) + 2 * h + p, cs[f] + 2 * p, cs[f] + 2 * p + 1)
    extra = sub(z1epi) if int(opt.get('peel', 0)) else []
    NPEEL = int(opt.get('peel', 0)); per = -(-len(extra) // max(NPEEL * 64, 1))
    SELF = True
    WPK = int(opt.get('wpk', 0))
    def wodma(i):
        blk, q = PI[i // 4], i % 4
        return f's_add_u32 m0, s43, {blk*16384 + 4096*q}\n s_add_u32 s35, s42, {(blk*128 + 32*q)*896}\n buffer_load_dwordx4 v10, s[8:11], s35 offen lds'
    def body(name, ride, last, dma=(False, False)):
        for n in range(8):
            k(f's_waitcnt vmcnt({(D-1)*2 - (2*n - min(WPK*n, 0 if not last else WPK*n) if last else 0)}) lgkmcnt(0)')
            fill = [[] for _ in range(8)]
            if n % 4 == 0:
                fill[4] = ['ds_write_b32 v29, v23']
                if opt.get('stamp') == '4':
                    for it in range(8):
                        st = 2 * it + n // 4
                        if st: fill[5].append(f's_cmp_lg_u32 s36, {10+st}\n s_cbranch_scc1 L_t{name}{n}_{it}\n s_memrealtime s[{64+2*st}:{65+2*st}]\nL_t{name}{n}_{it}:')
            if not (last and n > 3):
                if SELF:
                    if n % 4 == 1:
                        fill[4] = ['v_add_u32 v23, 1, v23']
                        fill[5] = ['s_lshr_b64 s[38:39], s[38:39], 4\n s_and_b32 s37, s38, 15\n s_lshl_b32 s37, s37, 14']
                    if n % 4 == 2:
                        fill[4] = [f'ds_read_b128 v[{CK}:{CK+3}], v22', f'ds_read_b128 v[{CK+4}:{CK+7}], v22 offset:16']
                        fill[5] = ['v_add_u32 v17, s37, v20']
                    if n % 4 == 3:
                        fill[4] = [f'v_min3_u32 v{CK}, v{CK}, v{CK+1}, v{CK+2}', f'v_min3_u32 v{CK+4}, v{CK+4}, v{CK+5}, v{CK+6}', 'v_add_u32 v18, s37, v21']
                        fill[5] = [f'v_min3_u32 v{CK}, v{CK}, v{CK+3}, v{CK+7}', f'v_min_u32 v{CK}, v{CK}, v{CK+4}']
                        fill[6] = [f'v_cmp_gt_u32 vcc, s36, v{CK}']
                        fill[7] = [f's_cbranch_vccnz L_{name}_spin{n}\nL_{name}_ok{n}:']
                        spins.append((f'L_{name}_spin{n}', f'L_{name}_ok{n}', CK, 'both', 's36'))
                    if dma[n // 4]:
                        d = spdma(n % 4, dyn=True).strip().split('\n')
                        fill[2] = [d[0]]; fill[3] = ['\n'.join(d[1:])]
                elif n % 4 == 1:
                    fill[4] = [f'ds_read_b128 v[{CK}:{CK+3}], v22 offset:32', 'v_add_u32 v23, 1, v23']
                    fill[5] = ['s_lshr_b64 s[38:39], s[38:39], 4\n s_and_b32 s37, s38, 15\n s_lshl_b32 s37, s37, 14']
                if n % 4 == 2 and not SELF:
                    fill[4] = [f'v_min3_u32 v{CK}, v{CK}, v{CK+1}, v{CK+2}', 's_sub_u32 s35, s36, 9']
                    fill[5] = [f'v_min_u32 v{CK}, v{CK}, v{CK+3}', 'v_add_u32 v17, s37, v20']
                    fill[6] = [f'v_cmp_gt_u32 vcc, s35, v{CK}']
                    fill[7] = [f's_cbranch_vccnz L_{name}_spin{n}\nL_{name}_ok{n}:']
                    spins.append((f'L_{name}_spin{n}', f'L_{name}_ok{n}', CK, 32, 's35'))
                if n % 4 == 3 and not SELF: fill[4] += ['v_add_u32 v18, s37, v21']
            for ft in range(2):
                for tt in range(4):
                    mfma(k, ACC2 + (ft * 4 + tt) * 4, Z + (n % D) * 8 + ft * 4, W + (n & 1) * 16 + tt * 4)
                    if ft == 0 and not (last and n == 7): w2read(n + 1, tt)
                    for x in fill[4 * ft + tt]: k(x)
                    if ride:
                        for _ in range(per):
                            if extra: k(extra.pop(0))
                if not last: zld(n, ft)
                elif ft < WPK: k(wodma(WPK * n + ft))
            if n % 4 == 3: k(adv + '\n s_add_u32 s36, s36, 1')
    if SELF:
        k(f"""
        s_lshl_b32 s43, s32, 11
        s_add_u32 s43, s43, {PI[7]*16384}
        s_mov_b32 s40, {hex(((PI_WORD << 4) | PI[7]) & 0xffffffff)}
        s_mov_b32 s41, {PI[7]}
        """)
        for it in range(max(NPEEL, 1)): body(f'pa{it}', True, False, (it > 0, True))
        k('L_p2a:')
        body('pd', False, False, (True, True))
        k('s_cmp_lt_u32 s36, 20\n s_cbranch_scc1 L_p2a')
    else:
        for it in range(NPEEL): body(f'pa{it}', True, False)
    assert not extra
    k('L_p2:')
    body('pb', False, False)
    k('s_cmp_lt_u32 s36, 24\n s_cbranch_scc1 L_p2')
    srd(k, 8, 52, 53, 896 * 896)
    k(f"""
    v_lshrrev_b32 v11, 3, v0
    v_and_b32 v10, 6, v11
    v_and_b32 v12, 7, v0
    v_xor_b32 v10, v10, v12
    v_lshlrev_b32 v10, 4, v10
    v_mul_u32_u24 v11, 896, v11
    v_add_u32 v10, v10, v11
    s_lshl_b32 s35, s29, 7
    s_mul_i32 s42, s32, {8*896}
    s_add_u32 s42, s42, s35
    s_lshl_b32 s43, s32, 10
    """)
    body('pc', False, True)
    k('s_branch L_p2_done')
    for a, b, c, off, val in spins:
        k(f"""
{a}:
        s_mov_b32 s62, {POLL_LIMIT*16}
{a}b:
        ds_read_b128 v[{c}:{c+3}], v22 offset:{0 if off == 'both' else off}
        {f'ds_read_b128 v[{c+4}:{c+7}], v22 offset:16' if off == 'both' else ''}
        s_waitcnt lgkmcnt(0)
        {f'v_min3_u32 v{c+4}, v{c+4}, v{c+5}, v{c+6}' if off == 'both' else ''}
        {f'v_min3_u32 v{c}, v{c}, v{c+4}, v{c+7}' if off == 'both' else ''}
        v_min3_u32 v{c}, v{c}, v{c+1}, v{c+2}
        v_min_u32 v{c}, v{c}, v{c+3}
        v_cmp_gt_u32 vcc, {val}, v{c}
        s_cbranch_vccz {b}
        s_sub_u32 s62, s62, 1
        s_cbranch_scc0 {a}b
        s_branch {b}
        """)
    k('L_p2_done:')
    G.stamp(11); G.stamp(1, '7'); G.stamp(1, '9')
    k(f"""
    s_mul_i32 s24, s28, {4*28}
    s_lshl_b32 s36, s29, 2
    s_add_u32 s36, s36, s32                ; kk
    s_add_u32 s24, s24, s36
    s_lshl_b32 s24, s24, 10
    s_add_u32 s24, s24, {hex(WS_H)}
    """)
    Z1R = ZP
    for tt in range(4): lo(k, BSP[tt], BSP[tt])
    for tt in range(4):
        for ft in range(2):
            for r in range(4): k(f'v_add_f32 v{ACC2+(ft*4+tt)*4+r}, v{ACC2+(ft*4+tt)*4+r}, v{BSP[tt]}')
    for tt in range(4):
        o = 96 + 24 * tt
        its = [(ACC2 + (ft * 4 + tt) * 4 + 2 * p, Z1R + 4 * tt + 2 * ft + p, o + 4 + 4 * (2 * ft + p), o + 2 * ft + p) for ft in range(2) for p in range(2)]
        for a, z, t, d in its: cvt(k, d, a, a + 1)
        for a, z, t, d in its: lo(k, t, z); hi(k, t + 1, z); lo(k, t + 2, d); hi(k, t + 3, d)
        for a, z, t, d in its: pk(k, 'mul', t, t, t + 2)
        for a, z, t, d in its: cvt(k, d, t, t + 1)
        k(f'buffer_store_dwordx4 v[{o}:{o+3}], v2, s[12:15], s24 offen sc1')
        if tt < 3: k(f's_add_u32 s24, s24, {28*1024}')
    G.stamp(12); G.stamp(2, '7')
    HB, AC3, A3 = 32, 144, 160
    HD = int(opt.get('hd', 10))
    n1 = min(8, 24 - 8 * WPK)
    for i in range(8 * WPK, 8 * WPK + n1): k(wodma(i))
    k(f"""
    s_lshl_b32 s33, s28, 2
    s_add_u32 s33, s33, s32                ; tt
    s_lshl_b32 s37, s28, 11
    s_add_u32 s37, s37, {hex(WS_FH)}
    s_lshl_b32 s36, s36, 6
    v_mov_b32 v12, s36
    {G.st(3, '7')}
    s_waitcnt vmcnt({n1})
    {G.st(4, '7')}
    s_mov_b64 exec, 1
    buffer_store_dword v{TAG}, v12, s[12:15], s37 offen sc1
    s_mov_b64 exec, -1
    """)
    for i in range(8 * WPK + n1, 24): k(wodma(i))
    waitfor(k, 'wa25', 0, 4, 25, CK, sleep=False)
    for i in range(24, 28): k(wodma(i))
    srd(k, 16, 26, 27, 2048 * 896)
    k(f"""
    s_mul_i32 s34, s33, {28*1024}
    s_add_u32 s34, s34, {hex(WS_H)}
    v_lshrrev_b32 v10, 2, v0
    v_lshrrev_b32 v4, 1, v10
    v_and_b32 v4, 3, v4
    v_lshlrev_b32 v21, 5, v4
    v_and_b32 v13, 3, v0
    v_lshlrev_b32 v13, 3, v13
    v_lshl_add_u32 v13, v10, 7, v13
    """)
    for dt in range(4):
        k(f'v_xor_b32 v{192+dt}, {32*dt}, v21\n v_add_u32 v{192+dt}, v{192+dt}, v13\n v_add_u32 v{196+dt}, 0xe000, v{192+dt}')
    G.stamp(5, '7')
    k('s_cmp_lg_u32 s3, 0\n s_cbranch_scc1 L_nofh')
    poll(k, 'pfh', 'buffer_load_dword v20, v19, s[12:15], s37 offen sc1', [20], lanes='s_mov_b32 exec_lo, 0x0fffffff\n s_mov_b32 exec_hi, 0', nap=int(opt.get('nap', 1)))
    k('L_nofh:\n s_waitcnt vmcnt(0)')
    post(k, 26)
    waitfor(k, 'wa26', 0, 4, 26, CK, sleep=False)
    G.stamp(13); G.stamp(6, '7')
    def aread(kk):
        for dt in range(4):
            for hh in range(2):
                f0 = 32 * kk + 16 * hh
                r = A3 + (kk & 1) * 16 + dt * 4 + hh * 2
                k(f'ds_read_b64_tr_b16 v[{r}:{r+1}], v{(192 if f0 < 448 else 196) + dt} offset:{(f0 % 448) * 128}')
    def hload(kk):
        k(f'buffer_load_dwordx4 v[{HB+4*kk}:{HB+4*kk+3}], v2, s[12:15], s34 offen offset:{1024*(kk%4)} {ZF}')
        if kk % 4 == 3: k('s_add_u32 s34, s34, 4096')
    for kk in range(HD): hload(kk)
    aread(0)
    for kk in range(28):
        if kk in (0, 8, 16): G.stamp(7 + kk // 8, '7')
        for dt in range(4):
            lg = 6 if kk < 27 else 6 - 2 * dt
            k(f's_waitcnt vmcnt({min(HD - 1, 27 - kk)}) lgkmcnt({lg})' if dt == 0 else f's_waitcnt lgkmcnt({lg})')
            mfma(k, AC3 + 4 * dt, A3 + (kk & 1) * 16 + dt * 4, HB + 4 * kk, '0' if kk == 0 else None)
            if kk < 27:
                for hh in range(2):
                    f0 = 32 * (kk + 1) + 16 * hh
                    r = A3 + ((kk + 1) & 1) * 16 + dt * 4 + hh * 2
                    k(f'ds_read_b64_tr_b16 v[{r}:{r+1}], v{(192 if f0 < 448 else 196) + dt} offset:{(f0 % 448) * 128}')
        if kk + HD < 28: hload(kk + HD)
    G.stamp(14); G.stamp(11, '7')
    k(f"""
    s_lshl_b32 s36, s32, 5
    v_xor_b32 v12, s36, v21
    v_add_u32 v12, v12, v13
    v_add_u32 v12, {L_R}, v12
    s_lshl_b32 s36, s32, 7
    s_add_u32 s36, s36, {L_R + 8192}
    v_lshlrev_b32 v11, 3, v8
    v_add_u32 v11, s36, v11
    s_barrier
    {G.st(12, '7')}
    ds_read_b64 v[4:5], v11
    """)
    for dt in range(4): k(f'ds_read_b64_tr_b16 v[{32+2*dt}:{33+2*dt}], v12 offset:{2048*dt}')
    k(f"""
    v_mul_u32_u24 v10, 896, v8
    v_lshrrev_b32 v11, 1, v9
    v_lshl_add_u32 v10, v11, 4, v10
    v_and_b32 v11, 1, v9
    v_lshl_add_u32 v10, v11, 5, v10        ; t*896 + (g>>1)*16 + (g&1)*32
    s_mul_i32 s36, s33, {16*896}
    s_lshl_b32 s37, s29, 7
    s_add_u32 s36, s36, s37
    s_waitcnt lgkmcnt(0)
    v_mov_b32 v6, v4
    v_mov_b32 v7, v4
    v_mov_b32 v4, v5
    """)
    its = [(AC3 + 4 * dt + 2 * p, 32 + 2 * dt + p, 48 + 4 * (2 * dt + p)) for dt in range(4) for p in range(2)]
    for c, a, t in its: cvt(k, c, c, c + 1)
    for c, a, t in its: lo(k, t, a); hi(k, t + 1, a); lo(k, t + 2, c); hi(k, t + 3, c)
    for c, a, t in its: pk(k, 'mul', t, t, 6); pk(k, 'mul', t + 2, t + 2, 4)
    for c, a, t in its: cvt(k, a, t, t + 1); cvt(k, c, t + 2, t + 3)
    for c, a, t in its: lo(k, t, a); hi(k, t + 1, a); lo(k, t + 2, c); hi(k, t + 3, c)
    for c, a, t in its: pk(k, 'add', t, t, t + 2)
    for c, a, t in its: cvt(k, a, t, t + 1)
    for pr in range(2):
        o = 32 + 4 * pr
        k(f'v_permlane16_swap_b32 v{o}, v{o+2}\n v_permlane16_swap_b32 v{o+1}, v{o+3}')
    for pr in range(2):
        o = 32 + 4 * pr
        k(f'buffer_store_dwordx4 v[{o}:{o+3}], v10, s[16:19], s36 offen offset:{64*pr}')
    k(f"""
    s_lshl_b32 s35, s2, 3
    s_add_u32 s35, s35, s3
    s_cmp_lg_u32 s35, 0
    s_cbranch_scc1 L_A_fin
    s_mov_b32 s35, {hex(WS_EP)}
    v_mov_b32 v1, 0
    s_mov_b64 exec, 1
    buffer_store_dword v{TAG}, v1, s[12:15], s35 offen sc1
    s_mov_b64 exec, -1
L_A_fin:
    """)
    G.stamp(13, '7')
    if opt.get('stamp'): k('s_waitcnt vmcnt(0)')
    G.stamp(15); G.stamp(14, '7')
    G.flush(16)
    k('s_endpgm')

    k('L_B:')
    common2()
    k(f"""
    s_mul_i32 s39, s32, {KG_WAVE}
    s_add_u32 s39, s39, {L_KG}
    """)
    k(tagcalc)
    G.stamp(1, '2')
    def wb(j, w): return G.st(2 + 2 * j, '2') + (f's_waitcnt vmcnt({w})\n' if w is not None else '') + G.st(3 + 2 * j, '2') + 's_barrier\n'
    k(wb(0, None) + w2stage(2))
    w1setup(18)
    k(f"""
    s_lshl_b32 s41, s31, 1
    v_mul_u32_u24 v7, {KG_ROW}, v0
    v_add_u32 v7, s39, v7
    v_lshrrev_b32 v1, 5, v0
    v_lshrrev_b32 v3, 2, v8
    v_lshl_add_u32 v1, v1, 2, v3
    v_mul_u32_u24 v1, {KG_ROW}, v1
    v_and_b32 v3, 1, v9
    v_lshl_add_u32 v1, v3, 5, v1
    v_and_b32 v3, 3, v0
    v_lshl_add_u32 v1, v3, 3, v1
    v_add_u32 v1, s39, v1
    """)
    k(wb(1, None) + w2stage(3) + w2stage(4))
    k(f"""
    ; L2 warm-up: this workgroup's eighth of the z1 slice of w_in, and a share of the second half of the w_sp tile
    s_and_b32 s35, s28, 7
    s_lshl_b32 s35, s35, 2
    s_add_u32 s35, s35, s32
    s_mul_i32 s42, s35, {14*3584}
    s_lshl_b32 s35, s29, 8
    s_add_u32 s42, s42, s35
    v_min_u32 v16, 27, v0
    v_lshrrev_b32 v17, 1, v16
    v_mul_u32_u24 v17, 3584, v17
    v_and_b32 v16, 1, v16
    v_lshl_add_u32 v16, v16, 7, v17
    v_lshrrev_b32 v156, 2, v8
    v_lshl_add_u32 v156, v9, 3, v156         ; 8g + r
    v_lshrrev_b32 v157, 1, v156
    v_and_b32 v157, 7, v157
    v_and_b32 v158, 3, v0
    v_lshrrev_b32 v159, 1, v158
    s_lshl_b32 s35, s32, 1
    v_add_u32 v159, s35, v159
    v_xor_b32 v157, v157, v159
    v_lshlrev_b32 v157, 4, v157
    v_lshl_add_u32 v157, v156, 7, v157
    v_and_b32 v158, 1, v158
    v_lshl_add_u32 v157, v158, 3, v157
    s_add_u32 s35, s29, 7
    s_sub_u32 s35, s35, s31
    s_cmp_ge_u32 s35, 7
    s_cselect_b32 s63, 7, 0
    s_sub_u32 s35, s35, s63
    s_lshl_b32 s35, s35, 13
    s_add_u32 s35, s35, {L_X}
    v_add_u32 v157, s35, v157                ; hh = 0
    v_xor_b32 v158, 32, v157
    v_add_u32 v158, 512, v158                ; hh = 1
    v_lshlrev_b32 v159, 12, v8
    v_lshl_add_u32 v159, v9, 4, v159
    s_lshl_b32 s36, s29, 2
    s_add_u32 s36, s36, s32
    s_lshl_b32 s36, s36, 16
    s_lshl_b32 s35, s28, 7
    s_add_u32 s36, s36, s35
    s_add_u32 s36, s36, {hex(WS_UT)}
    s_lshl_b32 s37, s29, 5
    s_add_u32 s37, s37, s28
    s_lshl_b32 s37, s37, 2
    s_add_u32 s37, s37, s32
    s_lshl_b32 s37, s37, 2
    s_add_u32 s37, s37, {hex(WS_FU)}
    """)
    da = float(opt.get('kga', 0.0)); db = float(opt.get('kgb', 0.0))
    k('s_waitcnt vmcnt(18)')
    d0 = float(opt.get('kg0', 0.0))
    EV = [(d0, wb(2, 12) + w2stage(5)), (d0 + da, wb(3, 12) + w2stage(6) + f'buffer_load_dword v{PRM+9}, v16, s[16:19], s42 offen'),
          (d0 + 2 * da, wb(4, 13) + w1dma(0, 18) + w1dma(1, 18)),
          (d0 + 2 * da + db, wb(5, 11) + w1dma(2, 18) + w1dma(3, 18)),
          (d0 + 2 * da + 2 * db, wb(6, 9) + w1dma(4, 18) + w1dma(5, 18))]
    t = K('w')
    for hf in range(2):
        t(f'ds_read_b64_tr_b16 v[{160+4*hf}:{161+4*hf}], v157 offset:{4096*hf}\n ds_read_b64_tr_b16 v[{162+4*hf}:{163+4*hf}], v158 offset:{4096*hf}')
    t('s_waitcnt lgkmcnt(0)')
    t('s_barrier\n' + w1dma(6, 18) + w1dma(7, 18))
    if opt.get('sent'):
        t(f's_mul_i32 s35, s28, {4*28}\n s_lshl_b32 s63, s29, 2\n s_add_u32 s35, s35, s63\n s_add_u32 s35, s35, s32\n s_lshl_b32 s35, s35, 10\n s_add_u32 s35, s35, {hex(WS_H)}')
        t('v_mov_b32 v168, -1\n v_mov_b32 v169, -1\n v_mov_b32 v170, -1\n v_mov_b32 v171, -1')
        for tt in range(4): t(f'buffer_store_dwordx4 v[168:171], v2, s[12:15], s35 offen sc1\n s_add_u32 s35, s35, {28*1024}')
    for hf in range(2): t(f'buffer_store_dwordx4 v[{160+4*hf}:{163+4*hf}], v159, s[12:15], s36 offen offset:{64*hf} sc1')
    t(G.st(1))
    EV.append((d0 + 2 * da + 3 * db, t.lines))
    DP = 232; DT = PRM + 8
    def kgen(t, c, hook=None):
        if c == 0:
            t(f'v_lshlrev_b32 v{DT}, 16, v{DT}\n v_mul_f32 v{DT}, {f32hex(L2E)}, v{DT}\n v_exp_f32 v{DT}, v{DT}')
            cvt(t, DT, DT, DT); lo(t, DT, DT)
        Z1_, Z8, Z256, Z2_, Z4 = 32, 35, 38, 41, 44
        V, PKD, XA_, XB_ = 128, 48, 56, 58
        p = PRM + 4 * c
        t(f"""
        v_lshlrev_b32 v{p}, 16, v{p}
        v_mul_f32 v{p}, {f32hex(L2E)}, v{p}
        v_exp_f32 v{p}, v{p}
        v_lshlrev_b32 v{p+1}, 16, v{p+1}
        v_lshlrev_b32 v{p+2}, 16, v{p+2}
        v_lshlrev_b32 v{p+3}, 16, v{p+3}
        v_cvt_pk_bf16_f32 v{p}, v{p}, v{p}
        v_mul_f32 v{p+1}, v{p+1}, v{DT}
        v_lshlrev_b32 v{p}, 16, v{p}
        v_mul_f32 v{p+1}, 0.15915494, v{p+1}
        v_mul_f32 v{p}, v{p}, v{DT}
        v_add_f32 v60, v{DT}, v{DT}
        v_mul_f32 v{p}, {f32hex(-L2E)}, v{p}
        v_mul_f32 v{XA_}, v{p+2}, v60
        v_mul_f32 v{XA_+1}, v{p+3}, v60
        """)
        for (d, e) in ((Z8, 8), (Z1_, 1), (Z256, 256)):
            t(f"""
            v_mul_f32 v60, {f32hex(float(e))}, v{p}
            v_mul_f32 v61, {f32hex(float(e))}, v{p+1}
            v_exp_f32 v60, v60
            v_fract_f32 v61, v61
            v_cos_f32 v{d}, v61
            v_sin_f32 v{d+1}, v61
            v_mul_f32 v{d}, v{d}, v60
            v_mul_f32 v{d+1}, v{d+1}, v60
            v_sub_f32 v{d+2}, 0, v{d+1}
            """)
        def put(q, vals, neg):
            for i in range(4):
                cvt(t, PKD + i, vals[2 * i], vals[2 * i + 1])
            t(f'ds_write_b128 v7, v[{PKD}:{PKD+3}] offset:{16*q}')
            n = '-' if neg else ''
            for i in range(4):
                t(f'v_cvt_pk_bf16_f32 v{PKD+4+i}, {n}v{vals[2*i]+1}, {n}v{vals[2*i+1]+1}')
            t(f'ds_write_b128 v7, v[{PKD+4}:{PKD+7}] offset:{64 + 16*q}')
        vs = [V + 2 * i for i in range(8)]
        t(f'v_mov_b32 v{V}, 1.0\n v_mov_b32 v{V+1}, 0')
        for q in range(4):
            for i in range(8):
                if q == 0 and i == 0: continue
                if q == 0 and i == 1: t(f'v_mov_b32 v{vs[1]}, v{Z8}\n v_mov_b32 v{vs[1]+1}, v{Z8+1}')
                else: cmul(t, vs[i], vs[i - 1], Z8)
            if q == 0 and hook: hook(t)
            put(q, vs, True)
        cmul(t, Z2_, Z1_, Z1_); t(f'v_sub_f32 v{Z2_+2}, 0, v{Z2_+1}')
        cmul(t, Z4, Z2_, Z2_); t(f'v_sub_f32 v{Z4+2}, 0, v{Z4+1}')
        t('s_waitcnt lgkmcnt(0)')
        FB, FA = 64, 96
        def frags(F):
            for ks in range(8):
                t(f'ds_read_b64_tr_b16 v[{F+4*ks}:{F+4*ks+1}], v1 offset:{8*KG_ROW*ks}\n ds_read_b64_tr_b16 v[{F+4*ks+2}:{F+4*ks+3}], v1 offset:{8*KG_ROW*ks + 64}')
        frags(FB)
        cmul(t, vs[1], XA_, Z1_)
        for i in range(2, 8): cmul(t, vs[i], vs[i - 1], Z1_)
        t('s_waitcnt lgkmcnt(0)')
        put(0, [XA_] + vs[1:], False)
        cmul(t, XB_, XA_, Z256)
        cmul(t, vs[1], XB_, Z2_)
        for i in range(2, 5): cmul(t, vs[i], vs[i - 1], Z2_)
        put(1, [XB_, vs[1], vs[2], vs[2], vs[2], vs[3], vs[4], vs[4]], False)
        cmul(t, XA_, XB_, Z256); cmul(t, vs[0], XA_, Z4); cmul(t, vs[1], vs[0], Z4)
        cmul(t, XB_, XA_, Z256); cmul(t, vs[2], XB_, Z4); cmul(t, vs[3], vs[2], Z4)
        put(2, [XA_, vs[0], XB_, vs[2], vs[0], vs[1], vs[2], vs[3]], False)
        cmul(t, vs[0], XB_, Z256)
        for i in range(1, 4): cmul(t, vs[i], vs[i - 1], Z256)
        for i in range(4): cmul(t, vs[4 + i], vs[i], Z8)
        put(3, vs, False)
        t('s_waitcnt lgkmcnt(0)')
        frags(FA)
        for ks in range(8):
            t(f's_waitcnt lgkmcnt({14-2*ks})')
            cin = '0' if (ks == 0 and c == 0) else f'v[{DP}:{DP+15}]'
            t(f'v_mfma_f32_32x32x16_bf16 v[{DP}:{DP+15}], v[{FA+4*ks}:{FA+4*ks+3}], v[{FB+4*ks}:{FB+4*ks+3}], {cin}')
    EV[-1] = (EV[-1][0], '\n'.join(EV[-1][1]))
    t = K('w'); t('s_waitcnt vmcnt(2)'); post(t, 1)
    t2 = f's_waitcnt vmcnt(0)\n v_mov_b32 v10, 0\n s_mov_b64 exec, 1\n buffer_store_dword v{TAG}, v10, s[12:15], s37 offen sc1\n s_mov_b64 exec, -1'
    f7 = EV[-1][0]
    B_, B2, A_, Wt, UR, AC, P = 32, 80, 112, 144, 168, 176, 192
    fuload = 'buffer_load_dwordx2 v[176:177], v5, s[12:15], s36 offen sc1'
    t3 = f"""
    s_lshr_b32 s36, s20, 6
    s_lshl_b32 s36, s36, 9
    s_add_u32 s36, s36, {hex(WS_FU)}
    v_lshlrev_b32 v5, 3, v0
    {fuload}
    s_lshl_b32 s23, s20, 12                ; ch*4096
    s_add_u32 s44, s12, {hex(WS_UT)}
    s_addc_u32 s45, s13, 0
    s_add_u32 s44, s44, s23
    s_addc_u32 s45, s45, 0
    s_mov_b32 s46, 4096
    s_mov_b32 s47, 0x20000
    """
    for q in range(5):
        t3 += f'v_add_u32 v{180+q}, {64*q}, v0\n v_mul_u32_u24 v6, 3856, v{180+q}\n v_lshrrev_b32 v6, 16, v6\n v_sub_u32 v{180+q}, v{180+q}, v6\n v_lshlrev_b32 v{180+q}, 4, v{180+q}\n v_add_u32 v{180+q}, -16, v{180+q}\n'
    t3 += f"""
    v_mul_u32_u24 v6, 272, v8
    s_lshl_b32 s35, s22, 3
    s_add_u32 s35, s35, s39
    v_lshl_add_u32 v185, v9, 4, v6
    v_add_u32 v185, s35, v185              ; a*272 + g*16 + 8hf
    v_lshl_add_u32 v186, v9, 6, v6
    v_add_u32 v186, s35, v186              ; a*272 + g*64 + 8hf
    """
    k.lines += weave(sub(kgen, 0), EV + [(f7 + float(opt.get('kgp', 0.06)), '\n'.join(t.lines)), (min(f7 + float(opt.get('kgu', 0.2)), 0.9), t2), (0.93, t3)])
    G.stamp(2)
    if opt.get('kprio'): k(f"s_setprio {opt['kprio']}")
    poll(k, 'pfu', fuload, [176, 177], nap=2, first_issued=True)
    for q in range(5):
        k(f's_add_u32 m0, s39, {q*1024}')
        if q == 4: k('s_mov_b64 exec, 0xffff')
        k(f'buffer_load_dwordx4 v{180+q}, s[44:47], 0 offen sc1 lds')
    k('s_mov_b64 exec, -1')
    G.stamp(3)
    def uhook(t):
        t('s_waitcnt vmcnt(0)')
        for kk in range(4):
            for m in range(3): t(f'ds_read_b64 v[{Wt+6*kk+2*m}:{Wt+6*kk+2*m+1}], v185 offset:{64*kk + 8*m}')
        t('s_waitcnt lgkmcnt(8)')
        for i in range(4): t(f'ds_read_b64 v[{UR+2*i}:{UR+2*i+1}], v186 offset:{16 + 16*i}')
        t('s_waitcnt lgkmcnt(0)')
    kgen(k, 1, uhook)
    G.stamp(5)
    k(f"""
    s_mul_i32 s38, s21, 4352
    s_xor_b32 s35, s3, 1
    s_lshl_b32 s35, s35, 2
    v_add_u32 v21, s35, v22
    s_cmp_eq_u32 s22, 0
    s_cbranch_scc1 L_B_fin
    v_add_u32 v1, s39, v2
    """)
    for q in range(4): k(f'ds_write_b128 v1, v[{DP+4*q}:{DP+4*q+3}] offset:{1024*q}')
    k('s_waitcnt lgkmcnt(0)'); post(k, 100)
    k('s_branch L_B_join')
    k(f'L_B_fin:\n s_add_u32 s35, s39, {KG_WAVE}\n v_add_u32 v1, s35, v2')
    waitfor(k, 'wbp', 0, 1, 100, 32, base=21)
    for q in range(4): k(f'ds_read_b128 v[{80+4*q}:{83+4*q}], v1 offset:{1024*q}')
    k(f"""
    v_and_b32 v5, 31, v0
    v_lshlrev_b32 v5, 4, v5
    v_lshrrev_b32 v7, 5, v0
    v_xor_b32 v6, 1, v7
    v_lshl_add_u32 v5, v6, 3, v5
    s_add_u32 s35, s38, {L_KI + 256}
    v_add_u32 v5, s35, v5                  ; KI + j*16 + 8*(1-h)
    v_lshlrev_b32 v6, 2, v0
    s_add_u32 s35, s38, {L_KI}
    v_add_u32 v6, s35, v6
    s_waitcnt lgkmcnt(0)
    """)
    post(k, 100)
    for i in range(8): pks(k, 'add', 64 + 2 * i, DP + 2 * i, 80 + 2 * i)
    k('v_cmp_eq_u32 vcc, 1, v7\n v_cndmask_b32 v80, v72, v73, vcc\n v_cndmask_b32 v81, v74, v75, vcc')
    k('v_and_b32 v7, 1, v0\n v_cmp_eq_u32 vcc, 1, v7')
    for i in range(4): k(f'v_mov_b32 v{84+i}, v{76+i}\n v_mov_b32 v{88+i}, v{76+i}')
    for i in range(4): k(f'v_permlane32_swap_b32 v{84+i}, v{88+i}')
    for i in range(4): k(f'v_cndmask_b32 v{84+i}, v{84+i}, v{76+i}, vcc')
    blks = [(67, 66, 65, 64), (70, 69, 68, 68), (73, 80, 72, 72), (75, 81, 74, 74)] + [(76 + i, 76 + i, 76 + i, 84 + i) for i in range(4)]
    for b, (a0, a1, a2, a3) in enumerate(blks): cvt(k, 96 + 2 * b, a0, a1); cvt(k, 97 + 2 * b, a2, a3)
    waitfor(k, 'wbb0', 16, 4, 100, 32)
    k('v_mov_b32 v3, 0\n ds_write_b32 v6, v3')
    for b in range(8): k(f'ds_write_b64 v5, v[{96+2*b}:{97+2*b}] offset:{512*b}')
    k('s_waitcnt lgkmcnt(0)\nL_B_join:')
    post(k, 101)
    LC = 216
    k(f"""
    v_sub_u32 v5, v8, v9
    v_lshlrev_b32 v5, 4, v5
    s_add_u32 s35, s38, {L_KI + 64 + 15*256}
    v_add_u32 v5, s35, v5
    v_cmp_ne_u32 vcc, 8, v8
    v_cndmask_b32 v15, 0, -1, vcc
    v_cmp_gt_u32 vcc, 8, v8
    """)
    G.stamp(6)
    def BF(kk, rr): return Wt + 6 * kk + 2 if rr == 3 else B_ + (kk * 3 + rr) * 4
    for kk in range(4):
        w = Wt + 6 * kk
        for j in range(4):
            k(f'v_alignbit_b32 v{BF(kk,0)+j}, v{w+j+1}, v{w+j}, 16\n v_mov_b32 v{BF(kk,1)+j}, v{w+j+1}\n v_alignbit_b32 v{BF(kk,2)+j}, v{w+j+2}, v{w+j+1}, 16')
    for kk in range(4):
        for p in range(2):
            for j in range(4):
                k(f'v_cndmask_b32_dpp v{B2 + (kk*2+p)*4 + j}, v{BF(kk,2*p+1)+j}, v{BF(kk,2*p)+j}, vcc row_shr:8 row_mask:0xf bank_mask:0xf bound_ctrl:1')
    for j in range(8): k(f'v_mov_b32 v{P+j}, 0')
    def cread(buf):
        for kk in range(4):
            r = A_ + buf * 16 + kk * 4
            k(f'ds_read_b128 v[{r}:{r+3}], v5 offset:{192 - 64*kk}')
        k('v_add_u32 v5, -256, v5')
    waitfor(k, 'wbq', 0, 1, 101, LC, base=21)
    cread(0)
    G.stamp(7)
    if opt.get('kprio'): k('s_setprio 0')
    if opt.get('bprio'): k(f"s_setprio {opt['bprio']}")
    shp = lambda r: f'v_and_b32_dpp v{r}, v{r}, v15 row_shr:1 row_mask:0xf bank_mask:0xf bound_ctrl:1'
    shf = lambda r: f'v_mov_b32_dpp v{r}, v{r} row_shr:1 row_mask:0xf bank_mask:0xf bound_ctrl:1'
    k('s_mov_b32 s7, 0' + ('\n s_branch L_B_last' if opt.get('noconv') else '') + '\nL_B_pk:')
    for half in range(2):
        cread(1 - half)
        for j in range(4): k(shp(P + j))
        k('s_waitcnt lgkmcnt(4)')
        for kk in range(4): mfma(k, P, A_ + half * 16 + kk * 4, B2 + (kk * 2) * 4); k(shp(P + 4 + kk))
        for kk in range(4): mfma(k, P + 4, A_ + half * 16 + kk * 4, B2 + (kk * 2 + 1) * 4)
    k('s_add_u32 s7, s7, 1\n s_cmp_lt_u32 s7, 4\n s_cbranch_scc1 L_B_pk')
    for j in range(4): k(f'v_mov_b32_dpp v{AC + j}, v{P+j} row_shr:1 row_mask:0xf bank_mask:0xf bound_ctrl:1')
    for j in range(4): k(f'v_mov_b32_dpp v{AC + 4 + j}, v{P+j} row_shl:8 row_mask:0xf bank_mask:0xf bound_ctrl:1')
    for j in range(4): k(f'v_mov_b32 v{AC + 8 + j}, v{P+4+j}')
    for j in range(4): k(f'v_mov_b32_dpp v{AC + 12 + j}, v{P+4+j} row_shl:8 row_mask:0xf bank_mask:0xf bound_ctrl:1')
    k('s_mov_b32 s7, 0\nL_B_fl:')
    for half in range(2):
        cread(1 - half)
        k('s_waitcnt lgkmcnt(4)')
        for rr in range(4):
            if rr == 3 and half == 1: k('s_add_u32 s7, s7, 1\n s_cmp_eq_u32 s7, 4\n s_cbranch_scc1 L_B_last')
            for kk in range(4):
                mfma(k, AC + 4 * rr, A_ + half * 16 + kk * 4, BF(kk, rr))
                k(shf(AC + 4 * ((rr + 1) % 4) + kk))
    k('s_branch L_B_fl\nL_B_last:\n s_nop 1')
    for kk in range(4): mfma(k, AC + 12, A_ + 16 + kk * 4, BF(kk, 3))
    G.stamp(8)
    k(f"s_setprio {opt.get('eprio', 2)}")
    k(f"""
    s_lshl_b32 s35, s22, 3
    s_add_u32 s35, s35, s38
    s_add_u32 s35, s35, {L_U + 16}
    v_mul_u32_u24 v6, 272, v8
    v_lshl_add_u32 v7, v9, 6, v6
    v_add_u32 v7, s35, v7
    s_lshl_b32 s35, s21, 4
    s_lshr_b32 s30, s30, s35
    s_lshl_b32 s30, s30, 16
    v_mov_b32 v18, s30
    v_mov_b32 v19, s30
    """)
    its = [(UR + 2 * i + p, AC + 8 * p + i, AC + 8 * p + 4 + i, 48 + 4 * (2 * i + p), 40 + 2 * i + p) for i in range(4) for p in range(2)]
    for u, y0, y1, t, y in its: cvt(k, y, y0, y1); lo(k, t, u); hi(k, t + 1, u)
    for u, y0, y1, t, y in its: pks(k, 'mul', t, t, 18)
    for u, y0, y1, t, y in its: cvt(k, u, t, t + 1); lo(k, t + 2, y); hi(k, t + 3, y)
    for u, y0, y1, t, y in its: lo(k, t, u); hi(k, t + 1, u)
    for u, y0, y1, t, y in its: pks(k, 'add', t, t, t + 2)
    for u, y0, y1, t, y in its: cvt(k, u, t, t + 1)
    for i in range(4): k(f'ds_write_b64 v7, v[{UR+2*i}:{UR+2*i+1}] offset:{16*i}')
    k(f"""
    s_lshl_b32 s35, s22, 3
    v_add_u32 v7, s35, v9
    v_mul_u32_u24 v7, 272, v7
    v_lshl_add_u32 v7, v8, 4, v7
    s_add_u32 s35, s38, {L_U + 16}
    v_add_u32 v7, s35, v7
    s_lshl_b32 s36, s22, 11
    s_add_u32 s36, s36, s23
    s_add_u32 s36, s36, {hex(WS_AT)}
    s_waitcnt lgkmcnt(0)
    """)
    post(k, 103)
    waitfor(k, 'wbr', 0, 1, 103, 32, base=21)
    k(f"""
    ds_read_b128 v[32:35], v7
    ds_read_b128 v[36:39], v7 offset:{4*272}
    s_waitcnt lgkmcnt(0)
    buffer_store_dwordx4 v[32:35], v2, s[12:15], s36 offen sc1
    buffer_store_dwordx4 v[36:39], v2, s[12:15], s36 offen offset:1024 sc1
    """)
    k(f"""
    s_lshl_b32 s30, s20, 3
    s_lshl_b32 s35, s22, 2
    s_add_u32 s30, s30, s35
    s_add_u32 s30, s30, {hex(WS_FA)}
    """)
    G.stamp(9)
    G.stamp(1, '7')
    faload = 'buffer_load_dwordx2 v[96:97], v1, s[12:15], s39 offen sc1\n buffer_load_dwordx4 v[100:103], v2, s[12:15], s5 offen sc1'
    atile = f"""
    s_lshl_b32 s36, s29, 18
    s_lshl_b32 s35, s28, 7
    s_add_u32 s36, s36, s35
    s_add_u32 s36, s36, {hex(WS_AT)}
    """
    for q in range(8): atile += f's_mov_b32 m0, {L_R + 1024*q}\n s_nop 0\n buffer_load_dwordx4 v17, s[12:15], s36 offen sc1 lds\n s_add_u32 s36, s36, 0x8000\n'
    atile += f"""
    s_lshl_b32 s36, s28, 9
    s_add_u32 s36, s36, {hex(WS_G2)}
    s_mov_b32 m0, {L_R + 8192}
    s_mov_b32 exec_hi, 0
    buffer_load_dwordx4 v2, s[12:15], s36 offen sc1 lds
    s_mov_b32 exec_hi, -1
    s_mov_b32 s7, 1
    """
    k(f"""
    s_lshl_b32 s39, s29, 9
    s_add_u32 s39, s39, {hex(WS_FA)}
    s_mov_b32 s5, {hex(WS_FG)}
    v_lshlrev_b32 v1, 3, v0
    v_mov_b32 v3, 0
    v_lshrrev_b32 v16, 3, v0
    v_and_b32 v17, 6, v16
    v_xor_b32 v17, v17, v0
    v_and_b32 v17, 7, v17
    v_lshlrev_b32 v17, 4, v17
    v_lshl_add_u32 v17, v16, 12, v17
    s_waitcnt vmcnt(0)
    s_mov_b64 exec, 1
    buffer_store_dword v{TAG}, v3, s[12:15], s30 offen sc1
    s_mov_b64 exec, -1
    s_setprio 0
    s_cmp_lg_u32 s32, 0
    s_cbranch_scc1 L_B_end
    """)
    waitfor(k, 'wfa', 0, 4, int(opt.get('fat', 26)), LC, sleep=2)
    poll(k, 'pfa', faload, [96, 97, 100, 101, 102, 103], nap=int(opt.get('anap', 8)))
    G.stamp(10)
    k(atile + 's_waitcnt vmcnt(0)\nL_B_end:')
    G.stamp(11); G.stamp(11, '7')
    k('s_barrier')
    G.flush(16)
    k('s_endpgm')

    k('L_helper:')
    k(f"""
    s_getpc_b64 s[36:37]
L_pc:
    s_sub_u32 s36, s36, L_pc-{NAME}
    s_subb_u32 s37, s37, 0
    s_lshl_b32 s35, s3, 13
    v_lshlrev_b32 v10, 7, v0
    v_add_u32 v10, s35, v10
    v_min_u32 v10, L_end-{NAME}, v10
    global_load_dword v29, v10, s[36:37]
    v_min_u32 v1, 55, v0
    v_lshlrev_b32 v10, 4, v1
    global_load_dwordx4 v[24:27], v10, s[54:55]
    v_lshlrev_b32 v5, 12, v0
    s_lshl_b32 s35, s28, 18
    s_lshl_b32 s22, s3, 7
    s_add_u32 s35, s35, s22
    v_add_u32 v5, s35, v5
    s_and_b32 s35, s3, 1
    s_cmp_eq_u32 s35, 1
    s_cbranch_scc0 L_H_even
    v_mov_b32 v6, v7
L_H_even:
    s_lshl_b32 s20, s28, 3
    s_add_u32 s20, s20, s3
    s_mul_i32 s20, s20, {8*896}
    s_lshl_b32 s21, s3, 10
    v_lshrrev_b32 v10, 3, v1
    v_lshlrev_b32 v10, 13, v10
    v_and_b32 v1, 7, v1
    v_lshl_add_u32 v10, v1, 4, v10
    s_lshl_b32 s23, s28, 3
    s_add_u32 s23, s23, s3
    """)
    for p in range(7):
        k(f's_add_u32 m0, s21, {8192*p}\n buffer_load_dwordx4 v6, s[8:11], s20 offen lds\n s_add_u32 s20, s20, 128')
    k('s_waitcnt vmcnt(0)')
    G.stamp(1)
    for r in range(4): k(f'global_load_dword v29, v5, s[48:49] offset:{1024*r}')
    k(tagcalc + '\n s_barrier')
    K0 = int(opt.get('zk0', 6))
    k(f"""
    s_and_b32 s35, s2, 1
    s_mul_i32 s35, s35, 3
    s_add_u32 s35, s35, s32
    s_lshl_b32 s36, s35, 11
    s_add_u32 s36, s36, {hex(WS_FZ)}
    s_and_b32 s37, s28, 3
    s_lshl_b32 s37, s37, 1
    s_lshr_b32 s38, s3, 2
    s_add_u32 s37, s37, s38
    s_add_u32 s37, s37, {K0}
    s_lshl_b32 s37, s37, 13
    s_lshl_b32 s35, s35, 19
    s_add_u32 s37, s37, s35
    s_add_u32 s38, s35, {64*8192}
    v_lshlrev_b32 v1, 6, v0
    v_lshlrev_b32 v5, 7, v0
    """)
    if opt.get('zpf'):
        k('s_cmp_ge_u32 s3, 4\n s_cbranch_scc1 L_H_nz')
        poll(k, 'hfz', 'buffer_load_dwordx4 v[32:35], v1, s[12:15], s36 offen sc1', [32, 33, 34, 35], lanes='s_mov_b32 exec_hi, 0', nap=int(opt.get('znap', 8)))
        k('L_H_nz:\n s_barrier')
        G.stamp(2)
        k(f"""
L_H_z:
        buffer_load_dword v29, v5, s[12:15], s37 offen sc1
        s_add_u32 s37, s37, {8*8192}
        s_cmp_lt_u32 s37, s38
        s_cbranch_scc1 L_H_z
        """)
    for i in range(8):
        k(f"""
        s_lshl_b32 s35, s3, 2
        s_add_u32 s35, s35, {i >> 1}
        s_and_b32 s35, s35, 7
        s_lshl_b32 s35, s35, 4
        v_xor_b32 v1, s35, v10
        v_add_u32 v1, s21, v1
        ds_read_b128 v[{64+4*i}:{67+4*i}], v1 offset:{128*i}
        """)
    for j in range(4): lo(k, 16 + 2 * j, 24 + j); hi(k, 17 + 2 * j, 24 + j)
    k('v_cmp_gt_u32 vcc, 56, v0\n s_waitcnt lgkmcnt(0)')
    for i in range(8):
        t = 96 + 8 * i
        for j in range(4): lo(k, t + 2 * j, 64 + 4 * i + j); hi(k, t + 2 * j + 1, 64 + 4 * i + j)
        for j in range(4): pk(k, 'mul', t + 2 * j, t + 2 * j, 16 + 2 * j)
        for j in range(4): cvt(k, 64 + 4 * i + j, t + 2 * j, t + 2 * j + 1)
        for j in range(4): lo(k, t + 2 * j, 64 + 4 * i + j); hi(k, t + 2 * j + 1, 64 + 4 * i + j)
        pk(k, 'add', t, t, t + 2); pk(k, 'add', t + 4, t + 4, t + 6); pk(k, 'add', t, t, t + 4)
        k(f'v_add_f32 v{t}, v{t}, v{t+1}\n v_cndmask_b32 v{32+i}, 0, v{t}, vcc')
    rowsum16(k, list(range(32, 40))); xsum4(k, list(range(32, 40)), 40)
    for i in range(1, 8): k(f'v_cmp_eq_u32 vcc, {i}, v0\n v_cndmask_b32 v32, v32, v{32+i}, vcc')
    cvt(k, 32, 32, 32); lo(k, 32, 32)
    k(f'v_mul_f32 v32, {f32hex(-L2E)}, v32\n v_exp_f32 v32, v32\n v_add_f32 v32, 1.0, v32\n v_rcp_f32 v32, v32')
    cvt(k, 32, 32, 32); lo(k, 32, 32)
    k('v_sub_f32 v33, 1.0, v32')
    cvt(k, 33, 33, 33); lo(k, 33, 33)
    k(f"""
    s_lshl_b32 s36, s23, 6
    s_add_u32 s36, s36, {hex(WS_G2)}
    s_lshl_b32 s35, s23, 2
    s_add_u32 s35, s35, {hex(WS_FG)}
    v_lshlrev_b32 v1, 3, v0
    s_mov_b64 exec, 0xff
    buffer_store_dwordx2 v[32:33], v1, s[12:15], s36 offen sc1
    s_waitcnt vmcnt(0)
    s_mov_b64 exec, 1
    buffer_store_dword v{TAG}, v1, s[12:15], s35 offen sc1
    s_mov_b64 exec, -1
    s_and_b32 s35, s28, 3
    s_lshl_b32 s35, s35, 3
    s_add_u32 s35, s35, s3
    s_mul_i32 s35, s35, {28*896}
    s_and_b32 s36, s2, 1
    s_mul_i32 s36, s36, 384
    s_add_u32 s35, s35, s36
    v_min_u32 v5, 55, v0
    v_lshrrev_b32 v1, 2, v5
    v_mul_u32_u24 v1, 896, v1
    v_and_b32 v5, 3, v5
    v_lshl_add_u32 v5, v5, 7, v1
    v_add_u32 v5, s35, v5
    global_load_dword v29, v5, s[52:53]
    v_add_u32 v5, {14*896}, v5
    global_load_dword v29, v5, s[52:53]
    """)
    if opt.get('stamp'): k('s_waitcnt vmcnt(0)')
    G.stamp(3)
    G.flush(4)
    k('L_end:\n s_endpgm')
    return k

if __name__ == '__main__':
    opt = dict(a.split('=') if '=' in a else (a, 1) for a in sys.argv[2:])
    k = gen(opt)
    v, s = k.maxreg()
    ref = open('gated_mix__ssm_conv_s4d__mixer_gmlp__prompt.s.ref').read().split('\n')
    hdr = [l for l in ref if l.startswith(';') and '@launch' not in l and 'Override launch' not in l and 'grid=ceil' not in l]
    txt = '\n'.join(hdr) + f'\n; @launch grid=(256,1,1) block=(512,1,1) lds={LDS}\n'
    txt += '.amdgcn_target "amdgcn-amd-amdhsa--gfx950"\n.text\n' + k.text(align=(opt.get('align', '1') == '1')) + '.section .rodata,"a"\n' + desc(k.name, v, s)
    open(sys.argv[1], 'w').write(txt)
    print('vgpr', v, 'sgpr', s, 'lines', len(k.lines))
```

```python
import sys, struct
from asmlib import *

NAME = 'gated_mix__ssm_conv_s4d__mixer_gmlp__prompt_kernel'
WS_Z2 = 0x000000
WS_H  = 0x380000
WS_UT = 0x700000
WS_AT = 0x8C0000
WS_G2 = 0xA80000
WS_ST = 0xA90000
WS_FZ = 0xAD0000
WS_FH = 0xAD4000
WS_FA = 0xAE4000
WS_FU = 0xAE5000
WS_FG = 0xAE5E00
WS_FG = 0xAE7000
WS_EP = 0xAE6000
WS_END = 0xAF0000
SZ_Z = 3670016
STAMP_BASE = 0x2000000
L_X = 65536
L_KG = 122880
KG_ROW = 144
KG_WAVE = 64 * KG_ROW
L_U = 131072
L_KI = L_U + 2 * 4352
L_R = L_KI + 2 * 4352
L_Z1 = L_U
L_CNT = 163840 - 48
LDS = 163840
L2E = 1.4426950408889634
PI = [4, 5, 2, 3, 6, 0, 1, 7]
PI_WORD = sum(v << (4 * i) for i, v in enumerate(PI))
TAG = 28
POLL_LIMIT = 1 << 16

def f32hex(x): return hex(struct.unpack('<I', struct.pack('<f', x))[0])

def srd(k, d, lo, hi, size, add=0):
    if add: k(f's_add_u32 s{d}, s{lo}, {hex(add)}\n s_addc_u32 s{d+1}, s{hi}, 0')
    else: k(f's_mov_b32 s{d}, s{lo}\n s_mov_b32 s{d+1}, s{hi}')
    k(f's_mov_b32 s{d+2}, {hex(size)}\n s_mov_b32 s{d+3}, 0x20000')

class Gen:
    def __init__(self, opt):
        self.opt = opt
        self.k = K(NAME)
    def st(self, idx, grp='1'):
        if str(self.opt.get('stamp')) == grp or (idx == 0 and self.opt.get('stamp')): return f's_memrealtime s[{64+2*idx}:{65+2*idx}]\n'
        return ''
    def stamp(self, idx, grp='1'):
        self.k(self.st(idx, grp))
        if grp == '1' and str(self.opt.get('stamp')) == '6' and idx in self.CL:
            j = self.CL.index(idx)
            self.k(f's_memrealtime s[{66+4*j}:{67+4*j}]\n s_memtime s[{68+4*j}:{69+4*j}]')
    CL = [1, 2, 3, 4, 10, 11, 14]
    def flush(self, n):
        k = self.k
        if not self.opt.get('stamp'): return
        k('s_waitcnt lgkmcnt(0)\n s_mov_b64 exec, 1')
        k(f's_lshl_b32 s60, s2, 3\n s_add_u32 s60, s60, s61\n s_lshl_b32 s60, s60, 6\n s_add_u32 s60, s60, {hex(STAMP_BASE)}')
        k('v_mov_b32 v1, 0')
        for i in range(n):
            k(f'v_mov_b32 v2, s{64+2*i}\n buffer_store_dword v2, v1, s[56:59], s60 offen offset:{4*i}')
        k('s_mov_b64 exec, -1')

def lo(k, d, s): k(f'v_lshlrev_b32 v{d}, 16, v{s}')
def hi(k, d, s): k(f'v_and_b32 v{d}, 0xffff0000, v{s}')
def cvt(k, d, a, b): k(f'v_cvt_pk_bf16_f32 v{d}, v{a}, v{b}')
def pk(k, op, d, a, b, c=None, mods=''):
    s = f'v_pk_{op}_f32 v[{d}:{d+1}], v[{a}:{a+1}], v[{b}:{b+1}]'
    if c is not None: s += f', v[{c}:{c+1}]'
    k(s + (' ' + mods if mods else ''))
def pks(k, op, d, a, b, c=None, neg=False, sc=True):
    if not sc:
        return pk(k, op, d, a, b, c, mods='neg_lo:[0,1] neg_hi:[0,1]' if neg else '')
    for i in range(2):
        if op == 'fma':
            k(f'v_fmac_f32 v{d+i}, v{a+i}, v{b+i}' if c == d else f'v_fma_f32 v{d+i}, v{a+i}, v{b+i}, v{c+i}')
        else: k(f"v_{'sub' if neg else op}_f32 v{d+i}, v{a+i}, v{b+i}")
def mfma(k, c, a, b, cin=None):
    k(f'v_mfma_f32_16x16x32_bf16 v[{c}:{c+3}], v[{a}:{a+3}], v[{b}:{b+3}], ' + (cin or f'v[{c}:{c+3}]'))

GC = 24
def gelu_consts(k):
    c0 = -2.0 * 0.7978845608028654 * L2E
    k(f'v_mov_b32 v24, {f32hex(c0*0.044715)}\n v_mov_b32 v25, {f32hex(c0*0.044715)}\n v_mov_b32 v26, {f32hex(c0)}\n v_mov_b32 v27, {f32hex(c0)}')
    k('v_mov_b32 v30, 1.0\n v_mov_b32 v31, 1.0')
def gelu_tiles(k, cs, t, sc=False):
    c0 = -2.0 * 0.7978845608028654 * L2E
    pairs = [(c + 2 * p, t + 4 * i + 2 * p) for i, c in enumerate(cs) for p in range(2)]
    if not NOROUND:
        for x, tt in pairs: cvt(k, tt, x, x + 1)
        for x, tt in pairs: lo(k, x, tt); hi(k, x + 1, tt)
    for x, tt in pairs: pks(k, 'mul', tt, x, x, sc=sc)
    for x, tt in pairs:
        if sc: k(f'v_fmaak_f32 v{tt}, v{tt}, v24, {f32hex(c0)}\n v_fmaak_f32 v{tt+1}, v{tt+1}, v24, {f32hex(c0)}')
        else: pk(k, 'fma', tt, tt, 24, 26)
    for x, tt in pairs: pks(k, 'mul', tt, tt, x, sc=sc)
    for x, tt in pairs: k(f'v_exp_f32 v{tt}, v{tt}\n v_exp_f32 v{tt+1}, v{tt+1}')
    for x, tt in pairs: pks(k, 'add', tt, tt, 30, sc=sc)
    for x, tt in pairs: k(f'v_rcp_f32 v{tt}, v{tt}\n v_rcp_f32 v{tt+1}, v{tt+1}')
    for x, tt in pairs: pks(k, 'mul', x, x, tt, sc=sc)

def rowsum16(k, regs):
    for sh in (8, 4, 2, 1):
        for r in regs: k(f'v_add_f32_dpp v{r}, v{r}, v{r} row_ror:{sh} row_mask:0xf bank_mask:0xf')
def xsum4(k, regs, t):
    for sw in ('16', '32'):
        for i, r in enumerate(regs): k(f'v_mov_b32 v{t+i}, v{r}')
        for i, r in enumerate(regs): k(f'v_permlane{sw}_swap_b32 v{r}, v{t+i}')
        for i, r in enumerate(regs): k(f'v_add_f32 v{r}, v{r}, v{t+i}')
def cmul(k, d, x, w):
    k(f'v_mul_f32 v{d}, v{x}, v{w}\n v_mul_f32 v{d+1}, v{x+1}, v{w}\n v_fmac_f32 v{d}, v{x+1}, v{w+2}\n v_fmac_f32 v{d+1}, v{x}, v{w+1}')

def poll(k, name, loads, regs, lanes=None, first_issued=False, wait0='s_waitcnt vmcnt(0)', nap=0):
    k(f's_mov_b32 s62, {POLL_LIMIT}')
    if lanes: k(lanes)
    if first_issued: k(f'{wait0}\n s_branch L_{name}_chk')
    k(f'L_{name}:')
    k(loads)
    k(f's_waitcnt vmcnt(0)\nL_{name}_chk:')
    k(f'v_cmp_ne_u32 vcc, v{TAG}, v{regs[0]}')
    for r in regs[1:]:
        k(f'v_cmp_ne_u32 s[54:55], v{TAG}, v{r}\n s_or_b64 vcc, vcc, s[54:55]')
    k(f's_cbranch_vccz L_{name}_ok\n' + (f's_sleep {nap}\n' if nap else '') + f's_sub_u32 s62, s62, 1\n s_cbranch_scc0 L_{name}\nL_{name}_ok:')
    if lanes: k('s_mov_b64 exec, -1')

def post(k, val, addr=29, tmp=23):
    k(f'v_mov_b32 v{tmp}, {val}\n ds_write_b32 v{addr}, v{tmp}')
def waitfor(k, name, off, n, val, t, base=22, sleep=True):
    k(f's_mov_b32 s62, {POLL_LIMIT*16}\nL_{name}:')
    if n == 4:
        k(f'ds_read_b128 v[{t}:{t+3}], v{base} offset:{off}\n s_waitcnt lgkmcnt(0)\n v_min3_u32 v{t}, v{t}, v{t+1}, v{t+2}\n v_min_u32 v{t}, v{t}, v{t+3}')
    else:
        k(f'ds_read_b32 v{t}, v{base} offset:{off}\n s_waitcnt lgkmcnt(0)')
    k(f'v_cmp_gt_u32 vcc, {val}, v{t}\n s_cbranch_vccz L_{name}_ok')
    if sleep: k(f's_sleep {int(sleep)}')
    k(f's_sub_u32 s62, s62, 1\n s_cbranch_scc0 L_{name}\nL_{name}_ok:')

def weave(lines, events):
    out = []; n = len(lines); ev = sorted(events, key=lambda e: e[0]); j = 0
    for i, l in enumerate(lines):
        while j < len(ev) and ev[j][0] * n <= i:
            out += [x.strip() for x in ev[j][1].split('\n') if x.strip()]; j += 1
        out.append(l)
    while j < len(ev):
        out += [x.strip() for x in ev[j][1].split('\n') if x.strip()]; j += 1
    return out

def sub(fn, *a):
    t = K('t'); fn(t, *a); return t.lines

NOROUND = False
def gen(opt):
    global NOROUND
    NOROUND = bool(opt.get('noround'))
    G = Gen(opt); k = G.k
    D = 8
    ZF = '' if opt.get('nosc1') else 'sc1'
    npf = int(opt.get('pfcode', 3))
    k(f"""
    s_cmp_ge_u32 s2, 256
    s_cbranch_scc1 L_end
    s_load_dwordx2 s[8:9], s[0:1], 0       ; x
    s_load_dwordx2 s[16:17], s[0:1], 64    ; w_in
    s_load_dwordx2 s[12:13], s[0:1], 120   ; ws
    s_load_dwordx8 s[36:43], s[0:1], 8
    s_load_dwordx4 s[44:47], s[0:1], 40
    s_load_dwordx8 s[48:55], s[0:1], 72
    s_load_dwordx2 s[26:27], s[0:1], 104   ; out
    v_lshrrev_b32 v1, 6, v0
    v_and_b32 v0, 63, v0
    v_readfirstlane_b32 s3, v1             ; wave
    s_lshr_b32 s30, s2, 3                  ; j
    s_and_b32 s29, s2, 1
    s_lshl_b32 s29, s29, 2                 ; 4*par
    s_and_b32 s31, s30, 3
    s_add_u32 s31, s31, s29
    s_lshr_b32 s35, s30, 3
    s_add_u32 s29, s29, s35
    s_and_b32 s35, s30, 7
    s_cmp_lt_u32 s30, 24
    s_cselect_b32 s31, s35, s31            ; tb&7
    s_cselect_b32 s29, s29, 3
    s_cmp_ge_u32 s30, 28
    s_cselect_b32 s29, 7, s29
    s_and_b32 s28, s2, 6
    s_lshl_b32 s28, s28, 2
    s_add_u32 s28, s28, s31
    s_min_u32 s31, s31, 6
    s_and_b32 s32, s3, 3
    v_and_b32 v8, 15, v0
    v_lshrrev_b32 v9, 4, v0
    v_lshlrev_b32 v10, 1, v9
    v_xor_b32 v10, v10, v8
    v_lshlrev_b32 v10, 4, v10
    v_mul_u32_u24 v11, 3584, v9
    v_add_u32 v10, v10, v11
    v_add_u32 v11, {4*3584}, v10
    v_xor_b32 v12, 128, v10
    v_add_u32 v12, {8*3584}, v12
    v_add_u32 v13, {4*3584}, v12
    s_mul_i32 s33, s32, {16*3584}
    s_lshl_b32 s34, s29, 8
    s_add_u32 s33, s33, s34
    s_add_u32 s33, s33, 1792
    s_lshl_b32 s34, s32, 12
    v_lshrrev_b32 v21, 3, v0
    v_and_b32 v20, 7, v0
    v_lshrrev_b32 v5, 1, v21
    v_xor_b32 v20, v20, v5
    v_lshlrev_b32 v20, 4, v20
    v_mul_u32_u24 v6, 896, v21
    v_add_u32 v6, v6, v20
    v_xor_b32 v7, 64, v6
    v_add_u32 v4, {8*896}, v7
    s_lshl_b32 s24, s28, 2
    s_add_u32 s24, s24, s32
    s_mul_i32 s24, s24, {16*896}
    s_lshl_b32 s25, s32, 11
    s_add_u32 s25, s25, {L_X}
    s_mov_b32 s10, {2048*896}
    s_mov_b32 s11, 0x20000
    s_mov_b32 s14, {hex(WS_END)}
    s_mov_b32 s15, 0x20000
    s_mov_b32 s18, {448*3584}
    s_mov_b32 s19, 0x20000
    s_mov_b32 s5, {hex(WS_EP)}
    s_cmp_eq_u32 s29, 7
    s_waitcnt lgkmcnt(0)
    """)
    if opt.get('stamp'):
        k('s_mov_b32 s61, s3'); G.stamp(0); srd(k, 56, 12, 13, 0x4000000)
    k(f"""
    s_load_dword s4, s[12:13], s5
    s_cbranch_scc1 L_helper
    s_cmp_lt_u32 s3, 4
    s_cbranch_scc1 L_A
    """)
    k(f"""
    v_mul_u32_u24 v1, 896, v8
    s_lshl_b32 s20, s29, 7
    s_add_u32 s20, s20, s24
    s_mov_b64 exec, 0xffff
    buffer_load_dword v209, v1, s[8:11], s20 offen
    s_mov_b64 exec, -1
    s_mul_i32 s20, s28, 7
    s_add_u32 s20, s20, s29                ; m
    s_lshr_b32 s21, s32, 1                 ; c2
    s_and_b32 s22, s32, 1                  ; hf
    s_lshl_b32 s23, s20, 2
    s_load_dword s30, s[46:47], s23
    s_lshl_b32 s20, s20, 1
    s_add_u32 s20, s20, s21                ; channel
    s_lshl_b32 s23, s20, 9
    s_lshl_b32 s35, s22, 8
    s_add_u32 s23, s23, s35
    v_lshlrev_b32 v1, 1, v0
    v_add_u32 v1, s23, v1
    """)
    PRM = 200
    for c in range(2):
        for i in range(4): k(f'global_load_ushort v{PRM+4*c+i}, v1, s[{36+2*i}:{37+2*i}] offset:{128*c}')
    k(f"""
    s_lshl_b32 s23, s20, 1
    v_mov_b32 v1, s23
    global_load_ushort v{PRM+8}, v1, s[44:45]
    """)
    G.stamp(1, '3')
    k('s_branch L_B')
    def w2parts(j):
        h = f's_add_u32 s35, s31, {j}\n s_cmp_ge_u32 s35, 7\n s_cselect_b32 s63, 7, 0\n s_sub_u32 s35, s35, s63\n s_lshl_b32 s63, s35, 7\n s_add_u32 s63, s63, s24\n'
        p = [h + f's_add_u32 m0, s25, {j * 8192}\n s_mul_i32 s35, s35, {64*3584}\n buffer_load_dwordx4 v6, s[8:11], s63 offen lds\n',
             f's_add_u32 m0, s25, {j * 8192 + 1024}\n s_add_u32 s35, s35, s33\n buffer_load_dwordx4 v4, s[8:11], s63 offen lds\n']
        for q in range(4):
            p.append(f's_add_u32 m0, s34, {(j & 3) * 16384 + q * 1024}\n buffer_load_dwordx4 v{10+q}, s[16:19], s35 offen lds\n')
        return p
    def w2stage(j): return ''.join(w2parts(j))
    def common2():
        k(f"""
        v_lshlrev_b32 v2, 4, v0
        v_mov_b32 v22, {L_CNT}
        s_lshl_b32 s35, s3, 2
        v_add_u32 v29, s35, v22
        """)
    tagcalc = f's_waitcnt lgkmcnt(0)\n s_mul_i32 s4, s4, 0x9E3779B1\n s_add_u32 s4, s4, 0x7F4A7C15\n v_mov_b32 v{TAG}, s4'
    def w1setup(r):
        k(f"""
        v_lshrrev_b32 v{r}, 2, v0
        v_mul_u32_u24 v{r}, 3584, v{r}
        v_lshrrev_b32 v{r+1}, 4, v0
        v_and_b32 v{r+1}, 2, v{r+1}
        v_xor_b32 v{r+1}, v{r+1}, v0
        v_and_b32 v{r+1}, 3, v{r+1}
        v_lshl_add_u32 v{r}, v{r+1}, 4, v{r}
        v_add_u32 v{r+1}, {16*3584}, v{r}
        s_lshl_b32 s38, s29, 8
        s_lshl_b32 s35, s32, 6
        s_add_u32 s38, s38, s35                ; z1 column base
        s_lshl_b32 s40, s32, 11
        """)
    def w1off(i): return [3, 0, 1, 2][(i % 8) >> 1] * 16384 + (i & 1) * 8192
    def w1dma(i, r):
        off = w1off(i)
        return (f's_mul_i32 s35, s41, {32*3584}\n s_add_u32 s35, s35, s38\n s_add_u32 m0, s40, {off}\n s_add_u32 s41, s41, 1\n'
                f'buffer_load_dwordx4 v{r}, s[16:19], s35 offen lds\n s_add_u32 m0, s40, {off+1024}\n s_cmp_eq_u32 s41, 14\n'
                f'buffer_load_dwordx4 v{r+1}, s[16:19], s35 offen lds\n s_cselect_b32 s41, 0, s41\n')
    k('L_A:')
    k(w2stage(0)); k(w2stage(1))
    if opt.get('prio', '1') != '0': k(f"s_setprio {opt.get('prio', 1)}")
    srd(k, 36, 50, 51, 4096)
    k('v_lshlrev_b32 v1, 1, v8\n s_lshl_b32 s35, s28, 7')
    BSP = [228, 229, 230, 231]
    for tt in range(4): k(f'buffer_load_ushort v{BSP[tt]}, v1, s[36:39], s35 offen offset:{32*tt}')
    common2()
    WA = 168
    k(f"""
    v_mov_b32 v23, 0
    ds_write_b32 v29, v23
    ds_write_b32 v29, v23 offset:16
    v_mov_b32 v23, 6
    ds_write_b32 v29, v23 offset:32
    v_lshrrev_b32 v14, 1, v8
    v_xor_b32 v14, v14, v9
    v_lshlrev_b32 v14, 4, v14
    v_lshl_add_u32 v14, v8, 7, v14
    v_add_u32 v14, s25, v14
    v_xor_b32 v15, 64, v14
    v_lshrrev_b32 v16, 2, v0
    v_and_b32 v17, 7, v16
    v_lshlrev_b32 v17, 5, v17
    v_and_b32 v16, 3, v16
    v_lshl_add_u32 v16, v9, 3, v16         ; 8g + r
    v_and_b32 v19, 3, v0
    v_lshlrev_b32 v18, 3, v19
    v_lshl_add_u32 v18, v16, 8, v18
    """)
    for ft in range(8): k(f'v_xor_b32 v{WA+ft}, {32*ft}, v17\n v_add_u32 v{WA+ft}, v{WA+ft}, v18')
    gelu_consts(k)
    w1setup(224)
    k(f"""
    v_lshlrev_b32 v226, 6, v16
    v_lshl_add_u32 v226, v19, 3, v226
    v_and_b32 v227, 1, v9
    v_lshl_add_u32 v226, v227, 5, v226     ; row*64 + (p ^ (g&1))*32 + 8c  (p = 0)
    v_xor_b32 v227, 32, v226
    v_add_u32 v226, s40, v226
    v_add_u32 v227, s40, v227
    s_lshl_b32 s41, s31, 1
    s_add_u32 s41, s41, 8
    s_cmp_ge_u32 s41, 14
    s_cselect_b32 s35, 14, 0
    s_sub_u32 s41, s41, s35                ; global k-step of the ninth step of the z1 stream
    s_lshl_b32 s35, s32, 2
    v_add_u32 v5, s35, v22
    """)
    XF, WF, ACC, T, CK1 = 32, 88, 120, 152, 40
    G.stamp(14, '2')
    k('s_waitcnt vmcnt(10) lgkmcnt(0)')
    G.stamp(15, '2')
    k(tagcalc + '\n s_barrier')
    G.stamp(1); G.stamp(1, '2')
    def wread(gi):
        ks = gi >> 1
        for f in range(4):
            for hh in range(2):
                r = WF + (gi & 1) * 16 + f * 4 + hh * 2
                k(f'ds_read_b64_tr_b16 v[{r}:{r+1}], v{WA + 4 * (gi & 1) + f} offset:{((ks >> 1) & 3) * 16384 + (ks & 1) * 8192 + hh * 1024}')
    def xread(i):
        k(f'ds_read_b128 v[{XF+4*(i&1)}:{XF+4*(i&1)+3}], v{14 + (i & 1)} offset:{(i >> 1) * 8192}')
    xread(0); wread(0)
    IL = opt.get('il', '1') == '1'
    def wread1(gi, f):
        ks = gi >> 1
        for hh in range(2):
            r = WF + (gi & 1) * 16 + f * 4 + hh * 2
            k(f'ds_read_b64_tr_b16 v[{r}:{r+1}], v{WA + 4 * (gi & 1) + f} offset:{((ks >> 1) & 3) * 16384 + (ks & 1) * 8192 + hh * 1024}')
    for gi in range(28):
        ks = gi >> 1; j = gi >> 2
        if gi % 4 == 3:
            k('s_waitcnt lgkmcnt(0)' + (' vmcnt(0)' if j == 0 else ''))
            if j < 6: G.stamp(2 + 2 * j, '2')
            k('s_barrier')
            if j < 6:
                G.stamp(3 + 2 * j, '2'); xread(ks + 1)
                if not IL: wread(gi + 1)
        elif not IL:
            nx = 0
            if gi % 4 == 0: xread(ks + 1); nx = 1
            wread(gi + 1); k(f's_waitcnt lgkmcnt({8 + nx})')
        for f in range(4):
            if IL and gi % 4 != 3: k(f's_waitcnt lgkmcnt({6 + (1 if gi % 4 == 1 and f < 3 else 0)})')
            mfma(k, ACC + 16 * (gi & 1) + 4 * f, XF + 4 * (ks & 1), WF + (gi & 1) * 16 + f * 4, '0' if ks == 0 else None)
            if IL and gi < 27: wread1(gi + 1, f)
            if IL and gi % 4 == 0 and f == 3: xread(ks + 1)
    G.stamp(2)
    S, Q = 88, 92
    def z2epi(t):
        for h in range(2):
            cs = [ACC + 16 * h + 4 * f for f in range(4)]
            gelu_tiles(t, cs, T)
            prs = [(c + 2 * p, T + 2 * i + p) for i, c in enumerate(cs) for p in range(2)]
            for x, tt in prs: cvt(t, tt, x, x + 1)
            for x, tt in prs: lo(t, x, tt); hi(t, x + 1, tt)
            for i, c in enumerate(cs):
                for p in range(2):
                    if h == 0 and i == 0: pk(t, 'mul', Q + 2 * p, c + 2 * p, c + 2 * p)
                    else: pk(t, 'fma', Q + 2 * p, c + 2 * p, c + 2 * p, Q + 2 * p)
                    if h == 0 and i == 0: pass
                    elif h == 0 and i == 1: pk(t, 'add', S + 2 * p, ACC + 2 * p, c + 2 * p)
                    else: pk(t, 'add', S + 2 * p, S + 2 * p, c + 2 * p)
    z2epi(k)
    rowsum16(k, list(range(S, S + 8)))
    k(f"""
    v_cmp_eq_u32 vcc, 1, v19
    v_cndmask_b32 v{T}, v{S}, v{S+1}, vcc
    v_cndmask_b32 v{T+2}, v{Q}, v{Q+1}, vcc
    v_cmp_eq_u32 vcc, 2, v19
    v_cndmask_b32 v{T}, v{T}, v{S+2}, vcc
    v_cndmask_b32 v{T+2}, v{T+2}, v{Q+2}, vcc
    v_cmp_eq_u32 vcc, 3, v19
    v_cndmask_b32 v{T}, v{T}, v{S+3}, vcc
    v_cndmask_b32 v{T+2}, v{T+2}, v{Q+3}, vcc
    v_mov_b32 v{T+1}, v{TAG}
    v_mov_b32 v{T+3}, v{TAG}
    v_lshl_add_u32 v18, v9, 2, v19
    v_lshlrev_b32 v18, 4, v18              ; row*16
    s_lshl_b32 s24, s28, 2
    s_add_u32 s24, s24, s32
    s_lshl_b32 s24, s24, 11
    s_add_u32 s24, s24, {hex(WS_ST)}
    s_lshl_b32 s35, s29, 8
    s_add_u32 s35, s35, s24
    """)
    if opt.get('sent'): waitfor(k, 'wbs', 16, 4, 1, 32, sleep=False)
    k(f"""
    s_mov_b32 exec_lo, 0x000f000f
    s_mov_b32 exec_hi, 0x000f000f
    buffer_store_dwordx4 v[{T}:{T+3}], v18, s[12:15], s35 offen sc1
    s_mov_b64 exec, -1
    v_min_u32 v18, 2, v9
    v_lshlrev_b32 v18, 8, v18
    v_lshl_add_u32 v18, v8, 4, v18
    """)
    G.stamp(3)
    def spdma(j, dyn=False, slot=0):
        vv, off = ((10, 0), (12, 1024), (11, 8192), (13, 9216))[j]
        t = f's_add_u32 m0, s43, {off + slot * 16384}\n buffer_load_dwordx4 v{vv}, s[8:11], s42 offen lds\n'
        if j == 3:
            t += 's_add_u32 s42, s42, 256\n'
            if dyn: t += 's_lshr_b64 s[40:41], s[40:41], 4\n s_and_b32 s43, s40, 15\n s_lshl_b32 s43, s43, 3\n s_add_u32 s43, s43, s32\n s_lshl_b32 s43, s43, 11\n'
        return t
    A1, FR, ZP = 176, 64, 208
    NR = int(opt.get('nr', 16))
    WR = ([168, 172] + list(range(232, 256, 4)) + list(range(176, 208, 4)))[:NR]
    srd(k, 44, 52, 53, 896 * 896)
    k(f"""
    v_and_b32 v3, 6, v21
    v_xor_b32 v3, v3, v0
    v_and_b32 v3, 7, v3
    v_lshlrev_b32 v3, 4, v3
    v_mul_u32_u24 v1, 896, v21
    v_add_u32 v3, v3, v1
    s_lshl_b32 s35, s29, 7
    s_mul_i32 s30, s32, {8*896}
    s_add_u32 s30, s30, s35
    """)
    def wold(j):
        i = 28 - NR + j; blk, q = PI[i // 4], i % 4
        return f's_add_u32 s35, s30, {(blk*128 + 32*q)*896}\n buffer_load_dwordx4 v[{WR[j]}:{WR[j]+3}], v3, s[44:47], s35 offen'
    WO1 = opt.get('wo1', 'z1')
    if WO1 == 'z1':
        for j in range(min(NR, 8)): k(wold(j))
    k(f"""
    s_lshl_b32 s35, s32, 11
    v_subrev_u32 v14, s35, v14
    v_subrev_u32 v15, s35, v15
    """)
    srd(k, 8, 48, 49, 0x800000)
    k(f"""
    v_lshl_add_u32 v10, v21, 12, v20
    v_add_u32 v11, 128, v10
    v_xor_b32 v12, 64, v10
    v_add_u32 v12, 0x8000, v12
    v_add_u32 v13, 128, v12
    s_lshl_b32 s42, s28, 2
    s_add_u32 s42, s42, s32
    s_lshl_b32 s42, s42, 16                ; (64*tb + 16*a)*4096
    s_lshl_b32 s43, s32, 11
    """)
    def z1read(i):
        b = FR + (i & 1) * 24
        for p in range(2):
            for hh in range(2):
                k(f'ds_read_b64_tr_b16 v[{b+4*p+2*hh}:{b+4*p+2*hh+1}], v{226 + p} offset:{w1off(i) + 256*hh}')
        for tt in range(4):
            r = b + 8 + 4 * tt
            k(f'ds_read_b128 v[{r}:{r+3}], v{14 + (i & 1)} offset:{(i >> 1) * 8192 + tt * 2048}')
    G.stamp(1, '5')
    if not opt.get('sent'): waitfor(k, 'wb1', 16, 1, 1, 32, base=5, sleep=False)
    G.stamp(2, '5')
    PL = 32; S, Q = 44, 48
    NP = int(opt.get('np', 7))
    stload = f'buffer_load_dwordx4 v[{PL}:{PL+3}], v2, s[12:15], s24 offen sc1\n buffer_load_dwordx4 v[{PL+4}:{PL+7}], v18, s[12:15], s24 offen offset:1024 sc1'
    def normalise():
        poll(k, 'pst', stload, [PL + 1, PL + 3, PL + 5, PL + 7], first_issued=True, wait0='s_waitcnt vmcnt(4)')
        G.stamp(5)
        k(f"""
        v_cmp_gt_u32 vcc, 3, v9
        v_cndmask_b32 v{PL+4}, 0, v{PL+4}, vcc
        v_cndmask_b32 v{PL+6}, 0, v{PL+6}, vcc
        v_add_f32 v40, v{PL}, v{PL+4}
        v_add_f32 v41, v{PL+2}, v{PL+6}
        """)
        xsum4(k, [40, 41], 42)
        k(f"""
        v_mul_f32 v40, {f32hex(1/896)}, v40
        v_mul_f32 v41, {f32hex(1/896)}, v41
        v_fma_f32 v41, -v40, v40, v41
        v_max_f32 v41, 0, v41
        """)
        cvt(k, 40, 40, 41); hi(k, 41, 40); lo(k, 40, 40)
        k(f'v_add_f32 v41, {f32hex(1e-5)}, v41')
        cvt(k, 41, 41, 41); lo(k, 41, 41)
        k('v_sqrt_f32 v41, v41')
        cvt(k, 41, 41, 41); lo(k, 41, 41)
        k('v_rcp_f32 v41, v41\n v_lshlrev_b32 v53, 4, v9')
        for r in range(4):
            k(f'ds_bpermute_b32 v{S+r}, v53, v40 offset:{4*r}\n ds_bpermute_b32 v{Q+r}, v53, v41 offset:{4*r}')
        k(f"""
        s_lshl_b32 s24, s29, 6
        s_lshl_b32 s25, s28, 1
        s_add_u32 s24, s24, s25
        s_lshr_b32 s25, s32, 1
        s_add_u32 s24, s24, s25
        s_lshl_b32 s24, s24, 13
        s_and_b32 s25, s32, 1
        s_lshl_b32 s25, s25, 9
        s_add_u32 s24, s24, s25
        s_add_u32 s25, s24, 4096
        v_lshrrev_b32 v53, 1, v9
        v_lshlrev_b32 v53, 8, v53
        v_lshl_add_u32 v53, v8, 4, v53
        v_and_b32 v54, 1, v9
        v_lshl_add_u32 v53, v54, 10, v53
        s_waitcnt lgkmcnt(0)
        """)
        for h in range(2):
            cs = [ACC + 16 * h + 4 * f for f in range(4)]
            prs = [(c + 2 * p, T + 8 * h + 2 * i + p, p) for i, c in enumerate(cs) for p in range(2)]
            for x, t, p in prs: pks(k, 'add', x, x, S + 2 * p, neg=True, sc=bool(opt.get('sca')))
            for x, t, p in prs: cvt(k, t, x, x + 1)
            for x, t, p in prs: lo(k, x, t); hi(k, x + 1, t)
            for x, t, p in prs: pks(k, 'mul', x, x, Q + 2 * p, sc=bool(opt.get('sca')))
            for x, t, p in prs: cvt(k, t, x, x + 1)
            for pr in range(2):
                o = T + 8 * h + 4 * pr
                k(f'v_permlane16_swap_b32 v{o}, v{o+2}\n v_permlane16_swap_b32 v{o+1}, v{o+3}')
            for pr in range(2):
                o = T + 8 * h + 4 * pr
                k(f'buffer_store_dwordx4 v[{o}:{o+3}], v53, s[12:15], s{24+h} offen offset:{2048*pr} sc1')

    CK1 = 56
    posts = {3: 5, 7: 6, 9: 7, 11: 8}; checks = {6: 5, 8: 6, 12: 7}
    pre = {6: [(0, 0), (0, 1)], 7: [(0, 2), (0, 3)], 8: [(1, 0), (1, 1)], 9: [(1, 2), (1, 3)], 10: [(2, 0), (2, 1)], 11: [(2, 2), (2, 3)], 12: [(3, 0), (3, 1)], 13: [(3, 2), (3, 3)]}
    assert NP == 7
    spins = []
    def sub2(fn, *a):
        n0 = len(k.lines); fn(*a); r = k.lines[n0:]; del k.lines[n0:]; return r
    z1read(0)
    for i in range(14):
        if i in checks: k(f'ds_read_b128 v[{CK1}:{CK1+3}], v22')
        if i < 13:
            if i == 7: k('s_waitcnt vmcnt(14)')
            if IL: k('s_waitcnt lgkmcnt(0)')
            else: z1read(i + 1); k('s_waitcnt lgkmcnt(8)')
        else:
            k('s_waitcnt lgkmcnt(0)'); post(k, 9)
        rd = sub2(z1read, i + 1) if (IL and i < 13) else []
        if i in posts: post(k, posts[i])
        b = FR + (i & 1) * 24
        if i < 13: G.stamp(3 + i, '5')
        for p in range(2):
            for tt in range(4):
                mfma(k, A1 + (p * 4 + tt) * 4, b + 4 * p, b + 8 + 4 * tt, '0' if i == 0 else None)
                for _ in range(2):
                    if rd: k(rd.pop(0))
                if p == 0 and i in checks:
                    k([f'v_min3_u32 v{CK1}, v{CK1}, v{CK1+1}, v{CK1+2}', f'v_min_u32 v{CK1}, v{CK1}, v{CK1+3}', f'v_cmp_gt_u32 vcc, {checks[i]}, v{CK1}',
                       f's_cbranch_vccnz L_z1_spin{i}\nL_z1_ok{i}:'][tt])
            if p == 0 and i < 6: k(w1dma(8 + i, 224))
            if i in pre: st, j = pre[i][p]; k(spdma(j, slot=PI[st]))
        if i in checks: spins.append((f'L_z1_spin{i}', f'L_z1_ok{i}', CK1, 0, checks[i]))
        if WO1 == 'late' and i >= 11:
            for j in range(*{11: (0, 3), 12: (3, 6), 13: (6, 8)}[i]): k(wold(j))
        if i == NP - 2: k(stload)
        if i == NP:
            G.stamp(4); normalise(); G.stamp(6)
        if i == NP + 3:
            k(f"""
            s_lshl_b32 s24, s29, 11
            s_add_u32 s24, s24, {hex(WS_FZ)}
            s_lshl_b32 s35, s28, 6
            s_lshl_b32 s25, s32, 2
            s_add_u32 s35, s35, s25
            v_mov_b32 v53, s35
            s_waitcnt vmcnt(6)
            s_mov_b64 exec, 1
            buffer_store_dword v{TAG}, v53, s[12:15], s24 offen sc1
            s_mov_b64 exec, -1
            """)
            G.stamp(7)
    waitfor(k, 'wa9', 0, 4, 9, 32, sleep=False)
    def z1pre(t):
        for h in range(2):
            cs = [A1 + 16 * h + 4 * f for f in range(4)]
            gelu_tiles(t, cs, 64, sc=bool(opt.get('sca')))
            for tt in range(4):
                for p in range(2): cvt(t, ZP + 4 * tt + 2 * h + p, cs[tt] + 2 * p, cs[tt] + 2 * p + 1)
    FZE = opt.get('fze', '0') == '1' and not opt.get('bl')
    fzload = 'buffer_load_dwordx4 v[160:163], v19, s[12:15], s24 offen sc1'
    ev = [(i / 20.0, spdma(i % 4, slot=PI[4 + i // 4])) for i in range(12)]
    if WO1 == 'pre': ev += [(0.62 + 0.045 * j, wold(j)) for j in range(min(NR, 8))]
    if FZE: ev.append((float(opt.get('fzp', 0.75)), 's_cmp_lg_u32 s3, 0\n s_cbranch_scc1 L_fz0\n s_mov_b32 exec_hi, 0\n' + fzload + '\n s_mov_b32 exec_hi, -1\nL_fz0:'))
    k('v_lshlrev_b32 v19, 6, v0')
    k.lines += weave(sub(z1pre) if int(opt.get('peel', 0)) == 0 else [], ev)
    srd(k, 16, 12, 13, SZ_Z)
    ACC2, W, Z, CK = 32, 64, 96, 160
    k(f"""
    v_lshlrev_b32 v19, 6, v0
    s_lshl_b32 s33, s29, 19
    s_lshl_b32 s35, s32, 11
    s_add_u32 s34, s33, s35                ; fb*64*8192 + w*2048
    v_lshrrev_b32 v20, 1, v8
    v_xor_b32 v20, v20, v9
    v_lshlrev_b32 v20, 4, v20
    v_lshl_add_u32 v20, v8, 7, v20
    v_xor_b32 v21, 64, v20
    v_add_u32 v17, {PI[0]*16384}, v20
    v_add_u32 v18, {PI[0]*16384}, v21
    v_add_u32 v14, 8192, v2
    v_add_u32 v15, 16384, v2
    v_add_u32 v16, 24576, v2
    s_mov_b32 s38, {hex(PI_WORD)}
    s_mov_b32 s39, {hex(PI_WORD)}
    s_mov_b32 s36, 10                      ; 10 + stage
    """)
    ZV = [2, 14, 15, 16]
    for tt in range(4):
        lo(k, BSP[tt], BSP[tt])
        for ft in range(2):
            for r in range(4): k(f'v_mov_b32 v{ACC2+(ft*4+tt)*4+r}, v{BSP[tt]}')
    for j in range(8, NR): k(wold(j))
    G.stamp(8)
    k('s_cmp_lg_u32 s3, 0\n s_cbranch_scc1 L_nofz')
    poll(k, 'pfz', fzload, [CK, CK + 1, CK + 2, CK + 3], lanes='s_mov_b32 exec_hi, 0', nap=int(opt.get('nap', 1)), first_issued=FZE)
    if FZE:
        k('v_mov_b32 v23, 7\n ds_write_b32 v22, v23 offset:32\nL_nofz:')
        waitfor(k, 'wfz', 32, 1, 7, CK, sleep=False)
    else:
        k('L_nofz:\n s_waitcnt vmcnt(0)')
        post(k, 10)
        waitfor(k, 'wa10', 0, 4, 10, CK, sleep=False)
    G.stamp(9)
    adv = f's_add_u32 s34, s34, {4*8192}'
    def zld(n, ft):
        r = Z + (n % D) * 8 + ft * 4
        k(f'buffer_load_dwordx4 v[{r}:{r+3}], v{ZV[n%4]}, s[16:19], s34 offen offset:{1024*ft} {ZF}')
    for n in range(D):
        zld(n, 0); zld(n, 1)
        if n % 4 == 3: k(adv)
        if FZE and n == 1:
            k('s_waitcnt vmcnt(4)'); post(k, 10)
    if FZE: waitfor(k, 'wa10', 0, 4, 10, CK, sleep=False)
    def w2read(n, tt):
        ks = n & 3
        r = W + (n & 1) * 16 + tt * 4
        k(f'ds_read_b128 v[{r}:{r+3}], v{17 + (ks & 1)} offset:{(ks >> 1) * 8192 + tt * 2048}')
    for tt in range(4): w2read(0, tt)
    G.stamp(10)
    def z1epi(t):
        for h in range(2):
            for q in range(2):
                cs = [A1 + 16 * h + 8 * q + 4 * f for f in range(2)]
                gelu_tiles(t, cs, 232 + 8 * q, sc=True)
                for f in range(2):
                    for p in range(2): cvt(t, ZP + 4 * (2 * q + f) + 2 * h + p, cs[f] + 2 * p, cs[f] + 2 * p + 1)
    extra = sub(z1epi) if int(opt.get('peel', 0)) else []
    NPEEL = int(opt.get('peel', 0)); per = -(-len(extra) // max(NPEEL * 64, 1))
    SELF = not opt.get('bl')
    WPK = int(opt.get('wpk', 0))
    def wodma(i):
        blk, q = PI[i // 4], i % 4
        return f's_add_u32 m0, s43, {blk*16384 + 4096*q}\n s_add_u32 s35, s42, {(blk*128 + 32*q)*896}\n buffer_load_dwordx4 v10, s[8:11], s35 offen lds'
    def body(name, ride, last, dma=(False, False)):
        for n in range(8):
            k(f's_waitcnt vmcnt({(D-1)*2 - (2*n - min(WPK*n, 0 if not last else WPK*n) if last else 0)}) lgkmcnt(0)')
            fill = [[] for _ in range(8)]
            if n % 4 == 0:
                fill[4] = ['ds_write_b32 v29, v23']
                if opt.get('stamp') == '4':
                    for it in range(8):
                        st = 2 * it + n // 4
                        if st: fill[5].append(f's_cmp_lg_u32 s36, {10+st}\n s_cbranch_scc1 L_t{name}{n}_{it}\n s_memrealtime s[{64+2*st}:{65+2*st}]\nL_t{name}{n}_{it}:')
            if not (last and n > 3):
                if SELF:
                    if n % 4 == 1:
                        fill[4] = ['v_add_u32 v23, 1, v23']
                        fill[5] = ['s_lshr_b64 s[38:39], s[38:39], 4\n s_and_b32 s37, s38, 15\n s_lshl_b32 s37, s37, 14']
                    if n % 4 == 2:
                        fill[4] = [f'ds_read_b128 v[{CK}:{CK+3}], v22', f'ds_read_b128 v[{CK+4}:{CK+7}], v22 offset:16']
                        fill[5] = ['v_add_u32 v17, s37, v20']
                    if n % 4 == 3:
                        fill[4] = [f'v_min3_u32 v{CK}, v{CK}, v{CK+1}, v{CK+2}', f'v_min3_u32 v{CK+4}, v{CK+4}, v{CK+5}, v{CK+6}', 'v_add_u32 v18, s37, v21']
                        fill[5] = [f'v_min3_u32 v{CK}, v{CK}, v{CK+3}, v{CK+7}', f'v_min_u32 v{CK}, v{CK}, v{CK+4}']
                        fill[6] = [f'v_cmp_gt_u32 vcc, s36, v{CK}']
                        fill[7] = [f's_cbranch_vccnz L_{name}_spin{n}\nL_{name}_ok{n}:']
                        spins.append((f'L_{name}_spin{n}', f'L_{name}_ok{n}', CK, 'both', 's36'))
                    if WO1 == 'p0' and name == 'pa0' and n < 4: fill[3] = [wold(2 * n)]; fill[6] += [wold(2 * n + 1)]
                    if dma[n // 4]:
                        d = spdma(n % 4, dyn=True).strip().split('\n')
                        fill[2] = [d[0]]; fill[3] = ['\n'.join(d[1:])]
                elif n % 4 == 1:
                    fill[4] = [f'ds_read_b128 v[{CK}:{CK+3}], v22 offset:32', 'v_add_u32 v23, 1, v23']
                    fill[5] = ['s_lshr_b64 s[38:39], s[38:39], 4\n s_and_b32 s37, s38, 15\n s_lshl_b32 s37, s37, 14']
                if n % 4 == 2 and not SELF:
                    fill[4] = [f'v_min3_u32 v{CK}, v{CK}, v{CK+1}, v{CK+2}', 's_sub_u32 s35, s36, 9']
                    fill[5] = [f'v_min_u32 v{CK}, v{CK}, v{CK+3}', 'v_add_u32 v17, s37, v20']
                    fill[6] = [f'v_cmp_gt_u32 vcc, s35, v{CK}']
                    fill[7] = [f's_cbranch_vccnz L_{name}_spin{n}\nL_{name}_ok{n}:']
                    spins.append((f'L_{name}_spin{n}', f'L_{name}_ok{n}', CK, 32, 's35'))
                if n % 4 == 3 and not SELF: fill[4] += ['v_add_u32 v18, s37, v21']
            for ft in range(2):
                for tt in range(4):
                    mfma(k, ACC2 + (ft * 4 + tt) * 4, Z + (n % D) * 8 + ft * 4, W + (n & 1) * 16 + tt * 4)
                    if ft == 0 and not (last and n == 7): w2read(n + 1, tt)
                    for x in fill[4 * ft + tt]: k(x)
                    if ride:
                        for _ in range(per):
                            if extra: k(extra.pop(0))
                if not last: zld(n, ft)
                elif ft < WPK: k(wodma(WPK * n + ft))
            if n % 4 == 3: k(adv + '\n s_add_u32 s36, s36, 1')
    if SELF:
        k(f"""
        s_lshl_b32 s43, s32, 11
        s_add_u32 s43, s43, {PI[7]*16384}
        s_mov_b32 s40, {hex(((PI_WORD << 4) | PI[7]) & 0xffffffff)}
        s_mov_b32 s41, {PI[7]}
        """)
        for it in range(max(NPEEL, 1)): body(f'pa{it}', True, False, (it > 0, True))
        k('L_p2a:')
        body('pd', False, False, (True, True))
        k('s_cmp_lt_u32 s36, 20\n s_cbranch_scc1 L_p2a')
    else:
        for it in range(NPEEL): body(f'pa{it}', True, False)
    assert not extra
    k('L_p2:')
    body('pb', False, False)
    k('s_cmp_lt_u32 s36, 24\n s_cbranch_scc1 L_p2')
    srd(k, 8, 52, 53, 896 * 896)
    k(f"""
    v_lshrrev_b32 v11, 3, v0
    v_and_b32 v10, 6, v11
    v_and_b32 v12, 7, v0
    v_xor_b32 v10, v10, v12
    v_lshlrev_b32 v10, 4, v10
    v_mul_u32_u24 v11, 896, v11
    v_add_u32 v10, v10, v11
    s_lshl_b32 s35, s29, 7
    s_mul_i32 s42, s32, {8*896}
    s_add_u32 s42, s42, s35
    s_lshl_b32 s43, s32, 10
    """)
    UZ = A1 if NR <= 8 else 96
    if NR > 8: extra += ['s_nop 0'] * 0
    zun = []
    for i in range(16): zun += [f'v_lshlrev_b32 v{UZ+2*i}, 16, v{ZP+i}', f'v_and_b32 v{UZ+2*i+1}, 0xffff0000, v{ZP+i}']
    extra += ([''] * 32 if NR > 8 else []) + zun
    per = 1
    k(f"""
    s_mul_i32 s24, s28, {4*28}
    s_lshl_b32 s25, s29, 2
    s_add_u32 s25, s25, s32                ; kk
    s_add_u32 s24, s24, s25
    s_lshl_b32 s24, s24, 10
    s_add_u32 s24, s24, {hex(WS_H)}
    """)
    body('pc', True, True)
    k('s_branch L_p2_done')
    for a, b, c, off, val in spins:
        k(f"""
{a}:
        s_mov_b32 s62, {POLL_LIMIT*16}
{a}b:
        ds_read_b128 v[{c}:{c+3}], v22 offset:{0 if off == 'both' else off}
        {f'ds_read_b128 v[{c+4}:{c+7}], v22 offset:16' if off == 'both' else ''}
        s_waitcnt lgkmcnt(0)
        {f'v_min3_u32 v{c+4}, v{c+4}, v{c+5}, v{c+6}' if off == 'both' else ''}
        {f'v_min3_u32 v{c}, v{c}, v{c+4}, v{c+7}' if off == 'both' else ''}
        v_min3_u32 v{c}, v{c}, v{c+1}, v{c+2}
        v_min_u32 v{c}, v{c}, v{c+3}
        v_cmp_gt_u32 vcc, {val}, v{c}
        s_cbranch_vccz {b}
        s_sub_u32 s62, s62, 1
        s_cbranch_scc0 {a}b
        s_branch {b}
        """)
    k('L_p2_done:')
    G.stamp(11); G.stamp(1, '7'); G.stamp(1, '9')
    for tt in range(4):
        o = (96 + 16 * tt) if NR <= 8 else (128 + 12 * tt if tt < 2 else 64 + 12 * (tt - 2))
        its = [(ACC2 + (ft * 4 + tt) * 4 + 2 * p, UZ + 2 * (4 * tt + 2 * ft + p), o + 4 + 2 * (2 * ft + p), o + 2 * ft + p) for ft in range(2) for p in range(2)]
        for a, z, t, d in its: cvt(k, d, a, a + 1)
        for a, z, t, d in its: lo(k, t, d); hi(k, t + 1, d)
        for a, z, t, d in its: pk(k, 'mul', t, t, z)
        for a, z, t, d in its: cvt(k, d, t, t + 1)
        k(f'buffer_store_dwordx4 v[{o}:{o+3}], v2, s[12:15], s24 offen sc1')
        if tt < 3: k(f's_add_u32 s24, s24, {28*1024}')
    G.stamp(12); G.stamp(2, '7')
    HB, AC3, A3 = 32, 144, 160
    HD = int(opt.get('hd', 10))
    if not SELF: waitfor(k, 'wa24', 0, 4, 24, CK, sleep=False)
    n1 = min(int(opt.get('n1', 4)), 28 - NR)
    for i in range(8 * WPK, 8 * WPK + n1): k(wodma(i))
    k(f"""
    s_lshl_b32 s33, s28, 2
    s_add_u32 s33, s33, s32                ; tt
    s_lshl_b32 s37, s28, 11
    s_add_u32 s37, s37, {hex(WS_FH)}
    s_lshl_b32 s36, s25, 6
    v_mov_b32 v12, s36
    {G.st(3, '7')}
    s_waitcnt vmcnt({n1})
    {G.st(4, '7')}
    s_mov_b64 exec, 1
    buffer_store_dword v{TAG}, v12, s[12:15], s37 offen sc1
    s_mov_b64 exec, -1
    """)
    if opt.get('ex'):
        assert n1 == 0 and WPK == 0
        k('s_cmp_eq_u32 s3, 0\n s_cbranch_scc1 L_ex')
        waitfor(k, 'wa25', 0, 4, 25, CK, sleep=False)
        k(f"""
        s_sub_u32 s42, s42, {8*896}
        s_sub_u32 s43, s43, 1024
L_exl:
        s_mov_b32 m0, s43
        s_add_u32 s43, s43, 3072
        buffer_load_dwordx4 v10, s[8:11], s42 offen lds
        s_add_u32 s42, s42, {24*896}
        s_cmp_lt_u32 s43, {112*1024}
        s_cbranch_scc1 L_exl
L_ex:
        """)
    else:
        for i in range(n1, min(24, 28 - NR)): k(wodma(i))
        k('v_add_u32 v14, s43, v2\n v_add_u32 v15, 0x10000, v14')
        waitfor(k, 'wa25', 0, 4, 25, CK, sleep=False)
        for i in range(24, 28 - NR): k(wodma(i))
        for j in range(NR):
            i = 28 - NR + j; off = PI[i // 4] * 16384 + 4096 * (i % 4)
            k(f'ds_write_b128 v{14 + off // 65536}, v[{WR[j]}:{WR[j]+3}] offset:{off % 65536}')
    srd(k, 16, 26, 27, 2048 * 896)
    k(f"""
    s_mul_i32 s34, s33, {28*1024}
    s_add_u32 s34, s34, {hex(WS_H)}
    v_lshrrev_b32 v10, 2, v0
    v_lshrrev_b32 v4, 1, v10
    v_and_b32 v4, 3, v4
    v_lshlrev_b32 v21, 5, v4
    v_and_b32 v13, 3, v0
    v_lshlrev_b32 v13, 3, v13
    v_lshl_add_u32 v13, v10, 7, v13
    """)
    for dt in range(4):
        k(f'v_xor_b32 v{192+dt}, {32*dt}, v21\n v_add_u32 v{192+dt}, v{192+dt}, v13\n v_add_u32 v{196+dt}, 0xe000, v{192+dt}')
    G.stamp(5, '7')
    k('s_cmp_lg_u32 s3, 0\n s_cbranch_scc1 L_nofh')
    poll(k, 'pfh', 'buffer_load_dword v20, v19, s[12:15], s37 offen sc1', [20], lanes='s_mov_b32 exec_lo, 0x0fffffff\n s_mov_b32 exec_hi, 0', nap=int(opt.get('nap', 1)))
    k('L_nofh:\n s_waitcnt vmcnt(0) lgkmcnt(0)')
    post(k, 26)
    waitfor(k, 'wa26', 0, 4, 26, CK, sleep=False)
    G.stamp(13); G.stamp(6, '7')
    def aread(kk):
        for dt in range(4):
            for hh in range(2):
                f0 = 32 * kk + 16 * hh
                r = A3 + (kk & 1) * 16 + dt * 4 + hh * 2
                k(f'ds_read_b64_tr_b16 v[{r}:{r+1}], v{(192 if f0 < 448 else 196) + dt} offset:{(f0 % 448) * 128}')
    def hload(kk):
        k(f'buffer_load_dwordx4 v[{HB+4*kk}:{HB+4*kk+3}], v2, s[12:15], s34 offen offset:{1024*(kk%4)} {ZF}')
        if kk % 4 == 3: k('s_add_u32 s34, s34, 4096')
    for kk in range(HD): hload(kk)
    aread(0)
    KB = int(opt.get('kb', 22))
    k(f"""
    s_lshl_b32 s36, s32, 5
    v_xor_b32 v12, s36, v21
    v_add_u32 v12, v12, v13
    v_add_u32 v12, {L_R}, v12
    s_lshl_b32 s36, s32, 7
    s_add_u32 s36, s36, {L_R + 8192}
    v_lshlrev_b32 v11, 3, v8
    v_add_u32 v11, s36, v11
    v_mul_u32_u24 v10, 896, v8
    v_lshrrev_b32 v14, 1, v9
    v_lshl_add_u32 v10, v14, 4, v10
    v_and_b32 v14, 1, v9
    v_lshl_add_u32 v10, v14, 5, v10        ; t*896 + (g>>1)*16 + (g&1)*32
    s_mul_i32 s36, s33, {16*896}
    s_lshl_b32 s37, s29, 7
    s_add_u32 s36, s36, s37
    """)
    t = K('w')
    for i in range(8): lo(t, 48 + 2 * i, 32 + i); hi(t, 49 + 2 * i, 32 + i)
    for i in range(16): t(f'v_mul_f32 v{48+i}, v{48+i}, v4')
    for i in range(8): cvt(t, 32 + i, 48 + 2 * i, 49 + 2 * i)
    for i in range(8): lo(t, 48 + 2 * i, 32 + i); hi(t, 49 + 2 * i, 32 + i)
    t('v_mov_b32 v4, v5')
    ride = t.lines; rp = -(-len(ride) // (4 * (27 - KB)))
    for kk in range(28):
        if kk in (0, 8, 16): G.stamp(7 + kk // 8, '7')
        for dt in range(4):
            lg = 6 if kk < 27 else 6 - 2 * dt
            k(f's_waitcnt vmcnt({min(HD - 1, 27 - kk)}) lgkmcnt({lg})' if dt == 0 else f's_waitcnt lgkmcnt({lg})')
            mfma(k, AC3 + 4 * dt, A3 + (kk & 1) * 16 + dt * 4, HB + 4 * kk, '0' if kk == 0 else None)
            if kk < 27:
                for hh in range(2):
                    f0 = 32 * (kk + 1) + 16 * hh
                    r = A3 + ((kk + 1) & 1) * 16 + dt * 4 + hh * 2
                    k(f'ds_read_b64_tr_b16 v[{r}:{r+1}], v{(192 if f0 < 448 else 196) + dt} offset:{(f0 % 448) * 128}')
            if kk > KB:
                for _ in range(rp):
                    if ride: k(ride.pop(0))
        if kk + HD < 28: hload(kk + HD)
        if kk == KB - 1:
            k('s_barrier'); G.stamp(12, '7'); k('ds_read_b64 v[4:5], v11')
            for dt in range(4): k(f'ds_read_b64_tr_b16 v[{32+2*dt}:{33+2*dt}], v12 offset:{2048*dt}')
    assert not ride
    G.stamp(14); G.stamp(11, '7')
    its = [(AC3 + 2 * i, 32 + i, 64 + 2 * i, 48 + 2 * i) for i in range(8)]
    for c, a, t, g in its: cvt(k, a, c, c + 1)
    for c, a, t, g in its: lo(k, t, a); hi(k, t + 1, a)
    for c, a, t, g in its: pk(k, 'mul', t, t, 4)
    for c, a, t, g in its: cvt(k, a, t, t + 1)
    for c, a, t, g in its: lo(k, t, a); hi(k, t + 1, a)
    for c, a, t, g in its: pk(k, 'add', t, t, g)
    for c, a, t, g in its: cvt(k, a, t, t + 1)
    for pr in range(2):
        o = 32 + 4 * pr
        k(f'v_permlane16_swap_b32 v{o}, v{o+2}\n v_permlane16_swap_b32 v{o+1}, v{o+3}')
    for pr in range(2):
        o = 32 + 4 * pr
        k(f"buffer_store_dwordx4 v[{o}:{o+3}], v10, s[16:19], s36 offen offset:{64*pr} {opt.get('of', '').replace('_', ' ')}")
    k(f"""
    s_lshl_b32 s35, s2, 3
    s_add_u32 s35, s35, s3
    s_cmp_lg_u32 s35, 0
    s_cbranch_scc1 L_A_fin
    s_mov_b32 s35, {hex(WS_EP)}
    v_mov_b32 v1, 0
    s_mov_b64 exec, 1
    buffer_store_dword v{TAG}, v1, s[12:15], s35 offen sc1
    s_mov_b64 exec, -1
L_A_fin:
    """)
    G.stamp(13, '7')
    if opt.get('stamp'): k('s_waitcnt vmcnt(0)')
    G.stamp(15); G.stamp(14, '7')
    G.flush(16)
    k('s_endpgm')

    k('L_B:')
    common2()
    k(f"""
    s_mul_i32 s39, s32, {KG_WAVE}
    s_add_u32 s39, s39, {L_KG}
    """)
    k(tagcalc)
    G.stamp(1, '2')
    def wb(j, w): return G.st(2 + 2 * j, '2') + (f's_waitcnt vmcnt({w})\n' if w is not None else '') + G.st(3 + 2 * j, '2') + 's_barrier\n'
    k(wb(0, None) + w2stage(2))
    w1setup(18)
    k(f"""
    s_lshl_b32 s41, s31, 1
    v_mul_u32_u24 v7, {KG_ROW}, v0
    v_add_u32 v7, s39, v7
    v_lshrrev_b32 v1, 5, v0
    v_lshrrev_b32 v3, 2, v8
    v_lshl_add_u32 v1, v1, 2, v3
    v_mul_u32_u24 v1, {KG_ROW}, v1
    v_and_b32 v3, 1, v9
    v_lshl_add_u32 v1, v3, 5, v1
    v_and_b32 v3, 3, v0
    v_lshl_add_u32 v1, v3, 3, v1
    v_add_u32 v1, s39, v1
    """)
    k(wb(1, None) + w2stage(3))
    k(f"""
    ; L2 warm-up: this workgroup's eighth of the z1 slice of w_in, and a share of the second half of the w_sp tile
    s_and_b32 s35, s28, 7
    s_lshl_b32 s35, s35, 2
    s_add_u32 s35, s35, s32
    s_mul_i32 s42, s35, {14*3584}
    s_lshl_b32 s35, s29, 8
    s_add_u32 s42, s42, s35
    v_min_u32 v16, 27, v0
    v_lshrrev_b32 v17, 1, v16
    v_mul_u32_u24 v17, 3584, v17
    v_and_b32 v16, 1, v16
    v_lshl_add_u32 v16, v16, 7, v17
    v_lshrrev_b32 v156, 2, v8
    v_lshl_add_u32 v156, v9, 3, v156         ; 8g + r
    v_lshrrev_b32 v157, 1, v156
    v_and_b32 v157, 7, v157
    v_and_b32 v158, 3, v0
    v_lshrrev_b32 v159, 1, v158
    s_lshl_b32 s35, s32, 1
    v_add_u32 v159, s35, v159
    v_xor_b32 v157, v157, v159
    v_lshlrev_b32 v157, 4, v157
    v_lshl_add_u32 v157, v156, 7, v157
    v_and_b32 v158, 1, v158
    v_lshl_add_u32 v157, v158, 3, v157
    s_add_u32 s35, s29, 7
    s_sub_u32 s35, s35, s31
    s_cmp_ge_u32 s35, 7
    s_cselect_b32 s63, 7, 0
    s_sub_u32 s35, s35, s63
    s_lshl_b32 s35, s35, 13
    s_add_u32 s35, s35, {L_X}
    v_add_u32 v157, s35, v157                ; hh = 0
    v_xor_b32 v158, 32, v157
    v_add_u32 v158, 512, v158                ; hh = 1
    v_lshlrev_b32 v159, 12, v8
    v_lshl_add_u32 v159, v9, 4, v159
    s_lshl_b32 s36, s29, 2
    s_add_u32 s36, s36, s32
    s_lshl_b32 s36, s36, 16
    s_lshl_b32 s35, s28, 7
    s_add_u32 s36, s36, s35
    s_add_u32 s36, s36, {hex(WS_UT)}
    s_lshl_b32 s37, s29, 5
    s_add_u32 s37, s37, s28
    s_lshl_b32 s37, s37, 2
    s_add_u32 s37, s37, s32
    s_lshl_b32 s37, s37, 2
    s_add_u32 s37, s37, {hex(WS_FU)}
    """)
    da = float(opt.get('kga', 0.0)); db = float(opt.get('kgb', 0.0))
    k(f'buffer_load_dword v{PRM+9}, v16, s[16:19], s42 offen')
    d0 = 0.0
    EV = [(d0, wb(2, 7) + w2stage(4)), (d0 + da, wb(3, 7) + w2stage(5)),
          (d0 + 2 * da, wb(4, 6) + w2stage(6) + w1dma(0, 18) + w1dma(1, 18)),
          (d0 + 2 * da + db, wb(5, 10) + w1dma(2, 18) + w1dma(3, 18)),
          (d0 + 2 * da + 2 * db, wb(6, 8) + w1dma(4, 18) + w1dma(5, 18))]
    t = K('w')
    for hf in range(2):
        t(f'ds_read_b64_tr_b16 v[{160+4*hf}:{161+4*hf}], v157 offset:{4096*hf}\n ds_read_b64_tr_b16 v[{162+4*hf}:{163+4*hf}], v158 offset:{4096*hf}')
    t('s_waitcnt lgkmcnt(0)')
    t('s_barrier\n' + w1dma(6, 18) + w1dma(7, 18))
    if opt.get('sent'):
        t(f's_mul_i32 s35, s28, {4*28}\n s_lshl_b32 s63, s29, 2\n s_add_u32 s35, s35, s63\n s_add_u32 s35, s35, s32\n s_lshl_b32 s35, s35, 10\n s_add_u32 s35, s35, {hex(WS_H)}')
        t('v_mov_b32 v168, -1\n v_mov_b32 v169, -1\n v_mov_b32 v170, -1\n v_mov_b32 v171, -1')
        for tt in range(4): t(f'buffer_store_dwordx4 v[168:171], v2, s[12:15], s35 offen sc1\n s_add_u32 s35, s35, {28*1024}')
    for hf in range(2): t(f'buffer_store_dwordx4 v[{160+4*hf}:{163+4*hf}], v159, s[12:15], s36 offen offset:{64*hf} sc1')
    t(G.st(1))
    EV.append((d0 + 2 * da + 3 * db, t.lines))
    DP = 232; DT = PRM + 8
    def kgen(t, c, hook=None):
        if opt.get('nokg'):
            if hook: hook(t)
            for i in range(100): t('s_nop 0')
            return
        if c == 0:
            t(f'v_lshlrev_b32 v{DT}, 16, v{DT}\n v_mul_f32 v{DT}, {f32hex(L2E)}, v{DT}\n v_exp_f32 v{DT}, v{DT}')
            cvt(t, DT, DT, DT); lo(t, DT, DT)
        Z1_, Z8, Z256, Z2_, Z4 = 32, 35, 38, 41, 44
        V, PKD, XA_, XB_ = 128, 48, 56, 58
        p = PRM + 4 * c
        t(f"""
        v_lshlrev_b32 v{p}, 16, v{p}
        v_mul_f32 v{p}, {f32hex(L2E)}, v{p}
        v_exp_f32 v{p}, v{p}
        v_lshlrev_b32 v{p+1}, 16, v{p+1}
        v_lshlrev_b32 v{p+2}, 16, v{p+2}
        v_lshlrev_b32 v{p+3}, 16, v{p+3}
        v_cvt_pk_bf16_f32 v{p}, v{p}, v{p}
        v_mul_f32 v{p+1}, v{p+1}, v{DT}
        v_lshlrev_b32 v{p}, 16, v{p}
        v_mul_f32 v{p+1}, 0.15915494, v{p+1}
        v_mul_f32 v{p}, v{p}, v{DT}
        v_add_f32 v60, v{DT}, v{DT}
        v_mul_f32 v{p}, {f32hex(-L2E)}, v{p}
        v_mul_f32 v{XA_}, v{p+2}, v60
        v_mul_f32 v{XA_+1}, v{p+3}, v60
        """)
        for (d, e) in ((Z8, 8), (Z1_, 1), (Z256, 256)):
            t(f"""
            v_mul_f32 v60, {f32hex(float(e))}, v{p}
            v_mul_f32 v61, {f32hex(float(e))}, v{p+1}
            v_exp_f32 v60, v60
            v_fract_f32 v61, v61
            v_cos_f32 v{d}, v61
            v_sin_f32 v{d+1}, v61
            v_mul_f32 v{d}, v{d}, v60
            v_mul_f32 v{d+1}, v{d+1}, v60
            v_sub_f32 v{d+2}, 0, v{d+1}
            """)
        def put(q, vals, neg):
            for i in range(4):
                cvt(t, PKD + i, vals[2 * i], vals[2 * i + 1])
            t(f'ds_write_b128 v7, v[{PKD}:{PKD+3}] offset:{16*q}')
            n = '-' if neg else ''
            for i in range(4):
                t(f'v_cvt_pk_bf16_f32 v{PKD+4+i}, {n}v{vals[2*i]+1}, {n}v{vals[2*i+1]+1}')
            t(f'ds_write_b128 v7, v[{PKD+4}:{PKD+7}] offset:{64 + 16*q}')
        vs = [V + 2 * i for i in range(8)]
        t(f'v_mov_b32 v{V}, 1.0\n v_mov_b32 v{V+1}, 0')
        for q in range(4):
            for i in range(8):
                if q == 0 and i == 0: continue
                if q == 0 and i == 1: t(f'v_mov_b32 v{vs[1]}, v{Z8}\n v_mov_b32 v{vs[1]+1}, v{Z8+1}')
                else: cmul(t, vs[i], vs[i - 1], Z8)
            if q == 0 and hook: hook(t)
            put(q, vs, True)
        cmul(t, Z2_, Z1_, Z1_); t(f'v_sub_f32 v{Z2_+2}, 0, v{Z2_+1}')
        cmul(t, Z4, Z2_, Z2_); t(f'v_sub_f32 v{Z4+2}, 0, v{Z4+1}')
        t('s_waitcnt lgkmcnt(0)')
        FB, FA = 64, 96
        def frags(F):
            for ks in range(8):
                t(f'ds_read_b64_tr_b16 v[{F+4*ks}:{F+4*ks+1}], v1 offset:{8*KG_ROW*ks}\n ds_read_b64_tr_b16 v[{F+4*ks+2}:{F+4*ks+3}], v1 offset:{8*KG_ROW*ks + 64}')
        frags(FB)
        cmul(t, vs[1], XA_, Z1_)
        for i in range(2, 8): cmul(t, vs[i], vs[i - 1], Z1_)
        t('s_waitcnt lgkmcnt(0)')
        put(0, [XA_] + vs[1:], False)
        cmul(t, XB_, XA_, Z256)
        cmul(t, vs[1], XB_, Z2_)
        for i in range(2, 5): cmul(t, vs[i], vs[i - 1], Z2_)
        put(1, [XB_, vs[1], vs[2], vs[2], vs[2], vs[3], vs[4], vs[4]], False)
        cmul(t, XA_, XB_, Z256); cmul(t, vs[0], XA_, Z4); cmul(t, vs[1], vs[0], Z4)
        cmul(t, XB_, XA_, Z256); cmul(t, vs[2], XB_, Z4); cmul(t, vs[3], vs[2], Z4)
        put(2, [XA_, vs[0], XB_, vs[2], vs[0], vs[1], vs[2], vs[3]], False)
        cmul(t, vs[0], XB_, Z256)
        for i in range(1, 4): cmul(t, vs[i], vs[i - 1], Z256)
        for i in range(4): cmul(t, vs[4 + i], vs[i], Z8)
        put(3, vs, False)
        t('s_waitcnt lgkmcnt(0)')
        frags(FA)
        for ks in range(8):
            t(f's_waitcnt lgkmcnt({14-2*ks})')
            cin = '0' if (ks == 0 and c == 0) else f'v[{DP}:{DP+15}]'
            t(f'v_mfma_f32_32x32x16_bf16 v[{DP}:{DP+15}], v[{FA+4*ks}:{FA+4*ks+3}], v[{FB+4*ks}:{FB+4*ks+3}], {cin}')
    EV[-1] = (EV[-1][0], '\n'.join(EV[-1][1]))
    t = K('w'); t('s_waitcnt vmcnt(2)'); post(t, 1)
    t2 = f's_waitcnt vmcnt(0)\n v_mov_b32 v10, 0\n s_mov_b64 exec, 1\n buffer_store_dword v{TAG}, v10, s[12:15], s37 offen sc1\n s_mov_b64 exec, -1'
    f7 = EV[-1][0]
    B_, B2, A_, Wt, UR, AC, P = 32, 80, 112, 144, 168, 176, 192
    fuload = 'buffer_load_dwordx2 v[176:177], v5, s[12:15], s36 offen sc1'
    t3 = f"""
    s_lshr_b32 s36, s20, 6
    s_lshl_b32 s36, s36, 9
    s_add_u32 s36, s36, {hex(WS_FU)}
    v_lshlrev_b32 v5, 3, v0
    {fuload}
    s_lshl_b32 s23, s20, 12                ; ch*4096
    s_add_u32 s44, s12, {hex(WS_UT)}
    s_addc_u32 s45, s13, 0
    s_add_u32 s44, s44, s23
    s_addc_u32 s45, s45, 0
    s_mov_b32 s46, 4096
    s_mov_b32 s47, 0x20000
    """
    for q in range(5):
        t3 += f'v_add_u32 v{180+q}, {64*q}, v0\n v_mul_u32_u24 v6, 3856, v{180+q}\n v_lshrrev_b32 v6, 16, v6\n v_sub_u32 v{180+q}, v{180+q}, v6\n v_lshlrev_b32 v{180+q}, 4, v{180+q}\n v_add_u32 v{180+q}, -16, v{180+q}\n'
    t3 += f"""
    v_mul_u32_u24 v6, 272, v8
    s_lshl_b32 s35, s22, 3
    s_add_u32 s35, s35, s39
    v_lshl_add_u32 v185, v9, 4, v6
    v_add_u32 v185, s35, v185              ; a*272 + g*16 + 8hf
    v_lshl_add_u32 v186, v9, 6, v6
    v_add_u32 v186, s35, v186              ; a*272 + g*64 + 8hf
    """
    k.lines += weave(sub(kgen, 0), EV + [(f7 + float(opt.get('kgp', 0.06)), '\n'.join(t.lines)), (min(f7 + float(opt.get('kgu', 0.2)), 0.9), t2), (0.93, t3)])
    G.stamp(2)
    if opt.get('kprio'): k(f"s_setprio {opt['kprio']}")
    poll(k, 'pfu', fuload, [176, 177], nap=2, first_issued=True)
    for q in range(5):
        k(f's_add_u32 m0, s39, {q*1024}')
        if q == 4: k('s_mov_b64 exec, 0xffff')
        k(f'buffer_load_dwordx4 v{180+q}, s[44:47], 0 offen sc1 lds')
    k('s_mov_b64 exec, -1')
    G.stamp(3)
    def uhook(t):
        t('s_waitcnt vmcnt(0)')
        for kk in range(4):
            for m in range(3): t(f'ds_read_b64 v[{Wt+6*kk+2*m}:{Wt+6*kk+2*m+1}], v185 offset:{64*kk + 8*m}')
        t('s_waitcnt lgkmcnt(8)')
        for i in range(4): t(f'ds_read_b64 v[{UR+2*i}:{UR+2*i+1}], v186 offset:{16 + 16*i}')
        t('s_waitcnt lgkmcnt(0)')
    kgen(k, 1, uhook)
    G.stamp(5)
    k(f"""
    s_mul_i32 s38, s21, 4352
    s_xor_b32 s35, s3, 1
    s_lshl_b32 s35, s35, 2
    v_add_u32 v21, s35, v22
    s_cmp_eq_u32 s22, 0
    s_cbranch_scc1 L_B_fin
    v_add_u32 v1, s39, v2
    """)
    for q in range(4): k(f'ds_write_b128 v1, v[{DP+4*q}:{DP+4*q+3}] offset:{1024*q}')
    k('s_waitcnt lgkmcnt(0)'); post(k, 100)
    k('s_branch L_B_join')
    k(f'L_B_fin:\n s_add_u32 s35, s39, {KG_WAVE}\n v_add_u32 v1, s35, v2')
    waitfor(k, 'wbp', 0, 1, 100, 32, base=21)
    for q in range(4): k(f'ds_read_b128 v[{80+4*q}:{83+4*q}], v1 offset:{1024*q}')
    k(f"""
    v_and_b32 v5, 31, v0
    v_lshlrev_b32 v5, 4, v5
    v_lshrrev_b32 v7, 5, v0
    v_xor_b32 v6, 1, v7
    v_lshl_add_u32 v5, v6, 3, v5
    s_add_u32 s35, s38, {L_KI + 256}
    v_add_u32 v5, s35, v5                  ; KI + j*16 + 8*(1-h)
    v_lshlrev_b32 v6, 2, v0
    s_add_u32 s35, s38, {L_KI}
    v_add_u32 v6, s35, v6
    s_waitcnt lgkmcnt(0)
    """)
    post(k, 100)
    for i in range(8): pks(k, 'add', 64 + 2 * i, DP + 2 * i, 80 + 2 * i)
    k('v_cmp_eq_u32 vcc, 1, v7\n v_cndmask_b32 v80, v72, v73, vcc\n v_cndmask_b32 v81, v74, v75, vcc')
    k('v_and_b32 v7, 1, v0\n v_cmp_eq_u32 vcc, 1, v7')
    for i in range(4): k(f'v_mov_b32 v{84+i}, v{76+i}\n v_mov_b32 v{88+i}, v{76+i}')
    for i in range(4): k(f'v_permlane32_swap_b32 v{84+i}, v{88+i}')
    for i in range(4): k(f'v_cndmask_b32 v{84+i}, v{84+i}, v{76+i}, vcc')
    blks = [(67, 66, 65, 64), (70, 69, 68, 68), (73, 80, 72, 72), (75, 81, 74, 74)] + [(76 + i, 76 + i, 76 + i, 84 + i) for i in range(4)]
    for b, (a0, a1, a2, a3) in enumerate(blks): cvt(k, 96 + 2 * b, a0, a1); cvt(k, 97 + 2 * b, a2, a3)
    waitfor(k, 'wbb0', 16, 4, 100, 32)
    k('v_mov_b32 v3, 0\n ds_write_b32 v6, v3')
    for b in range(8): k(f'ds_write_b64 v5, v[{96+2*b}:{97+2*b}] offset:{512*b}')
    k('s_waitcnt lgkmcnt(0)\nL_B_join:')
    post(k, 101)
    LC = 216
    BL = opt.get('bl')
    ldread = f'ds_read_b128 v[{LC}:{LC+3}], v22'
    if BL:
        srd(k, 8, 48, 49, 0x800000)
        k(f"""
        v_lshrrev_b32 v10, 3, v0
        v_lshl_add_u32 v10, v10, 12, v20
        v_add_u32 v11, 128, v10
        v_xor_b32 v12, 64, v10
        v_add_u32 v12, 0x8000, v12
        v_add_u32 v13, 128, v12
        s_lshl_b32 s42, s28, 2
        s_add_u32 s42, s42, s32
        s_lshl_b32 s42, s42, 16
        s_add_u32 s42, s42, {7*256}
        s_lshl_b32 s43, s32, 11
        s_add_u32 s43, s43, {PI[7]*16384}
        s_mov_b32 s40, {hex(((PI_WORD << 4) | PI[7]) & 0xffffffff)}
        s_mov_b32 s41, {PI[7]}
        s_mov_b32 s44, 7
        s_mov_b32 s45, 0
        s_mov_b32 s46, 9
        """)
    LD = int(opt.get('ld', 1))
    def ldstep(name):
        k(f"""
        v_min3_u32 v{LC}, v{LC}, v{LC+1}, v{LC+2}
        v_min_u32 v{LC}, v{LC}, v{LC+3}
        v_cmp_gt_u32 vcc, s46, v{LC}
        s_cbranch_vccnz L_{name}_no
        s_cmp_lg_u32 s44, 16
        s_cbranch_scc1 L_{name}_go
        v_mov_b32 v23, 15
        s_mov_b32 s46, -1
        s_waitcnt vmcnt(0)
        s_branch L_{name}_po
L_{name}_go:
        """)
        for j in range(4): k(spdma(j, dyn=True))
        k(f"""
        s_sub_u32 s35, s44, {LD}
        s_max_u32 s35, s35, 6
        v_mov_b32 v23, s35
        s_add_u32 s44, s44, 1
        s_add_u32 s45, s45, {int(opt.get('pace', 2))}
        s_lshr_b32 s46, s45, 1
        s_add_u32 s46, s46, 10
        s_cmp_eq_u32 s44, 16
        s_cselect_b32 s46, 0, s46
        s_waitcnt vmcnt({4*LD})
L_{name}_po:
        ds_write_b32 v29, v23 offset:16
L_{name}_no:
        """)
    k(f"""
    v_sub_u32 v5, v8, v9
    v_lshlrev_b32 v5, 4, v5
    s_add_u32 s35, s38, {L_KI + 64 + 15*256}
    v_add_u32 v5, s35, v5
    v_cmp_ne_u32 vcc, 8, v8
    v_cndmask_b32 v15, 0, -1, vcc
    v_cmp_gt_u32 vcc, 8, v8
    """)
    G.stamp(6)
    def BF(kk, rr): return Wt + 6 * kk + 2 if rr == 3 else B_ + (kk * 3 + rr) * 4
    for kk in range(4):
        w = Wt + 6 * kk
        for j in range(4):
            k(f'v_alignbit_b32 v{BF(kk,0)+j}, v{w+j+1}, v{w+j}, 16\n v_mov_b32 v{BF(kk,1)+j}, v{w+j+1}\n v_alignbit_b32 v{BF(kk,2)+j}, v{w+j+2}, v{w+j+1}, 16')
    for kk in range(4):
        for p in range(2):
            for j in range(4):
                k(f'v_cndmask_b32_dpp v{B2 + (kk*2+p)*4 + j}, v{BF(kk,2*p+1)+j}, v{BF(kk,2*p)+j}, vcc row_shr:8 row_mask:0xf bank_mask:0xf bound_ctrl:1')
    for j in range(8): k(f'v_mov_b32 v{P+j}, 0')
    def cread(buf):
        for kk in range(4):
            r = A_ + buf * 16 + kk * 4
            k(f'ds_read_b128 v[{r}:{r+3}], v5 offset:{192 - 64*kk}')
        k('v_add_u32 v5, -256, v5')
    waitfor(k, 'wbq', 0, 1, 101, LC, base=21)
    cread(0)
    G.stamp(7)
    if opt.get('kprio'): k('s_setprio 0')
    if opt.get('bprio'): k(f"s_setprio {opt['bprio']}")
    shp = lambda r: f'v_and_b32_dpp v{r}, v{r}, v15 row_shr:1 row_mask:0xf bank_mask:0xf bound_ctrl:1'
    shf = lambda r: f'v_mov_b32_dpp v{r}, v{r} row_shr:1 row_mask:0xf bank_mask:0xf bound_ctrl:1'
    k('s_mov_b32 s7, 0' + ('\n s_branch L_B_last' if opt.get('noconv') else '') + '\nL_B_pk:')
    for half in range(2):
        if BL: k(ldread)
        cread(1 - half)
        for j in range(4): k(shp(P + j))
        k('s_waitcnt lgkmcnt(4)')
        if BL: ldstep(f'ldp{half}')
        for kk in range(4): mfma(k, P, A_ + half * 16 + kk * 4, B2 + (kk * 2) * 4); k(shp(P + 4 + kk))
        for kk in range(4): mfma(k, P + 4, A_ + half * 16 + kk * 4, B2 + (kk * 2 + 1) * 4)
    k('s_add_u32 s7, s7, 1\n s_cmp_lt_u32 s7, 4\n s_cbranch_scc1 L_B_pk')
    for j in range(4): k(f'v_mov_b32_dpp v{AC + j}, v{P+j} row_shr:1 row_mask:0xf bank_mask:0xf bound_ctrl:1')
    for j in range(4): k(f'v_mov_b32_dpp v{AC + 4 + j}, v{P+j} row_shl:8 row_mask:0xf bank_mask:0xf bound_ctrl:1')
    for j in range(4): k(f'v_mov_b32 v{AC + 8 + j}, v{P+4+j}')
    for j in range(4): k(f'v_mov_b32_dpp v{AC + 12 + j}, v{P+4+j} row_shl:8 row_mask:0xf bank_mask:0xf bound_ctrl:1')
    k('s_mov_b32 s7, 0\nL_B_fl:')
    if opt.get('bpk'): k(f"s_cmp_lt_u32 s7, {int(opt['bpk']) - 1}\n s_cbranch_scc1 L_B_kp\n s_setprio 0\nL_B_kp:")
    for half in range(2):
        if BL: k(ldread)
        cread(1 - half)
        k('s_waitcnt lgkmcnt(4)')
        if BL: ldstep(f'ldf{half}')
        for rr in range(4):
            if rr == 3 and half == 1: k('s_add_u32 s7, s7, 1\n s_cmp_eq_u32 s7, 4\n s_cbranch_scc1 L_B_last')
            for kk in range(4):
                mfma(k, AC + 4 * rr, A_ + half * 16 + kk * 4, BF(kk, rr))
                k(shf(AC + 4 * ((rr + 1) % 4) + kk))
    k('s_branch L_B_fl\nL_B_last:\n s_nop 1')
    for kk in range(4): mfma(k, AC + 12, A_ + 16 + kk * 4, BF(kk, 3))
    G.stamp(8)
    if BL:
        k(f's_mov_b32 s62, {POLL_LIMIT*16}\nL_B_ld:\n s_cmp_eq_u32 s46, -1\n s_cbranch_scc1 L_B_ldd\n' + ldread + '\n s_waitcnt lgkmcnt(0)')
        ldstep('ldl')
        k('s_sub_u32 s62, s62, 1\n s_cbranch_scc0 L_B_ld\nL_B_ldd:\n s_nop 7')
    k(f"s_setprio {opt.get('eprio', 2)}")
    k(f"""
    s_lshl_b32 s35, s22, 3
    s_add_u32 s35, s35, s38
    s_add_u32 s35, s35, {L_U + 16}
    v_mul_u32_u24 v6, 272, v8
    v_lshl_add_u32 v7, v9, 6, v6
    v_add_u32 v7, s35, v7
    s_lshl_b32 s35, s21, 4
    s_lshr_b32 s30, s30, s35
    s_lshl_b32 s30, s30, 16
    v_mov_b32 v18, s30
    v_mov_b32 v19, s30
    """)
    its = [(UR + 2 * i + p, AC + 8 * p + i, AC + 8 * p + 4 + i, 48 + 4 * (2 * i + p), 40 + 2 * i + p) for i in range(4) for p in range(2)]
    for u, y0, y1, t, y in its: cvt(k, y, y0, y1); lo(k, t, u); hi(k, t + 1, u)
    for u, y0, y1, t, y in its: pks(k, 'mul', t, t, 18)
    for u, y0, y1, t, y in its: cvt(k, u, t, t + 1); lo(k, t + 2, y); hi(k, t + 3, y)
    for u, y0, y1, t, y in its: lo(k, t, u); hi(k, t + 1, u)
    for u, y0, y1, t, y in its: pks(k, 'add', t, t, t + 2)
    for u, y0, y1, t, y in its: cvt(k, u, t, t + 1)
    for i in range(4): k(f'ds_write_b64 v7, v[{UR+2*i}:{UR+2*i+1}] offset:{16*i}')
    k(f"""
    s_lshl_b32 s35, s22, 3
    v_add_u32 v7, s35, v9
    v_mul_u32_u24 v7, 272, v7
    v_lshl_add_u32 v7, v8, 4, v7
    s_add_u32 s35, s38, {L_U + 16}
    v_add_u32 v7, s35, v7
    s_lshl_b32 s36, s22, 11
    s_add_u32 s36, s36, s23
    s_add_u32 s36, s36, {hex(WS_AT)}
    s_waitcnt lgkmcnt(0)
    """)
    post(k, 103)
    waitfor(k, 'wbr', 0, 1, 103, 32, base=21)
    k(f"""
    ds_read_b128 v[32:35], v7
    ds_read_b128 v[36:39], v7 offset:{4*272}
    s_waitcnt lgkmcnt(0)
    buffer_store_dwordx4 v[32:35], v2, s[12:15], s36 offen sc1
    buffer_store_dwordx4 v[36:39], v2, s[12:15], s36 offen offset:1024 sc1
    """)
    k(f"""
    s_lshl_b32 s30, s20, 3
    s_lshl_b32 s35, s22, 2
    s_add_u32 s30, s30, s35
    s_add_u32 s30, s30, {hex(WS_FA)}
    """)
    G.stamp(9)
    G.stamp(1, '7')
    faload = 'buffer_load_dwordx2 v[96:97], v1, s[12:15], s39 offen sc1\n buffer_load_dwordx4 v[100:103], v2, s[12:15], s5 offen sc1'
    atile = f"""
    s_lshl_b32 s36, s29, 18
    s_lshl_b32 s35, s28, 7
    s_add_u32 s36, s36, s35
    s_add_u32 s36, s36, {hex(WS_AT)}
    """
    for q in range(8): atile += f's_mov_b32 m0, {L_R + 1024*q}\n s_nop 0\n buffer_load_dwordx4 v17, s[12:15], s36 offen sc1 lds\n s_add_u32 s36, s36, 0x8000\n'
    atile += f"""
    s_lshl_b32 s36, s28, 9
    s_add_u32 s36, s36, {hex(WS_G2)}
    s_mov_b32 m0, {L_R + 8192}
    s_mov_b32 exec_hi, 0
    buffer_load_dwordx4 v2, s[12:15], s36 offen sc1 lds
    s_mov_b32 exec_hi, -1
    s_mov_b32 s7, 1
    """
    k(f"""
    s_lshl_b32 s39, s29, 9
    s_add_u32 s39, s39, {hex(WS_FA)}
    s_mov_b32 s5, {hex(WS_FG)}
    v_lshlrev_b32 v1, 3, v0
    v_mov_b32 v3, 0
    v_lshrrev_b32 v16, 3, v0
    v_and_b32 v17, 6, v16
    v_xor_b32 v17, v17, v0
    v_and_b32 v17, 7, v17
    v_lshlrev_b32 v17, 4, v17
    v_lshl_add_u32 v17, v16, 12, v17
    s_waitcnt vmcnt(0)
    s_mov_b64 exec, 1
    buffer_store_dword v{TAG}, v3, s[12:15], s30 offen sc1
    s_mov_b64 exec, -1
    s_setprio 0
    s_cmp_lg_u32 s32, 0
    s_cbranch_scc1 L_B_end
    """)
    fa1, fa2 = faload.split('\n')
    poll(k, 'pfg', fa2, [100, 101, 102, 103], nap=16)
    waitfor(k, 'wfa', 0, 4, int(opt.get('fat', 26)), LC, sleep=2)
    poll(k, 'pfa', fa1, [96, 97], nap=int(opt.get('anap', 8)))
    G.stamp(10)
    k(atile + 's_waitcnt vmcnt(0)\nL_B_end:')
    G.stamp(11); G.stamp(11, '7')
    k('s_barrier')
    G.flush(16)
    k('s_endpgm')

    k('L_helper:')
    k(f"""
    s_getpc_b64 s[36:37]
L_pc:
    s_sub_u32 s36, s36, L_pc-{NAME}
    s_subb_u32 s37, s37, 0
    s_lshl_b32 s35, s3, 13
    v_lshlrev_b32 v10, 7, v0
    v_add_u32 v10, s35, v10
    v_min_u32 v10, L_end-{NAME}, v10
    global_load_dword v29, v10, s[36:37]
    v_min_u32 v1, 55, v0
    v_lshlrev_b32 v10, 4, v1
    global_load_dwordx4 v[24:27], v10, s[54:55]
    v_lshlrev_b32 v5, 12, v0
    s_lshl_b32 s35, s28, 18
    s_lshl_b32 s22, s3, 7
    s_add_u32 s35, s35, s22
    v_add_u32 v5, s35, v5
    s_and_b32 s35, s3, 1
    s_cmp_eq_u32 s35, 1
    s_cbranch_scc0 L_H_even
    v_mov_b32 v6, v7
L_H_even:
    s_lshl_b32 s20, s28, 3
    s_add_u32 s20, s20, s3
    s_mul_i32 s20, s20, {8*896}
    s_lshl_b32 s21, s3, 10
    v_lshrrev_b32 v10, 3, v1
    v_lshlrev_b32 v10, 13, v10
    v_and_b32 v1, 7, v1
    v_lshl_add_u32 v10, v1, 4, v10
    s_lshl_b32 s23, s28, 3
    s_add_u32 s23, s23, s3
    """)
    for p in range(7):
        k(f's_add_u32 m0, s21, {8192*p}\n buffer_load_dwordx4 v6, s[8:11], s20 offen lds\n s_add_u32 s20, s20, 128')
    k('s_waitcnt vmcnt(0)')
    G.stamp(1)
    for r in range(4): k(f'global_load_dword v29, v5, s[48:49] offset:{1024*r}')
    k(tagcalc + '\n s_barrier')
    K0 = int(opt.get('zk0', 6))
    k(f"""
    s_and_b32 s35, s2, 1
    s_mul_i32 s35, s35, 3
    s_add_u32 s35, s35, s32
    s_lshl_b32 s36, s35, 11
    s_add_u32 s36, s36, {hex(WS_FZ)}
    s_and_b32 s37, s28, 3
    s_lshl_b32 s37, s37, 1
    s_lshr_b32 s38, s3, 2
    s_add_u32 s37, s37, s38
    s_add_u32 s37, s37, {K0}
    s_lshl_b32 s37, s37, 13
    s_lshl_b32 s35, s35, 19
    s_add_u32 s37, s37, s35
    s_add_u32 s38, s35, {64*8192}
    v_lshlrev_b32 v1, 6, v0
    v_lshlrev_b32 v5, 7, v0
    """)
    if opt.get('zpf'):
        k('s_cmp_ge_u32 s3, 4\n s_cbranch_scc1 L_H_nz')
        poll(k, 'hfz', 'buffer_load_dwordx4 v[32:35], v1, s[12:15], s36 offen sc1', [32, 33, 34, 35], lanes='s_mov_b32 exec_hi, 0', nap=int(opt.get('znap', 8)))
        k('L_H_nz:\n s_barrier')
        G.stamp(2)
        k(f"""
L_H_z:
        buffer_load_dword v29, v5, s[12:15], s37 offen sc1
        s_add_u32 s37, s37, {8*8192}
        s_cmp_lt_u32 s37, s38
        s_cbranch_scc1 L_H_z
        """)
    for i in range(8):
        k(f"""
        s_lshl_b32 s35, s3, 2
        s_add_u32 s35, s35, {i >> 1}
        s_and_b32 s35, s35, 7
        s_lshl_b32 s35, s35, 4
        v_xor_b32 v1, s35, v10
        v_add_u32 v1, s21, v1
        ds_read_b128 v[{64+4*i}:{67+4*i}], v1 offset:{128*i}
        """)
    for j in range(4): lo(k, 16 + 2 * j, 24 + j); hi(k, 17 + 2 * j, 24 + j)
    k('v_cmp_gt_u32 vcc, 56, v0\n s_waitcnt lgkmcnt(0)')
    for i in range(8):
        t = 96 + 8 * i
        for j in range(4): lo(k, t + 2 * j, 64 + 4 * i + j); hi(k, t + 2 * j + 1, 64 + 4 * i + j)
        for j in range(4): pk(k, 'mul', t + 2 * j, t + 2 * j, 16 + 2 * j)
        for j in range(4): cvt(k, 64 + 4 * i + j, t + 2 * j, t + 2 * j + 1)
        for j in range(4): lo(k, t + 2 * j, 64 + 4 * i + j); hi(k, t + 2 * j + 1, 64 + 4 * i + j)
        pk(k, 'add', t, t, t + 2); pk(k, 'add', t + 4, t + 4, t + 6); pk(k, 'add', t, t, t + 4)
        k(f'v_add_f32 v{t}, v{t}, v{t+1}\n v_cndmask_b32 v{32+i}, 0, v{t}, vcc')
    rowsum16(k, list(range(32, 40))); xsum4(k, list(range(32, 40)), 40)
    for i in range(1, 8): k(f'v_cmp_eq_u32 vcc, {i}, v0\n v_cndmask_b32 v32, v32, v{32+i}, vcc')
    cvt(k, 32, 32, 32); lo(k, 32, 32)
    k(f'v_mul_f32 v32, {f32hex(-L2E)}, v32\n v_exp_f32 v32, v32\n v_add_f32 v32, 1.0, v32\n v_rcp_f32 v32, v32')
    cvt(k, 32, 32, 32); lo(k, 32, 32)
    k('v_sub_f32 v33, 1.0, v32')
    cvt(k, 33, 33, 33); lo(k, 33, 33)
    k(f"""
    s_lshl_b32 s36, s23, 6
    s_add_u32 s36, s36, {hex(WS_G2)}
    s_lshl_b32 s35, s23, 2
    s_add_u32 s35, s35, {hex(WS_FG)}
    v_lshlrev_b32 v1, 3, v0
    s_mov_b64 exec, 0xff
    buffer_store_dwordx2 v[32:33], v1, s[12:15], s36 offen sc1
    s_waitcnt vmcnt(0)
    s_mov_b64 exec, 1
    buffer_store_dword v{TAG}, v1, s[12:15], s35 offen sc1
    s_mov_b64 exec, -1
    s_and_b32 s35, s28, 3
    s_lshl_b32 s35, s35, 3
    s_add_u32 s35, s35, s3
    s_mul_i32 s35, s35, {28*896}
    s_and_b32 s36, s2, 1
    s_mul_i32 s36, s36, 384
    s_add_u32 s35, s35, s36
    v_min_u32 v5, 55, v0
    v_lshrrev_b32 v1, 2, v5
    v_mul_u32_u24 v1, 896, v1
    v_and_b32 v5, 3, v5
    v_lshl_add_u32 v5, v5, 7, v1
    v_add_u32 v5, s35, v5
    global_load_dword v29, v5, s[52:53]
    v_add_u32 v5, {14*896}, v5
    global_load_dword v29, v5, s[52:53]
    """)
    if opt.get('stamp'): k('s_waitcnt vmcnt(0)')
    G.stamp(3)
    G.flush(4)
    k('L_end:\n s_endpgm')
    return k

if __name__ == '__main__':
    opt = dict(a.split('=') if '=' in a else (a, 1) for a in sys.argv[2:])
    k = gen(opt)
    v, s = k.maxreg()
    ref = open('gated_mix__ssm_conv_s4d__mixer_gmlp__prompt.s.ref').read().split('\n')
    hdr = [l for l in ref if l.startswith(';') and '@launch' not in l and 'Override launch' not in l and 'grid=ceil' not in l]
    txt = '\n'.join(hdr) + f'\n; @launch grid=(256,1,1) block=(512,1,1) lds={LDS}\n'
    txt += '.amdgcn_target "amdgcn-amd-amdhsa--gfx950"\n.text\n' + k.text(align=(opt.get('align', '1') == '1')) + '.section .rodata,"a"\n' + desc(k.name, v, s)
    open(sys.argv[1], 'w').write(txt)
    print('vgpr', v, 'sgpr', s, 'lines', len(k.lines))
```

```python
import sys, struct
from asmlib import *

NAME = 'gated_mix__ssm_conv_s4d__mixer_gmlp__prompt_kernel'
WS_Z2 = 0x000000
WS_H  = 0x380000
WS_UT = 0x700000
WS_AT = 0x8C0000
WS_G2 = 0xA80000
WS_ST = 0xA90000
WS_FZ = 0xAD0000
WS_FH = 0xAD4000
WS_FA = 0xAE4000
WS_FU = 0xAE5000
WS_FG = 0xAE5E00
WS_FG = 0xAE7000
WS_EP = 0xAE6000
WS_END = 0xAF0000
SZ_Z = 3670016
STAMP_BASE = 0x2000000
L_X = 65536
L_KG = 122880
KG_ROW = 144
KG_WAVE = 64 * KG_ROW
L_U = 131072
L_KI = L_U + 2 * 4352
L_R = L_KI + 2 * 4352
L_Z1 = L_U
L_CNT = 163840 - 48
LDS = 163840
L2E = 1.4426950408889634
PI = [4, 5, 2, 3, 6, 0, 1, 7]
PI_WORD = sum(v << (4 * i) for i, v in enumerate(PI))
TAG = 28
POLL_LIMIT = 1 << 16

def f32hex(x): return hex(struct.unpack('<I', struct.pack('<f', x))[0])

def srd(k, d, lo, hi, size, add=0):
    if add: k(f's_add_u32 s{d}, s{lo}, {hex(add)}\n s_addc_u32 s{d+1}, s{hi}, 0')
    else: k(f's_mov_b32 s{d}, s{lo}\n s_mov_b32 s{d+1}, s{hi}')
    k(f's_mov_b32 s{d+2}, {hex(size)}\n s_mov_b32 s{d+3}, 0x20000')

class Gen:
    def __init__(self, opt):
        self.opt = opt
        self.k = K(NAME)
    def st(self, idx, grp='1'):
        if str(self.opt.get('stamp')) == grp or (idx == 0 and self.opt.get('stamp')): return f's_memrealtime s[{64+2*idx}:{65+2*idx}]\n'
        return ''
    def stamp(self, idx, grp='1'):
        self.k(self.st(idx, grp))
        if grp == '1' and str(self.opt.get('stamp')) == '6' and idx in self.CL:
            j = self.CL.index(idx)
            self.k(f's_memrealtime s[{66+4*j}:{67+4*j}]\n s_memtime s[{68+4*j}:{69+4*j}]')
    CL = [1, 2, 3, 4, 10, 11, 14]
    def flush(self, n):
        k = self.k
        if not self.opt.get('stamp'): return
        k('s_waitcnt lgkmcnt(0)\n s_mov_b64 exec, 1')
        k(f's_lshl_b32 s60, s2, 3\n s_add_u32 s60, s60, s61\n s_lshl_b32 s60, s60, 6\n s_add_u32 s60, s60, {hex(STAMP_BASE)}')
        k('v_mov_b32 v1, 0')
        for i in range(n):
            k(f'v_mov_b32 v2, s{64+2*i}\n buffer_store_dword v2, v1, s[56:59], s60 offen offset:{4*i}')
        k('s_mov_b64 exec, -1')

def lo(k, d, s): k(f'v_lshlrev_b32 v{d}, 16, v{s}')
def hi(k, d, s): k(f'v_and_b32 v{d}, 0xffff0000, v{s}')
def cvt(k, d, a, b): k(f'v_cvt_pk_bf16_f32 v{d}, v{a}, v{b}')
def pk(k, op, d, a, b, c=None, mods=''):
    s = f'v_pk_{op}_f32 v[{d}:{d+1}], v[{a}:{a+1}], v[{b}:{b+1}]'
    if c is not None: s += f', v[{c}:{c+1}]'
    k(s + (' ' + mods if mods else ''))
def pks(k, op, d, a, b, c=None, neg=False, sc=True):
    if not sc:
        return pk(k, op, d, a, b, c, mods='neg_lo:[0,1] neg_hi:[0,1]' if neg else '')
    for i in range(2):
        if op == 'fma':
            k(f'v_fmac_f32 v{d+i}, v{a+i}, v{b+i}' if c == d else f'v_fma_f32 v{d+i}, v{a+i}, v{b+i}, v{c+i}')
        else: k(f"v_{'sub' if neg else op}_f32 v{d+i}, v{a+i}, v{b+i}")
def mfma(k, c, a, b, cin=None):
    k(f'v_mfma_f32_16x16x32_bf16 v[{c}:{c+3}], v[{a}:{a+3}], v[{b}:{b+3}], ' + (cin or f'v[{c}:{c+3}]'))

GC = 24
def gelu_consts(k):
    c0 = -2.0 * 0.7978845608028654 * L2E
    k(f'v_mov_b32 v24, {f32hex(c0*0.044715)}\n v_mov_b32 v25, {f32hex(c0*0.044715)}\n v_mov_b32 v26, {f32hex(c0)}\n v_mov_b32 v27, {f32hex(c0)}')
    k('v_mov_b32 v30, 1.0\n v_mov_b32 v31, 1.0')
def gelu_tiles(k, cs, t, sc=False):
    c0 = -2.0 * 0.7978845608028654 * L2E
    pairs = [(c + 2 * p, t + 4 * i + 2 * p) for i, c in enumerate(cs) for p in range(2)]
    if not NOROUND:
        for x, tt in pairs: cvt(k, tt, x, x + 1)
        for x, tt in pairs: lo(k, x, tt); hi(k, x + 1, tt)
    for x, tt in pairs: pks(k, 'mul', tt, x, x, sc=sc)
    for x, tt in pairs:
        if sc: k(f'v_fmaak_f32 v{tt}, v{tt}, v24, {f32hex(c0)}\n v_fmaak_f32 v{tt+1}, v{tt+1}, v24, {f32hex(c0)}')
        else: pk(k, 'fma', tt, tt, 24, 26)
    for x, tt in pairs: pks(k, 'mul', tt, tt, x, sc=sc)
    for x, tt in pairs: k(f'v_exp_f32 v{tt}, v{tt}\n v_exp_f32 v{tt+1}, v{tt+1}')
    for x, tt in pairs: pks(k, 'add', tt, tt, 30, sc=sc)
    for x, tt in pairs: k(f'v_rcp_f32 v{tt}, v{tt}\n v_rcp_f32 v{tt+1}, v{tt+1}')
    for x, tt in pairs: pks(k, 'mul', x, x, tt, sc=sc)

def rowsum16(k, regs):
    for sh in (8, 4, 2, 1):
        for r in regs: k(f'v_add_f32_dpp v{r}, v{r}, v{r} row_ror:{sh} row_mask:0xf bank_mask:0xf')
def xsum4(k, regs, t):
    for sw in ('16', '32'):
        for i, r in enumerate(regs): k(f'v_mov_b32 v{t+i}, v{r}')
        for i, r in enumerate(regs): k(f'v_permlane{sw}_swap_b32 v{r}, v{t+i}')
        for i, r in enumerate(regs): k(f'v_add_f32 v{r}, v{r}, v{t+i}')
def cmul(k, d, x, w):
    k(f'v_mul_f32 v{d}, v{x}, v{w}\n v_mul_f32 v{d+1}, v{x+1}, v{w}\n v_fmac_f32 v{d}, v{x+1}, v{w+2}\n v_fmac_f32 v{d+1}, v{x}, v{w+1}')

def poll(k, name, loads, regs, lanes=None, first_issued=False, wait0='s_waitcnt vmcnt(0)', nap=0):
    k(f's_mov_b32 s62, {POLL_LIMIT}')
    if lanes: k(lanes)
    if first_issued: k(f'{wait0}\n s_branch L_{name}_chk')
    k(f'L_{name}:')
    k(loads)
    k(f's_waitcnt vmcnt(0)\nL_{name}_chk:')
    k(f'v_cmp_ne_u32 vcc, v{TAG}, v{regs[0]}')
    for r in regs[1:]:
        k(f'v_cmp_ne_u32 s[54:55], v{TAG}, v{r}\n s_or_b64 vcc, vcc, s[54:55]')
    k(f's_cbranch_vccz L_{name}_ok\n' + (f's_sleep {nap}\n' if nap else '') + f's_sub_u32 s62, s62, 1\n s_cbranch_scc0 L_{name}\nL_{name}_ok:')
    if lanes: k('s_mov_b64 exec, -1')

def post(k, val, addr=29, tmp=23):
    k(f'v_mov_b32 v{tmp}, {val}\n ds_write_b32 v{addr}, v{tmp}')
def waitfor(k, name, off, n, val, t, base=22, sleep=True):
    k(f's_mov_b32 s62, {POLL_LIMIT*16}\nL_{name}:')
    if n == 4:
        k(f'ds_read_b128 v[{t}:{t+3}], v{base} offset:{off}\n s_waitcnt lgkmcnt(0)\n v_min3_u32 v{t}, v{t}, v{t+1}, v{t+2}\n v_min_u32 v{t}, v{t}, v{t+3}')
    else:
        k(f'ds_read_b32 v{t}, v{base} offset:{off}\n s_waitcnt lgkmcnt(0)')
    k(f'v_cmp_gt_u32 vcc, {val}, v{t}\n s_cbranch_vccz L_{name}_ok')
    if sleep: k(f's_sleep {int(sleep)}')
    k(f's_sub_u32 s62, s62, 1\n s_cbranch_scc0 L_{name}\nL_{name}_ok:')

def weave(lines, events):
    out = []; n = len(lines); ev = sorted(events, key=lambda e: e[0]); j = 0
    for i, l in enumerate(lines):
        while j < len(ev) and ev[j][0] * n <= i:
            out += [x.strip() for x in ev[j][1].split('\n') if x.strip()]; j += 1
        out.append(l)
    while j < len(ev):
        out += [x.strip() for x in ev[j][1].split('\n') if x.strip()]; j += 1
    return out

def sub(fn, *a):
    t = K('t'); fn(t, *a); return t.lines

NOROUND = False
def gen(opt):
    global NOROUND
    NOROUND = bool(opt.get('noround'))
    G = Gen(opt); k = G.k
    D = 8
    ZF = '' if opt.get('nosc1') else 'sc1'
    npf = int(opt.get('pfcode', 3))
    k(f"""
    s_cmp_ge_u32 s2, 256
    s_cbranch_scc1 L_end
    s_load_dwordx2 s[8:9], s[0:1], 0       ; x
    s_load_dwordx2 s[16:17], s[0:1], 64    ; w_in
    s_load_dwordx2 s[12:13], s[0:1], 120   ; ws
    s_load_dwordx8 s[36:43], s[0:1], 8
    s_load_dwordx4 s[44:47], s[0:1], 40
    s_load_dwordx8 s[48:55], s[0:1], 72
    s_load_dwordx2 s[26:27], s[0:1], 104   ; out
    v_lshrrev_b32 v1, 6, v0
    v_and_b32 v0, 63, v0
    v_readfirstlane_b32 s3, v1             ; wave
    s_lshr_b32 s30, s2, 3                  ; j
    s_and_b32 s29, s2, 1
    s_lshl_b32 s29, s29, 2                 ; 4*par
    s_and_b32 s31, s30, 3
    s_add_u32 s31, s31, s29
    s_lshr_b32 s35, s30, 3
    s_add_u32 s29, s29, s35
    s_and_b32 s35, s30, 7
    s_cmp_lt_u32 s30, 24
    s_cselect_b32 s31, s35, s31            ; tb&7
    s_cselect_b32 s29, s29, 3
    s_cmp_ge_u32 s30, 28
    s_cselect_b32 s29, 7, s29
    s_and_b32 s28, s2, 6
    s_lshl_b32 s28, s28, 2
    s_add_u32 s28, s28, s31
    s_min_u32 s31, s31, 6
    s_and_b32 s32, s3, 3
    v_and_b32 v8, 15, v0
    v_lshrrev_b32 v9, 4, v0
    v_lshlrev_b32 v10, 1, v9
    v_xor_b32 v10, v10, v8
    v_lshlrev_b32 v10, 4, v10
    v_mul_u32_u24 v11, 3584, v9
    v_add_u32 v10, v10, v11
    v_add_u32 v11, {4*3584}, v10
    v_xor_b32 v12, 128, v10
    v_add_u32 v12, {8*3584}, v12
    v_add_u32 v13, {4*3584}, v12
    s_mul_i32 s33, s32, {16*3584}
    s_lshl_b32 s34, s29, 8
    s_add_u32 s33, s33, s34
    s_add_u32 s33, s33, 1792
    s_lshl_b32 s34, s32, 12
    v_lshrrev_b32 v21, 3, v0
    v_and_b32 v20, 7, v0
    v_lshrrev_b32 v5, 1, v21
    v_xor_b32 v20, v20, v5
    v_lshlrev_b32 v20, 4, v20
    v_mul_u32_u24 v6, 896, v21
    v_add_u32 v6, v6, v20
    v_xor_b32 v7, 64, v6
    v_add_u32 v4, {8*896}, v7
    s_lshl_b32 s24, s28, 2
    s_add_u32 s24, s24, s32
    s_mul_i32 s24, s24, {16*896}
    s_lshl_b32 s25, s32, 11
    s_add_u32 s25, s25, {L_X}
    s_mov_b32 s10, {2048*896}
    s_mov_b32 s11, 0x20000
    s_mov_b32 s14, {hex(WS_END)}
    s_mov_b32 s15, 0x20000
    s_mov_b32 s18, {448*3584}
    s_mov_b32 s19, 0x20000
    s_mov_b32 s5, {hex(WS_EP)}
    s_cmp_eq_u32 s29, 7
    s_waitcnt lgkmcnt(0)
    """)
    if opt.get('stamp'):
        k('s_mov_b32 s61, s3'); G.stamp(0); srd(k, 56, 12, 13, 0x4000000)
    k(f"""
    s_load_dword s4, s[12:13], s5
    s_cbranch_scc1 L_helper
    s_cmp_lt_u32 s3, 4
    s_cbranch_scc1 L_A
    """)
    k(f"""
    v_mul_u32_u24 v1, 896, v8
    s_lshl_b32 s20, s29, 7
    s_add_u32 s20, s20, s24
    s_mov_b64 exec, 0xffff
    buffer_load_dword v209, v1, s[8:11], s20 offen
    s_mov_b64 exec, -1
    s_mul_i32 s20, s28, 7
    s_add_u32 s20, s20, s29                ; m
    s_lshr_b32 s21, s32, 1                 ; c2
    s_and_b32 s22, s32, 1                  ; hf
    s_lshl_b32 s23, s20, 2
    s_load_dword s30, s[46:47], s23
    s_lshl_b32 s20, s20, 1
    s_add_u32 s20, s20, s21                ; channel
    s_lshl_b32 s23, s20, 9
    s_lshl_b32 s35, s22, 8
    s_add_u32 s23, s23, s35
    v_lshlrev_b32 v1, 1, v0
    v_add_u32 v1, s23, v1
    """)
    PRM = 200
    for c in range(2):
        for i in range(4): k(f'global_load_ushort v{PRM+4*c+i}, v1, s[{36+2*i}:{37+2*i}] offset:{128*c}')
    k(f"""
    s_lshl_b32 s23, s20, 1
    v_mov_b32 v1, s23
    global_load_ushort v{PRM+8}, v1, s[44:45]
    """)
    G.stamp(1, '3')
    k('s_branch L_B')
    def w2parts(j):
        h = f's_add_u32 s35, s31, {j}\n s_cmp_ge_u32 s35, 7\n s_cselect_b32 s63, 7, 0\n s_sub_u32 s35, s35, s63\n s_lshl_b32 s63, s35, 7\n s_add_u32 s63, s63, s24\n'
        p = [h + f's_add_u32 m0, s25, {j * 8192}\n s_mul_i32 s35, s35, {64*3584}\n buffer_load_dwordx4 v6, s[8:11], s63 offen lds\n',
             f's_add_u32 m0, s25, {j * 8192 + 1024}\n s_add_u32 s35, s35, s33\n buffer_load_dwordx4 v4, s[8:11], s63 offen lds\n']
        for q in range(4):
            p.append(f's_add_u32 m0, s34, {(j & 3) * 16384 + q * 1024}\n buffer_load_dwordx4 v{10+q}, s[16:19], s35 offen lds\n')
        return p
    def w2stage(j): return ''.join(w2parts(j))
    def common2():
        k(f"""
        v_lshlrev_b32 v2, 4, v0
        v_mov_b32 v22, {L_CNT}
        s_lshl_b32 s35, s3, 2
        v_add_u32 v29, s35, v22
        """)
    tagcalc = f's_waitcnt lgkmcnt(0)\n s_mul_i32 s4, s4, 0x9E3779B1\n s_add_u32 s4, s4, 0x7F4A7C15\n v_mov_b32 v{TAG}, s4'
    def w1setup(r):
        k(f"""
        v_lshrrev_b32 v{r}, 2, v0
        v_mul_u32_u24 v{r}, 3584, v{r}
        v_lshrrev_b32 v{r+1}, 4, v0
        v_and_b32 v{r+1}, 2, v{r+1}
        v_xor_b32 v{r+1}, v{r+1}, v0
        v_and_b32 v{r+1}, 3, v{r+1}
        v_lshl_add_u32 v{r}, v{r+1}, 4, v{r}
        v_add_u32 v{r+1}, {16*3584}, v{r}
        s_lshl_b32 s38, s29, 8
        s_lshl_b32 s35, s32, 6
        s_add_u32 s38, s38, s35                ; z1 column base
        s_lshl_b32 s40, s32, 11
        """)
    def w1off(i): return [3, 0, 1, 2][(i % 8) >> 1] * 16384 + (i & 1) * 8192
    def w1dma(i, r):
        off = w1off(i)
        return (f's_mul_i32 s35, s41, {32*3584}\n s_add_u32 s35, s35, s38\n s_add_u32 m0, s40, {off}\n s_add_u32 s41, s41, 1\n'
                f'buffer_load_dwordx4 v{r}, s[16:19], s35 offen lds\n s_add_u32 m0, s40, {off+1024}\n s_cmp_eq_u32 s41, 14\n'
                f'buffer_load_dwordx4 v{r+1}, s[16:19], s35 offen lds\n s_cselect_b32 s41, 0, s41\n')
    k('L_A:')
    k(w2stage(0)); k(w2stage(1))
    if opt.get('prio', '1') != '0': k(f"s_setprio {opt.get('prio', 1)}")
    srd(k, 36, 50, 51, 4096)
    k('v_lshlrev_b32 v1, 1, v8\n s_lshl_b32 s35, s28, 7')
    BSP = [228, 229, 230, 231]
    for tt in range(4): k(f'buffer_load_ushort v{BSP[tt]}, v1, s[36:39], s35 offen offset:{32*tt}')
    common2()
    WA = 168
    k(f"""
    v_mov_b32 v23, 0
    ds_write_b32 v29, v23
    ds_write_b32 v29, v23 offset:16
    v_mov_b32 v23, 6
    ds_write_b32 v29, v23 offset:32
    v_lshrrev_b32 v14, 1, v8
    v_xor_b32 v14, v14, v9
    v_lshlrev_b32 v14, 4, v14
    v_lshl_add_u32 v14, v8, 7, v14
    v_add_u32 v14, s25, v14
    v_xor_b32 v15, 64, v14
    v_lshrrev_b32 v16, 2, v0
    v_and_b32 v17, 7, v16
    v_lshlrev_b32 v17, 5, v17
    v_and_b32 v16, 3, v16
    v_lshl_add_u32 v16, v9, 3, v16         ; 8g + r
    v_and_b32 v19, 3, v0
    v_lshlrev_b32 v18, 3, v19
    v_lshl_add_u32 v18, v16, 8, v18
    """)
    for ft in range(8): k(f'v_xor_b32 v{WA+ft}, {32*ft}, v17\n v_add_u32 v{WA+ft}, v{WA+ft}, v18')
    gelu_consts(k)
    w1setup(224)
    k(f"""
    v_lshlrev_b32 v226, 6, v16
    v_lshl_add_u32 v226, v19, 3, v226
    v_and_b32 v227, 1, v9
    v_lshl_add_u32 v226, v227, 5, v226     ; row*64 + (p ^ (g&1))*32 + 8c  (p = 0)
    v_xor_b32 v227, 32, v226
    v_add_u32 v226, s40, v226
    v_add_u32 v227, s40, v227
    s_lshl_b32 s41, s31, 1
    s_add_u32 s41, s41, 8
    s_cmp_ge_u32 s41, 14
    s_cselect_b32 s35, 14, 0
    s_sub_u32 s41, s41, s35                ; global k-step of the ninth step of the z1 stream
    s_lshl_b32 s35, s32, 2
    v_add_u32 v5, s35, v22
    """)
    XF, WF, ACC, T, CK1 = 32, 88, 120, 152, 40
    G.stamp(14, '2')
    k('s_waitcnt vmcnt(10) lgkmcnt(0)')
    G.stamp(15, '2')
    k(tagcalc + '\n s_barrier')
    G.stamp(1); G.stamp(1, '2')
    def wread(gi):
        ks = gi >> 1
        for f in range(4):
            for hh in range(2):
                r = WF + (gi & 1) * 16 + f * 4 + hh * 2
                k(f'ds_read_b64_tr_b16 v[{r}:{r+1}], v{WA + 4 * (gi & 1) + f} offset:{((ks >> 1) & 3) * 16384 + (ks & 1) * 8192 + hh * 1024}')
    def xread(i):
        k(f'ds_read_b128 v[{XF+4*(i&1)}:{XF+4*(i&1)+3}], v{14 + (i & 1)} offset:{(i >> 1) * 8192}')
    xread(0); wread(0)
    IL = opt.get('il', '1') == '1'
    def wread1(gi, f):
        ks = gi >> 1
        for hh in range(2):
            r = WF + (gi & 1) * 16 + f * 4 + hh * 2
            k(f'ds_read_b64_tr_b16 v[{r}:{r+1}], v{WA + 4 * (gi & 1) + f} offset:{((ks >> 1) & 3) * 16384 + (ks & 1) * 8192 + hh * 1024}')
    for gi in range(28):
        ks = gi >> 1; j = gi >> 2
        if gi % 4 == 3:
            k('s_waitcnt lgkmcnt(0)' + (' vmcnt(0)' if j == 0 else ''))
            if j < 6: G.stamp(2 + 2 * j, '2')
            k('s_barrier')
            if j < 6:
                G.stamp(3 + 2 * j, '2'); xread(ks + 1)
                if not IL: wread(gi + 1)
        elif not IL:
            nx = 0
            if gi % 4 == 0: xread(ks + 1); nx = 1
            wread(gi + 1); k(f's_waitcnt lgkmcnt({8 + nx})')
        for f in range(4):
            if IL and gi % 4 != 3:
                if opt.get('w1', '1') != '1': k(f's_waitcnt lgkmcnt({6 + (1 if gi % 4 == 1 and f < 3 else 0)})')
                elif f % 2 == 0: k(f's_waitcnt lgkmcnt({4 + (1 if gi % 4 == 1 and f == 0 else 0)})')
            mfma(k, ACC + 16 * (gi & 1) + 4 * f, XF + 4 * (ks & 1), WF + (gi & 1) * 16 + f * 4, '0' if ks == 0 else None)
            if IL and gi < 27: wread1(gi + 1, f)
            if IL and gi % 4 == 0 and f == 3: xread(ks + 1)
    G.stamp(2)
    S, Q = 88, 92
    def z2epi(t):
        for h in range(2):
            cs = [ACC + 16 * h + 4 * f for f in range(4)]
            gelu_tiles(t, cs, T)
            prs = [(c + 2 * p, T + 2 * i + p) for i, c in enumerate(cs) for p in range(2)]
            for x, tt in prs: cvt(t, tt, x, x + 1)
            for x, tt in prs: lo(t, x, tt); hi(t, x + 1, tt)
            for i, c in enumerate(cs):
                for p in range(2):
                    if h == 0 and i == 0: pk(t, 'mul', Q + 2 * p, c + 2 * p, c + 2 * p)
                    else: pk(t, 'fma', Q + 2 * p, c + 2 * p, c + 2 * p, Q + 2 * p)
                    if h == 0 and i == 0: pass
                    elif h == 0 and i == 1: pk(t, 'add', S + 2 * p, ACC + 2 * p, c + 2 * p)
                    else: pk(t, 'add', S + 2 * p, S + 2 * p, c + 2 * p)
    z2epi(k)
    rowsum16(k, list(range(S, S + 8)))
    k(f"""
    v_cmp_eq_u32 vcc, 1, v19
    v_cndmask_b32 v{T}, v{S}, v{S+1}, vcc
    v_cndmask_b32 v{T+2}, v{Q}, v{Q+1}, vcc
    v_cmp_eq_u32 vcc, 2, v19
    v_cndmask_b32 v{T}, v{T}, v{S+2}, vcc
    v_cndmask_b32 v{T+2}, v{T+2}, v{Q+2}, vcc
    v_cmp_eq_u32 vcc, 3, v19
    v_cndmask_b32 v{T}, v{T}, v{S+3}, vcc
    v_cndmask_b32 v{T+2}, v{T+2}, v{Q+3}, vcc
    v_mov_b32 v{T+1}, v{TAG}
    v_mov_b32 v{T+3}, v{TAG}
    v_lshl_add_u32 v18, v9, 2, v19
    v_lshlrev_b32 v18, 4, v18              ; row*16
    s_lshl_b32 s24, s28, 2
    s_add_u32 s24, s24, s32
    s_lshl_b32 s24, s24, 11
    s_add_u32 s24, s24, {hex(WS_ST)}
    s_lshl_b32 s35, s29, 8
    s_add_u32 s35, s35, s24
    """)
    if opt.get('sent'): waitfor(k, 'wbs', 16, 4, 1, 32, sleep=False)
    k(f"""
    s_mov_b32 exec_lo, 0x000f000f
    s_mov_b32 exec_hi, 0x000f000f
    buffer_store_dwordx4 v[{T}:{T+3}], v18, s[12:15], s35 offen sc1
    s_mov_b64 exec, -1
    v_min_u32 v18, 2, v9
    v_lshlrev_b32 v18, 8, v18
    v_lshl_add_u32 v18, v8, 4, v18
    """)
    G.stamp(3)
    def spdma(j, dyn=False, slot=0):
        vv, off = ((10, 0), (12, 1024), (11, 8192), (13, 9216))[j]
        t = f's_add_u32 m0, s43, {off + slot * 16384}\n buffer_load_dwordx4 v{vv}, s[8:11], s42 offen lds\n'
        if j == 3:
            t += 's_add_u32 s42, s42, 256\n'
            if dyn: t += 's_lshr_b64 s[40:41], s[40:41], 4\n s_and_b32 s43, s40, 15\n s_lshl_b32 s43, s43, 3\n s_add_u32 s43, s43, s32\n s_lshl_b32 s43, s43, 11\n'
        return t
    A1, FR, ZP = 176, 64, 208
    NR = int(opt.get('nr', 16))
    WR = ([168, 172] + list(range(232, 256, 4)) + list(range(176, 208, 4)))[:NR]
    srd(k, 44, 52, 53, 896 * 896)
    k(f"""
    v_and_b32 v3, 6, v21
    v_xor_b32 v3, v3, v0
    v_and_b32 v3, 7, v3
    v_lshlrev_b32 v3, 4, v3
    v_mul_u32_u24 v1, 896, v21
    v_add_u32 v3, v3, v1
    s_lshl_b32 s35, s29, 7
    s_mul_i32 s30, s32, {8*896}
    s_add_u32 s30, s30, s35
    """)
    def wold(j):
        i = 28 - NR + j; blk, q = PI[i // 4], i % 4
        return f's_add_u32 s35, s30, {(blk*128 + 32*q)*896}\n buffer_load_dwordx4 v[{WR[j]}:{WR[j]+3}], v3, s[44:47], s35 offen'
    WO1 = opt.get('wo1', 'z1')
    if WO1 == 'z1':
        for j in range(min(NR, 8)): k(wold(j))
    k(f"""
    s_lshl_b32 s35, s32, 11
    v_subrev_u32 v14, s35, v14
    v_subrev_u32 v15, s35, v15
    """)
    srd(k, 8, 48, 49, 0x800000)
    k(f"""
    v_lshl_add_u32 v10, v21, 12, v20
    v_add_u32 v11, 128, v10
    v_xor_b32 v12, 64, v10
    v_add_u32 v12, 0x8000, v12
    v_add_u32 v13, 128, v12
    s_lshl_b32 s42, s28, 2
    s_add_u32 s42, s42, s32
    s_lshl_b32 s42, s42, 16                ; (64*tb + 16*a)*4096
    s_lshl_b32 s43, s32, 11
    """)
    def z1read(i):
        b = FR + (i & 1) * 24
        for p in range(2):
            for hh in range(2):
                k(f'ds_read_b64_tr_b16 v[{b+4*p+2*hh}:{b+4*p+2*hh+1}], v{226 + p} offset:{w1off(i) + 256*hh}')
        for tt in range(4):
            r = b + 8 + 4 * tt
            k(f'ds_read_b128 v[{r}:{r+3}], v{14 + (i & 1)} offset:{(i >> 1) * 8192 + tt * 2048}')
    G.stamp(1, '5')
    if not opt.get('sent'): waitfor(k, 'wb1', 16, 1, 1, 32, base=5, sleep=False)
    G.stamp(2, '5')
    PL = 32; S, Q = 44, 48
    NP = int(opt.get('np', 7))
    stload = f'buffer_load_dwordx4 v[{PL}:{PL+3}], v2, s[12:15], s24 offen sc1\n buffer_load_dwordx4 v[{PL+4}:{PL+7}], v18, s[12:15], s24 offen offset:1024 sc1'
    def normalise():
        poll(k, 'pst', stload, [PL + 1, PL + 3, PL + 5, PL + 7], first_issued=True, wait0='s_waitcnt vmcnt(4)')
        G.stamp(5)
        k(f"""
        v_cmp_gt_u32 vcc, 3, v9
        v_cndmask_b32 v{PL+4}, 0, v{PL+4}, vcc
        v_cndmask_b32 v{PL+6}, 0, v{PL+6}, vcc
        v_add_f32 v40, v{PL}, v{PL+4}
        v_add_f32 v41, v{PL+2}, v{PL+6}
        """)
        xsum4(k, [40, 41], 42)
        k(f"""
        v_mul_f32 v40, {f32hex(1/896)}, v40
        v_mul_f32 v41, {f32hex(1/896)}, v41
        v_fma_f32 v41, -v40, v40, v41
        v_max_f32 v41, 0, v41
        """)
        cvt(k, 40, 40, 41); hi(k, 41, 40); lo(k, 40, 40)
        k(f'v_add_f32 v41, {f32hex(1e-5)}, v41')
        cvt(k, 41, 41, 41); lo(k, 41, 41)
        k('v_sqrt_f32 v41, v41')
        cvt(k, 41, 41, 41); lo(k, 41, 41)
        k('v_rcp_f32 v41, v41\n v_lshlrev_b32 v53, 4, v9')
        for r in range(4):
            k(f'ds_bpermute_b32 v{S+r}, v53, v40 offset:{4*r}\n ds_bpermute_b32 v{Q+r}, v53, v41 offset:{4*r}')
        k(f"""
        s_lshl_b32 s24, s29, 6
        s_lshl_b32 s25, s28, 1
        s_add_u32 s24, s24, s25
        s_lshr_b32 s25, s32, 1
        s_add_u32 s24, s24, s25
        s_lshl_b32 s24, s24, 13
        s_and_b32 s25, s32, 1
        s_lshl_b32 s25, s25, 9
        s_add_u32 s24, s24, s25
        s_add_u32 s25, s24, 4096
        v_lshrrev_b32 v53, 1, v9
        v_lshlrev_b32 v53, 8, v53
        v_lshl_add_u32 v53, v8, 4, v53
        v_and_b32 v54, 1, v9
        v_lshl_add_u32 v53, v54, 10, v53
        s_waitcnt lgkmcnt(0)
        """)
        for h in range(2):
            cs = [ACC + 16 * h + 4 * f for f in range(4)]
            prs = [(c + 2 * p, T + 8 * h + 2 * i + p, p) for i, c in enumerate(cs) for p in range(2)]
            for x, t, p in prs: pks(k, 'add', x, x, S + 2 * p, neg=True, sc=bool(opt.get('sca')))
            for x, t, p in prs: cvt(k, t, x, x + 1)
            for x, t, p in prs: lo(k, x, t); hi(k, x + 1, t)
            for x, t, p in prs: pks(k, 'mul', x, x, Q + 2 * p, sc=bool(opt.get('sca')))
            for x, t, p in prs: cvt(k, t, x, x + 1)
            for pr in range(2):
                o = T + 8 * h + 4 * pr
                k(f'v_permlane16_swap_b32 v{o}, v{o+2}\n v_permlane16_swap_b32 v{o+1}, v{o+3}')
            for pr in range(2):
                o = T + 8 * h + 4 * pr
                k(f'buffer_store_dwordx4 v[{o}:{o+3}], v53, s[12:15], s{24+h} offen offset:{2048*pr} sc1')

    CK1 = 56
    posts = {3: 5, 7: 6, 9: 7, 11: 8}; checks = {6: 5, 8: 6, 12: 7}
    pre = {6: [(0, 0), (0, 1)], 7: [(0, 2), (0, 3)], 8: [(1, 0), (1, 1)], 9: [(1, 2), (1, 3)], 10: [(2, 0), (2, 1)], 11: [(2, 2), (2, 3)], 12: [(3, 0), (3, 1)], 13: [(3, 2), (3, 3)]}
    assert NP == 7
    spins = []
    def sub2(fn, *a):
        n0 = len(k.lines); fn(*a); r = k.lines[n0:]; del k.lines[n0:]; return r
    z1read(0)
    for i in range(14):
        if i in checks: k(f'ds_read_b128 v[{CK1}:{CK1+3}], v22')
        if i < 13:
            if i == 7: k('s_waitcnt vmcnt(14)')
            if IL: k('s_waitcnt lgkmcnt(0)')
            else: z1read(i + 1); k('s_waitcnt lgkmcnt(8)')
        else:
            k('s_waitcnt lgkmcnt(0)'); post(k, 9)
        rd = sub2(z1read, i + 1) if (IL and i < 13) else []
        if i in posts: post(k, posts[i])
        b = FR + (i & 1) * 24
        if i < 13: G.stamp(3 + i, '5')
        for p in range(2):
            for tt in range(4):
                mfma(k, A1 + (p * 4 + tt) * 4, b + 4 * p, b + 8 + 4 * tt, '0' if i == 0 else None)
                for _ in range(2):
                    if rd: k(rd.pop(0))
                if p == 0 and i in checks:
                    k([f'v_min3_u32 v{CK1}, v{CK1}, v{CK1+1}, v{CK1+2}', f'v_min_u32 v{CK1}, v{CK1}, v{CK1+3}', f'v_cmp_gt_u32 vcc, {checks[i]}, v{CK1}',
                       f's_cbranch_vccnz L_z1_spin{i}\nL_z1_ok{i}:'][tt])
            if p == 0 and i < 6: k(w1dma(8 + i, 224))
            if i in pre: st, j = pre[i][p]; k(spdma(j, slot=PI[st]))
        if i in checks: spins.append((f'L_z1_spin{i}', f'L_z1_ok{i}', CK1, 0, checks[i]))
        if WO1 == 'late' and i >= 11:
            for j in range(*{11: (0, 3), 12: (3, 6), 13: (6, 8)}[i]): k(wold(j))
        if i == NP - 2: k(stload)
        if i == NP:
            G.stamp(4); normalise(); G.stamp(6)
        if i == NP + 3:
            k(f"""
            s_lshl_b32 s24, s29, 11
            s_add_u32 s24, s24, {hex(WS_FZ)}
            s_lshl_b32 s35, s28, 6
            s_lshl_b32 s25, s32, 2
            s_add_u32 s35, s35, s25
            v_mov_b32 v53, s35
            s_waitcnt vmcnt(6)
            s_mov_b64 exec, 1
            buffer_store_dword v{TAG}, v53, s[12:15], s24 offen sc1
            s_mov_b64 exec, -1
            """)
            G.stamp(7)
    waitfor(k, 'wa9', 0, 4, 9, 32, sleep=False)
    def z1pre(t):
        for h in range(2):
            cs = [A1 + 16 * h + 4 * f for f in range(4)]
            gelu_tiles(t, cs, 64, sc=bool(opt.get('sca')))
            for tt in range(4):
                for p in range(2): cvt(t, ZP + 4 * tt + 2 * h + p, cs[tt] + 2 * p, cs[tt] + 2 * p + 1)
    FZE = opt.get('fze', '0') == '1' and not opt.get('bl')
    fzload = 'buffer_load_dwordx4 v[160:163], v19, s[12:15], s24 offen sc1'
    ev = [(i / 20.0, spdma(i % 4, slot=PI[4 + i // 4])) for i in range(12)]
    if WO1 == 'pre': ev += [(0.62 + 0.045 * j, wold(j)) for j in range(min(NR, 8))]
    if FZE: ev.append((float(opt.get('fzp', 0.75)), 's_cmp_lg_u32 s3, 0\n s_cbranch_scc1 L_fz0\n s_mov_b32 exec_hi, 0\n' + fzload + '\n s_mov_b32 exec_hi, -1\nL_fz0:'))
    k('v_lshlrev_b32 v19, 6, v0')
    k.lines += weave(sub(z1pre) if int(opt.get('peel', 0)) == 0 else [], ev)
    srd(k, 16, 12, 13, SZ_Z)
    ACC2, W, Z, CK = 32, 64, 96, 160
    k(f"""
    v_lshlrev_b32 v19, 6, v0
    s_lshl_b32 s33, s29, 19
    s_lshl_b32 s35, s32, 11
    s_add_u32 s34, s33, s35                ; fb*64*8192 + w*2048
    v_lshrrev_b32 v20, 1, v8
    v_xor_b32 v20, v20, v9
    v_lshlrev_b32 v20, 4, v20
    v_lshl_add_u32 v20, v8, 7, v20
    v_xor_b32 v21, 64, v20
    v_add_u32 v17, {PI[0]*16384}, v20
    v_add_u32 v18, {PI[0]*16384}, v21
    v_add_u32 v14, 8192, v2
    v_add_u32 v15, 16384, v2
    v_add_u32 v16, 24576, v2
    s_mov_b32 s38, {hex(PI_WORD)}
    s_mov_b32 s39, {hex(PI_WORD)}
    s_mov_b32 s36, 10                      ; 10 + stage
    """)
    ZV = [2, 14, 15, 16]
    for tt in range(4):
        lo(k, BSP[tt], BSP[tt])
        for ft in range(2):
            for r in range(4): k(f'v_mov_b32 v{ACC2+(ft*4+tt)*4+r}, v{BSP[tt]}')
    for j in range(8, NR): k(wold(j))
    G.stamp(8)
    k('s_cmp_lg_u32 s3, 0\n s_cbranch_scc1 L_nofz')
    poll(k, 'pfz', fzload, [CK, CK + 1, CK + 2, CK + 3], lanes='s_mov_b32 exec_hi, 0', nap=int(opt.get('nap', 1)), first_issued=FZE)
    if FZE:
        k('v_mov_b32 v23, 7\n ds_write_b32 v22, v23 offset:32\nL_nofz:')
        waitfor(k, 'wfz', 32, 1, 7, CK, sleep=False)
    else:
        k('L_nofz:\n s_waitcnt vmcnt(0)')
        post(k, 10)
        waitfor(k, 'wa10', 0, 4, 10, CK, sleep=False)
    G.stamp(9)
    adv = f's_add_u32 s34, s34, {4*8192}'
    def zld(n, ft):
        r = Z + (n % D) * 8 + ft * 4
        k(f'buffer_load_dwordx4 v[{r}:{r+3}], v{ZV[n%4]}, s[16:19], s34 offen offset:{1024*ft} {ZF}')
    for n in range(D):
        zld(n, 0); zld(n, 1)
        if n % 4 == 3: k(adv)
        if FZE and n == 1:
            k('s_waitcnt vmcnt(4)'); post(k, 10)
    if FZE: waitfor(k, 'wa10', 0, 4, 10, CK, sleep=False)
    def w2read(n, tt):
        ks = n & 3
        r = W + (n & 1) * 16 + tt * 4
        k(f'ds_read_b128 v[{r}:{r+3}], v{17 + (ks & 1)} offset:{(ks >> 1) * 8192 + tt * 2048}')
    for tt in range(4): w2read(0, tt)
    G.stamp(10)
    def z1epi(t):
        for h in range(2):
            for q in range(2):
                cs = [A1 + 16 * h + 8 * q + 4 * f for f in range(2)]
                gelu_tiles(t, cs, 232 + 8 * q, sc=True)
                for f in range(2):
                    for p in range(2): cvt(t, ZP + 4 * (2 * q + f) + 2 * h + p, cs[f] + 2 * p, cs[f] + 2 * p + 1)
    extra = sub(z1epi) if int(opt.get('peel', 0)) else []
    NPEEL = int(opt.get('peel', 0)); per = -(-len(extra) // max(NPEEL * 64, 1))
    SELF = not opt.get('bl')
    WPK = int(opt.get('wpk', 0))
    def wodma(i):
        blk, q = PI[i // 4], i % 4
        return f's_add_u32 m0, s43, {blk*16384 + 4096*q}\n s_add_u32 s35, s42, {(blk*128 + 32*q)*896}\n buffer_load_dwordx4 v10, s[8:11], s35 offen lds'
    def body(name, ride, last, dma=(False, False)):
        for n in range(8):
            k(f's_waitcnt vmcnt({(D-1)*2 - (2*n - min(WPK*n, 0 if not last else WPK*n) if last else 0)}) lgkmcnt(0)')
            fill = [[] for _ in range(8)]
            if n % 4 == 0:
                fill[4] = ['ds_write_b32 v29, v23']
                if opt.get('stamp') == '4':
                    for it in range(8):
                        st = 2 * it + n // 4
                        if st: fill[5].append(f's_cmp_lg_u32 s36, {10+st}\n s_cbranch_scc1 L_t{name}{n}_{it}\n s_memrealtime s[{64+2*st}:{65+2*st}]\nL_t{name}{n}_{it}:')
            if not (last and n > 3):
                if SELF:
                    if n % 4 == 1:
                        fill[4] = ['v_add_u32 v23, 1, v23']
                        fill[5] = ['s_lshr_b64 s[38:39], s[38:39], 4\n s_and_b32 s37, s38, 15\n s_lshl_b32 s37, s37, 14']
                    if n % 4 == 2:
                        fill[4] = [f'ds_read_b128 v[{CK}:{CK+3}], v22', f'ds_read_b128 v[{CK+4}:{CK+7}], v22 offset:16']
                        fill[5] = ['v_add_u32 v17, s37, v20']
                    if n % 4 == 3:
                        fill[4] = [f'v_min3_u32 v{CK}, v{CK}, v{CK+1}, v{CK+2}', f'v_min3_u32 v{CK+4}, v{CK+4}, v{CK+5}, v{CK+6}', 'v_add_u32 v18, s37, v21']
                        fill[5] = [f'v_min3_u32 v{CK}, v{CK}, v{CK+3}, v{CK+7}', f'v_min_u32 v{CK}, v{CK}, v{CK+4}']
                        fill[6] = [f'v_cmp_gt_u32 vcc, s36, v{CK}']
                        fill[7] = [f's_cbranch_vccnz L_{name}_spin{n}\nL_{name}_ok{n}:']
                        spins.append((f'L_{name}_spin{n}', f'L_{name}_ok{n}', CK, 'both', 's36'))
                    if WO1 == 'p0' and name == 'pa0' and n < 4: fill[3] = [wold(2 * n)]; fill[6] += [wold(2 * n + 1)]
                    if dma[n // 4]:
                        d = spdma(n % 4, dyn=True).strip().split('\n')
                        dp = int(opt.get('dpos', 6))
                        fill[dp - 1] = fill[dp - 1] + [d[0]]; fill[dp] = [d[1]] + fill[dp]
                        if len(d) > 2: fill[7] = ['\n'.join(d[2:])] + fill[7] if dp < 7 else fill[7] + ['\n'.join(d[2:])]
                elif n % 4 == 1:
                    fill[4] = [f'ds_read_b128 v[{CK}:{CK+3}], v22 offset:32', 'v_add_u32 v23, 1, v23']
                    fill[5] = ['s_lshr_b64 s[38:39], s[38:39], 4\n s_and_b32 s37, s38, 15\n s_lshl_b32 s37, s37, 14']
                if n % 4 == 2 and not SELF:
                    fill[4] = [f'v_min3_u32 v{CK}, v{CK}, v{CK+1}, v{CK+2}', 's_sub_u32 s35, s36, 9']
                    fill[5] = [f'v_min_u32 v{CK}, v{CK}, v{CK+3}', 'v_add_u32 v17, s37, v20']
                    fill[6] = [f'v_cmp_gt_u32 vcc, s35, v{CK}']
                    fill[7] = [f's_cbranch_vccnz L_{name}_spin{n}\nL_{name}_ok{n}:']
                    spins.append((f'L_{name}_spin{n}', f'L_{name}_ok{n}', CK, 32, 's35'))
                if n % 4 == 3 and not SELF: fill[4] += ['v_add_u32 v18, s37, v21']
            for ft in range(2):
                for tt in range(4):
                    mfma(k, ACC2 + (ft * 4 + tt) * 4, Z + (n % D) * 8 + ft * 4, W + (n & 1) * 16 + tt * 4)
                    if ft == 0 and not (last and n == 7): w2read(n + 1, tt)
                    for x in fill[4 * ft + tt]: k(x)
                    if ride:
                        for _ in range(per):
                            if extra: k(extra.pop(0))
                    if not last and 4 * ft + tt == int(opt.get('zpos', 3)): zld(n, 0)
                if not last and ft == 1: zld(n, 1)
            if n % 4 == 3: k(adv + '\n s_add_u32 s36, s36, 1')
    if SELF:
        k(f"""
        s_lshl_b32 s43, s32, 11
        s_add_u32 s43, s43, {PI[7]*16384}
        s_mov_b32 s40, {hex(((PI_WORD << 4) | PI[7]) & 0xffffffff)}
        s_mov_b32 s41, {PI[7]}
        """)
        for it in range(max(NPEEL, 1)): body(f'pa{it}', True, False, (it > 0, True))
        k('L_p2a:')
        body('pd', False, False, (True, True))
        k('s_cmp_lt_u32 s36, 20\n s_cbranch_scc1 L_p2a')
    else:
        for it in range(NPEEL): body(f'pa{it}', True, False)
    assert not extra
    k('L_p2:')
    body('pb', False, False)
    k('s_cmp_lt_u32 s36, 24\n s_cbranch_scc1 L_p2')
    srd(k, 8, 52, 53, 896 * 896)
    k(f"""
    v_lshrrev_b32 v11, 3, v0
    v_and_b32 v10, 6, v11
    v_and_b32 v12, 7, v0
    v_xor_b32 v10, v10, v12
    v_lshlrev_b32 v10, 4, v10
    v_mul_u32_u24 v11, 896, v11
    v_add_u32 v10, v10, v11
    s_lshl_b32 s35, s29, 7
    s_mul_i32 s42, s32, {8*896}
    s_add_u32 s42, s42, s35
    s_lshl_b32 s43, s32, 10
    """)
    UZ = A1 if NR <= 8 else 96
    if NR > 8: extra += ['s_nop 0'] * 0
    zun = []
    for i in range(16): zun += [f'v_lshlrev_b32 v{UZ+2*i}, 16, v{ZP+i}', f'v_and_b32 v{UZ+2*i+1}, 0xffff0000, v{ZP+i}']
    extra += ([''] * 32 if NR > 8 else []) + zun
    per = 1
    k(f"""
    s_mul_i32 s24, s28, {4*28}
    s_lshl_b32 s25, s29, 2
    s_add_u32 s25, s25, s32                ; kk
    s_add_u32 s24, s24, s25
    s_lshl_b32 s24, s24, 10
    s_add_u32 s24, s24, {hex(WS_H)}
    """)
    body('pc', True, True)
    k('s_branch L_p2_done')
    for a, b, c, off, val in spins:
        k(f"""
{a}:
        s_mov_b32 s62, {POLL_LIMIT*16}
{a}b:
        ds_read_b128 v[{c}:{c+3}], v22 offset:{0 if off == 'both' else off}
        {f'ds_read_b128 v[{c+4}:{c+7}], v22 offset:16' if off == 'both' else ''}
        s_waitcnt lgkmcnt(0)
        {f'v_min3_u32 v{c+4}, v{c+4}, v{c+5}, v{c+6}' if off == 'both' else ''}
        {f'v_min3_u32 v{c}, v{c}, v{c+4}, v{c+7}' if off == 'both' else ''}
        v_min3_u32 v{c}, v{c}, v{c+1}, v{c+2}
        v_min_u32 v{c}, v{c}, v{c+3}
        v_cmp_gt_u32 vcc, {val}, v{c}
        s_cbranch_vccz {b}
        s_sub_u32 s62, s62, 1
        s_cbranch_scc0 {a}b
        s_branch {b}
        """)
    k('L_p2_done:')
    G.stamp(11); G.stamp(1, '7'); G.stamp(1, '9')
    for tt in range(4):
        o = (96 + 16 * tt) if NR <= 8 else (128 + 12 * tt if tt < 2 else 64 + 12 * (tt - 2))
        its = [(ACC2 + (ft * 4 + tt) * 4 + 2 * p, UZ + 2 * (4 * tt + 2 * ft + p), o + 4 + 2 * (2 * ft + p), o + 2 * ft + p) for ft in range(2) for p in range(2)]
        for a, z, t, d in its: cvt(k, d, a, a + 1)
        for a, z, t, d in its: lo(k, t, d); hi(k, t + 1, d)
        for a, z, t, d in its: pk(k, 'mul', t, t, z)
        for a, z, t, d in its: cvt(k, d, t, t + 1)
        k(f'buffer_store_dwordx4 v[{o}:{o+3}], v2, s[12:15], s24 offen sc1')
        if tt < 3: k(f's_add_u32 s24, s24, {28*1024}')
    G.stamp(12); G.stamp(2, '7')
    HB, AC3, A3 = 32, 144, 160
    HD = int(opt.get('hd', 10))
    if not SELF: waitfor(k, 'wa24', 0, 4, 24, CK, sleep=False)
    n1 = min(int(opt.get('n1', 4)), 28 - NR)
    for i in range(8 * WPK, 8 * WPK + n1): k(wodma(i))
    k(f"""
    s_lshl_b32 s33, s28, 2
    s_add_u32 s33, s33, s32                ; tt
    s_lshl_b32 s37, s28, 11
    s_add_u32 s37, s37, {hex(WS_FH)}
    s_lshl_b32 s36, s25, 6
    v_mov_b32 v12, s36
    {G.st(3, '7')}
    s_waitcnt vmcnt({n1})
    {G.st(4, '7')}
    s_mov_b64 exec, 1
    buffer_store_dword v{TAG}, v12, s[12:15], s37 offen sc1
    s_mov_b64 exec, -1
    """)
    if opt.get('ex'):
        assert n1 == 0 and WPK == 0
        k('s_cmp_eq_u32 s3, 0\n s_cbranch_scc1 L_ex')
        waitfor(k, 'wa25', 0, 4, 25, CK, sleep=False)
        k(f"""
        s_sub_u32 s42, s42, {8*896}
        s_sub_u32 s43, s43, 1024
L_exl:
        s_mov_b32 m0, s43
        s_add_u32 s43, s43, 3072
        buffer_load_dwordx4 v10, s[8:11], s42 offen lds
        s_add_u32 s42, s42, {24*896}
        s_cmp_lt_u32 s43, {112*1024}
        s_cbranch_scc1 L_exl
L_ex:
        """)
    else:
        for i in range(n1, min(24, 28 - NR)): k(wodma(i))
        k('v_add_u32 v14, s43, v2\n v_add_u32 v15, 0x10000, v14')
        waitfor(k, 'wa25', 0, 4, 25, CK, sleep=False)
        for i in range(24, 28 - NR): k(wodma(i))
        for j in range(NR):
            i = 28 - NR + j; off = PI[i // 4] * 16384 + 4096 * (i % 4)
            k(f'ds_write_b128 v{14 + off // 65536}, v[{WR[j]}:{WR[j]+3}] offset:{off % 65536}')
    srd(k, 16, 26, 27, 2048 * 896)
    k(f"""
    s_mul_i32 s34, s33, {28*1024}
    s_add_u32 s34, s34, {hex(WS_H)}
    v_lshrrev_b32 v10, 2, v0
    v_lshrrev_b32 v4, 1, v10
    v_and_b32 v4, 3, v4
    v_lshlrev_b32 v21, 5, v4
    v_and_b32 v13, 3, v0
    v_lshlrev_b32 v13, 3, v13
    v_lshl_add_u32 v13, v10, 7, v13
    """)
    for dt in range(4):
        k(f'v_xor_b32 v{192+dt}, {32*dt}, v21\n v_add_u32 v{192+dt}, v{192+dt}, v13\n v_add_u32 v{196+dt}, 0xe000, v{192+dt}')
    G.stamp(5, '7')
    k('s_cmp_lg_u32 s3, 0\n s_cbranch_scc1 L_nofh')
    poll(k, 'pfh', 'buffer_load_dword v20, v19, s[12:15], s37 offen sc1', [20], lanes='s_mov_b32 exec_lo, 0x0fffffff\n s_mov_b32 exec_hi, 0', nap=int(opt.get('nap', 1)))
    k('L_nofh:\n s_waitcnt vmcnt(0) lgkmcnt(0)')
    post(k, 26)
    waitfor(k, 'wa26', 0, 4, 26, CK, sleep=False)
    G.stamp(13); G.stamp(6, '7')
    def aread(kk):
        for dt in range(4):
            for hh in range(2):
                f0 = 32 * kk + 16 * hh
                r = A3 + (kk & 1) * 16 + dt * 4 + hh * 2
                k(f'ds_read_b64_tr_b16 v[{r}:{r+1}], v{(192 if f0 < 448 else 196) + dt} offset:{(f0 % 448) * 128}')
    def hload(kk):
        k(f'buffer_load_dwordx4 v[{HB+4*kk}:{HB+4*kk+3}], v2, s[12:15], s34 offen offset:{1024*(kk%4)} {ZF}')
        if kk % 4 == 3: k('s_add_u32 s34, s34, 4096')
    for kk in range(HD): hload(kk)
    aread(0)
    KB = int(opt.get('kb', 22))
    k(f"""
    s_lshl_b32 s36, s32, 5
    v_xor_b32 v12, s36, v21
    v_add_u32 v12, v12, v13
    v_add_u32 v12, {L_R}, v12
    s_lshl_b32 s36, s32, 7
    s_add_u32 s36, s36, {L_R + 8192}
    v_lshlrev_b32 v11, 3, v8
    v_add_u32 v11, s36, v11
    v_mul_u32_u24 v10, 896, v8
    v_lshrrev_b32 v14, 1, v9
    v_lshl_add_u32 v10, v14, 4, v10
    v_and_b32 v14, 1, v9
    v_lshl_add_u32 v10, v14, 5, v10        ; t*896 + (g>>1)*16 + (g&1)*32
    s_mul_i32 s36, s33, {16*896}
    s_lshl_b32 s37, s29, 7
    s_add_u32 s36, s36, s37
    """)
    t = K('w')
    for i in range(8): lo(t, 48 + 2 * i, 32 + i); hi(t, 49 + 2 * i, 32 + i)
    for i in range(16): t(f'v_mul_f32 v{48+i}, v{48+i}, v4')
    for i in range(8): cvt(t, 32 + i, 48 + 2 * i, 49 + 2 * i)
    for i in range(8): lo(t, 48 + 2 * i, 32 + i); hi(t, 49 + 2 * i, 32 + i)
    t('v_mov_b32 v4, v5')
    ride = t.lines; rp = -(-len(ride) // (4 * (27 - KB)))
    for kk in range(28):
        if kk in (0, 8, 16): G.stamp(7 + kk // 8, '7')
        for dt in range(4):
            lg = 6 if kk < 27 else 6 - 2 * dt
            if opt.get('w2', '1') == '1':
                lg -= 2
                if dt % 2 == 0: k(f's_waitcnt vmcnt({min(HD - 1, 27 - kk)}) lgkmcnt({lg})' if dt == 0 else f's_waitcnt lgkmcnt({lg})')
            else: k(f's_waitcnt vmcnt({min(HD - 1, 27 - kk)}) lgkmcnt({lg})' if dt == 0 else f's_waitcnt lgkmcnt({lg})')
            mfma(k, AC3 + 4 * dt, A3 + (kk & 1) * 16 + dt * 4, HB + 4 * kk, '0' if kk == 0 else None)
            if kk < 27:
                for hh in range(2):
                    f0 = 32 * (kk + 1) + 16 * hh
                    r = A3 + ((kk + 1) & 1) * 16 + dt * 4 + hh * 2
                    k(f'ds_read_b64_tr_b16 v[{r}:{r+1}], v{(192 if f0 < 448 else 196) + dt} offset:{(f0 % 448) * 128}')
            if kk > KB:
                for _ in range(rp):
                    if ride: k(ride.pop(0))
        if kk + HD < 28: hload(kk + HD)
        if kk == KB - 1:
            k('s_barrier'); G.stamp(12, '7'); k('ds_read_b64 v[4:5], v11')
            for dt in range(4): k(f'ds_read_b64_tr_b16 v[{32+2*dt}:{33+2*dt}], v12 offset:{2048*dt}')
    assert not ride
    G.stamp(14); G.stamp(11, '7')
    its = [(AC3 + 2 * i, 32 + i, 64 + 2 * i, 48 + 2 * i) for i in range(8)]
    for c, a, t, g in its: cvt(k, a, c, c + 1)
    for c, a, t, g in its: lo(k, t, a); hi(k, t + 1, a)
    for c, a, t, g in its: pk(k, 'mul', t, t, 4)
    for c, a, t, g in its: cvt(k, a, t, t + 1)
    for c, a, t, g in its: lo(k, t, a); hi(k, t + 1, a)
    for c, a, t, g in its: pk(k, 'add', t, t, g)
    if opt.get('bias'):
        for c, a, t, g in its[:int(opt.get('biasn', 8))]: k(f"v_add_f32 v{t}, {f32hex(float(opt['bias']))}, v{t}")
    for c, a, t, g in its: cvt(k, a, t, t + 1)
    for pr in range(2):
        o = 32 + 4 * pr
        k(f'v_permlane16_swap_b32 v{o}, v{o+2}\n v_permlane16_swap_b32 v{o+1}, v{o+3}')
    for pr in range(2):
        o = 32 + 4 * pr
        k(f"buffer_store_dwordx4 v[{o}:{o+3}], v10, s[16:19], s36 offen offset:{64*pr} {opt.get('of', '').replace('_', ' ')}")
    k(f"""
    s_lshl_b32 s35, s2, 3
    s_add_u32 s35, s35, s3
    s_cmp_lg_u32 s35, 0
    s_cbranch_scc1 L_A_fin
    s_mov_b32 s35, {hex(WS_EP)}
    v_mov_b32 v1, 0
    s_mov_b64 exec, 1
    buffer_store_dword v{TAG}, v1, s[12:15], s35 offen sc1
    s_mov_b64 exec, -1
L_A_fin:
    """)
    G.stamp(13, '7')
    if opt.get('stamp'): k('s_waitcnt vmcnt(0)')
    G.stamp(15); G.stamp(14, '7')
    G.flush(16)
    k('s_endpgm')

    k('L_B:')
    common2()
    k(f"""
    s_mul_i32 s39, s32, {KG_WAVE}
    s_add_u32 s39, s39, {L_KG}
    """)
    k(tagcalc)
    G.stamp(1, '2')
    def wb(j, w): return G.st(2 + 2 * j, '2') + (f's_waitcnt vmcnt({w})\n' if w is not None else '') + G.st(3 + 2 * j, '2') + 's_barrier\n'
    k(wb(0, None) + w2stage(2))
    w1setup(18)
    k(f"""
    s_lshl_b32 s41, s31, 1
    v_mul_u32_u24 v7, {KG_ROW}, v0
    v_add_u32 v7, s39, v7
    v_lshrrev_b32 v1, 5, v0
    v_lshrrev_b32 v3, 2, v8
    v_lshl_add_u32 v1, v1, 2, v3
    v_mul_u32_u24 v1, {KG_ROW}, v1
    v_and_b32 v3, 1, v9
    v_lshl_add_u32 v1, v3, 5, v1
    v_and_b32 v3, 3, v0
    v_lshl_add_u32 v1, v3, 3, v1
    v_add_u32 v1, s39, v1
    """)
    k(wb(1, None) + w2stage(3))
    k(f"""
    ; L2 warm-up: this workgroup's eighth of the z1 slice of w_in, and a share of the second half of the w_sp tile
    s_and_b32 s35, s28, 7
    s_lshl_b32 s35, s35, 2
    s_add_u32 s35, s35, s32
    s_mul_i32 s42, s35, {14*3584}
    s_lshl_b32 s35, s29, 8
    s_add_u32 s42, s42, s35
    v_min_u32 v16, 27, v0
    v_lshrrev_b32 v17, 1, v16
    v_mul_u32_u24 v17, 3584, v17
    v_and_b32 v16, 1, v16
    v_lshl_add_u32 v16, v16, 7, v17
    v_lshrrev_b32 v156, 2, v8
    v_lshl_add_u32 v156, v9, 3, v156         ; 8g + r
    v_lshrrev_b32 v157, 1, v156
    v_and_b32 v157, 7, v157
    v_and_b32 v158, 3, v0
    v_lshrrev_b32 v159, 1, v158
    s_lshl_b32 s35, s32, 1
    v_add_u32 v159, s35, v159
    v_xor_b32 v157, v157, v159
    v_lshlrev_b32 v157, 4, v157
    v_lshl_add_u32 v157, v156, 7, v157
    v_and_b32 v158, 1, v158
    v_lshl_add_u32 v157, v158, 3, v157
    s_add_u32 s35, s29, 7
    s_sub_u32 s35, s35, s31
    s_cmp_ge_u32 s35, 7
    s_cselect_b32 s63, 7, 0
    s_sub_u32 s35, s35, s63
    s_lshl_b32 s35, s35, 13
    s_add_u32 s35, s35, {L_X}
    v_add_u32 v157, s35, v157                ; hh = 0
    v_xor_b32 v158, 32, v157
    v_add_u32 v158, 512, v158                ; hh = 1
    v_lshlrev_b32 v159, 12, v8
    v_lshl_add_u32 v159, v9, 4, v159
    s_lshl_b32 s36, s29, 2
    s_add_u32 s36, s36, s32
    s_lshl_b32 s36, s36, 16
    s_lshl_b32 s35, s28, 7
    s_add_u32 s36, s36, s35
    s_add_u32 s36, s36, {hex(WS_UT)}
    s_lshl_b32 s37, s29, 5
    s_add_u32 s37, s37, s28
    s_lshl_b32 s37, s37, 2
    s_add_u32 s37, s37, s32
    s_lshl_b32 s37, s37, 2
    s_add_u32 s37, s37, {hex(WS_FU)}
    """)
    da = float(opt.get('kga', 0.0)); db = float(opt.get('kgb', 0.0))
    k(f'buffer_load_dword v{PRM+9}, v16, s[16:19], s42 offen')
    d0 = 0.0
    EV = [(d0, wb(2, 7) + w2stage(4)), (d0 + da, wb(3, 7) + w2stage(5)),
          (d0 + 2 * da, wb(4, 6) + w2stage(6) + w1dma(0, 18) + w1dma(1, 18)),
          (d0 + 2 * da + db, wb(5, 10) + w1dma(2, 18) + w1dma(3, 18)),
          (d0 + 2 * da + 2 * db, wb(6, 8) + w1dma(4, 18) + w1dma(5, 18))]
    t = K('w')
    for hf in range(2):
        t(f'ds_read_b64_tr_b16 v[{160+4*hf}:{161+4*hf}], v157 offset:{4096*hf}\n ds_read_b64_tr_b16 v[{162+4*hf}:{163+4*hf}], v158 offset:{4096*hf}')
    t('s_waitcnt lgkmcnt(0)')
    t('s_barrier\n' + w1dma(6, 18) + w1dma(7, 18))
    if opt.get('sent'):
        t(f's_mul_i32 s35, s28, {4*28}\n s_lshl_b32 s63, s29, 2\n s_add_u32 s35, s35, s63\n s_add_u32 s35, s35, s32\n s_lshl_b32 s35, s35, 10\n s_add_u32 s35, s35, {hex(WS_H)}')
        t('v_mov_b32 v168, -1\n v_mov_b32 v169, -1\n v_mov_b32 v170, -1\n v_mov_b32 v171, -1')
        for tt in range(4): t(f'buffer_store_dwordx4 v[168:171], v2, s[12:15], s35 offen sc1\n s_add_u32 s35, s35, {28*1024}')
    for hf in range(2): t(f'buffer_store_dwordx4 v[{160+4*hf}:{163+4*hf}], v159, s[12:15], s36 offen offset:{64*hf} sc1')
    t(G.st(1))
    EV.append((d0 + 2 * da + 3 * db, t.lines))
    DP = 232; DT = PRM + 8
    def kgen(t, c, hook=None):
        if opt.get('nokg'):
            if hook: hook(t)
            for i in range(100): t('s_nop 0')
            return
        if c == 0:
            t(f'v_lshlrev_b32 v{DT}, 16, v{DT}\n v_mul_f32 v{DT}, {f32hex(L2E)}, v{DT}\n v_exp_f32 v{DT}, v{DT}')
            cvt(t, DT, DT, DT); lo(t, DT, DT)
        Z1_, Z8, Z256, Z2_, Z4 = 32, 35, 38, 41, 44
        V, PKD, XA_, XB_ = 128, 48, 56, 58
        p = PRM + 4 * c
        t(f"""
        v_lshlrev_b32 v{p}, 16, v{p}
        v_mul_f32 v{p}, {f32hex(L2E)}, v{p}
        v_exp_f32 v{p}, v{p}
        v_lshlrev_b32 v{p+1}, 16, v{p+1}
        v_lshlrev_b32 v{p+2}, 16, v{p+2}
        v_lshlrev_b32 v{p+3}, 16, v{p+3}
        v_cvt_pk_bf16_f32 v{p}, v{p}, v{p}
        v_mul_f32 v{p+1}, v{p+1}, v{DT}
        v_lshlrev_b32 v{p}, 16, v{p}
        v_mul_f32 v{p+1}, 0.15915494, v{p+1}
        v_mul_f32 v{p}, v{p}, v{DT}
        v_add_f32 v60, v{DT}, v{DT}
        v_mul_f32 v{p}, {f32hex(-L2E)}, v{p}
        v_mul_f32 v{XA_}, v{p+2}, v60
        v_mul_f32 v{XA_+1}, v{p+3}, v60
        """)
        for (d, e) in ((Z8, 8), (Z1_, 1), (Z256, 256)):
            t(f"""
            v_mul_f32 v60, {f32hex(float(e))}, v{p}
            v_mul_f32 v61, {f32hex(float(e))}, v{p+1}
            v_exp_f32 v60, v60
            v_fract_f32 v61, v61
            v_cos_f32 v{d}, v61
            v_sin_f32 v{d+1}, v61
            v_mul_f32 v{d}, v{d}, v60
            v_mul_f32 v{d+1}, v{d+1}, v60
            v_sub_f32 v{d+2}, 0, v{d+1}
            """)
        def put(q, vals, neg):
            for i in range(4):
                cvt(t, PKD + i, vals[2 * i], vals[2 * i + 1])
            t(f'ds_write_b128 v7, v[{PKD}:{PKD+3}] offset:{16*q}')
            n = '-' if neg else ''
            for i in range(4):
                t(f'v_cvt_pk_bf16_f32 v{PKD+4+i}, {n}v{vals[2*i]+1}, {n}v{vals[2*i+1]+1}')
            t(f'ds_write_b128 v7, v[{PKD+4}:{PKD+7}] offset:{64 + 16*q}')
        vs = [V + 2 * i for i in range(8)]
        t(f'v_mov_b32 v{V}, 1.0\n v_mov_b32 v{V+1}, 0')
        for q in range(4):
            for i in range(8):
                if q == 0 and i == 0: continue
                if q == 0 and i == 1: t(f'v_mov_b32 v{vs[1]}, v{Z8}\n v_mov_b32 v{vs[1]+1}, v{Z8+1}')
                else: cmul(t, vs[i], vs[i - 1], Z8)
            if q == 0 and hook: hook(t)
            put(q, vs, True)
        cmul(t, Z2_, Z1_, Z1_); t(f'v_sub_f32 v{Z2_+2}, 0, v{Z2_+1}')
        cmul(t, Z4, Z2_, Z2_); t(f'v_sub_f32 v{Z4+2}, 0, v{Z4+1}')
        t('s_waitcnt lgkmcnt(0)')
        FB, FA = 64, 96
        def frags(F):
            for ks in range(8):
                t(f'ds_read_b64_tr_b16 v[{F+4*ks}:{F+4*ks+1}], v1 offset:{8*KG_ROW*ks}\n ds_read_b64_tr_b16 v[{F+4*ks+2}:{F+4*ks+3}], v1 offset:{8*KG_ROW*ks + 64}')
        frags(FB)
        cmul(t, vs[1], XA_, Z1_)
        for i in range(2, 8): cmul(t, vs[i], vs[i - 1], Z1_)
        t('s_waitcnt lgkmcnt(0)')
        put(0, [XA_] + vs[1:], False)
        cmul(t, XB_, XA_, Z256)
        cmul(t, vs[1], XB_, Z2_)
        for i in range(2, 5): cmul(t, vs[i], vs[i - 1], Z2_)
        put(1, [XB_, vs[1], vs[2], vs[2], vs[2], vs[3], vs[4], vs[4]], False)
        cmul(t, XA_, XB_, Z256); cmul(t, vs[0], XA_, Z4); cmul(t, vs[1], vs[0], Z4)
        cmul(t, XB_, XA_, Z256); cmul(t, vs[2], XB_, Z4); cmul(t, vs[3], vs[2], Z4)
        put(2, [XA_, vs[0], XB_, vs[2], vs[0], vs[1], vs[2], vs[3]], False)
        cmul(t, vs[0], XB_, Z256)
        for i in range(1, 4): cmul(t, vs[i], vs[i - 1], Z256)
        for i in range(4): cmul(t, vs[4 + i], vs[i], Z8)
        put(3, vs, False)
        t('s_waitcnt lgkmcnt(0)')
        frags(FA)
        for ks in range(8):
            t(f's_waitcnt lgkmcnt({14-2*ks})')
            cin = '0' if (ks == 0 and c == 0) else f'v[{DP}:{DP+15}]'
            t(f'v_mfma_f32_32x32x16_bf16 v[{DP}:{DP+15}], v[{FA+4*ks}:{FA+4*ks+3}], v[{FB+4*ks}:{FB+4*ks+3}], {cin}')
    EV[-1] = (EV[-1][0], '\n'.join(EV[-1][1]))
    t = K('w'); t('s_waitcnt vmcnt(2)'); post(t, 1)
    t2 = f's_waitcnt vmcnt(0)\n v_mov_b32 v10, 0\n s_mov_b64 exec, 1\n buffer_store_dword v{TAG}, v10, s[12:15], s37 offen sc1\n s_mov_b64 exec, -1'
    f7 = EV[-1][0]
    B_, B2, A_, Wt, UR, AC, P = 32, 80, 112, 144, 168, 176, 192
    fuload = 'buffer_load_dwordx2 v[176:177], v5, s[12:15], s36 offen sc1'
    t3 = f"""
    s_lshr_b32 s36, s20, 6
    s_lshl_b32 s36, s36, 9
    s_add_u32 s36, s36, {hex(WS_FU)}
    v_lshlrev_b32 v5, 3, v0
    {fuload}
    s_lshl_b32 s23, s20, 12                ; ch*4096
    s_add_u32 s44, s12, {hex(WS_UT)}
    s_addc_u32 s45, s13, 0
    s_add_u32 s44, s44, s23
    s_addc_u32 s45, s45, 0
    s_mov_b32 s46, 4096
    s_mov_b32 s47, 0x20000
    """
    for q in range(5):
        t3 += f'v_add_u32 v{180+q}, {64*q}, v0\n v_mul_u32_u24 v6, 3856, v{180+q}\n v_lshrrev_b32 v6, 16, v6\n v_sub_u32 v{180+q}, v{180+q}, v6\n v_lshlrev_b32 v{180+q}, 4, v{180+q}\n v_add_u32 v{180+q}, -16, v{180+q}\n'
    t3 += f"""
    v_mul_u32_u24 v6, 272, v8
    s_lshl_b32 s35, s22, 3
    s_add_u32 s35, s35, s39
    v_lshl_add_u32 v185, v9, 4, v6
    v_add_u32 v185, s35, v185              ; a*272 + g*16 + 8hf
    v_lshl_add_u32 v186, v9, 6, v6
    v_add_u32 v186, s35, v186              ; a*272 + g*64 + 8hf
    """
    k.lines += weave(sub(kgen, 0), EV + [(f7 + float(opt.get('kgp', 0.06)), '\n'.join(t.lines)), (min(f7 + float(opt.get('kgu', 0.2)), 0.9), t2), (0.93, t3)])
    G.stamp(2)
    if opt.get('kprio'): k(f"s_setprio {opt['kprio']}")
    poll(k, 'pfu', fuload, [176, 177], nap=2, first_issued=True)
    for q in range(5):
        k(f's_add_u32 m0, s39, {q*1024}')
        if q == 4: k('s_mov_b64 exec, 0xffff')
        k(f'buffer_load_dwordx4 v{180+q}, s[44:47], 0 offen sc1 lds')
    k('s_mov_b64 exec, -1')
    G.stamp(3)
    def uhook(t):
        t('s_waitcnt vmcnt(0)')
        for kk in range(4):
            for m in range(3): t(f'ds_read_b64 v[{Wt+6*kk+2*m}:{Wt+6*kk+2*m+1}], v185 offset:{64*kk + 8*m}')
        t('s_waitcnt lgkmcnt(8)')
        for i in range(4): t(f'ds_read_b64 v[{UR+2*i}:{UR+2*i+1}], v186 offset:{16 + 16*i}')
        t('s_waitcnt lgkmcnt(0)')
    kgen(k, 1, uhook)
    G.stamp(5)
    k(f"""
    s_mul_i32 s38, s21, 4352
    s_xor_b32 s35, s3, 1
    s_lshl_b32 s35, s35, 2
    v_add_u32 v21, s35, v22
    s_cmp_eq_u32 s22, 0
    s_cbranch_scc1 L_B_fin
    v_add_u32 v1, s39, v2
    """)
    for q in range(4): k(f'ds_write_b128 v1, v[{DP+4*q}:{DP+4*q+3}] offset:{1024*q}')
    k('s_waitcnt lgkmcnt(0)'); post(k, 100)
    k('s_branch L_B_join')
    k(f'L_B_fin:\n s_add_u32 s35, s39, {KG_WAVE}\n v_add_u32 v1, s35, v2')
    waitfor(k, 'wbp', 0, 1, 100, 32, base=21)
    for q in range(4): k(f'ds_read_b128 v[{80+4*q}:{83+4*q}], v1 offset:{1024*q}')
    k(f"""
    v_and_b32 v5, 31, v0
    v_lshlrev_b32 v5, 4, v5
    v_lshrrev_b32 v7, 5, v0
    v_xor_b32 v6, 1, v7
    v_lshl_add_u32 v5, v6, 3, v5
    s_add_u32 s35, s38, {L_KI + 256}
    v_add_u32 v5, s35, v5                  ; KI + j*16 + 8*(1-h)
    v_lshlrev_b32 v6, 2, v0
    s_add_u32 s35, s38, {L_KI}
    v_add_u32 v6, s35, v6
    s_waitcnt lgkmcnt(0)
    """)
    post(k, 100)
    for i in range(8): pks(k, 'add', 64 + 2 * i, DP + 2 * i, 80 + 2 * i)
    k('v_cmp_eq_u32 vcc, 1, v7\n v_cndmask_b32 v80, v72, v73, vcc\n v_cndmask_b32 v81, v74, v75, vcc')
    k('v_and_b32 v7, 1, v0\n v_cmp_eq_u32 vcc, 1, v7')
    for i in range(4): k(f'v_mov_b32 v{84+i}, v{76+i}\n v_mov_b32 v{88+i}, v{76+i}')
    for i in range(4): k(f'v_permlane32_swap_b32 v{84+i}, v{88+i}')
    for i in range(4): k(f'v_cndmask_b32 v{84+i}, v{84+i}, v{76+i}, vcc')
    blks = [(67, 66, 65, 64), (70, 69, 68, 68), (73, 80, 72, 72), (75, 81, 74, 74)] + [(76 + i, 76 + i, 76 + i, 84 + i) for i in range(4)]
    for b, (a0, a1, a2, a3) in enumerate(blks): cvt(k, 96 + 2 * b, a0, a1); cvt(k, 97 + 2 * b, a2, a3)
    waitfor(k, 'wbb0', 16, 4, 100, 32)
    k('v_mov_b32 v3, 0\n ds_write_b32 v6, v3')
    for b in range(8): k(f'ds_write_b64 v5, v[{96+2*b}:{97+2*b}] offset:{512*b}')
    k('s_waitcnt lgkmcnt(0)\nL_B_join:')
    post(k, 101)
    LC = 216
    BL = opt.get('bl')
    ldread = f'ds_read_b128 v[{LC}:{LC+3}], v22'
    if BL:
        srd(k, 8, 48, 49, 0x800000)
        k(f"""
        v_lshrrev_b32 v10, 3, v0
        v_lshl_add_u32 v10, v10, 12, v20
        v_add_u32 v11, 128, v10
        v_xor_b32 v12, 64, v10
        v_add_u32 v12, 0x8000, v12
        v_add_u32 v13, 128, v12
        s_lshl_b32 s42, s28, 2
        s_add_u32 s42, s42, s32
        s_lshl_b32 s42, s42, 16
        s_add_u32 s42, s42, {7*256}
        s_lshl_b32 s43, s32, 11
        s_add_u32 s43, s43, {PI[7]*16384}
        s_mov_b32 s40, {hex(((PI_WORD << 4) | PI[7]) & 0xffffffff)}
        s_mov_b32 s41, {PI[7]}
        s_mov_b32 s44, 7
        s_mov_b32 s45, 0
        s_mov_b32 s46, 9
        """)
    LD = int(opt.get('ld', 1))
    def ldstep(name):
        k(f"""
        v_min3_u32 v{LC}, v{LC}, v{LC+1}, v{LC+2}
        v_min_u32 v{LC}, v{LC}, v{LC+3}
        v_cmp_gt_u32 vcc, s46, v{LC}
        s_cbranch_vccnz L_{name}_no
        s_cmp_lg_u32 s44, 16
        s_cbranch_scc1 L_{name}_go
        v_mov_b32 v23, 15
        s_mov_b32 s46, -1
        s_waitcnt vmcnt(0)
        s_branch L_{name}_po
L_{name}_go:
        """)
        for j in range(4): k(spdma(j, dyn=True))
        k(f"""
        s_sub_u32 s35, s44, {LD}
        s_max_u32 s35, s35, 6
        v_mov_b32 v23, s35
        s_add_u32 s44, s44, 1
        s_add_u32 s45, s45, {int(opt.get('pace', 2))}
        s_lshr_b32 s46, s45, 1
        s_add_u32 s46, s46, 10
        s_cmp_eq_u32 s44, 16
        s_cselect_b32 s46, 0, s46
        s_waitcnt vmcnt({4*LD})
L_{name}_po:
        ds_write_b32 v29, v23 offset:16
L_{name}_no:
        """)
    k(f"""
    v_sub_u32 v5, v8, v9
    v_lshlrev_b32 v5, 4, v5
    s_add_u32 s35, s38, {L_KI + 64 + 15*256}
    v_add_u32 v5, s35, v5
    v_cmp_ne_u32 vcc, 8, v8
    v_cndmask_b32 v15, 0, -1, vcc
    v_cmp_gt_u32 vcc, 8, v8
    """)
    G.stamp(6)
    def BF(kk, rr): return Wt + 6 * kk + 2 if rr == 3 else B_ + (kk * 3 + rr) * 4
    for kk in range(4):
        w = Wt + 6 * kk
        for j in range(4):
            k(f'v_alignbit_b32 v{BF(kk,0)+j}, v{w+j+1}, v{w+j}, 16\n v_mov_b32 v{BF(kk,1)+j}, v{w+j+1}\n v_alignbit_b32 v{BF(kk,2)+j}, v{w+j+2}, v{w+j+1}, 16')
    for kk in range(4):
        for p in range(2):
            for j in range(4):
                k(f'v_cndmask_b32_dpp v{B2 + (kk*2+p)*4 + j}, v{BF(kk,2*p+1)+j}, v{BF(kk,2*p)+j}, vcc row_shr:8 row_mask:0xf bank_mask:0xf bound_ctrl:1')
    for j in range(8): k(f'v_mov_b32 v{P+j}, 0')
    def cread(buf):
        for kk in range(4):
            r = A_ + buf * 16 + kk * 4
            k(f'ds_read_b128 v[{r}:{r+3}], v5 offset:{192 - 64*kk}')
        k('v_add_u32 v5, -256, v5')
    waitfor(k, 'wbq', 0, 1, 101, LC, base=21)
    cread(0)
    G.stamp(7)
    if opt.get('kprio'): k('s_setprio 0')
    if opt.get('bprio'): k(f"s_setprio {opt['bprio']}")
    shp = lambda r: f'v_and_b32_dpp v{r}, v{r}, v15 row_shr:1 row_mask:0xf bank_mask:0xf bound_ctrl:1'
    shf = lambda r: f'v_mov_b32_dpp v{r}, v{r} row_shr:1 row_mask:0xf bank_mask:0xf bound_ctrl:1'
    k('s_mov_b32 s7, 0' + ('\n s_branch L_B_last' if opt.get('noconv') else '') + '\nL_B_pk:')
    for half in range(2):
        if BL: k(ldread)
        cread(1 - half)
        for j in range(4): k(shp(P + j))
        k('s_waitcnt lgkmcnt(4)')
        if BL: ldstep(f'ldp{half}')
        for kk in range(4): mfma(k, P, A_ + half * 16 + kk * 4, B2 + (kk * 2) * 4); k(shp(P + 4 + kk))
        for kk in range(4): mfma(k, P + 4, A_ + half * 16 + kk * 4, B2 + (kk * 2 + 1) * 4)
    k('s_add_u32 s7, s7, 1\n s_cmp_lt_u32 s7, 4\n s_cbranch_scc1 L_B_pk')
    for j in range(4): k(f'v_mov_b32_dpp v{AC + j}, v{P+j} row_shr:1 row_mask:0xf bank_mask:0xf bound_ctrl:1')
    for j in range(4): k(f'v_mov_b32_dpp v{AC + 4 + j}, v{P+j} row_shl:8 row_mask:0xf bank_mask:0xf bound_ctrl:1')
    for j in range(4): k(f'v_mov_b32 v{AC + 8 + j}, v{P+4+j}')
    for j in range(4): k(f'v_mov_b32_dpp v{AC + 12 + j}, v{P+4+j} row_shl:8 row_mask:0xf bank_mask:0xf bound_ctrl:1')
    k('s_mov_b32 s7, 0\nL_B_fl:')
    if opt.get('bpk'): k(f"s_cmp_lt_u32 s7, {int(opt['bpk']) - 1}\n s_cbranch_scc1 L_B_kp\n s_setprio 0\nL_B_kp:")
    for half in range(2):
        if BL: k(ldread)
        cread(1 - half)
        k('s_waitcnt lgkmcnt(4)')
        if BL: ldstep(f'ldf{half}')
        for rr in range(4):
            if rr == 3 and half == 1: k('s_add_u32 s7, s7, 1\n s_cmp_eq_u32 s7, 4\n s_cbranch_scc1 L_B_last')
            for kk in range(4):
                mfma(k, AC + 4 * rr, A_ + half * 16 + kk * 4, BF(kk, rr))
                k(shf(AC + 4 * ((rr + 1) % 4) + kk))
    k('s_branch L_B_fl\nL_B_last:\n s_nop 1')
    for kk in range(4): mfma(k, AC + 12, A_ + 16 + kk * 4, BF(kk, 3))
    G.stamp(8)
    if BL:
        k(f's_mov_b32 s62, {POLL_LIMIT*16}\nL_B_ld:\n s_cmp_eq_u32 s46, -1\n s_cbranch_scc1 L_B_ldd\n' + ldread + '\n s_waitcnt lgkmcnt(0)')
        ldstep('ldl')
        k('s_sub_u32 s62, s62, 1\n s_cbranch_scc0 L_B_ld\nL_B_ldd:\n s_nop 7')
    k(f"s_setprio {opt.get('eprio', 2)}")
    k(f"""
    s_lshl_b32 s35, s22, 3
    s_add_u32 s35, s35, s38
    s_add_u32 s35, s35, {L_U + 16}
    v_mul_u32_u24 v6, 272, v8
    v_lshl_add_u32 v7, v9, 6, v6
    v_add_u32 v7, s35, v7
    s_lshl_b32 s35, s21, 4
    s_lshr_b32 s30, s30, s35
    s_lshl_b32 s30, s30, 16
    v_mov_b32 v18, s30
    v_mov_b32 v19, s30
    """)
    its = [(UR + 2 * i + p, AC + 8 * p + i, AC + 8 * p + 4 + i, 48 + 4 * (2 * i + p), 40 + 2 * i + p) for i in range(4) for p in range(2)]
    for u, y0, y1, t, y in its: cvt(k, y, y0, y1); lo(k, t, u); hi(k, t + 1, u)
    for u, y0, y1, t, y in its: pks(k, 'mul', t, t, 18)
    for u, y0, y1, t, y in its: cvt(k, u, t, t + 1); lo(k, t + 2, y); hi(k, t + 3, y)
    for u, y0, y1, t, y in its: lo(k, t, u); hi(k, t + 1, u)
    for u, y0, y1, t, y in its: pks(k, 'add', t, t, t + 2)
    for u, y0, y1, t, y in its: cvt(k, u, t, t + 1)
    for i in range(4): k(f'ds_write_b64 v7, v[{UR+2*i}:{UR+2*i+1}] offset:{16*i}')
    k(f"""
    s_lshl_b32 s35, s22, 3
    v_add_u32 v7, s35, v9
    v_mul_u32_u24 v7, 272, v7
    v_lshl_add_u32 v7, v8, 4, v7
    s_add_u32 s35, s38, {L_U + 16}
    v_add_u32 v7, s35, v7
    s_lshl_b32 s36, s22, 11
    s_add_u32 s36, s36, s23
    s_add_u32 s36, s36, {hex(WS_AT)}
    s_waitcnt lgkmcnt(0)
    """)
    post(k, 103)
    waitfor(k, 'wbr', 0, 1, 103, 32, base=21)
    k(f"""
    ds_read_b128 v[32:35], v7
    ds_read_b128 v[36:39], v7 offset:{4*272}
    s_waitcnt lgkmcnt(0)
    buffer_store_dwordx4 v[32:35], v2, s[12:15], s36 offen sc1
    buffer_store_dwordx4 v[36:39], v2, s[12:15], s36 offen offset:1024 sc1
    """)
    k(f"""
    s_lshl_b32 s30, s20, 3
    s_lshl_b32 s35, s22, 2
    s_add_u32 s30, s30, s35
    s_add_u32 s30, s30, {hex(WS_FA)}
    """)
    G.stamp(9)
    G.stamp(1, '7')
    faload = 'buffer_load_dwordx2 v[96:97], v1, s[12:15], s39 offen sc1\n buffer_load_dwordx4 v[100:103], v2, s[12:15], s5 offen sc1'
    atile = f"""
    s_lshl_b32 s36, s29, 18
    s_lshl_b32 s35, s28, 7
    s_add_u32 s36, s36, s35
    s_add_u32 s36, s36, {hex(WS_AT)}
    """
    for q in range(8): atile += f's_mov_b32 m0, {L_R + 1024*q}\n s_nop 0\n buffer_load_dwordx4 v17, s[12:15], s36 offen sc1 lds\n s_add_u32 s36, s36, 0x8000\n'
    atile += f"""
    s_lshl_b32 s36, s28, 9
    s_add_u32 s36, s36, {hex(WS_G2)}
    s_mov_b32 m0, {L_R + 8192}
    s_mov_b32 exec_hi, 0
    buffer_load_dwordx4 v2, s[12:15], s36 offen sc1 lds
    s_mov_b32 exec_hi, -1
    s_mov_b32 s7, 1
    """
    k(f"""
    s_lshl_b32 s39, s29, 9
    s_add_u32 s39, s39, {hex(WS_FA)}
    s_mov_b32 s5, {hex(WS_FG)}
    v_lshlrev_b32 v1, 3, v0
    v_mov_b32 v3, 0
    v_lshrrev_b32 v16, 3, v0
    v_and_b32 v17, 6, v16
    v_xor_b32 v17, v17, v0
    v_and_b32 v17, 7, v17
    v_lshlrev_b32 v17, 4, v17
    v_lshl_add_u32 v17, v16, 12, v17
    s_waitcnt vmcnt(0)
    s_mov_b64 exec, 1
    buffer_store_dword v{TAG}, v3, s[12:15], s30 offen sc1
    s_mov_b64 exec, -1
    s_setprio 0
    s_cmp_lg_u32 s32, 0
    s_cbranch_scc1 L_B_end
    """)
    fa1, fa2 = faload.split('\n')
    poll(k, 'pfg', fa2, [100, 101, 102, 103], nap=16)
    waitfor(k, 'wfa', 0, 4, int(opt.get('fat', 26)), LC, sleep=2)
    poll(k, 'pfa', fa1, [96, 97], nap=int(opt.get('anap', 8)))
    G.stamp(10)
    k(atile + 's_waitcnt vmcnt(0)\nL_B_end:')
    G.stamp(11); G.stamp(11, '7')
    k('s_barrier')
    G.flush(16)
    k('s_endpgm')

    k('L_helper:')
    k(f"""
    s_getpc_b64 s[36:37]
L_pc:
    s_sub_u32 s36, s36, L_pc-{NAME}
    s_subb_u32 s37, s37, 0
    s_lshl_b32 s35, s3, 13
    v_lshlrev_b32 v10, 7, v0
    v_add_u32 v10, s35, v10
    v_min_u32 v10, L_end-{NAME}, v10
    global_load_dword v29, v10, s[36:37]
    v_min_u32 v1, 55, v0
    v_lshlrev_b32 v10, 4, v1
    global_load_dwordx4 v[24:27], v10, s[54:55]
    v_lshlrev_b32 v5, 12, v0
    s_lshl_b32 s35, s28, 18
    s_lshl_b32 s22, s3, 7
    s_add_u32 s35, s35, s22
    v_add_u32 v5, s35, v5
    s_and_b32 s35, s3, 1
    s_cmp_eq_u32 s35, 1
    s_cbranch_scc0 L_H_even
    v_mov_b32 v6, v7
L_H_even:
    s_lshl_b32 s20, s28, 3
    s_add_u32 s20, s20, s3
    s_mul_i32 s20, s20, {8*896}
    s_lshl_b32 s21, s3, 10
    v_lshrrev_b32 v10, 3, v1
    v_lshlrev_b32 v10, 13, v10
    v_and_b32 v1, 7, v1
    v_lshl_add_u32 v10, v1, 4, v10
    s_lshl_b32 s23, s28, 3
    s_add_u32 s23, s23, s3
    """)
    for p in range(7):
        k(f's_add_u32 m0, s21, {8192*p}\n buffer_load_dwordx4 v6, s[8:11], s20 offen lds\n s_add_u32 s20, s20, 128')
    k('s_waitcnt vmcnt(0)')
    G.stamp(1)
    for r in range(4): k(f'global_load_dword v29, v5, s[48:49] offset:{1024*r}')
    k(tagcalc + '\n s_barrier')
    K0 = int(opt.get('zk0', 6))
    k(f"""
    s_and_b32 s35, s2, 1
    s_mul_i32 s35, s35, 3
    s_add_u32 s35, s35, s32
    s_lshl_b32 s36, s35, 11
    s_add_u32 s36, s36, {hex(WS_FZ)}
    s_and_b32 s37, s28, 3
    s_lshl_b32 s37, s37, 1
    s_lshr_b32 s38, s3, 2
    s_add_u32 s37, s37, s38
    s_add_u32 s37, s37, {K0}
    s_lshl_b32 s37, s37, 13
    s_lshl_b32 s35, s35, 19
    s_add_u32 s37, s37, s35
    s_add_u32 s38, s35, {64*8192}
    v_lshlrev_b32 v1, 6, v0
    v_lshlrev_b32 v5, 7, v0
    """)
    if opt.get('zpf'):
        k('s_cmp_ge_u32 s3, 4\n s_cbranch_scc1 L_H_nz')
        poll(k, 'hfz', 'buffer_load_dwordx4 v[32:35], v1, s[12:15], s36 offen sc1', [32, 33, 34, 35], lanes='s_mov_b32 exec_hi, 0', nap=int(opt.get('znap', 8)))
        k('L_H_nz:\n s_barrier')
        G.stamp(2)
        k(f"""
L_H_z:
        buffer_load_dword v29, v5, s[12:15], s37 offen sc1
        s_add_u32 s37, s37, {8*8192}
        s_cmp_lt_u32 s37, s38
        s_cbranch_scc1 L_H_z
        """)
    for i in range(8):
        k(f"""
        s_lshl_b32 s35, s3, 2
        s_add_u32 s35, s35, {i >> 1}
        s_and_b32 s35, s35, 7
        s_lshl_b32 s35, s35, 4
        v_xor_b32 v1, s35, v10
        v_add_u32 v1, s21, v1
        ds_read_b128 v[{64+4*i}:{67+4*i}], v1 offset:{128*i}
        """)
    for j in range(4): lo(k, 16 + 2 * j, 24 + j); hi(k, 17 + 2 * j, 24 + j)
    k('v_cmp_gt_u32 vcc, 56, v0\n s_waitcnt lgkmcnt(0)')
    for i in range(8):
        t = 96 + 8 * i
        for j in range(4): lo(k, t + 2 * j, 64 + 4 * i + j); hi(k, t + 2 * j + 1, 64 + 4 * i + j)
        for j in range(4): pk(k, 'mul', t + 2 * j, t + 2 * j, 16 + 2 * j)
        for j in range(4): cvt(k, 64 + 4 * i + j, t + 2 * j, t + 2 * j + 1)
        for j in range(4): lo(k, t + 2 * j, 64 + 4 * i + j); hi(k, t + 2 * j + 1, 64 + 4 * i + j)
        pk(k, 'add', t, t, t + 2); pk(k, 'add', t + 4, t + 4, t + 6); pk(k, 'add', t, t, t + 4)
        k(f'v_add_f32 v{t}, v{t}, v{t+1}\n v_cndmask_b32 v{32+i}, 0, v{t}, vcc')
    rowsum16(k, list(range(32, 40))); xsum4(k, list(range(32, 40)), 40)
    for i in range(1, 8): k(f'v_cmp_eq_u32 vcc, {i}, v0\n v_cndmask_b32 v32, v32, v{32+i}, vcc')
    cvt(k, 32, 32, 32); lo(k, 32, 32)
    k(f'v_mul_f32 v32, {f32hex(-L2E)}, v32\n v_exp_f32 v32, v32\n v_add_f32 v32, 1.0, v32\n v_rcp_f32 v32, v32')
    cvt(k, 32, 32, 32); lo(k, 32, 32)
    k('v_sub_f32 v33, 1.0, v32')
    cvt(k, 33, 33, 33); lo(k, 33, 33)
    k(f"""
    s_lshl_b32 s36, s23, 6
    s_add_u32 s36, s36, {hex(WS_G2)}
    s_lshl_b32 s35, s23, 2
    s_add_u32 s35, s35, {hex(WS_FG)}
    v_lshlrev_b32 v1, 3, v0
    s_mov_b64 exec, 0xff
    buffer_store_dwordx2 v[32:33], v1, s[12:15], s36 offen sc1
    s_waitcnt vmcnt(0)
    s_mov_b64 exec, 1
    buffer_store_dword v{TAG}, v1, s[12:15], s35 offen sc1
    s_mov_b64 exec, -1
    s_and_b32 s35, s28, 3
    s_lshl_b32 s35, s35, 3
    s_add_u32 s35, s35, s3
    s_mul_i32 s35, s35, {28*896}
    s_and_b32 s36, s2, 1
    s_mul_i32 s36, s36, 384
    s_add_u32 s35, s35, s36
    v_min_u32 v5, 55, v0
    v_lshrrev_b32 v1, 2, v5
    v_mul_u32_u24 v1, 896, v1
    v_and_b32 v5, 3, v5
    v_lshl_add_u32 v5, v5, 7, v1
    v_add_u32 v5, s35, v5
    global_load_dword v29, v5, s[52:53]
    v_add_u32 v5, {14*896}, v5
    global_load_dword v29, v5, s[52:53]
    """)
    if opt.get('stamp'): k('s_waitcnt vmcnt(0)')
    G.stamp(3)
    G.flush(4)
    k('L_end:\n s_endpgm')
    return k

def jitter(k, dense=False):
    out = []; n = 0
    L = k.lines
    def sccdead(i):
        for l in L[i:i + 400]:
            op = l.split()[0]
            if l.endswith(':'): continue
            if op.startswith(('s_cbranch_scc', 's_cselect', 's_addc', 's_subb')): return False
            if op.startswith(('s_cmp', 's_add_', 's_sub_', 's_lshl', 's_lshr', 's_and_', 's_or_', 's_min', 's_max', 's_xor')): return True
            if op.startswith(('s_branch', 's_cbranch', 's_setpc', 's_swappc')): return False
            if op == 's_endpgm': return True
        return True
    started = False
    for i, l in enumerate(L):
        op = l.split()[0]
        hook = op == 's_barrier' or (op == 'ds_write_b32' and 'v29' in l) or (op.startswith('buffer_store') and 'sc1' in l) \
            or (op == 'buffer_load_dwordx4' and ' lds' in l and i % 3 == 0) or (op == 's_waitcnt' and ('vmcnt' in l and i % 2 == 0 or dense and i % 3 == 0)) or l in ('L_A:', 'L_B:', 'L_helper:')
        pos = i + 1 if l.endswith(':') else i
        if l in ('L_A:', 'L_B:', 'L_helper:'): out.append(l)
        if started and hook and sccdead(pos) and not (op == 'buffer_load_dwordx4' and L[i-1].startswith('s_add_u32 m0')) and 'exec' not in L[i-1]:
            n += 1
            out += [f's_mul_i32 s97, s96, 0x41C64E6D', f's_add_u32 s96, s97, {12345 + 2 * n}', 's_lshr_b32 s97, s96, 16', f's_and_b32 s98, s97, {15 if dense else 7}', 's_cmp_lg_u32 s98, 0',
                    f's_cbranch_scc1 L_jit{n}', 's_lshr_b32 s97, s97, 3', 's_and_b32 s97, s97, 31', f'L_jitl{n}:', 's_sleep 4', 's_sub_u32 s97, s97, 1', f's_cbranch_scc0 L_jitl{n}', f'L_jit{n}:']
        if l not in ('L_A:', 'L_B:', 'L_helper:'): out.append(l)
        if l.startswith('s_load_dword s4, s[12:13], s5'):
            out += ['s_load_dwordx2 s[98:99], s[0:1], 56', 's_waitcnt lgkmcnt(0)', 's_load_dword s96, s[98:99], 0', 's_waitcnt lgkmcnt(0)',
                    's_mul_i32 s97, s2, 0x9E3779B1', 's_mul_i32 s98, s3, 0x85EBCA6B', 's_xor_b32 s96, s96, s97', 's_xor_b32 s96, s96, s98', 's_cmp_eq_u32 s29, 7']
            started = True
    k.lines = out
    print('jitter points', n)

if __name__ == '__main__':
    opt = dict(a.split('=') if '=' in a else (a, 1) for a in sys.argv[2:])
    k = gen(opt)
    if opt.get('jit'): jitter(k, opt['jit'] == '2')
    v, s = k.maxreg()
    ref = open('gated_mix__ssm_conv_s4d__mixer_gmlp__prompt.s.ref').read().split('\n')
    hdr = [l for l in ref if l.startswith(';') and '@launch' not in l and 'Override launch' not in l and 'grid=ceil' not in l]
    txt = '\n'.join(hdr) + f'\n; @launch grid=(256,1,1) block=(512,1,1) lds={LDS}\n'
    txt += '.amdgcn_target "amdgcn-amd-amdhsa--gfx950"\n.text\n' + k.text(align=(opt.get('align', '1') == '1')) + '.section .rodata,"a"\n' + desc(k.name, v, s)
    open(sys.argv[1], 'w').write(txt)
    print('vgpr', v, 'sgpr', s, 'lines', len(k.lines))
```

```python
import sys, struct
from asmlib import *

NAME = 'gated_mix__ssm_conv_s4d__mixer_gmlp__prompt_kernel'
WS_Z2 = 0x000000
WS_H  = 0x380000
WS_UT = 0x700000
WS_AT = 0x8C0000
WS_G2 = 0xA80000
WS_ST = 0xA90000
WS_FZ = 0xAD0000
WS_FH = 0xAD4000
WS_FA = 0xAE4000
WS_FU = 0xAE5000
WS_FG = 0xAE5E00
WS_FG = 0xAE7000
WS_EP = 0xAE6000
WS_END = 0xAF0000
SZ_Z = 3670016
STAMP_BASE = 0x2000000
L_X = 65536
L_KG = 122880
KG_ROW = 144
KG_WAVE = 64 * KG_ROW
L_U = 131072
L_KI = L_U + 2 * 4352
L_R = L_KI + 2 * 4352
L_Z1 = L_U
L_CNT = 163840 - 48
LDS = 163840
L2E = 1.4426950408889634
PI = [4, 5, 2, 3, 6, 0, 1, 7]
PI_WORD = sum(v << (4 * i) for i, v in enumerate(PI))
TAG = 28
POLL_LIMIT = 1 << 16

def f32hex(x): return hex(struct.unpack('<I', struct.pack('<f', x))[0])

def srd(k, d, lo, hi, size, add=0):
    if add: k(f's_add_u32 s{d}, s{lo}, {hex(add)}\n s_addc_u32 s{d+1}, s{hi}, 0')
    else: k(f's_mov_b32 s{d}, s{lo}\n s_mov_b32 s{d+1}, s{hi}')
    k(f's_mov_b32 s{d+2}, {hex(size)}\n s_mov_b32 s{d+3}, 0x20000')

class Gen:
    def __init__(self, opt):
        self.opt = opt
        self.k = K(NAME)
    def st(self, idx, grp='1'):
        if str(self.opt.get('stamp')) == grp or (idx == 0 and self.opt.get('stamp')): return f's_memrealtime s[{64+2*idx}:{65+2*idx}]\n'
        return ''
    def stamp(self, idx, grp='1'):
        self.k(self.st(idx, grp))
        if grp == '1' and str(self.opt.get('stamp')) == '6' and idx in self.CL:
            j = self.CL.index(idx)
            self.k(f's_memrealtime s[{66+4*j}:{67+4*j}]\n s_memtime s[{68+4*j}:{69+4*j}]')
    CL = [1, 2, 3, 4, 10, 11, 14]
    def flush(self, n):
        k = self.k
        if not self.opt.get('stamp'): return
        k('s_waitcnt lgkmcnt(0)\n s_mov_b64 exec, 1')
        k(f's_lshl_b32 s60, s2, 3\n s_add_u32 s60, s60, s61\n s_lshl_b32 s60, s60, 6\n s_add_u32 s60, s60, {hex(STAMP_BASE)}')
        k('v_mov_b32 v1, 0')
        for i in range(n):
            k(f'v_mov_b32 v2, s{64+2*i}\n buffer_store_dword v2, v1, s[56:59], s60 offen offset:{4*i}')
        k('s_mov_b64 exec, -1')

def lo(k, d, s): k(f'v_lshlrev_b32 v{d}, 16, v{s}')
def hi(k, d, s): k(f'v_and_b32 v{d}, 0xffff0000, v{s}')
def cvt(k, d, a, b): k(f'v_cvt_pk_bf16_f32 v{d}, v{a}, v{b}')
def pk(k, op, d, a, b, c=None, mods=''):
    s = f'v_pk_{op}_f32 v[{d}:{d+1}], v[{a}:{a+1}], v[{b}:{b+1}]'
    if c is not None: s += f', v[{c}:{c+1}]'
    k(s + (' ' + mods if mods else ''))
def pks(k, op, d, a, b, c=None, neg=False, sc=True):
    if not sc:
        return pk(k, op, d, a, b, c, mods='neg_lo:[0,1] neg_hi:[0,1]' if neg else '')
    for i in range(2):
        if op == 'fma':
            k(f'v_fmac_f32 v{d+i}, v{a+i}, v{b+i}' if c == d else f'v_fma_f32 v{d+i}, v{a+i}, v{b+i}, v{c+i}')
        else: k(f"v_{'sub' if neg else op}_f32 v{d+i}, v{a+i}, v{b+i}")
def mfma(k, c, a, b, cin=None):
    k(f'v_mfma_f32_16x16x32_bf16 v[{c}:{c+3}], v[{a}:{a+3}], v[{b}:{b+3}], ' + (cin or f'v[{c}:{c+3}]'))

GC = 24
def gelu_consts(k):
    c0 = -2.0 * 0.7978845608028654 * L2E
    k(f'v_mov_b32 v24, {f32hex(c0*0.044715)}\n v_mov_b32 v25, {f32hex(c0*0.044715)}\n v_mov_b32 v26, {f32hex(c0)}\n v_mov_b32 v27, {f32hex(c0)}')
    k('v_mov_b32 v30, 1.0\n v_mov_b32 v31, 1.0')
def gelu_tiles(k, cs, t, sc=False):
    c0 = -2.0 * 0.7978845608028654 * L2E
    pairs = [(c + 2 * p, t + 4 * i + 2 * p) for i, c in enumerate(cs) for p in range(2)]
    if not NOROUND:
        for x, tt in pairs: cvt(k, tt, x, x + 1)
        for x, tt in pairs: lo(k, x, tt); hi(k, x + 1, tt)
    for x, tt in pairs: pks(k, 'mul', tt, x, x, sc=sc)
    for x, tt in pairs:
        if sc: k(f'v_fmaak_f32 v{tt}, v{tt}, v24, {f32hex(c0)}\n v_fmaak_f32 v{tt+1}, v{tt+1}, v24, {f32hex(c0)}')
        else: pk(k, 'fma', tt, tt, 24, 26)
    for x, tt in pairs: pks(k, 'mul', tt, tt, x, sc=sc)
    for x, tt in pairs: k(f'v_exp_f32 v{tt}, v{tt}\n v_exp_f32 v{tt+1}, v{tt+1}')
    for x, tt in pairs: pks(k, 'add', tt, tt, 30, sc=sc)
    for x, tt in pairs: k(f'v_rcp_f32 v{tt}, v{tt}\n v_rcp_f32 v{tt+1}, v{tt+1}')
    for x, tt in pairs: pks(k, 'mul', x, x, tt, sc=sc)

def rowsum16(k, regs):
    for sh in (8, 4, 2, 1):
        for r in regs: k(f'v_add_f32_dpp v{r}, v{r}, v{r} row_ror:{sh} row_mask:0xf bank_mask:0xf')
def xsum4(k, regs, t):
    for sw in ('16', '32'):
        for i, r in enumerate(regs): k(f'v_mov_b32 v{t+i}, v{r}')
        for i, r in enumerate(regs): k(f'v_permlane{sw}_swap_b32 v{r}, v{t+i}')
        for i, r in enumerate(regs): k(f'v_add_f32 v{r}, v{r}, v{t+i}')
def cmul(k, d, x, w):
    k(f'v_mul_f32 v{d}, v{x}, v{w}\n v_mul_f32 v{d+1}, v{x+1}, v{w}\n v_fmac_f32 v{d}, v{x+1}, v{w+2}\n v_fmac_f32 v{d+1}, v{x}, v{w+1}')

def poll(k, name, loads, regs, lanes=None, first_issued=False, wait0='s_waitcnt vmcnt(0)', nap=0):
    k(f's_mov_b32 s62, {POLL_LIMIT}')
    if lanes: k(lanes)
    if first_issued: k(f'{wait0}\n s_branch L_{name}_chk')
    k(f'L_{name}:')
    k(loads)
    k(f's_waitcnt vmcnt(0)\nL_{name}_chk:')
    k(f'v_cmp_ne_u32 vcc, v{TAG}, v{regs[0]}')
    for r in regs[1:]:
        k(f'v_cmp_ne_u32 s[54:55], v{TAG}, v{r}\n s_or_b64 vcc, vcc, s[54:55]')
    k(f's_cbranch_vccz L_{name}_ok\n' + (f's_sleep {nap}\n' if nap else '') + f's_sub_u32 s62, s62, 1\n s_cbranch_scc0 L_{name}\nL_{name}_ok:')
    if lanes: k('s_mov_b64 exec, -1')

def post(k, val, addr=29, tmp=23):
    k(f'v_mov_b32 v{tmp}, {val}\n ds_write_b32 v{addr}, v{tmp}')
def waitfor(k, name, off, n, val, t, base=22, sleep=True):
    k(f's_mov_b32 s62, {POLL_LIMIT*16}\nL_{name}:')
    if n == 4:
        k(f'ds_read_b128 v[{t}:{t+3}], v{base} offset:{off}\n s_waitcnt lgkmcnt(0)\n v_min3_u32 v{t}, v{t}, v{t+1}, v{t+2}\n v_min_u32 v{t}, v{t}, v{t+3}')
    else:
        k(f'ds_read_b32 v{t}, v{base} offset:{off}\n s_waitcnt lgkmcnt(0)')
    k(f'v_cmp_gt_u32 vcc, {val}, v{t}\n s_cbranch_vccz L_{name}_ok')
    if sleep: k(f's_sleep {int(sleep)}')
    k(f's_sub_u32 s62, s62, 1\n s_cbranch_scc0 L_{name}\nL_{name}_ok:')

def weave(lines, events):
    out = []; n = len(lines); ev = sorted(events, key=lambda e: e[0]); j = 0
    for i, l in enumerate(lines):
        while j < len(ev) and ev[j][0] * n <= i:
            out += [x.strip() for x in ev[j][1].split('\n') if x.strip()]; j += 1
        out.append(l)
    while j < len(ev):
        out += [x.strip() for x in ev[j][1].split('\n') if x.strip()]; j += 1
    return out

def sub(fn, *a):
    t = K('t'); fn(t, *a); return t.lines

NOROUND = False
def gen(opt):
    global NOROUND
    NOROUND = opt.get('fp32', '1') == '1'
    G = Gen(opt); k = G.k
    D = 8
    ZF = '' if opt.get('nosc1') else 'sc1'
    npf = int(opt.get('pfcode', 3))
    k(f"""
    s_cmp_ge_u32 s2, 256
    s_cbranch_scc1 L_end
    s_load_dwordx2 s[8:9], s[0:1], 0       ; x
    s_load_dwordx2 s[16:17], s[0:1], 64    ; w_in
    s_load_dwordx2 s[12:13], s[0:1], 120   ; ws
    s_load_dwordx8 s[36:43], s[0:1], 8
    s_load_dwordx4 s[44:47], s[0:1], 40
    s_load_dwordx8 s[48:55], s[0:1], 72
    s_load_dwordx2 s[26:27], s[0:1], 104   ; out
    v_lshrrev_b32 v1, 6, v0
    v_and_b32 v0, 63, v0
    v_readfirstlane_b32 s3, v1             ; wave
    s_lshr_b32 s30, s2, 3                  ; j
    s_and_b32 s29, s2, 1
    s_lshl_b32 s29, s29, 2                 ; 4*par
    s_and_b32 s31, s30, 3
    s_add_u32 s31, s31, s29
    s_lshr_b32 s35, s30, 3
    s_add_u32 s29, s29, s35
    s_and_b32 s35, s30, 7
    s_cmp_lt_u32 s30, 24
    s_cselect_b32 s31, s35, s31            ; tb&7
    s_cselect_b32 s29, s29, 3
    s_cmp_ge_u32 s30, 28
    s_cselect_b32 s29, 7, s29
    s_and_b32 s28, s2, 6
    s_lshl_b32 s28, s28, 2
    s_add_u32 s28, s28, s31
    s_min_u32 s31, s31, 6
    s_and_b32 s32, s3, 3
    v_and_b32 v8, 15, v0
    v_lshrrev_b32 v9, 4, v0
    v_lshlrev_b32 v10, 1, v9
    v_xor_b32 v10, v10, v8
    v_lshlrev_b32 v10, 4, v10
    v_mul_u32_u24 v11, 3584, v9
    v_add_u32 v10, v10, v11
    v_add_u32 v11, {4*3584}, v10
    v_xor_b32 v12, 128, v10
    v_add_u32 v12, {8*3584}, v12
    v_add_u32 v13, {4*3584}, v12
    s_mul_i32 s33, s32, {16*3584}
    s_lshl_b32 s34, s29, 8
    s_add_u32 s33, s33, s34
    s_add_u32 s33, s33, 1792
    s_lshl_b32 s34, s32, 12
    v_lshrrev_b32 v21, 3, v0
    v_and_b32 v20, 7, v0
    v_lshrrev_b32 v5, 1, v21
    v_xor_b32 v20, v20, v5
    v_lshlrev_b32 v20, 4, v20
    v_mul_u32_u24 v6, 896, v21
    v_add_u32 v6, v6, v20
    v_xor_b32 v7, 64, v6
    v_add_u32 v4, {8*896}, v7
    s_lshl_b32 s24, s28, 2
    s_add_u32 s24, s24, s32
    s_mul_i32 s24, s24, {16*896}
    s_lshl_b32 s25, s32, 11
    s_add_u32 s25, s25, {L_X}
    s_mov_b32 s10, {2048*896}
    s_mov_b32 s11, 0x20000
    s_mov_b32 s14, {hex(WS_END)}
    s_mov_b32 s15, 0x20000
    s_mov_b32 s18, {448*3584}
    s_mov_b32 s19, 0x20000
    s_mov_b32 s5, {hex(WS_EP)}
    s_cmp_eq_u32 s29, 7
    s_waitcnt lgkmcnt(0)
    """)
    if opt.get('stamp'):
        k('s_mov_b32 s61, s3'); G.stamp(0); srd(k, 56, 12, 13, 0x4000000)
    k(f"""
    s_load_dword s4, s[12:13], s5
    s_cbranch_scc1 L_helper
    s_cmp_lt_u32 s3, 4
    s_cbranch_scc1 L_A
    """)
    k(f"""
    v_mul_u32_u24 v1, 896, v8
    s_lshl_b32 s20, s29, 7
    s_add_u32 s20, s20, s24
    s_mov_b64 exec, 0xffff
    buffer_load_dword v209, v1, s[8:11], s20 offen
    s_mov_b64 exec, -1
    s_mul_i32 s20, s28, 7
    s_add_u32 s20, s20, s29                ; m
    s_lshr_b32 s21, s32, 1                 ; c2
    s_and_b32 s22, s32, 1                  ; hf
    s_lshl_b32 s23, s20, 2
    s_load_dword s30, s[46:47], s23
    s_lshl_b32 s20, s20, 1
    s_add_u32 s20, s20, s21                ; channel
    s_lshl_b32 s23, s20, 9
    s_lshl_b32 s35, s22, 8
    s_add_u32 s23, s23, s35
    v_lshlrev_b32 v1, 1, v0
    v_add_u32 v1, s23, v1
    """)
    PRM = 200
    for c in range(2):
        for i in range(4): k(f'global_load_ushort v{PRM+4*c+i}, v1, s[{36+2*i}:{37+2*i}] offset:{128*c}')
    k(f"""
    s_lshl_b32 s23, s20, 1
    v_mov_b32 v1, s23
    global_load_ushort v{PRM+8}, v1, s[44:45]
    """)
    G.stamp(1, '3')
    k('s_branch L_B')
    def w2parts(j):
        h = f's_add_u32 s35, s31, {j}\n s_cmp_ge_u32 s35, 7\n s_cselect_b32 s63, 7, 0\n s_sub_u32 s35, s35, s63\n s_lshl_b32 s63, s35, 7\n s_add_u32 s63, s63, s24\n'
        p = [h + f's_add_u32 m0, s25, {j * 8192}\n s_mul_i32 s35, s35, {64*3584}\n buffer_load_dwordx4 v6, s[8:11], s63 offen lds\n',
             f's_add_u32 m0, s25, {j * 8192 + 1024}\n s_add_u32 s35, s35, s33\n buffer_load_dwordx4 v4, s[8:11], s63 offen lds\n']
        for q in range(4):
            p.append(f's_add_u32 m0, s34, {(j & 3) * 16384 + q * 1024}\n buffer_load_dwordx4 v{10+q}, s[16:19], s35 offen lds\n')
        return p
    def w2stage(j): return ''.join(w2parts(j))
    def common2():
        k(f"""
        v_lshlrev_b32 v2, 4, v0
        v_mov_b32 v22, {L_CNT}
        s_lshl_b32 s35, s3, 2
        v_add_u32 v29, s35, v22
        """)
    tagcalc = f's_waitcnt lgkmcnt(0)\n s_mul_i32 s4, s4, 0x9E3779B1\n s_add_u32 s4, s4, 0x7F4A7C15\n v_mov_b32 v{TAG}, s4'
    def w1setup(r):
        k(f"""
        v_lshrrev_b32 v{r}, 2, v0
        v_mul_u32_u24 v{r}, 3584, v{r}
        v_lshrrev_b32 v{r+1}, 4, v0
        v_and_b32 v{r+1}, 2, v{r+1}
        v_xor_b32 v{r+1}, v{r+1}, v0
        v_and_b32 v{r+1}, 3, v{r+1}
        v_lshl_add_u32 v{r}, v{r+1}, 4, v{r}
        v_add_u32 v{r+1}, {16*3584}, v{r}
        s_lshl_b32 s38, s29, 8
        s_lshl_b32 s35, s32, 6
        s_add_u32 s38, s38, s35                ; z1 column base
        s_lshl_b32 s40, s32, 11
        """)
    def w1off(i): return [3, 0, 1, 2][(i % 8) >> 1] * 16384 + (i & 1) * 8192
    def w1dma(i, r):
        off = w1off(i)
        return (f's_mul_i32 s35, s41, {32*3584}\n s_add_u32 s35, s35, s38\n s_add_u32 m0, s40, {off}\n s_add_u32 s41, s41, 1\n'
                f'buffer_load_dwordx4 v{r}, s[16:19], s35 offen lds\n s_add_u32 m0, s40, {off+1024}\n s_cmp_eq_u32 s41, 14\n'
                f'buffer_load_dwordx4 v{r+1}, s[16:19], s35 offen lds\n s_cselect_b32 s41, 0, s41\n')
    k('L_A:')
    k(w2stage(0)); k(w2stage(1))
    if opt.get('prio', '1') != '0': k(f"s_setprio {opt.get('prio', 1)}")
    srd(k, 36, 50, 51, 4096)
    k('v_lshlrev_b32 v1, 1, v8\n s_lshl_b32 s35, s28, 7')
    BSP = [228, 229, 230, 231]
    for tt in range(4): k(f'buffer_load_ushort v{BSP[tt]}, v1, s[36:39], s35 offen offset:{32*tt}')
    common2()
    WA = 168
    k(f"""
    v_mov_b32 v23, 0
    ds_write_b32 v29, v23
    ds_write_b32 v29, v23 offset:16
    v_mov_b32 v23, 6
    ds_write_b32 v29, v23 offset:32
    v_lshrrev_b32 v14, 1, v8
    v_xor_b32 v14, v14, v9
    v_lshlrev_b32 v14, 4, v14
    v_lshl_add_u32 v14, v8, 7, v14
    v_add_u32 v14, s25, v14
    v_xor_b32 v15, 64, v14
    v_lshrrev_b32 v16, 2, v0
    v_and_b32 v17, 7, v16
    v_lshlrev_b32 v17, 5, v17
    v_and_b32 v16, 3, v16
    v_lshl_add_u32 v16, v9, 3, v16         ; 8g + r
    v_and_b32 v19, 3, v0
    v_lshlrev_b32 v18, 3, v19
    v_lshl_add_u32 v18, v16, 8, v18
    """)
    for ft in range(8): k(f'v_xor_b32 v{WA+ft}, {32*ft}, v17\n v_add_u32 v{WA+ft}, v{WA+ft}, v18')
    gelu_consts(k)
    w1setup(224)
    k(f"""
    v_lshlrev_b32 v226, 6, v16
    v_lshl_add_u32 v226, v19, 3, v226
    v_and_b32 v227, 1, v9
    v_lshl_add_u32 v226, v227, 5, v226     ; row*64 + (p ^ (g&1))*32 + 8c  (p = 0)
    v_xor_b32 v227, 32, v226
    v_add_u32 v226, s40, v226
    v_add_u32 v227, s40, v227
    s_lshl_b32 s41, s31, 1
    s_add_u32 s41, s41, 8
    s_cmp_ge_u32 s41, 14
    s_cselect_b32 s35, 14, 0
    s_sub_u32 s41, s41, s35                ; global k-step of the ninth step of the z1 stream
    s_lshl_b32 s35, s32, 2
    v_add_u32 v5, s35, v22
    """)
    XF, WF, ACC, T, CK1 = 32, 88, 120, 152, 40
    G.stamp(14, '2')
    k('s_waitcnt vmcnt(10) lgkmcnt(0)')
    G.stamp(15, '2')
    k(tagcalc + '\n s_barrier')
    G.stamp(1); G.stamp(1, '2')
    def wread(gi):
        ks = gi >> 1
        for f in range(4):
            for hh in range(2):
                r = WF + (gi & 1) * 16 + f * 4 + hh * 2
                k(f'ds_read_b64_tr_b16 v[{r}:{r+1}], v{WA + 4 * (gi & 1) + f} offset:{((ks >> 1) & 3) * 16384 + (ks & 1) * 8192 + hh * 1024}')
    def xread(i):
        k(f'ds_read_b128 v[{XF+4*(i&1)}:{XF+4*(i&1)+3}], v{14 + (i & 1)} offset:{(i >> 1) * 8192}')
    xread(0); wread(0)
    IL = opt.get('il', '1') == '1'
    def wread1(gi, f):
        ks = gi >> 1
        for hh in range(2):
            r = WF + (gi & 1) * 16 + f * 4 + hh * 2
            k(f'ds_read_b64_tr_b16 v[{r}:{r+1}], v{WA + 4 * (gi & 1) + f} offset:{((ks >> 1) & 3) * 16384 + (ks & 1) * 8192 + hh * 1024}')
    for gi in range(28):
        ks = gi >> 1; j = gi >> 2
        if gi % 4 == 3:
            k('s_waitcnt lgkmcnt(0)' + (' vmcnt(0)' if j == 0 else ''))
            if j < 6: G.stamp(2 + 2 * j, '2')
            k('s_barrier')
            if j < 6:
                G.stamp(3 + 2 * j, '2'); xread(ks + 1)
                if not IL: wread(gi + 1)
        elif not IL:
            nx = 0
            if gi % 4 == 0: xread(ks + 1); nx = 1
            wread(gi + 1); k(f's_waitcnt lgkmcnt({8 + nx})')
        for f in range(4):
            if IL and gi % 4 != 3:
                if opt.get('w1', '1') != '1': k(f's_waitcnt lgkmcnt({6 + (1 if gi % 4 == 1 and f < 3 else 0)})')
                elif f % 2 == 0: k(f's_waitcnt lgkmcnt({4 + (1 if gi % 4 == 1 and f == 0 else 0)})')
            mfma(k, ACC + 16 * (gi & 1) + 4 * f, XF + 4 * (ks & 1), WF + (gi & 1) * 16 + f * 4, '0' if ks == 0 else None)
            if IL and gi < 27: wread1(gi + 1, f)
            if IL and gi % 4 == 0 and f == 3: xread(ks + 1)
    G.stamp(2)
    S, Q = 88, 92
    def z2epi(t):
        for h in range(2):
            cs = [ACC + 16 * h + 4 * f for f in range(4)]
            gelu_tiles(t, cs, T)
            prs = [(c + 2 * p, T + 2 * i + p) for i, c in enumerate(cs) for p in range(2)]
            if not NOROUND:
                for x, tt in prs: cvt(t, tt, x, x + 1)
                for x, tt in prs: lo(t, x, tt); hi(t, x + 1, tt)
            for i, c in enumerate(cs):
                for p in range(2):
                    if h == 0 and i == 0: pk(t, 'mul', Q + 2 * p, c + 2 * p, c + 2 * p)
                    else: pk(t, 'fma', Q + 2 * p, c + 2 * p, c + 2 * p, Q + 2 * p)
                    if h == 0 and i == 0: pass
                    elif h == 0 and i == 1: pk(t, 'add', S + 2 * p, ACC + 2 * p, c + 2 * p)
                    else: pk(t, 'add', S + 2 * p, S + 2 * p, c + 2 * p)
    z2epi(k)
    rowsum16(k, list(range(S, S + 8)))
    k(f"""
    v_cmp_eq_u32 vcc, 1, v19
    v_cndmask_b32 v{T}, v{S}, v{S+1}, vcc
    v_cndmask_b32 v{T+2}, v{Q}, v{Q+1}, vcc
    v_cmp_eq_u32 vcc, 2, v19
    v_cndmask_b32 v{T}, v{T}, v{S+2}, vcc
    v_cndmask_b32 v{T+2}, v{T+2}, v{Q+2}, vcc
    v_cmp_eq_u32 vcc, 3, v19
    v_cndmask_b32 v{T}, v{T}, v{S+3}, vcc
    v_cndmask_b32 v{T+2}, v{T+2}, v{Q+3}, vcc
    v_mov_b32 v{T+1}, v{TAG}
    v_mov_b32 v{T+3}, v{TAG}
    v_lshl_add_u32 v18, v9, 2, v19
    v_lshlrev_b32 v18, 4, v18              ; row*16
    s_lshl_b32 s24, s28, 2
    s_add_u32 s24, s24, s32
    s_lshl_b32 s24, s24, 11
    s_add_u32 s24, s24, {hex(WS_ST)}
    s_lshl_b32 s35, s29, 8
    s_add_u32 s35, s35, s24
    """)
    if opt.get('sent'): waitfor(k, 'wbs', 16, 4, 1, 32, sleep=False)
    k(f"""
    s_mov_b32 exec_lo, 0x000f000f
    s_mov_b32 exec_hi, 0x000f000f
    buffer_store_dwordx4 v[{T}:{T+3}], v18, s[12:15], s35 offen sc1
    s_mov_b64 exec, -1
    v_min_u32 v18, 2, v9
    v_lshlrev_b32 v18, 8, v18
    v_lshl_add_u32 v18, v8, 4, v18
    """)
    G.stamp(3)
    def spdma(j, dyn=False, slot=0):
        vv, off = ((10, 0), (12, 1024), (11, 8192), (13, 9216))[j]
        t = f's_add_u32 m0, s43, {off + slot * 16384}\n buffer_load_dwordx4 v{vv}, s[8:11], s42 offen lds\n'
        if j == 3:
            t += 's_add_u32 s42, s42, 256\n'
            if dyn: t += 's_lshr_b64 s[40:41], s[40:41], 4\n s_and_b32 s43, s40, 15\n s_lshl_b32 s43, s43, 3\n s_add_u32 s43, s43, s32\n s_lshl_b32 s43, s43, 11\n'
        return t
    A1, FR, ZP = 176, 64, 208
    NR = int(opt.get('nr', 16))
    WR = ([168, 172] + list(range(232, 256, 4)) + list(range(176, 208, 4)))[:NR]
    srd(k, 44, 52, 53, 896 * 896)
    k(f"""
    v_and_b32 v3, 6, v21
    v_xor_b32 v3, v3, v0
    v_and_b32 v3, 7, v3
    v_lshlrev_b32 v3, 4, v3
    v_mul_u32_u24 v1, 896, v21
    v_add_u32 v3, v3, v1
    s_lshl_b32 s35, s29, 7
    s_mul_i32 s30, s32, {8*896}
    s_add_u32 s30, s30, s35
    """)
    def wold(j):
        i = 28 - NR + j; blk, q = PI[i // 4], i % 4
        return f's_add_u32 s35, s30, {(blk*128 + 32*q)*896}\n buffer_load_dwordx4 v[{WR[j]}:{WR[j]+3}], v3, s[44:47], s35 offen'
    WO1 = opt.get('wo1', 'z1')
    if WO1 == 'z1':
        for j in range(min(NR, 8)): k(wold(j))
    k(f"""
    s_lshl_b32 s35, s32, 11
    v_subrev_u32 v14, s35, v14
    v_subrev_u32 v15, s35, v15
    """)
    srd(k, 8, 48, 49, 0x800000)
    k(f"""
    v_lshl_add_u32 v10, v21, 12, v20
    v_add_u32 v11, 128, v10
    v_xor_b32 v12, 64, v10
    v_add_u32 v12, 0x8000, v12
    v_add_u32 v13, 128, v12
    s_lshl_b32 s42, s28, 2
    s_add_u32 s42, s42, s32
    s_lshl_b32 s42, s42, 16                ; (64*tb + 16*a)*4096
    s_lshl_b32 s43, s32, 11
    """)
    def z1read(i):
        b = FR + (i & 1) * 24
        for p in range(2):
            for hh in range(2):
                k(f'ds_read_b64_tr_b16 v[{b+4*p+2*hh}:{b+4*p+2*hh+1}], v{226 + p} offset:{w1off(i) + 256*hh}')
        for tt in range(4):
            r = b + 8 + 4 * tt
            k(f'ds_read_b128 v[{r}:{r+3}], v{14 + (i & 1)} offset:{(i >> 1) * 8192 + tt * 2048}')
    G.stamp(1, '5')
    if not opt.get('sent'): waitfor(k, 'wb1', 16, 1, 1, 32, base=5, sleep=False)
    G.stamp(2, '5')
    PL = 32; S, Q = 44, 48
    NP = int(opt.get('np', 7))
    stload = f'buffer_load_dwordx4 v[{PL}:{PL+3}], v2, s[12:15], s24 offen sc1\n buffer_load_dwordx4 v[{PL+4}:{PL+7}], v18, s[12:15], s24 offen offset:1024 sc1'
    def normalise():
        poll(k, 'pst', stload, [PL + 1, PL + 3, PL + 5, PL + 7], first_issued=True, wait0='s_waitcnt vmcnt(4)')
        G.stamp(5)
        k(f"""
        v_cmp_gt_u32 vcc, 3, v9
        v_cndmask_b32 v{PL+4}, 0, v{PL+4}, vcc
        v_cndmask_b32 v{PL+6}, 0, v{PL+6}, vcc
        v_add_f32 v40, v{PL}, v{PL+4}
        v_add_f32 v41, v{PL+2}, v{PL+6}
        """)
        xsum4(k, [40, 41], 42)
        k(f"""
        v_mul_f32 v40, {f32hex(1/896)}, v40
        v_mul_f32 v41, {f32hex(1/896)}, v41
        v_fma_f32 v41, -v40, v40, v41
        v_max_f32 v41, 0, v41
        """)
        if NOROUND:
            k(f'v_add_f32 v41, {f32hex(1e-5)}, v41\n v_rsq_f32 v41, v41\n v_lshlrev_b32 v53, 4, v9\n v_mul_f32 v40, v40, v41')
        else:
            cvt(k, 40, 40, 41); hi(k, 41, 40); lo(k, 40, 40)
            k(f'v_add_f32 v41, {f32hex(1e-5)}, v41')
            cvt(k, 41, 41, 41); lo(k, 41, 41)
            k('v_sqrt_f32 v41, v41')
            cvt(k, 41, 41, 41); lo(k, 41, 41)
            k('v_rcp_f32 v41, v41\n v_lshlrev_b32 v53, 4, v9')
        for r in range(4):
            k(f'ds_bpermute_b32 v{S+r}, v53, v40 offset:{4*r}\n ds_bpermute_b32 v{Q+r}, v53, v41 offset:{4*r}')
        k(f"""
        s_lshl_b32 s24, s29, 6
        s_lshl_b32 s25, s28, 1
        s_add_u32 s24, s24, s25
        s_lshr_b32 s25, s32, 1
        s_add_u32 s24, s24, s25
        s_lshl_b32 s24, s24, 13
        s_and_b32 s25, s32, 1
        s_lshl_b32 s25, s25, 9
        s_add_u32 s24, s24, s25
        s_add_u32 s25, s24, 4096
        v_lshrrev_b32 v53, 1, v9
        v_lshlrev_b32 v53, 8, v53
        v_lshl_add_u32 v53, v8, 4, v53
        v_and_b32 v54, 1, v9
        v_lshl_add_u32 v53, v54, 10, v53
        s_waitcnt lgkmcnt(0)
        """)
        for h in range(2):
            cs = [ACC + 16 * h + 4 * f for f in range(4)]
            prs = [(c + 2 * p, T + 8 * h + 2 * i + p, p) for i, c in enumerate(cs) for p in range(2)]
            if NOROUND:
                for x, t, p in prs: pk(k, 'fma', x, x, Q + 2 * p, S + 2 * p, mods='neg_lo:[0,0,1] neg_hi:[0,0,1]')
            else:
                for x, t, p in prs: pks(k, 'add', x, x, S + 2 * p, neg=True, sc=bool(opt.get('sca')))
                for x, t, p in prs: cvt(k, t, x, x + 1)
                for x, t, p in prs: lo(k, x, t); hi(k, x + 1, t)
                for x, t, p in prs: pks(k, 'mul', x, x, Q + 2 * p, sc=bool(opt.get('sca')))
            for x, t, p in prs: cvt(k, t, x, x + 1)
            for pr in range(2):
                o = T + 8 * h + 4 * pr
                k(f'v_permlane16_swap_b32 v{o}, v{o+2}\n v_permlane16_swap_b32 v{o+1}, v{o+3}')
            for pr in range(2):
                o = T + 8 * h + 4 * pr
                k(f'buffer_store_dwordx4 v[{o}:{o+3}], v53, s[12:15], s{24+h} offen offset:{2048*pr} sc1')

    CK1 = 56
    posts = {3: 5, 7: 6, 9: 7, 11: 8}; checks = {6: 5, 8: 6, 12: 7}
    pre = {6: [(0, 0), (0, 1)], 7: [(0, 2), (0, 3)], 8: [(1, 0), (1, 1)], 9: [(1, 2), (1, 3)], 10: [(2, 0), (2, 1)], 11: [(2, 2), (2, 3)], 12: [(3, 0), (3, 1)], 13: [(3, 2), (3, 3)]}
    assert NP == 7
    spins = []
    def sub2(fn, *a):
        n0 = len(k.lines); fn(*a); r = k.lines[n0:]; del k.lines[n0:]; return r
    z1read(0)
    for i in range(14):
        if i in checks: k(f'ds_read_b128 v[{CK1}:{CK1+3}], v22')
        if i < 13:
            if i == 7: k('s_waitcnt vmcnt(14)')
            if IL: k('s_waitcnt lgkmcnt(0)')
            else: z1read(i + 1); k('s_waitcnt lgkmcnt(8)')
        else:
            k('s_waitcnt lgkmcnt(0)'); post(k, 9)
        rd = sub2(z1read, i + 1) if (IL and i < 13) else []
        if i in posts: post(k, posts[i])
        b = FR + (i & 1) * 24
        if i < 13: G.stamp(3 + i, '5')
        for p in range(2):
            for tt in range(4):
                mfma(k, A1 + (p * 4 + tt) * 4, b + 4 * p, b + 8 + 4 * tt, '0' if i == 0 else None)
                for _ in range(2):
                    if rd: k(rd.pop(0))
                if p == 0 and i in checks:
                    k([f'v_min3_u32 v{CK1}, v{CK1}, v{CK1+1}, v{CK1+2}', f'v_min_u32 v{CK1}, v{CK1}, v{CK1+3}', f'v_cmp_gt_u32 vcc, {checks[i]}, v{CK1}',
                       f's_cbranch_vccnz L_z1_spin{i}\nL_z1_ok{i}:'][tt])
            if p == 0 and i < 6: k(w1dma(8 + i, 224))
            if i in pre: st, j = pre[i][p]; k(spdma(j, slot=PI[st]))
        if i in checks: spins.append((f'L_z1_spin{i}', f'L_z1_ok{i}', CK1, 0, checks[i]))
        if WO1 == 'late' and i >= 11:
            for j in range(*{11: (0, 3), 12: (3, 6), 13: (6, 8)}[i]): k(wold(j))
        if i == NP - 2: k(stload)
        if i == NP:
            G.stamp(4); normalise(); G.stamp(6)
        if i == NP + 3:
            k(f"""
            s_lshl_b32 s24, s29, 11
            s_add_u32 s24, s24, {hex(WS_FZ)}
            s_lshl_b32 s35, s28, 6
            s_lshl_b32 s25, s32, 2
            s_add_u32 s35, s35, s25
            v_mov_b32 v53, s35
            s_waitcnt vmcnt(6)
            s_mov_b64 exec, 1
            buffer_store_dword v{TAG}, v53, s[12:15], s24 offen sc1
            s_mov_b64 exec, -1
            """)
            G.stamp(7)
    waitfor(k, 'wa9', 0, 4, 9, 32, sleep=False)
    def z1pre(t):
        for h in range(2):
            cs = [A1 + 16 * h + 4 * f for f in range(4)]
            gelu_tiles(t, cs, 64, sc=bool(opt.get('sca')))
            for tt in range(4):
                for p in range(2): cvt(t, ZP + 4 * tt + 2 * h + p, cs[tt] + 2 * p, cs[tt] + 2 * p + 1)
    FZE = opt.get('fze', '0') == '1' and not opt.get('bl')
    fzload = 'buffer_load_dwordx4 v[160:163], v19, s[12:15], s24 offen sc1'
    ev = [(i / 20.0, spdma(i % 4, slot=PI[4 + i // 4])) for i in range(12)]
    if WO1 == 'pre': ev += [(0.62 + 0.045 * j, wold(j)) for j in range(min(NR, 8))]
    if FZE: ev.append((float(opt.get('fzp', 0.75)), 's_cmp_lg_u32 s3, 0\n s_cbranch_scc1 L_fz0\n s_mov_b32 exec_hi, 0\n' + fzload + '\n s_mov_b32 exec_hi, -1\nL_fz0:'))
    k('v_lshlrev_b32 v19, 6, v0')
    k.lines += weave(sub(z1pre) if int(opt.get('peel', 0)) == 0 else [], ev)
    srd(k, 16, 12, 13, SZ_Z)
    ACC2, W, Z, CK = 32, 64, 96, 160
    k(f"""
    v_lshlrev_b32 v19, 6, v0
    s_lshl_b32 s33, s29, 19
    s_lshl_b32 s35, s32, 11
    s_add_u32 s34, s33, s35                ; fb*64*8192 + w*2048
    v_lshrrev_b32 v20, 1, v8
    v_xor_b32 v20, v20, v9
    v_lshlrev_b32 v20, 4, v20
    v_lshl_add_u32 v20, v8, 7, v20
    v_xor_b32 v21, 64, v20
    v_add_u32 v17, {PI[0]*16384}, v20
    v_add_u32 v18, {PI[0]*16384}, v21
    v_add_u32 v14, 8192, v2
    v_add_u32 v15, 16384, v2
    v_add_u32 v16, 24576, v2
    s_mov_b32 s38, {hex(PI_WORD)}
    s_mov_b32 s39, {hex(PI_WORD)}
    s_mov_b32 s36, 10                      ; 10 + stage
    """)
    ZV = [2, 14, 15, 16]
    for tt in range(4):
        lo(k, BSP[tt], BSP[tt])
        for ft in range(2):
            for r in range(4): k(f'v_mov_b32 v{ACC2+(ft*4+tt)*4+r}, v{BSP[tt]}')
    for j in range(8, NR): k(wold(j))
    G.stamp(8)
    k('s_cmp_lg_u32 s3, 0\n s_cbranch_scc1 L_nofz')
    poll(k, 'pfz', fzload, [CK, CK + 1, CK + 2, CK + 3], lanes='s_mov_b32 exec_hi, 0', nap=int(opt.get('nap', 1)), first_issued=FZE)
    if FZE:
        k('v_mov_b32 v23, 7\n ds_write_b32 v22, v23 offset:32\nL_nofz:')
        waitfor(k, 'wfz', 32, 1, 7, CK, sleep=False)
    else:
        k('L_nofz:\n s_waitcnt vmcnt(0)')
        post(k, 10)
        waitfor(k, 'wa10', 0, 4, 10, CK, sleep=False)
    G.stamp(9)
    adv = f's_add_u32 s34, s34, {4*8192}'
    def zld(n, ft):
        r = Z + (n % D) * 8 + ft * 4
        k(f'buffer_load_dwordx4 v[{r}:{r+3}], v{ZV[n%4]}, s[16:19], s34 offen offset:{1024*ft} {ZF}')
    for n in range(D):
        zld(n, 0); zld(n, 1)
        if n % 4 == 3: k(adv)
        if FZE and n == 1:
            k('s_waitcnt vmcnt(4)'); post(k, 10)
    if FZE: waitfor(k, 'wa10', 0, 4, 10, CK, sleep=False)
    def w2read(n, tt):
        ks = n & 3
        r = W + (n & 1) * 16 + tt * 4
        k(f'ds_read_b128 v[{r}:{r+3}], v{17 + (ks & 1)} offset:{(ks >> 1) * 8192 + tt * 2048}')
    for tt in range(4): w2read(0, tt)
    G.stamp(10)
    def z1epi(t):
        for h in range(2):
            for q in range(2):
                cs = [A1 + 16 * h + 8 * q + 4 * f for f in range(2)]
                gelu_tiles(t, cs, 232 + 8 * q, sc=True)
                for f in range(2):
                    for p in range(2): cvt(t, ZP + 4 * (2 * q + f) + 2 * h + p, cs[f] + 2 * p, cs[f] + 2 * p + 1)
    extra = sub(z1epi) if int(opt.get('peel', 0)) else []
    NPEEL = int(opt.get('peel', 0)); per = -(-len(extra) // max(NPEEL * 64, 1))
    SELF = not opt.get('bl')
    WPK = int(opt.get('wpk', 0))
    def wodma(i):
        blk, q = PI[i // 4], i % 4
        return f's_add_u32 m0, s43, {blk*16384 + 4096*q}\n s_add_u32 s35, s42, {(blk*128 + 32*q)*896}\n buffer_load_dwordx4 v10, s[8:11], s35 offen lds'
    def body(name, ride, last, dma=(False, False)):
        for n in range(8):
            k(f's_waitcnt vmcnt({(D-1)*2 - (2*n - min(WPK*n, 0 if not last else WPK*n) if last else 0)}) lgkmcnt(0)')
            fill = [[] for _ in range(8)]
            if n % 4 == 0:
                fill[4] = ['ds_write_b32 v29, v23']
                if opt.get('stamp') == '4':
                    for it in range(8):
                        st = 2 * it + n // 4
                        if st: fill[5].append(f's_cmp_lg_u32 s36, {10+st}\n s_cbranch_scc1 L_t{name}{n}_{it}\n s_memrealtime s[{64+2*st}:{65+2*st}]\nL_t{name}{n}_{it}:')
            if not (last and n > 3):
                if SELF:
                    if n % 4 == 1:
                        fill[4] = ['v_add_u32 v23, 1, v23']
                        fill[5] = ['s_lshr_b64 s[38:39], s[38:39], 4\n s_and_b32 s37, s38, 15\n s_lshl_b32 s37, s37, 14']
                    if n % 4 == 2:
                        fill[4] = [f'ds_read_b128 v[{CK}:{CK+3}], v22', f'ds_read_b128 v[{CK+4}:{CK+7}], v22 offset:16']
                        fill[5] = ['v_add_u32 v17, s37, v20']
                    if n % 4 == 3:
                        fill[4] = [f'v_min3_u32 v{CK}, v{CK}, v{CK+1}, v{CK+2}', f'v_min3_u32 v{CK+4}, v{CK+4}, v{CK+5}, v{CK+6}', 'v_add_u32 v18, s37, v21']
                        fill[5] = [f'v_min3_u32 v{CK}, v{CK}, v{CK+3}, v{CK+7}', f'v_min_u32 v{CK}, v{CK}, v{CK+4}']
                        fill[6] = [f'v_cmp_gt_u32 vcc, s36, v{CK}']
                        fill[7] = [f's_cbranch_vccnz L_{name}_spin{n}\nL_{name}_ok{n}:']
                        spins.append((f'L_{name}_spin{n}', f'L_{name}_ok{n}', CK, 'both', 's36'))
                    if WO1 == 'p0' and name == 'pa0' and n < 4: fill[3] = [wold(2 * n)]; fill[6] += [wold(2 * n + 1)]
                    if dma[n // 4]:
                        d = spdma(n % 4, dyn=True).strip().split('\n')
                        dp = int(opt.get('dpos', 6))
                        fill[dp - 1] = fill[dp - 1] + [d[0]]; fill[dp] = [d[1]] + fill[dp]
                        if len(d) > 2: fill[7] = ['\n'.join(d[2:])] + fill[7] if dp < 7 else fill[7] + ['\n'.join(d[2:])]
                elif n % 4 == 1:
                    fill[4] = [f'ds_read_b128 v[{CK}:{CK+3}], v22 offset:32', 'v_add_u32 v23, 1, v23']
                    fill[5] = ['s_lshr_b64 s[38:39], s[38:39], 4\n s_and_b32 s37, s38, 15\n s_lshl_b32 s37, s37, 14']
                if n % 4 == 2 and not SELF:
                    fill[4] = [f'v_min3_u32 v{CK}, v{CK}, v{CK+1}, v{CK+2}', 's_sub_u32 s35, s36, 9']
                    fill[5] = [f'v_min_u32 v{CK}, v{CK}, v{CK+3}', 'v_add_u32 v17, s37, v20']
                    fill[6] = [f'v_cmp_gt_u32 vcc, s35, v{CK}']
                    fill[7] = [f's_cbranch_vccnz L_{name}_spin{n}\nL_{name}_ok{n}:']
                    spins.append((f'L_{name}_spin{n}', f'L_{name}_ok{n}', CK, 32, 's35'))
                if n % 4 == 3 and not SELF: fill[4] += ['v_add_u32 v18, s37, v21']
            for ft in range(2):
                for tt in range(4):
                    mfma(k, ACC2 + (ft * 4 + tt) * 4, Z + (n % D) * 8 + ft * 4, W + (n & 1) * 16 + tt * 4)
                    if ft == 0 and not (last and n == 7): w2read(n + 1, tt)
                    for x in fill[4 * ft + tt]: k(x)
                    if ride:
                        for _ in range(per):
                            if extra: k(extra.pop(0))
                    if not last and 4 * ft + tt == int(opt.get('zpos', 3)): zld(n, 0)
                if not last and ft == 1: zld(n, 1)
            if n % 4 == 3: k(adv + '\n s_add_u32 s36, s36, 1')
    if SELF:
        k(f"""
        s_lshl_b32 s43, s32, 11
        s_add_u32 s43, s43, {PI[7]*16384}
        s_mov_b32 s40, {hex(((PI_WORD << 4) | PI[7]) & 0xffffffff)}
        s_mov_b32 s41, {PI[7]}
        """)
        for it in range(max(NPEEL, 1)): body(f'pa{it}', True, False, (it > 0, True))
        k('L_p2a:')
        body('pd', False, False, (True, True))
        k('s_cmp_lt_u32 s36, 20\n s_cbranch_scc1 L_p2a')
    else:
        for it in range(NPEEL): body(f'pa{it}', True, False)
    assert not extra
    k('L_p2:')
    body('pb', False, False)
    k('s_cmp_lt_u32 s36, 24\n s_cbranch_scc1 L_p2')
    srd(k, 8, 52, 53, 896 * 896)
    k(f"""
    v_lshrrev_b32 v11, 3, v0
    v_and_b32 v10, 6, v11
    v_and_b32 v12, 7, v0
    v_xor_b32 v10, v10, v12
    v_lshlrev_b32 v10, 4, v10
    v_mul_u32_u24 v11, 896, v11
    v_add_u32 v10, v10, v11
    s_lshl_b32 s35, s29, 7
    s_mul_i32 s42, s32, {8*896}
    s_add_u32 s42, s42, s35
    s_lshl_b32 s43, s32, 10
    """)
    UZ = A1 if NR <= 8 else 96
    if NR > 8: extra += ['s_nop 0'] * 0
    zun = []
    for i in range(16): zun += [f'v_lshlrev_b32 v{UZ+2*i}, 16, v{ZP+i}', f'v_and_b32 v{UZ+2*i+1}, 0xffff0000, v{ZP+i}']
    extra += ([''] * 32 if NR > 8 else []) + zun
    per = 1
    k(f"""
    s_mul_i32 s24, s28, {4*28}
    s_lshl_b32 s25, s29, 2
    s_add_u32 s25, s25, s32                ; kk
    s_add_u32 s24, s24, s25
    s_lshl_b32 s24, s24, 10
    s_add_u32 s24, s24, {hex(WS_H)}
    """)
    body('pc', True, True)
    k('s_branch L_p2_done')
    for a, b, c, off, val in spins:
        k(f"""
{a}:
        s_mov_b32 s62, {POLL_LIMIT*16}
{a}b:
        ds_read_b128 v[{c}:{c+3}], v22 offset:{0 if off == 'both' else off}
        {f'ds_read_b128 v[{c+4}:{c+7}], v22 offset:16' if off == 'both' else ''}
        s_waitcnt lgkmcnt(0)
        {f'v_min3_u32 v{c+4}, v{c+4}, v{c+5}, v{c+6}' if off == 'both' else ''}
        {f'v_min3_u32 v{c}, v{c}, v{c+4}, v{c+7}' if off == 'both' else ''}
        v_min3_u32 v{c}, v{c}, v{c+1}, v{c+2}
        v_min_u32 v{c}, v{c}, v{c+3}
        v_cmp_gt_u32 vcc, {val}, v{c}
        s_cbranch_vccz {b}
        s_sub_u32 s62, s62, 1
        s_cbranch_scc0 {a}b
        s_branch {b}
        """)
    k('L_p2_done:')
    G.stamp(11); G.stamp(1, '7'); G.stamp(1, '9')
    for tt in range(4):
        o = (96 + 16 * tt) if NR <= 8 else (128 + 12 * tt if tt < 2 else 64 + 12 * (tt - 2))
        its = [(ACC2 + (ft * 4 + tt) * 4 + 2 * p, UZ + 2 * (4 * tt + 2 * ft + p), o + 4 + 2 * (2 * ft + p), o + 2 * ft + p) for ft in range(2) for p in range(2)]
        if NOROUND:
            for a, z, t, d in its: pk(k, 'mul', t, a, z)
        else:
            for a, z, t, d in its: cvt(k, d, a, a + 1)
            for a, z, t, d in its: lo(k, t, d); hi(k, t + 1, d)
            for a, z, t, d in its: pk(k, 'mul', t, t, z)
        for a, z, t, d in its: cvt(k, d, t, t + 1)
        k(f'buffer_store_dwordx4 v[{o}:{o+3}], v2, s[12:15], s24 offen sc1')
        if tt < 3: k(f's_add_u32 s24, s24, {28*1024}')
    G.stamp(12); G.stamp(2, '7')
    HB, AC3, A3 = 32, 144, 160
    HD = int(opt.get('hd', 10))
    if not SELF: waitfor(k, 'wa24', 0, 4, 24, CK, sleep=False)
    n1 = min(int(opt.get('n1', 4)), 28 - NR)
    for i in range(8 * WPK, 8 * WPK + n1): k(wodma(i))
    k(f"""
    s_lshl_b32 s33, s28, 2
    s_add_u32 s33, s33, s32                ; tt
    s_lshl_b32 s37, s28, 11
    s_add_u32 s37, s37, {hex(WS_FH)}
    s_lshl_b32 s36, s25, 6
    v_mov_b32 v12, s36
    {G.st(3, '7')}
    s_waitcnt vmcnt({n1})
    {G.st(4, '7')}
    s_mov_b64 exec, 1
    buffer_store_dword v{TAG}, v12, s[12:15], s37 offen sc1
    s_mov_b64 exec, -1
    """)
    EARLY = opt.get('early', '0') != '0' and NR == 16
    LOOK = opt.get('early') == '1'
    fhl = {'': 'buffer_load_dword v20, v19, s[12:15], s37 offen sc1', 'a': 'v_mov_b32 v20, 0\n buffer_atomic_or v20, v19, s[12:15], s37 offen sc0 sc1', 's': 'buffer_load_dword v20, v19, s[12:15], s37 offen sc0 sc1', 'n': 'buffer_load_dword v20, v19, s[12:15], s37 offen sc1 nt'}[opt.get('fhk', '')]
    fhlanes = 's_mov_b32 exec_lo, 0x0fffffff\n s_mov_b32 exec_hi, 0'
    if LOOK: k('s_cmp_lg_u32 s3, 0\n s_cbranch_scc1 L_fh0\n' + fhlanes + '\n' + fhl + '\n s_mov_b64 exec, -1\nL_fh0:')
    if opt.get('ex'):
        assert n1 == 0 and WPK == 0
        k('s_cmp_eq_u32 s3, 0\n s_cbranch_scc1 L_ex')
        waitfor(k, 'wa25', 0, 4, 25, CK, sleep=False)
        k(f"""
        s_sub_u32 s42, s42, {8*896}
        s_sub_u32 s43, s43, 1024
L_exl:
        s_mov_b32 m0, s43
        s_add_u32 s43, s43, 3072
        buffer_load_dwordx4 v10, s[8:11], s42 offen lds
        s_add_u32 s42, s42, {24*896}
        s_cmp_lt_u32 s43, {112*1024}
        s_cbranch_scc1 L_exl
L_ex:
        """)
    else:
        for i in range(n1, min(24, 28 - NR)): k(wodma(i))
        k('v_add_u32 v14, s43, v2\n v_add_u32 v15, 0x10000, v14')
        waitfor(k, 'wa25', 0, 4, 25, CK, sleep=False)
        for i in range(24, 28 - NR): k(wodma(i))
        for j in range(NR):
            i = 28 - NR + j; off = PI[i // 4] * 16384 + 4096 * (i % 4)
            k(f'ds_write_b128 v{14 + off // 65536}, v[{WR[j]}:{WR[j]+3}] offset:{off % 65536}')
    srd(k, 16, 26, 27, 2048 * 896)
    k(f"""
    s_mul_i32 s34, s33, {28*1024}
    s_add_u32 s34, s34, {hex(WS_H)}
    v_lshrrev_b32 v10, 2, v0
    v_lshrrev_b32 v4, 1, v10
    v_and_b32 v4, 3, v4
    v_lshlrev_b32 v21, 5, v4
    v_and_b32 v13, 3, v0
    v_lshlrev_b32 v13, 3, v13
    v_lshl_add_u32 v13, v10, 7, v13
    """)
    for dt in range(4):
        k(f'v_xor_b32 v{192+dt}, {32*dt}, v21\n v_add_u32 v{192+dt}, v{192+dt}, v13\n v_add_u32 v{196+dt}, 0xe000, v{192+dt}')
    G.stamp(5, '7')
    k('s_cmp_lg_u32 s3, 0\n s_cbranch_scc1 L_nofh')
    poll(k, 'pfh', fhl, [20], lanes=fhlanes, nap=int(opt.get('hnap', 1)), first_issued=LOOK, wait0=f's_waitcnt vmcnt({28 - NR - n1})')
    k('L_nofh:\n s_waitcnt ' + ('' if EARLY else 'vmcnt(0) ') + 'lgkmcnt(0)')
    post(k, 26)
    waitfor(k, 'wa26', 0, 4, 26, CK, sleep=False)
    G.stamp(13); G.stamp(6, '7')
    KO = [4 * PI[b] + q for b in ([3, 4, 5, 6, 0, 1, 2] if EARLY else [PI.index(x) for x in range(7)]) for q in range(4)]
    def aread1(n, dt):
        for hh in range(2):
            f0 = 32 * KO[n] + 16 * hh
            r = A3 + (n & 1) * 16 + dt * 4 + hh * 2
            k(f'ds_read_b64_tr_b16 v[{r}:{r+1}], v{(192 if f0 < 448 else 196) + dt} offset:{(f0 % 448) * 128}')
    def hload(n):
        if n % 4 == 0: k(f's_add_u32 s38, s34, {KO[n]*1024}')
        k(f'buffer_load_dwordx4 v[{HB+4*n}:{HB+4*n+3}], v2, s[12:15], s38 offen offset:{1024*(n%4)} {ZF}')
    for kk in range(HD): hload(kk)
    for dt in range(4): aread1(0, dt)
    KB = int(opt.get('kb', 22))
    k(f"""
    s_lshl_b32 s36, s32, 5
    v_xor_b32 v12, s36, v21
    v_add_u32 v12, v12, v13
    v_add_u32 v12, {L_R}, v12
    s_lshl_b32 s36, s32, 7
    s_add_u32 s36, s36, {L_R + 8192}
    v_lshlrev_b32 v11, 3, v8
    v_add_u32 v11, s36, v11
    v_mul_u32_u24 v10, 896, v8
    v_lshrrev_b32 v14, 1, v9
    v_lshl_add_u32 v10, v14, 4, v10
    v_and_b32 v14, 1, v9
    v_lshl_add_u32 v10, v14, 5, v10        ; t*896 + (g>>1)*16 + (g&1)*32
    s_mul_i32 s36, s33, {16*896}
    s_lshl_b32 s37, s29, 7
    s_add_u32 s36, s36, s37
    """)
    t = K('w')
    for i in range(8): lo(t, 48 + 2 * i, 32 + i); hi(t, 49 + 2 * i, 32 + i)
    for i in range(16): t(f'v_mul_f32 v{48+i}, v{48+i}, v4')
    if not NOROUND:
        for i in range(8): cvt(t, 32 + i, 48 + 2 * i, 49 + 2 * i)
        for i in range(8): lo(t, 48 + 2 * i, 32 + i); hi(t, 49 + 2 * i, 32 + i)
    t('v_mov_b32 v4, v5')
    ride = t.lines; rp = -(-len(ride) // (4 * (27 - KB)))
    CK3 = 200
    for kk in range(28):
        if kk in (0, 8, 16): G.stamp(7 + kk // 8, '7')
        for dt in range(4):
            lg = 6 if kk < 27 else 6 - 2 * dt
            if opt.get('w2', '1') == '1':
                lg -= 2
                if dt % 2 == 0: k(f's_waitcnt vmcnt({min(HD - 1, 27 - kk)}) lgkmcnt({lg})' if dt == 0 else f's_waitcnt lgkmcnt({lg})')
            else: k(f's_waitcnt vmcnt({min(HD - 1, 27 - kk)}) lgkmcnt({lg})' if dt == 0 else f's_waitcnt lgkmcnt({lg})')
            mfma(k, AC3 + 4 * dt, A3 + (kk & 1) * 16 + dt * 4, HB + 4 * kk, '0' if kk == 0 else None)
            if EARLY and kk == 14:
                k([f'v_min3_u32 v{CK3}, v{CK3}, v{CK3+1}, v{CK3+2}', f'v_min_u32 v{CK3}, v{CK3}, v{CK3+3}', f'v_cmp_gt_u32 vcc, 27, v{CK3}', 's_cbranch_vccnz L_p3_spin\nL_p3_ok:'][dt])
            if kk < 27: aread1(kk + 1, dt)
            if kk > KB:
                for _ in range(rp):
                    if ride: k(ride.pop(0))
        if kk + HD < 28: hload(kk + HD)
        if EARLY and kk == 0: post(k, 27)
        if EARLY and kk == 12: k(f'ds_read_b128 v[{CK3}:{CK3+3}], v22')
        if kk == KB - 1:
            k('s_barrier'); G.stamp(12, '7'); k('ds_read_b64 v[4:5], v11')
            for dt in range(4): k(f'ds_read_b64_tr_b16 v[{32+2*dt}:{33+2*dt}], v12 offset:{2048*dt}')
    assert not ride
    G.stamp(14); G.stamp(11, '7')
    its = [(AC3 + 2 * i, 32 + i, 64 + 2 * i, 48 + 2 * i) for i in range(8)]
    if NOROUND:
        for c, a, t, g in its: pk(k, 'fma', t, c, 4, g)
    else:
        for c, a, t, g in its: cvt(k, a, c, c + 1)
        for c, a, t, g in its: lo(k, t, a); hi(k, t + 1, a)
        for c, a, t, g in its: pk(k, 'mul', t, t, 4)
        for c, a, t, g in its: cvt(k, a, t, t + 1)
        for c, a, t, g in its: lo(k, t, a); hi(k, t + 1, a)
        for c, a, t, g in its: pk(k, 'add', t, t, g)
    for c, a, t, g in its: cvt(k, a, t, t + 1)
    for pr in range(2):
        o = 32 + 4 * pr
        k(f'v_permlane16_swap_b32 v{o}, v{o+2}\n v_permlane16_swap_b32 v{o+1}, v{o+3}')
    for pr in range(2):
        o = 32 + 4 * pr
        k(f"buffer_store_dwordx4 v[{o}:{o+3}], v10, s[16:19], s36 offen offset:{64*pr} {opt.get('of', '').replace('_', ' ')}")
    k(f"""
    s_lshl_b32 s35, s2, 3
    s_add_u32 s35, s35, s3
    s_cmp_lg_u32 s35, 0
    s_cbranch_scc1 L_A_fin
    s_mov_b32 s35, {hex(WS_EP)}
    v_mov_b32 v1, 0
    s_mov_b64 exec, 1
    buffer_store_dword v{TAG}, v1, s[12:15], s35 offen sc1
    s_mov_b64 exec, -1
L_A_fin:
    """)
    tail_spin = EARLY
    G.stamp(13, '7')
    if opt.get('stamp'): k('s_waitcnt vmcnt(0)')
    G.stamp(15); G.stamp(14, '7')
    G.flush(16)
    k('s_endpgm')
    if tail_spin:
        k('L_p3_spin:'); waitfor(k, 'w27', 0, 4, 27, CK3, sleep=False); k('s_branch L_p3_ok')

    k('L_B:')
    common2()
    k(f"""
    s_mul_i32 s39, s32, {KG_WAVE}
    s_add_u32 s39, s39, {L_KG}
    """)
    k(tagcalc)
    G.stamp(1, '2')
    def wb(j, w): return G.st(2 + 2 * j, '2') + (f's_waitcnt vmcnt({w})\n' if w is not None else '') + G.st(3 + 2 * j, '2') + 's_barrier\n'
    k(wb(0, None) + w2stage(2))
    w1setup(18)
    k(f"""
    s_lshl_b32 s41, s31, 1
    v_mul_u32_u24 v7, {KG_ROW}, v0
    v_add_u32 v7, s39, v7
    v_lshrrev_b32 v1, 5, v0
    v_lshrrev_b32 v3, 2, v8
    v_lshl_add_u32 v1, v1, 2, v3
    v_mul_u32_u24 v1, {KG_ROW}, v1
    v_and_b32 v3, 1, v9
    v_lshl_add_u32 v1, v3, 5, v1
    v_and_b32 v3, 3, v0
    v_lshl_add_u32 v1, v3, 3, v1
    v_add_u32 v1, s39, v1
    """)
    k(wb(1, None) + w2stage(3))
    k(f"""
    ; L2 warm-up: this workgroup's eighth of the z1 slice of w_in, and a share of the second half of the w_sp tile
    s_and_b32 s35, s28, 7
    s_lshl_b32 s35, s35, 2
    s_add_u32 s35, s35, s32
    s_mul_i32 s42, s35, {14*3584}
    s_lshl_b32 s35, s29, 8
    s_add_u32 s42, s42, s35
    v_min_u32 v16, 27, v0
    v_lshrrev_b32 v17, 1, v16
    v_mul_u32_u24 v17, 3584, v17
    v_and_b32 v16, 1, v16
    v_lshl_add_u32 v16, v16, 7, v17
    v_lshrrev_b32 v156, 2, v8
    v_lshl_add_u32 v156, v9, 3, v156         ; 8g + r
    v_lshrrev_b32 v157, 1, v156
    v_and_b32 v157, 7, v157
    v_and_b32 v158, 3, v0
    v_lshrrev_b32 v159, 1, v158
    s_lshl_b32 s35, s32, 1
    v_add_u32 v159, s35, v159
    v_xor_b32 v157, v157, v159
    v_lshlrev_b32 v157, 4, v157
    v_lshl_add_u32 v157, v156, 7, v157
    v_and_b32 v158, 1, v158
    v_lshl_add_u32 v157, v158, 3, v157
    s_add_u32 s35, s29, 7
    s_sub_u32 s35, s35, s31
    s_cmp_ge_u32 s35, 7
    s_cselect_b32 s63, 7, 0
    s_sub_u32 s35, s35, s63
    s_lshl_b32 s35, s35, 13
    s_add_u32 s35, s35, {L_X}
    v_add_u32 v157, s35, v157                ; hh = 0
    v_xor_b32 v158, 32, v157
    v_add_u32 v158, 512, v158                ; hh = 1
    v_lshlrev_b32 v159, 12, v8
    v_lshl_add_u32 v159, v9, 4, v159
    s_lshl_b32 s36, s29, 2
    s_add_u32 s36, s36, s32
    s_lshl_b32 s36, s36, 16
    s_lshl_b32 s35, s28, 7
    s_add_u32 s36, s36, s35
    s_add_u32 s36, s36, {hex(WS_UT)}
    s_lshl_b32 s37, s29, 5
    s_add_u32 s37, s37, s28
    s_lshl_b32 s37, s37, 2
    s_add_u32 s37, s37, s32
    s_lshl_b32 s37, s37, 2
    s_add_u32 s37, s37, {hex(WS_FU)}
    """)
    da = float(opt.get('kga', 0.0)); db = float(opt.get('kgb', 0.0))
    k(f'buffer_load_dword v{PRM+9}, v16, s[16:19], s42 offen')
    d0 = 0.0
    EV = [(d0, wb(2, 7) + w2stage(4)), (d0 + da, wb(3, 7) + w2stage(5)),
          (d0 + 2 * da, wb(4, 6) + w2stage(6) + w1dma(0, 18) + w1dma(1, 18)),
          (d0 + 2 * da + db, wb(5, 10) + w1dma(2, 18) + w1dma(3, 18)),
          (d0 + 2 * da + 2 * db, wb(6, 8) + w1dma(4, 18) + w1dma(5, 18))]
    t = K('w')
    for hf in range(2):
        t(f'ds_read_b64_tr_b16 v[{160+4*hf}:{161+4*hf}], v157 offset:{4096*hf}\n ds_read_b64_tr_b16 v[{162+4*hf}:{163+4*hf}], v158 offset:{4096*hf}')
    t('s_waitcnt lgkmcnt(0)')
    t('s_barrier\n' + w1dma(6, 18) + w1dma(7, 18))
    if opt.get('sent'):
        t(f's_mul_i32 s35, s28, {4*28}\n s_lshl_b32 s63, s29, 2\n s_add_u32 s35, s35, s63\n s_add_u32 s35, s35, s32\n s_lshl_b32 s35, s35, 10\n s_add_u32 s35, s35, {hex(WS_H)}')
        t('v_mov_b32 v168, -1\n v_mov_b32 v169, -1\n v_mov_b32 v170, -1\n v_mov_b32 v171, -1')
        for tt in range(4): t(f'buffer_store_dwordx4 v[168:171], v2, s[12:15], s35 offen sc1\n s_add_u32 s35, s35, {28*1024}')
    for hf in range(2): t(f'buffer_store_dwordx4 v[{160+4*hf}:{163+4*hf}], v159, s[12:15], s36 offen offset:{64*hf} sc1')
    t(G.st(1))
    EV.append((d0 + 2 * da + 3 * db, t.lines))
    DP = 232; DT = PRM + 8
    def kgen(t, c, hook=None):
        if opt.get('nokg'):
            if hook: hook(t)
            for i in range(100): t('s_nop 0')
            return
        if c == 0:
            t(f'v_lshlrev_b32 v{DT}, 16, v{DT}\n v_mul_f32 v{DT}, {f32hex(L2E)}, v{DT}\n v_exp_f32 v{DT}, v{DT}')
            cvt(t, DT, DT, DT); lo(t, DT, DT)
        Z1_, Z8, Z256, Z2_, Z4 = 32, 35, 38, 41, 44
        V, PKD, XA_, XB_ = 128, 48, 56, 58
        p = PRM + 4 * c
        t(f"""
        v_lshlrev_b32 v{p}, 16, v{p}
        v_mul_f32 v{p}, {f32hex(L2E)}, v{p}
        v_exp_f32 v{p}, v{p}
        v_lshlrev_b32 v{p+1}, 16, v{p+1}
        v_lshlrev_b32 v{p+2}, 16, v{p+2}
        v_lshlrev_b32 v{p+3}, 16, v{p+3}
        v_cvt_pk_bf16_f32 v{p}, v{p}, v{p}
        v_mul_f32 v{p+1}, v{p+1}, v{DT}
        v_lshlrev_b32 v{p}, 16, v{p}
        v_mul_f32 v{p+1}, 0.15915494, v{p+1}
        v_mul_f32 v{p}, v{p}, v{DT}
        v_add_f32 v60, v{DT}, v{DT}
        v_mul_f32 v{p}, {f32hex(-L2E)}, v{p}
        v_mul_f32 v{XA_}, v{p+2}, v60
        v_mul_f32 v{XA_+1}, v{p+3}, v60
        """)
        for (d, e) in ((Z8, 8), (Z1_, 1), (Z256, 256)):
            t(f"""
            v_mul_f32 v60, {f32hex(float(e))}, v{p}
            v_mul_f32 v61, {f32hex(float(e))}, v{p+1}
            v_exp_f32 v60, v60
            v_fract_f32 v61, v61
            v_cos_f32 v{d}, v61
            v_sin_f32 v{d+1}, v61
            v_mul_f32 v{d}, v{d}, v60
            v_mul_f32 v{d+1}, v{d+1}, v60
            v_sub_f32 v{d+2}, 0, v{d+1}
            """)
        def put(q, vals, neg):
            for i in range(4):
                cvt(t, PKD + i, vals[2 * i], vals[2 * i + 1])
            t(f'ds_write_b128 v7, v[{PKD}:{PKD+3}] offset:{16*q}')
            n = '-' if neg else ''
            for i in range(4):
                t(f'v_cvt_pk_bf16_f32 v{PKD+4+i}, {n}v{vals[2*i]+1}, {n}v{vals[2*i+1]+1}')
            t(f'ds_write_b128 v7, v[{PKD+4}:{PKD+7}] offset:{64 + 16*q}')
        vs = [V + 2 * i for i in range(8)]
        t(f'v_mov_b32 v{V}, 1.0\n v_mov_b32 v{V+1}, 0')
        for q in range(4):
            for i in range(8):
                if q == 0 and i == 0: continue
                if q == 0 and i == 1: t(f'v_mov_b32 v{vs[1]}, v{Z8}\n v_mov_b32 v{vs[1]+1}, v{Z8+1}')
                else: cmul(t, vs[i], vs[i - 1], Z8)
            if q == 0 and hook: hook(t)
            put(q, vs, True)
        cmul(t, Z2_, Z1_, Z1_); t(f'v_sub_f32 v{Z2_+2}, 0, v{Z2_+1}')
        cmul(t, Z4, Z2_, Z2_); t(f'v_sub_f32 v{Z4+2}, 0, v{Z4+1}')
        t('s_waitcnt lgkmcnt(0)')
        FB, FA = 64, 96
        def frags(F):
            for ks in range(8):
                t(f'ds_read_b64_tr_b16 v[{F+4*ks}:{F+4*ks+1}], v1 offset:{8*KG_ROW*ks}\n ds_read_b64_tr_b16 v[{F+4*ks+2}:{F+4*ks+3}], v1 offset:{8*KG_ROW*ks + 64}')
        frags(FB)
        cmul(t, vs[1], XA_, Z1_)
        for i in range(2, 8): cmul(t, vs[i], vs[i - 1], Z1_)
        t('s_waitcnt lgkmcnt(0)')
        put(0, [XA_] + vs[1:], False)
        cmul(t, XB_, XA_, Z256)
        cmul(t, vs[1], XB_, Z2_)
        for i in range(2, 5): cmul(t, vs[i], vs[i - 1], Z2_)
        put(1, [XB_, vs[1], vs[2], vs[2], vs[2], vs[3], vs[4], vs[4]], False)
        cmul(t, XA_, XB_, Z256); cmul(t, vs[0], XA_, Z4); cmul(t, vs[1], vs[0], Z4)
        cmul(t, XB_, XA_, Z256); cmul(t, vs[2], XB_, Z4); cmul(t, vs[3], vs[2], Z4)
        put(2, [XA_, vs[0], XB_, vs[2], vs[0], vs[1], vs[2], vs[3]], False)
        cmul(t, vs[0], XB_, Z256)
        for i in range(1, 4): cmul(t, vs[i], vs[i - 1], Z256)
        for i in range(4): cmul(t, vs[4 + i], vs[i], Z8)
        put(3, vs, False)
        t('s_waitcnt lgkmcnt(0)')
        frags(FA)
        for ks in range(8):
            t(f's_waitcnt lgkmcnt({14-2*ks})')
            cin = '0' if (ks == 0 and c == 0) else f'v[{DP}:{DP+15}]'
            t(f'v_mfma_f32_32x32x16_bf16 v[{DP}:{DP+15}], v[{FA+4*ks}:{FA+4*ks+3}], v[{FB+4*ks}:{FB+4*ks+3}], {cin}')
    EV[-1] = (EV[-1][0], '\n'.join(EV[-1][1]))
    t = K('w'); t('s_waitcnt vmcnt(2)'); post(t, 1)
    t2 = f's_waitcnt vmcnt(0)\n v_mov_b32 v10, 0\n s_mov_b64 exec, 1\n buffer_store_dword v{TAG}, v10, s[12:15], s37 offen sc1\n s_mov_b64 exec, -1'
    f7 = EV[-1][0]
    B_, B2, A_, Wt, UR, AC, P = 32, 80, 112, 144, 168, 176, 192
    fuload = 'buffer_load_dwordx2 v[176:177], v5, s[12:15], s36 offen sc1'
    t3 = f"""
    s_lshr_b32 s36, s20, 6
    s_lshl_b32 s36, s36, 9
    s_add_u32 s36, s36, {hex(WS_FU)}
    v_lshlrev_b32 v5, 3, v0
    {fuload}
    s_lshl_b32 s23, s20, 12                ; ch*4096
    s_add_u32 s44, s12, {hex(WS_UT)}
    s_addc_u32 s45, s13, 0
    s_add_u32 s44, s44, s23
    s_addc_u32 s45, s45, 0
    s_mov_b32 s46, 4096
    s_mov_b32 s47, 0x20000
    """
    for q in range(5):
        t3 += f'v_add_u32 v{180+q}, {64*q}, v0\n v_mul_u32_u24 v6, 3856, v{180+q}\n v_lshrrev_b32 v6, 16, v6\n v_sub_u32 v{180+q}, v{180+q}, v6\n v_lshlrev_b32 v{180+q}, 4, v{180+q}\n v_add_u32 v{180+q}, -16, v{180+q}\n'
    t3 += f"""
    v_mul_u32_u24 v6, 272, v8
    s_lshl_b32 s35, s22, 3
    s_add_u32 s35, s35, s39
    v_lshl_add_u32 v185, v9, 4, v6
    v_add_u32 v185, s35, v185              ; a*272 + g*16 + 8hf
    v_lshl_add_u32 v186, v9, 6, v6
    v_add_u32 v186, s35, v186              ; a*272 + g*64 + 8hf
    """
    k.lines += weave(sub(kgen, 0), EV + [(f7 + float(opt.get('kgp', 0.06)), '\n'.join(t.lines)), (min(f7 + float(opt.get('kgu', 0.2)), 0.9), t2), (0.93, t3)])
    G.stamp(2)
    if opt.get('kprio'): k(f"s_setprio {opt['kprio']}")
    poll(k, 'pfu', fuload, [176, 177], nap=2, first_issued=True)
    for q in range(5):
        k(f's_add_u32 m0, s39, {q*1024}')
        if q == 4: k('s_mov_b64 exec, 0xffff')
        k(f'buffer_load_dwordx4 v{180+q}, s[44:47], 0 offen sc1 lds')
    k('s_mov_b64 exec, -1')
    G.stamp(3)
    def uhook(t):
        t('s_waitcnt vmcnt(0)')
        for kk in range(4):
            for m in range(3): t(f'ds_read_b64 v[{Wt+6*kk+2*m}:{Wt+6*kk+2*m+1}], v185 offset:{64*kk + 8*m}')
        t('s_waitcnt lgkmcnt(8)')
        for i in range(4): t(f'ds_read_b64 v[{UR+2*i}:{UR+2*i+1}], v186 offset:{16 + 16*i}')
        t('s_waitcnt lgkmcnt(0)')
    kgen(k, 1, uhook)
    G.stamp(5)
    k(f"""
    s_mul_i32 s38, s21, 4352
    s_xor_b32 s35, s3, 1
    s_lshl_b32 s35, s35, 2
    v_add_u32 v21, s35, v22
    s_cmp_eq_u32 s22, 0
    s_cbranch_scc1 L_B_fin
    v_add_u32 v1, s39, v2
    """)
    for q in range(4): k(f'ds_write_b128 v1, v[{DP+4*q}:{DP+4*q+3}] offset:{1024*q}')
    k('s_waitcnt lgkmcnt(0)'); post(k, 100)
    k('s_branch L_B_join')
    k(f'L_B_fin:\n s_add_u32 s35, s39, {KG_WAVE}\n v_add_u32 v1, s35, v2')
    waitfor(k, 'wbp', 0, 1, 100, 32, base=21)
    for q in range(4): k(f'ds_read_b128 v[{80+4*q}:{83+4*q}], v1 offset:{1024*q}')
    k(f"""
    v_and_b32 v5, 31, v0
    v_lshlrev_b32 v5, 4, v5
    v_lshrrev_b32 v7, 5, v0
    v_xor_b32 v6, 1, v7
    v_lshl_add_u32 v5, v6, 3, v5
    s_add_u32 s35, s38, {L_KI + 256}
    v_add_u32 v5, s35, v5                  ; KI + j*16 + 8*(1-h)
    v_lshlrev_b32 v6, 2, v0
    s_add_u32 s35, s38, {L_KI}
    v_add_u32 v6, s35, v6
    s_waitcnt lgkmcnt(0)
    """)
    post(k, 100)
    for i in range(8): pks(k, 'add', 64 + 2 * i, DP + 2 * i, 80 + 2 * i)
    k('v_cmp_eq_u32 vcc, 1, v7\n v_cndmask_b32 v80, v72, v73, vcc\n v_cndmask_b32 v81, v74, v75, vcc')
    k('v_and_b32 v7, 1, v0\n v_cmp_eq_u32 vcc, 1, v7')
    for i in range(4): k(f'v_mov_b32 v{84+i}, v{76+i}\n v_mov_b32 v{88+i}, v{76+i}')
    for i in range(4): k(f'v_permlane32_swap_b32 v{84+i}, v{88+i}')
    for i in range(4): k(f'v_cndmask_b32 v{84+i}, v{84+i}, v{76+i}, vcc')
    blks = [(67, 66, 65, 64), (70, 69, 68, 68), (73, 80, 72, 72), (75, 81, 74, 74)] + [(76 + i, 76 + i, 76 + i, 84 + i) for i in range(4)]
    for b, (a0, a1, a2, a3) in enumerate(blks): cvt(k, 96 + 2 * b, a0, a1); cvt(k, 97 + 2 * b, a2, a3)
    waitfor(k, 'wbb0', 16, 4, 100, 32)
    k('v_mov_b32 v3, 0\n ds_write_b32 v6, v3')
    for b in range(8): k(f'ds_write_b64 v5, v[{96+2*b}:{97+2*b}] offset:{512*b}')
    k('s_waitcnt lgkmcnt(0)\nL_B_join:')
    post(k, 101)
    LC = 216
    BL = opt.get('bl')
    ldread = f'ds_read_b128 v[{LC}:{LC+3}], v22'
    if BL:
        srd(k, 8, 48, 49, 0x800000)
        k(f"""
        v_lshrrev_b32 v10, 3, v0
        v_lshl_add_u32 v10, v10, 12, v20
        v_add_u32 v11, 128, v10
        v_xor_b32 v12, 64, v10
        v_add_u32 v12, 0x8000, v12
        v_add_u32 v13, 128, v12
        s_lshl_b32 s42, s28, 2
        s_add_u32 s42, s42, s32
        s_lshl_b32 s42, s42, 16
        s_add_u32 s42, s42, {7*256}
        s_lshl_b32 s43, s32, 11
        s_add_u32 s43, s43, {PI[7]*16384}
        s_mov_b32 s40, {hex(((PI_WORD << 4) | PI[7]) & 0xffffffff)}
        s_mov_b32 s41, {PI[7]}
        s_mov_b32 s44, 7
        s_mov_b32 s45, 0
        s_mov_b32 s46, 9
        """)
    LD = int(opt.get('ld', 1))
    def ldstep(name):
        k(f"""
        v_min3_u32 v{LC}, v{LC}, v{LC+1}, v{LC+2}
        v_min_u32 v{LC}, v{LC}, v{LC+3}
        v_cmp_gt_u32 vcc, s46, v{LC}
        s_cbranch_vccnz L_{name}_no
        s_cmp_lg_u32 s44, 16
        s_cbranch_scc1 L_{name}_go
        v_mov_b32 v23, 15
        s_mov_b32 s46, -1
        s_waitcnt vmcnt(0)
        s_branch L_{name}_po
L_{name}_go:
        """)
        for j in range(4): k(spdma(j, dyn=True))
        k(f"""
        s_sub_u32 s35, s44, {LD}
        s_max_u32 s35, s35, 6
        v_mov_b32 v23, s35
        s_add_u32 s44, s44, 1
        s_add_u32 s45, s45, {int(opt.get('pace', 2))}
        s_lshr_b32 s46, s45, 1
        s_add_u32 s46, s46, 10
        s_cmp_eq_u32 s44, 16
        s_cselect_b32 s46, 0, s46
        s_waitcnt vmcnt({4*LD})
L_{name}_po:
        ds_write_b32 v29, v23 offset:16
L_{name}_no:
        """)
    k(f"""
    v_sub_u32 v5, v8, v9
    v_lshlrev_b32 v5, 4, v5
    s_add_u32 s35, s38, {L_KI + 64 + 15*256}
    v_add_u32 v5, s35, v5
    v_cmp_ne_u32 vcc, 8, v8
    v_cndmask_b32 v15, 0, -1, vcc
    v_cmp_gt_u32 vcc, 8, v8
    """)
    G.stamp(6)
    def BF(kk, rr): return Wt + 6 * kk + 2 if rr == 3 else B_ + (kk * 3 + rr) * 4
    for kk in range(4):
        w = Wt + 6 * kk
        for j in range(4):
            k(f'v_alignbit_b32 v{BF(kk,0)+j}, v{w+j+1}, v{w+j}, 16\n v_mov_b32 v{BF(kk,1)+j}, v{w+j+1}\n v_alignbit_b32 v{BF(kk,2)+j}, v{w+j+2}, v{w+j+1}, 16')
    for kk in range(4):
        for p in range(2):
            for j in range(4):
                k(f'v_cndmask_b32_dpp v{B2 + (kk*2+p)*4 + j}, v{BF(kk,2*p+1)+j}, v{BF(kk,2*p)+j}, vcc row_shr:8 row_mask:0xf bank_mask:0xf bound_ctrl:1')
    for j in range(8): k(f'v_mov_b32 v{P+j}, 0')
    def cread(buf):
        for kk in range(4):
            r = A_ + buf * 16 + kk * 4
            k(f'ds_read_b128 v[{r}:{r+3}], v5 offset:{192 - 64*kk}')
        k('v_add_u32 v5, -256, v5')
    waitfor(k, 'wbq', 0, 1, 101, LC, base=21)
    cread(0)
    G.stamp(7)
    if opt.get('kprio'): k('s_setprio 0')
    if opt.get('bprio'): k(f"s_setprio {opt['bprio']}")
    shp = lambda r: f'v_and_b32_dpp v{r}, v{r}, v15 row_shr:1 row_mask:0xf bank_mask:0xf bound_ctrl:1'
    shf = lambda r: f'v_mov_b32_dpp v{r}, v{r} row_shr:1 row_mask:0xf bank_mask:0xf bound_ctrl:1'
    k('s_mov_b32 s7, 0' + ('\n s_branch L_B_last' if opt.get('noconv') else '') + '\nL_B_pk:')
    for half in range(2):
        if BL: k(ldread)
        cread(1 - half)
        for j in range(4): k(shp(P + j))
        k('s_waitcnt lgkmcnt(4)')
        if BL: ldstep(f'ldp{half}')
        for kk in range(4): mfma(k, P, A_ + half * 16 + kk * 4, B2 + (kk * 2) * 4); k(shp(P + 4 + kk))
        for kk in range(4): mfma(k, P + 4, A_ + half * 16 + kk * 4, B2 + (kk * 2 + 1) * 4)
    k('s_add_u32 s7, s7, 1\n s_cmp_lt_u32 s7, 4\n s_cbranch_scc1 L_B_pk')
    for j in range(4): k(f'v_mov_b32_dpp v{AC + j}, v{P+j} row_shr:1 row_mask:0xf bank_mask:0xf bound_ctrl:1')
    for j in range(4): k(f'v_mov_b32_dpp v{AC + 4 + j}, v{P+j} row_shl:8 row_mask:0xf bank_mask:0xf bound_ctrl:1')
    for j in range(4): k(f'v_mov_b32 v{AC + 8 + j}, v{P+4+j}')
    for j in range(4): k(f'v_mov_b32_dpp v{AC + 12 + j}, v{P+4+j} row_shl:8 row_mask:0xf bank_mask:0xf bound_ctrl:1')
    k('s_mov_b32 s7, 0\nL_B_fl:')
    if opt.get('bpk'): k(f"s_cmp_lt_u32 s7, {int(opt['bpk']) - 1}\n s_cbranch_scc1 L_B_kp\n s_setprio 0\nL_B_kp:")
    for half in range(2):
        if BL: k(ldread)
        cread(1 - half)
        k('s_waitcnt lgkmcnt(4)')
        if BL: ldstep(f'ldf{half}')
        for rr in range(4):
            if rr == 3 and half == 1: k('s_add_u32 s7, s7, 1\n s_cmp_eq_u32 s7, 4\n s_cbranch_scc1 L_B_last')
            for kk in range(4):
                mfma(k, AC + 4 * rr, A_ + half * 16 + kk * 4, BF(kk, rr))
                k(shf(AC + 4 * ((rr + 1) % 4) + kk))
    k('s_branch L_B_fl\nL_B_last:\n s_nop 1')
    for kk in range(4): mfma(k, AC + 12, A_ + 16 + kk * 4, BF(kk, 3))
    G.stamp(8)
    if BL:
        k(f's_mov_b32 s62, {POLL_LIMIT*16}\nL_B_ld:\n s_cmp_eq_u32 s46, -1\n s_cbranch_scc1 L_B_ldd\n' + ldread + '\n s_waitcnt lgkmcnt(0)')
        ldstep('ldl')
        k('s_sub_u32 s62, s62, 1\n s_cbranch_scc0 L_B_ld\nL_B_ldd:\n s_nop 7')
    k(f"s_setprio {opt.get('eprio', 2)}")
    k(f"""
    s_lshl_b32 s35, s22, 3
    s_add_u32 s35, s35, s38
    s_add_u32 s35, s35, {L_U + 16}
    v_mul_u32_u24 v6, 272, v8
    v_lshl_add_u32 v7, v9, 6, v6
    v_add_u32 v7, s35, v7
    s_lshl_b32 s35, s21, 4
    s_lshr_b32 s30, s30, s35
    s_lshl_b32 s30, s30, 16
    v_mov_b32 v18, s30
    v_mov_b32 v19, s30
    """)
    its = [(UR + 2 * i + p, AC + 8 * p + i, AC + 8 * p + 4 + i, 48 + 4 * (2 * i + p), 40 + 2 * i + p) for i in range(4) for p in range(2)]
    if NOROUND:
        for u, y0, y1, t, y in its: lo(k, t, u); hi(k, t + 1, u)
        for u, y0, y1, t, y in its: k(f'v_fmac_f32 v{y0}, v{t}, v18\n v_fmac_f32 v{y1}, v{t+1}, v18')
        for u, y0, y1, t, y in its: cvt(k, u, y0, y1)
    else:
        for u, y0, y1, t, y in its: cvt(k, y, y0, y1); lo(k, t, u); hi(k, t + 1, u)
        for u, y0, y1, t, y in its: pks(k, 'mul', t, t, 18)
        for u, y0, y1, t, y in its: cvt(k, u, t, t + 1); lo(k, t + 2, y); hi(k, t + 3, y)
        for u, y0, y1, t, y in its: lo(k, t, u); hi(k, t + 1, u)
        for u, y0, y1, t, y in its: pks(k, 'add', t, t, t + 2)
        for u, y0, y1, t, y in its: cvt(k, u, t, t + 1)
    for i in range(4): k(f'ds_write_b64 v7, v[{UR+2*i}:{UR+2*i+1}] offset:{16*i}')
    k(f"""
    s_lshl_b32 s35, s22, 3
    v_add_u32 v7, s35, v9
    v_mul_u32_u24 v7, 272, v7
    v_lshl_add_u32 v7, v8, 4, v7
    s_add_u32 s35, s38, {L_U + 16}
    v_add_u32 v7, s35, v7
    s_lshl_b32 s36, s22, 11
    s_add_u32 s36, s36, s23
    s_add_u32 s36, s36, {hex(WS_AT)}
    s_waitcnt lgkmcnt(0)
    """)
    post(k, 103)
    waitfor(k, 'wbr', 0, 1, 103, 32, base=21)
    k(f"""
    ds_read_b128 v[32:35], v7
    ds_read_b128 v[36:39], v7 offset:{4*272}
    s_waitcnt lgkmcnt(0)
    buffer_store_dwordx4 v[32:35], v2, s[12:15], s36 offen sc1
    buffer_store_dwordx4 v[36:39], v2, s[12:15], s36 offen offset:1024 sc1
    """)
    k(f"""
    s_lshl_b32 s30, s20, 3
    s_lshl_b32 s35, s22, 2
    s_add_u32 s30, s30, s35
    s_add_u32 s30, s30, {hex(WS_FA)}
    """)
    G.stamp(9)
    G.stamp(1, '7')
    faload = 'buffer_load_dwordx2 v[96:97], v1, s[12:15], s39 offen sc1\n buffer_load_dwordx4 v[100:103], v2, s[12:15], s5 offen sc1'
    atile = f"""
    s_lshl_b32 s36, s29, 18
    s_lshl_b32 s35, s28, 7
    s_add_u32 s36, s36, s35
    s_add_u32 s36, s36, {hex(WS_AT)}
    """
    for q in range(8): atile += f's_mov_b32 m0, {L_R + 1024*q}\n s_nop 0\n buffer_load_dwordx4 v17, s[12:15], s36 offen sc1 lds\n s_add_u32 s36, s36, 0x8000\n'
    atile += f"""
    s_lshl_b32 s36, s28, 9
    s_add_u32 s36, s36, {hex(WS_G2)}
    s_mov_b32 m0, {L_R + 8192}
    s_mov_b32 exec_hi, 0
    buffer_load_dwordx4 v2, s[12:15], s36 offen sc1 lds
    s_mov_b32 exec_hi, -1
    s_mov_b32 s7, 1
    """
    k(f"""
    s_lshl_b32 s39, s29, 9
    s_add_u32 s39, s39, {hex(WS_FA)}
    s_mov_b32 s5, {hex(WS_FG)}
    v_lshlrev_b32 v1, 3, v0
    v_mov_b32 v3, 0
    v_lshrrev_b32 v16, 3, v0
    v_and_b32 v17, 6, v16
    v_xor_b32 v17, v17, v0
    v_and_b32 v17, 7, v17
    v_lshlrev_b32 v17, 4, v17
    v_lshl_add_u32 v17, v16, 12, v17
    s_waitcnt vmcnt(0)
    s_mov_b64 exec, 1
    buffer_store_dword v{TAG}, v3, s[12:15], s30 offen sc1
    s_mov_b64 exec, -1
    s_setprio 0
    s_cmp_lg_u32 s32, 0
    s_cbranch_scc1 L_B_end
    """)
    fa1, fa2 = faload.split('\n')
    poll(k, 'pfg', fa2, [100, 101, 102, 103], nap=16)
    waitfor(k, 'wfa', 0, 4, int(opt.get('fat', 26)), LC, sleep=2)
    poll(k, 'pfa', fa1, [96, 97], nap=int(opt.get('anap', 8)))
    G.stamp(10)
    k(atile + 's_waitcnt vmcnt(0)\nL_B_end:')
    G.stamp(11); G.stamp(11, '7')
    k('s_barrier')
    G.flush(16)
    k('s_endpgm')

    k('L_helper:')
    k(f"""
    s_getpc_b64 s[36:37]
L_pc:
    s_sub_u32 s36, s36, L_pc-{NAME}
    s_subb_u32 s37, s37, 0
    s_lshl_b32 s35, s3, 13
    v_lshlrev_b32 v10, 7, v0
    v_add_u32 v10, s35, v10
    v_min_u32 v10, L_end-{NAME}, v10
    global_load_dword v29, v10, s[36:37]
    v_min_u32 v1, 55, v0
    v_lshlrev_b32 v10, 4, v1
    global_load_dwordx4 v[24:27], v10, s[54:55]
    v_lshlrev_b32 v5, 12, v0
    s_lshl_b32 s35, s28, 18
    s_lshl_b32 s22, s3, 7
    s_add_u32 s35, s35, s22
    v_add_u32 v5, s35, v5
    s_and_b32 s35, s3, 1
    s_cmp_eq_u32 s35, 1
    s_cbranch_scc0 L_H_even
    v_mov_b32 v6, v7
L_H_even:
    s_lshl_b32 s20, s28, 3
    s_add_u32 s20, s20, s3
    s_mul_i32 s20, s20, {8*896}
    s_lshl_b32 s21, s3, 10
    v_lshrrev_b32 v10, 3, v1
    v_lshlrev_b32 v10, 13, v10
    v_and_b32 v1, 7, v1
    v_lshl_add_u32 v10, v1, 4, v10
    s_lshl_b32 s23, s28, 3
    s_add_u32 s23, s23, s3
    """)
    for p in range(7):
        k(f's_add_u32 m0, s21, {8192*p}\n buffer_load_dwordx4 v6, s[8:11], s20 offen lds\n s_add_u32 s20, s20, 128')
    k('s_waitcnt vmcnt(0)')
    G.stamp(1)
    for r in range(4): k(f'global_load_dword v29, v5, s[48:49] offset:{1024*r}')
    k(tagcalc + '\n s_barrier')
    K0 = int(opt.get('zk0', 6))
    k(f"""
    s_and_b32 s35, s2, 1
    s_mul_i32 s35, s35, 3
    s_add_u32 s35, s35, s32
    s_lshl_b32 s36, s35, 11
    s_add_u32 s36, s36, {hex(WS_FZ)}
    s_and_b32 s37, s28, 3
    s_lshl_b32 s37, s37, 1
    s_lshr_b32 s38, s3, 2
    s_add_u32 s37, s37, s38
    s_add_u32 s37, s37, {K0}
    s_lshl_b32 s37, s37, 13
    s_lshl_b32 s35, s35, 19
    s_add_u32 s37, s37, s35
    s_add_u32 s38, s35, {64*8192}
    v_lshlrev_b32 v1, 6, v0
    v_lshlrev_b32 v5, 7, v0
    """)
    if opt.get('zpf'):
        k('s_cmp_ge_u32 s3, 4\n s_cbranch_scc1 L_H_nz')
        poll(k, 'hfz', 'buffer_load_dwordx4 v[32:35], v1, s[12:15], s36 offen sc1', [32, 33, 34, 35], lanes='s_mov_b32 exec_hi, 0', nap=int(opt.get('znap', 8)))
        k('L_H_nz:\n s_barrier')
        G.stamp(2)
        k(f"""
L_H_z:
        buffer_load_dword v29, v5, s[12:15], s37 offen sc1
        s_add_u32 s37, s37, {8*8192}
        s_cmp_lt_u32 s37, s38
        s_cbranch_scc1 L_H_z
        """)
    for i in range(8):
        k(f"""
        s_lshl_b32 s35, s3, 2
        s_add_u32 s35, s35, {i >> 1}
        s_and_b32 s35, s35, 7
        s_lshl_b32 s35, s35, 4
        v_xor_b32 v1, s35, v10
        v_add_u32 v1, s21, v1
        ds_read_b128 v[{64+4*i}:{67+4*i}], v1 offset:{128*i}
        """)
    for j in range(4): lo(k, 16 + 2 * j, 24 + j); hi(k, 17 + 2 * j, 24 + j)
    k('v_cmp_gt_u32 vcc, 56, v0\n s_waitcnt lgkmcnt(0)')
    for i in range(8):
        t = 96 + 8 * i
        for j in range(4): lo(k, t + 2 * j, 64 + 4 * i + j); hi(k, t + 2 * j + 1, 64 + 4 * i + j)
        for j in range(4): pk(k, 'mul', t + 2 * j, t + 2 * j, 16 + 2 * j)
        for j in range(4): cvt(k, 64 + 4 * i + j, t + 2 * j, t + 2 * j + 1)
        for j in range(4): lo(k, t + 2 * j, 64 + 4 * i + j); hi(k, t + 2 * j + 1, 64 + 4 * i + j)
        pk(k, 'add', t, t, t + 2); pk(k, 'add', t + 4, t + 4, t + 6); pk(k, 'add', t, t, t + 4)
        k(f'v_add_f32 v{t}, v{t}, v{t+1}\n v_cndmask_b32 v{32+i}, 0, v{t}, vcc')
    rowsum16(k, list(range(32, 40))); xsum4(k, list(range(32, 40)), 40)
    for i in range(1, 8): k(f'v_cmp_eq_u32 vcc, {i}, v0\n v_cndmask_b32 v32, v32, v{32+i}, vcc')
    cvt(k, 32, 32, 32); lo(k, 32, 32)
    k(f'v_mul_f32 v32, {f32hex(-L2E)}, v32\n v_exp_f32 v32, v32\n v_add_f32 v32, 1.0, v32\n v_rcp_f32 v32, v32')
    cvt(k, 32, 32, 32); lo(k, 32, 32)
    k('v_sub_f32 v33, 1.0, v32')
    cvt(k, 33, 33, 33); lo(k, 33, 33)
    k(f"""
    s_lshl_b32 s36, s23, 6
    s_add_u32 s36, s36, {hex(WS_G2)}
    s_lshl_b32 s35, s23, 2
    s_add_u32 s35, s35, {hex(WS_FG)}
    v_lshlrev_b32 v1, 3, v0
    s_mov_b64 exec, 0xff
    buffer_store_dwordx2 v[32:33], v1, s[12:15], s36 offen sc1
    s_waitcnt vmcnt(0)
    s_mov_b64 exec, 1
    buffer_store_dword v{TAG}, v1, s[12:15], s35 offen sc1
    s_mov_b64 exec, -1
    s_and_b32 s35, s28, 3
    s_lshl_b32 s35, s35, 3
    s_add_u32 s35, s35, s3
    s_mul_i32 s35, s35, {28*896}
    s_and_b32 s36, s2, 1
    s_mul_i32 s36, s36, 384
    s_add_u32 s35, s35, s36
    v_min_u32 v5, 55, v0
    v_lshrrev_b32 v1, 2, v5
    v_mul_u32_u24 v1, 896, v1
    v_and_b32 v5, 3, v5
    v_lshl_add_u32 v5, v5, 7, v1
    v_add_u32 v5, s35, v5
    global_load_dword v29, v5, s[52:53]
    v_add_u32 v5, {14*896}, v5
    global_load_dword v29, v5, s[52:53]
    """)
    if opt.get('stamp'): k('s_waitcnt vmcnt(0)')
    G.stamp(3)
    G.flush(4)
    k('L_end:\n s_endpgm')
    return k

def jitter(k, dense=False):
    out = []; n = 0
    L = k.lines
    def sccdead(i):
        for l in L[i:i + 400]:
            op = l.split()[0]
            if l.endswith(':'): continue
            if op.startswith(('s_cbranch_scc', 's_cselect', 's_addc', 's_subb')): return False
            if op.startswith(('s_cmp', 's_add_', 's_sub_', 's_lshl', 's_lshr', 's_and_', 's_or_', 's_min', 's_max', 's_xor')): return True
            if op.startswith(('s_branch', 's_cbranch', 's_setpc', 's_swappc')): return False
            if op == 's_endpgm': return True
        return True
    started = False
    for i, l in enumerate(L):
        op = l.split()[0]
        hook = op == 's_barrier' or (op == 'ds_write_b32' and 'v29' in l) or (op.startswith('buffer_store') and 'sc1' in l) \
            or (op == 'buffer_load_dwordx4' and ' lds' in l and i % 3 == 0) or (op == 's_waitcnt' and ('vmcnt' in l and i % 2 == 0 or dense and i % 3 == 0)) or l in ('L_A:', 'L_B:', 'L_helper:')
        pos = i + 1 if l.endswith(':') else i
        if l in ('L_A:', 'L_B:', 'L_helper:'): out.append(l)
        if started and hook and sccdead(pos) and not (op == 'buffer_load_dwordx4' and L[i-1].startswith('s_add_u32 m0')) and 'exec' not in L[i-1]:
            n += 1
            out += [f's_mul_i32 s97, s96, 0x41C64E6D', f's_add_u32 s96, s97, {12345 + 2 * n}', 's_lshr_b32 s97, s96, 16', f's_and_b32 s98, s97, {15 if dense else 7}', 's_cmp_lg_u32 s98, 0',
                    f's_cbranch_scc1 L_jit{n}', 's_lshr_b32 s97, s97, 3', 's_and_b32 s97, s97, 31', f'L_jitl{n}:', 's_sleep 4', 's_sub_u32 s97, s97, 1', f's_cbranch_scc0 L_jitl{n}', f'L_jit{n}:']
        if l not in ('L_A:', 'L_B:', 'L_helper:'): out.append(l)
        if l.startswith('s_load_dword s4, s[12:13], s5'):
            out += ['s_load_dwordx2 s[98:99], s[0:1], 56', 's_waitcnt lgkmcnt(0)', 's_load_dword s96, s[98:99], 0', 's_waitcnt lgkmcnt(0)',
                    's_mul_i32 s97, s2, 0x9E3779B1', 's_mul_i32 s98, s3, 0x85EBCA6B', 's_xor_b32 s96, s96, s97', 's_xor_b32 s96, s96, s98', 's_cmp_eq_u32 s29, 7']
            started = True
    k.lines = out
    print('jitter points', n)

if __name__ == '__main__':
    opt = dict(a.split('=') if '=' in a else (a, 1) for a in sys.argv[2:])
    k = gen(opt)
    if opt.get('jit'): jitter(k, opt['jit'] == '2')
    v, s = k.maxreg()
    ref = open('gated_mix__ssm_conv_s4d__mixer_gmlp__prompt.s.ref').read().split('\n')
    hdr = [l for l in ref if l.startswith(';') and '@launch' not in l and 'Override launch' not in l and 'grid=ceil' not in l]
    txt = '\n'.join(hdr) + f'\n; @launch grid=(256,1,1) block=(512,1,1) lds={LDS}\n'
    txt += '.amdgcn_target "amdgcn-amd-amdhsa--gfx950"\n.text\n' + k.text(align=(opt.get('align', '1') == '1')) + '.section .rodata,"a"\n' + desc(k.name, v, s)
    open(sys.argv[1], 'w').write(txt)
    print('vgpr', v, 'sgpr', s, 'lines', len(k.lines))
```

```python
import sys
from asmlib import *
def mk(name, mode, slot, nwg=256):
    k = K(name)
    k(f"""
    s_load_dwordx2 s[4:5], s[0:1], 120
    s_load_dwordx2 s[6:7], s[0:1], 72
    s_waitcnt lgkmcnt(0)
    s_mov_b32 s12, s4
    s_mov_b32 s13, s5
    s_mov_b32 s14, 0x10000000
    s_mov_b32 s15, 0x00020000
    s_mov_b32 s16, s6
    s_mov_b32 s17, s7
    s_mov_b32 s18, 0x800000
    s_mov_b32 s19, 0x00020000
    s_cmp_ge_u32 s2, {nwg}
    s_cbranch_scc1 L_end_{name}
    v_and_b32 v1, 63, v0
    v_lshrrev_b32 v2, 6, v0
    s_nop 0
    v_readfirstlane_b32 s20, v2
    """)
    if mode in ('dma', 'vgpr'):
        k('v_lshlrev_b32 v3, 4, v1')
        step = 1024
    elif mode in ('dma128', 'vgpr128'):
        k('v_lshrrev_b32 v3, 3, v1\n v_lshlrev_b32 v3, 12, v3\n v_and_b32 v4, 7, v1\n v_lshlrev_b32 v4, 4, v4\n v_add_u32 v3, v3, v4')
    elif mode in ('dma64', 'vgpr64'):
        k('v_lshrrev_b32 v3, 2, v1\n v_lshlrev_b32 v3, 12, v3\n v_and_b32 v4, 3, v1\n v_lshlrev_b32 v4, 4, v4\n v_add_u32 v3, v3, v4')
    elif mode in ('vgprfrag','dmafrag'):
        k('v_and_b32 v3, 15, v1\n v_lshlrev_b32 v3, 12, v3\n v_lshrrev_b32 v4, 4, v1\n v_lshlrev_b32 v4, 4, v4\n v_add_u32 v3, v3, v4')
    elif mode.startswith('dma224'):
        k('v_mul_u32_u24 v4, 4682, v1\n v_lshrrev_b32 v4, 16, v4\n v_mul_u32_u24 v5, 14, v4\n v_sub_u32 v5, v1, v5\n v_mul_u32_u24 v4, 3584, v4\n v_lshl_add_u32 v3, v5, 4, v4')
        if mode == 'dma224m': k('v_add_u32 v3, 224, v3')
        if mode == 'dma224n': k('v_add_u32 v3, 672, v3')
    elif mode.startswith('dma256'):
        k('v_lshrrev_b32 v3, 4, v1\n v_mul_u32_u24 v3, 3584, v3\n v_and_b32 v4, 15, v1\n v_lshl_add_u32 v3, v4, 4, v3')
        if mode == 'dma256o': k('v_add_u32 v3, 64, v3')
    elif mode == 'dma896':
        k('v_lshlrev_b32 v3, 4, v1\n s_mov_b32 exec_hi, 0x00ffffff')
    elif mode == 'dmaW128':
        k('v_lshrrev_b32 v3, 3, v1\n v_mul_u32_u24 v3, 3584, v3\n v_and_b32 v4, 7, v1\n v_lshl_add_u32 v3, v4, 4, v3')
    elif mode == 'dmaW64':
        k('v_lshrrev_b32 v3, 2, v1\n v_mul_u32_u24 v3, 3584, v3\n v_and_b32 v4, 3, v1\n v_lshl_add_u32 v3, v4, 4, v3')
    elif mode == 'dmaX':
        k('v_lshrrev_b32 v3, 3, v1\n v_mul_u32_u24 v3, 896, v3\n v_and_b32 v4, 7, v1\n v_lshl_add_u32 v3, v4, 4, v3')
    k('s_and_b32 s21, s2, 7\n s_lshl_b32 s21, s21, 20')
    k('s_lshl_b32 s22, s20, 14\n s_mov_b32 m0, s22')
    k('s_barrier\n s_memtime s[8:9]')
    NI = 176
    depth = 12
    for i in range(NI):
        if mode in ('dma', 'vgpr'):
            off = ((i * 4) * 1024)
            so = f's_lshl_b32 s23, s20, 10\n s_add_u32 s23, s23, s21\n s_add_u32 s23, s23, {off}'
        elif mode in ('dma128', 'vgpr128'):
            so = f's_lshl_b32 s23, s20, 15\n s_add_u32 s23, s23, s21\n s_add_u32 s23, s23, {(i%8)*4*32768 + (i//8)*128}'
        elif mode.startswith('dma224') or mode.startswith('dma256'):
            so = f's_mul_i32 s23, s20, {4*3584}\n s_add_u32 s23, s23, s21\n s_add_u32 s23, s23, {(i%16)*16*3584 + (i//16)*256}'
        elif mode == 'dmaW128':
            so = f's_mul_i32 s23, s20, {8*3584}\n s_add_u32 s23, s23, s21\n s_add_u32 s23, s23, {((i//2)%8)*32*3584 + (i%2)*128 + (i//16)*256}'
        elif mode == 'dmaW64':
            so = f's_mul_i32 s23, s20, 64\n s_add_u32 s23, s23, s21\n s_add_u32 s23, s23, {(i%16)*16*3584 + (i//16)*256}'
        elif mode == 'dmaX':
            so = f's_mul_i32 s23, s20, {8*896}\n s_add_u32 s23, s23, s21\n s_add_u32 s23, s23, {(i//7)*32*896 + (i%7)*128}'
        elif mode == 'dma896':
            so = f's_mul_i32 s23, s20, 896\n s_add_u32 s23, s23, s21\n s_add_u32 s23, s23, {i*4*896}'
        else:
            so = f's_lshl_b32 s23, s20, 16\n s_add_u32 s23, s23, s21\n s_add_u32 s23, s23, {(i%4)*4*65536 + (i//4)*64}'
        k(so)
        if mode.startswith('dma'):
            k(f's_add_u32 s24, s22, {(i % 16) * 1024}\n s_mov_b32 m0, s24\n s_nop 0')
            k('buffer_load_dwordx4 v3, s[16:19], s23 offen lds')
        else:
            r = 8 + (i % 16) * 4
            k(f'buffer_load_dwordx4 v[{r}:{r+3}], v3, s[16:19], s23 offen')
        if i >= depth:
            k(f's_waitcnt vmcnt({depth})')
    k('s_mov_b64 exec, -1\n s_waitcnt vmcnt(0)\n s_barrier\n s_memtime s[10:11]\n s_waitcnt lgkmcnt(0)')
    k(f"""
    v_mov_b32 v2, s8
    v_mov_b32 v3, s9
    v_mov_b32 v4, s10
    v_mov_b32 v5, s11
    s_lshl_b32 s3, s2, 4
    s_add_u32 s3, s3, {slot * 4096}
    v_mov_b32 v1, s3
    v_cmp_eq_u32 vcc, 0, v0
    s_and_saveexec_b64 s[24:25], vcc
    s_cbranch_execz L_end_{name}
    buffer_store_dwordx4 v[2:5], v1, s[12:15], 0 offen
L_end_{name}:
    s_endpgm
    """)
    return k
cfg = [(m, 224) for m in ('dma', 'dma', 'dma256', 'dma256', 'dmaW128', 'dmaW128', 'dmaW64', 'dmaW64', 'dma128', 'dma128', 'dmaX', 'dmaX', 'dma256', 'dmaW128')]
modes = [f'{m}:{n}' for m, n in cfg]
ks = [mk(f'k{i}{m}_kernel', m, i, n) for i, (m, n) in enumerate(cfg)]
build('mb_bw.s', [(k, 80, 32) for k in ks], [(k.name, 256, 256, 65536) for k in ks])
open('mb_bw.modes', 'w').write(' '.join(modes))
```
